```python
import torch

def _softmax(x, axis=-1):
    return torch.softmax(x, dim=axis)
def _gelu(x):
    return torch.nn.functional.gelu(x, approximate="tanh")
def _silu(x):
    return torch.nn.functional.silu(x)
def _sigmoid(x):
    return torch.sigmoid(x)
def _layernorm(x, axis=-1, eps=1e-5):
    m = x.mean(dim=axis, keepdim=True)
    v = x.var(dim=axis, keepdim=True, unbiased=False)
    return (x - m) / torch.sqrt(v + eps)
def _scatter_add(tgt, idx, src, axis=0):
    return tgt.clone().index_add_(axis, idx, src)
def _segment_sum(src, seg, n):
    out = torch.zeros((n,) + src.shape[1:], dtype=src.dtype)
    return out.index_add_(0, seg, src)
def _pad(x, pw):
    flat = tuple(v for pair in reversed(pw) for v in pair)
    return torch.nn.functional.pad(x, flat)

kernel_name = 'sequential_preLN__sliding_block_cached__glu_gated_swiglu__decode'

def setup_inputs():

    _w = (lambda a: (lambda t: t.to(torch.bfloat16) if t.is_floating_point() else t)(torch.as_tensor(a)))
    def _A_setup():
        B, Sq, D = 1, 1, 640
        Hq, Hkv, Sk, Dh = 32, 32, 32768, 192
        assert Hq % Hkv == 0, (Hq, Hkv)
        return {
            "x": _w((lambda *s: torch.randn(*s, dtype=torch.bfloat16) * 0.05)(B, Sq, D)),
            "k_cache": _w((lambda *s: torch.randn(*s, dtype=torch.bfloat16) * 1.6)(B, Hkv, Sk, Dh)),
            "v_cache": _w((lambda *s: torch.randn(*s, dtype=torch.bfloat16) * 0.8)(B, Hkv, Sk, Dh)),
            "wq": _w((lambda *s: torch.randn(*s, dtype=torch.bfloat16) * 1.6)(D, Hq * Dh) * (D ** -0.5)),
            "wo": _w((lambda *s: torch.randn(*s, dtype=torch.bfloat16) * 0.8)(Hq * Dh, D) * ((Hq * Dh) ** -0.5)),
        }
    _A_in = _A_setup()

    def _B_setup():
        B, S, D, F = 1, 1, 640, 1536
        return {
            "x": _w((lambda *s: torch.randn(*s, dtype=torch.bfloat16) * 0.05)(B, S, D)),
            "w1": _w((lambda *s: torch.randn(*s, dtype=torch.bfloat16) * 0.4)(D, F) * (2.0 / D) ** 0.5),
            "w3": _w((lambda *s: torch.randn(*s, dtype=torch.bfloat16) * 0.4)(D, F) * (2.0 / D) ** 0.5),
            "w2": _w((lambda *s: torch.randn(*s, dtype=torch.bfloat16) * 0.4)(F, D) * (2.0 / F) ** 0.5),
        }
    _B_in = _B_setup()

    return {
        "A_x": _A_in["x"],
        "A_k_cache": _A_in["k_cache"],
        "A_v_cache": _A_in["v_cache"],
        "A_wq": _A_in["wq"],
        "A_wo": _A_in["wo"],
        "B_x": _B_in["x"],
        "B_w1": _B_in["w1"],
        "B_w3": _B_in["w3"],
        "B_w2": _B_in["w2"],
    }

def reference(A_x, A_k_cache, A_v_cache, A_wq, A_wo, B_x, B_w1, B_w3, B_w2):
    def _A_ref(x, k_cache, v_cache, wq, wo):
        B, Sq, D = x.shape
        Hq, Dh = 32, 192
        Hkv, Sk = k_cache.shape[1], k_cache.shape[2]
        W = min(4096, max(256, Sk // 4))
        rep = Hq // Hkv
        q = (lambda x, *d: x.permute(*d))((x @ wq).reshape(B, Sq, Hq, Dh), 0, 2, 1, 3)
        k = (lambda x, n, axis: torch.repeat_interleave(x, n, dim=axis))(k_cache[:, :, Sk - W:, :], rep, axis=1)
        v = (lambda x, n, axis: torch.repeat_interleave(x, n, dim=axis))(v_cache[:, :, Sk - W:, :], rep, axis=1)
        scores = torch.einsum("bhqd,bhkd->bhqk", q, k) * (Dh ** -0.5)
        p = _softmax(scores, axis=-1)
        o = torch.einsum("bhqk,bhkd->bhqd", p, v)
        return (lambda x, *d: x.permute(*d))(o, 0, 2, 1, 3).reshape(B, Sq, Hq * Dh) @ wo

    def _B_ref(x, w1, w3, w2):
        gate = torch.einsum("bsd,df->bsf", x, w1)
        up = torch.einsum("bsd,df->bsf", x, w3)
        h = _silu(gate) * up
        out = torch.einsum("bsf,fd->bsd", h, w2)
        return out

    x = A_x
    h = x + _A_ref(_layernorm(x, axis=-1), A_k_cache, A_v_cache, A_wq, A_wo)
    h2 = h + _B_ref(_layernorm(h, axis=-1), B_w1, B_w3, B_w2)
    return h2
```

```python
import re

def regs_of(tok):
    tok = tok.strip()
    neg = tok.lstrip('-')
    if neg.startswith('abs(') or neg.startswith('|'):
        neg = neg.strip('|')
        if neg.startswith('abs('): neg = neg[4:-1]
    tok = neg
    m = re.fullmatch(r'([vsa])(\d+)', tok)
    if m: return [(m.group(1), int(m.group(2)))]
    m = re.fullmatch(r'([vsa])\[(\d+):(\d+)\]', tok)
    if m: return [(m.group(1), i) for i in range(int(m.group(2)), int(m.group(3)) + 1)]
    if tok == 'vcc': return [('s', 106), ('s', 107)]
    if tok == 'vcc_lo': return [('s', 106)]
    if tok == 'vcc_hi': return [('s', 107)]
    if tok == 'exec': return [('s', 126), ('s', 127)]
    if tok == 'exec_lo': return [('s', 126)]
    if tok == 'exec_hi': return [('s', 127)]
    if tok == 'm0': return [('s', 124)]
    return []

TRANS = ('v_exp_f32', 'v_log_f32', 'v_rcp_f32', 'v_rsq_f32', 'v_sqrt_f32', 'v_sin_f32', 'v_cos_f32')

class Ins:
    def __init__(self, text):
        self.text = text
        t = text.split(';')[0].strip()
        self.label = t.endswith(':')
        self.directive = t.startswith('.') or t == '' or text.lstrip().startswith(';')
        self.mn = '' if (self.label or self.directive) else t.split()[0]
        rest = t[len(self.mn):].strip() if self.mn else ''
        ops = [o.strip() for o in rest.split(',')] if rest else []
        clean = []
        for o in ops:
            first = o.split()[0] if o.split() else ''
            clean.append(first)
        self.ops = clean
        self.rest = rest
        mn = self.mn
        self.dst = []; self.src = []
        self.valu = mn.startswith('v_') and not mn.startswith('v_mfma')
        self.mfma = mn.startswith('v_mfma')
        self.dpp = ('_dpp' in mn) or ('quad_perm' in rest) or ('row_' in rest)
        self.perml = mn.startswith('v_permlane')
        self.dot = mn.startswith('v_dot')
        self.base = mn.replace('_e32', '').replace('_e64', '').replace('_dpp', '')
        self.trans = self.base in TRANS
        self.vmem = mn.startswith(('buffer_', 'global_', 'flat_'))
        self.ds = mn.startswith('ds_')
        self.salu = mn.startswith('s_')
        self.rdlane = self.base in ('v_readlane_b32', 'v_readfirstlane_b32')
        R = [regs_of(o) for o in clean]
        if self.valu or self.mfma:
            if self.perml:
                self.dst = R[0] + R[1]; self.src = R[0] + R[1]
            else:
                self.dst = list(R[0]) if R else []
                k = 1
                if self.base in ('v_add_co_u32', 'v_sub_co_u32', 'v_addc_co_u32', 'v_div_scale_f32', 'v_mad_u64_u32'):
                    self.dst += R[1]; k = 2
                for r in R[k:]: self.src += r
                if self.base in ('v_fmac_f32', 'v_dot2c_f32_bf16', 'v_pk_fmac_f16', 'v_writelane_b32'):
                    self.src += R[0]
                if self.base == 'v_cndmask_b32' and len(clean) == 3:
                    self.src += regs_of('vcc')
            if self.mfma:
                self.A = R[1]; self.B = R[2]; self.C = R[3]
        elif self.vmem or self.ds:
            isload = ('load' in mn or 'read' in mn or 'bpermute' in mn or 'swizzle' in mn or 'permute' in mn) and ' lds' not in (' ' + rest) and '_lds_' not in mn
            ret_atomic = 'atomic' in mn and ' sc0' in (' ' + rest)
            if isload or (ret_atomic and mn.startswith('global')):
                self.dst = list(R[0])
                for r in R[1:]: self.src += r
            else:
                for r in R: self.src += r
            self.lds_dma = (' lds' in (' ' + rest)) or '_lds_' in mn
            self.wide_store = ('store' in mn and ('x3' in mn or 'x4' in mn)) and self.vmem
            if self.wide_store:
                self.data = max((r for r in R if r and r[0][0] == 'v'), key=len)
        elif self.salu:
            if mn.startswith(('s_cmp', 's_cbranch', 's_branch', 's_waitcnt', 's_barrier', 's_nop', 's_endpgm', 's_setprio', 's_sleep', 's_bitcmp')):
                for r in R: self.src += r
            else:
                self.dst = list(R[0]) if R else []
                for r in R[1:]: self.src += r
                if 'saveexec' in mn: self.dst += regs_of('exec')

    def states(self):
        if self.label or self.directive: return 0
        if self.mn == 's_nop': return int(self.ops[0], 0) + 1
        return 1

def mfma_passes(mn):
    if '32x32x16' in mn or '32x32x8' in mn: return 8
    if '16x16x32' in mn or '16x16x16' in mn: return 4
    raise ValueError(mn)

def need(p, c):
    n = 0
    pd = set(p.dst); cs = set(c.src); cd = set(c.dst)
    pv = {r for r in pd if r[0] in 'va'}; ps = {r for r in pd if r[0] == 's'}
    if p.valu:
        if pv & cs:
            if c.valu and c.dpp: n = max(n, 2)
            if c.perml: n = max(n, 2)
            if c.rdlane: n = max(n, 1)
            if c.mfma: n = max(n, 2)
            if p.trans and (c.valu and not c.trans or c.mfma or c.vmem or c.ds): n = max(n, 1)
        if p.dot and (pv & (cs | cd)):
            if c.dot and c.base == p.base and not (pv & set(sum([regs_of(o) for o in c.ops[1:3]], []))):
                pass
            else:
                n = max(n, 3)
        if ps & cs:
            if c.valu or c.mfma: n = max(n, 4 if c.base in ('v_readlane_b32', 'v_writelane_b32') else 2)
            if c.vmem: n = max(n, 5)
            if c.salu: n = max(n, 1)
    if p.mfma:
        ps_ = mfma_passes(p.mn)
        t = {4: (6, 8, 8, 3), 8: (10, 12, 12, 7)}[ps_]
        if c.mfma:
            if pv & set(c.C):
                if not (set(c.C) == pv and mfma_passes(c.mn) == ps_): n = max(n, t[0])
            if pv & (set(c.A) | set(c.B)): n = max(n, t[1])
            if (pv & cd) and not (pv & set(c.C)): n = max(n, t[2])
        elif pv & (cs | cd): n = max(n, t[2])
        if c.valu and (set(p.C) & cd): n = max(n, t[3])
    if p.vmem and getattr(p, 'wide_store', False):
        if set(p.data) & cd: n = max(n, 2)
    if p.salu and ('s', 124) in pd and (c.vmem and getattr(c, 'lds_dma', False)): n = max(n, 1)
    return n

class Asm:
    def __init__(self):
        self.lines = []
    def __call__(self, s):
        for l in s.split('\n'):
            l = l.strip()
            if l: self.lines.append(l)
    def raw(self, s):
        self.lines.append(s)
    def finalize(self):
        out = []
        for l in self.lines:
            ins = Ins(l)
            if not (ins.label or ins.directive):
                dist = 0; pad = 0
                for p in reversed(out):
                    if dist >= 20: break
                    if not (p.label or p.directive):
                        k = need(p, ins)
                        if k > dist: pad = max(pad, k - dist)
                    dist += p.states()
                while pad > 0:
                    k = min(pad, 16)
                    out.append(Ins(f's_nop {k-1}'))
                    pad -= k
            out.append(ins)
        return '\n'.join((i.text if (i.label or i.directive) else '  ' + i.text) for i in out) + '\n'
```

```python
import sys, struct, os
from asmlib import Asm

NAME = "sequential_preLN__sliding_block_cached__glu_gated_swiglu__decode"
opt = dict(D1=3, D2=3, stamps=0, spin=200007, sleep=2, Vpre=3, swave=11, stsleep=24, wtrig=3, ttrig=9, tcnt=8, DWF=6,
           idtries=12, idsleep=16, forceslow=0, trap=0, fsleep=20, gdone=0, dyn=1, pref=2, prew=1, shots=4,
           w2early=0, f1trig=0, dbg=0, diagp=0, puback=0)
for a in sys.argv[2:]:
    k, v = a.split('=')
    assert k in opt, k
    opt[k] = int(v)
D1 = opt['D1']; D2 = opt['D2']; STAMPS = opt['stamps']; SPIN = opt['spin']

def f32(x): return '0x%08x' % struct.unpack('<I', struct.pack('<f', x))[0]
LOG2E = 1.4426950408889634

QP = 0x0
OP = 0x80000
ST = 0xB0000
ID = 0xB8000
DN = 0xBA000
YP = 0xC0000
EP = 0xE0000
TK = 0xE1000
PF = 0xE8000
FP = 0x100000
PB = 0x1A0000
SP = 0x200000
PA = 0x220000
PS = 0x2A0000
PH = 0x2A4000
WSN = 0x400000
FAST = 0x400000
QL = 0
QF = 384
SL = 512
CNT = 640
HRDY = CNT + 12; ROLE = CNT + 20
CL = 768
HID = 896
OL = 1024
RL = 7168
HL = 8192
WL = 8704
LDS = WL + 49152

A = Asm()
A.raw(open(os.path.join(os.path.dirname(os.path.abspath(__file__)), '..', NAME + '.s.ref')).read().split('; Override launch')[0].rstrip())
A.raw(f"; @launch grid=(256,1,1) block=(768,1,1) lds={LDS}")
A.raw('''; Generated by gen/gen12.py (hand-written generator).  One persistent launch, 256 workgroups x 12 waves, 1 per CU.
;  s_sleep is used only as back-off inside / ahead of polling loops.''')
A.raw('.amdgcn_target "amdgcn-amd-amdhsa--gfx950"')
A.raw('.text')
A.raw(f'.globl {NAME}_kernel')
A.raw('.p2align 8')
A.raw(f'.type {NAME}_kernel,@function')
A.raw(f'{NAME}_kernel:')

def stamp(i):
    if STAMPS: A(f's_memrealtime s[{80+2*i}:{81+2*i}]')
def write_stamps(base_idx):
    if not STAMPS: return
    A('s_waitcnt lgkmcnt(0)')
    A('s_mov_b64 exec, 1')
    A('s_lshl3_add_u32 s68, s5, s4')
    A('s_lshl_b32 s68, s68, 8')
    A(f's_add_u32 s68, s68, {SP + base_idx*8}')
    A('v_mov_b32 v1, 0')
    for q in range(4):
        for e in range(4): A(f'v_mov_b32 v{4+e}, s{80+4*q+e}')
        A(f'buffer_store_dwordx4 v[4:7], v1, s[24:27], s68 offen offset:{16*q}')
        A('s_nop 2')
def stamp_val(idx, lo, hi, plus_wave=False):
    if not STAMPS: return
    A('s_lshl3_add_u32 s98, s5, s4')
    A('s_lshl_b32 s98, s98, 8')
    A(f's_add_u32 s98, s98, {SP + idx*8}')
    if plus_wave: A('s_lshl3_add_u32 s98, s3, s98')
    A('s_waitcnt lgkmcnt(0)')
    A(f'v_mov_b32 v120, s{lo}\nv_mov_b32 v121, s{hi}\nv_mov_b32 v122, 0')
    A('s_mov_b64 exec, 1')
    A('buffer_store_dwordx2 v[120:121], v122, s[24:27], s98 offen')
    A('s_mov_b64 exec, -1')
    A('s_nop 1')
def stamp_now(idx, plus_wave=False):
    if not STAMPS: return
    A('s_memrealtime s[96:97]')
    stamp_val(idx, 96, 97, plus_wave)

def srd(d, ptr, nbytes):
    A(f's_mov_b32 s{d}, s{ptr}')
    A(f's_mov_b32 s{d+1}, s{ptr+1}')
    A(f's_mov_b32 s{d+2}, {nbytes}')
    A(f's_mov_b32 s{d+3}, 0x20000')
def ws_srds():
    srd(24, 58, WSN)
    A(f's_add_u32 s32, s58, {FAST}')
    A('s_addc_u32 s33, s59, 0')
    A(f's_mov_b32 s34, {WSN}')
    A('s_mov_b32 s35, 0x20000')
    A('s_lshl3_add_u32 s71, s6, s7')

ALL = (1 << 64) - 1
def setexec(mask):
    if mask == ALL: A('s_mov_b64 exec, -1'); return
    A(f's_mov_b32 exec_lo, 0x{mask & 0xffffffff:x}')
    A(f's_mov_b32 exec_hi, 0x{mask >> 32:x}')

DPPM = 'row_mask:0xf bank_mask:0xf'
def allreduce8(op, regs):
    for pat in ('quad_perm:[1,0,3,2]', 'quad_perm:[2,3,0,1]', 'row_half_mirror'):
        for r in regs: A(f'{op}_dpp v{r}, v{r}, v{r} {pat} {DPPM}')
def allreduce16(op, regs):
    allreduce8(op, regs)
    for r in regs: A(f'{op}_dpp v{r}, v{r}, v{r} row_mirror {DPPM}')
def swapreduce(sw, op, regs, tmps):
    for r, t in zip(regs, tmps): A(f'v_mov_b32 v{t}, v{r}')
    for r, t in zip(regs, tmps): A(f'{sw} v{r}, v{t}')
    for r, t in zip(regs, tmps): A(f'{op} v{r}, v{r}, v{t}')
S16 = 'v_permlane16_swap_b32'; S32 = 'v_permlane32_swap_b32'
def allreduce_rows(op, regs, tmps):
    swapreduce(S16, op, regs, tmps); swapreduce(S32, op, regs, tmps)
def allreduce64(op, regs, tmps):
    allreduce16(op, regs); allreduce_rows(op, regs, tmps)
def bf16r(d, s):
    A(f'v_cvt_pk_bf16_f32 v{d}, v{s}, v{s}')
    A(f'v_lshlrev_b32 v{d}, 16, v{d}')
def mktag():
    A('''
s_waitcnt lgkmcnt(0)
s_mul_i32 s30, s28, 0x2c9277b5
s_add_u32 s30, s30, 0xac564b05
s_mul_i32 s31, s29, 0x0019660d
s_add_u32 s31, s31, 0x3c6ef35f
''')
lbl = [0]
def newlabel(p):
    lbl[0] += 1
    return f'L_{p}_{lbl[0]}'

def tagcheck(pairs):
    A(f'v_cmp_ne_u64 vcc, s[30:31], v[{pairs[0]}:{pairs[0]+1}]')
    tm = [(20, 21), (22, 23)]
    pend = []
    for i, p in enumerate(pairs[1:]):
        t = tm[i % 2]
        if len(pend) == 2:
            q = pend.pop(0); A(f's_or_b64 vcc, vcc, s[{q[0]}:{q[1]}]')
        A(f'v_cmp_ne_u64 s[{t[0]}:{t[1]}], s[30:31], v[{p}:{p+1}]')
        pend.append(t)
    for q in pend: A(f's_or_b64 vcc, vcc, s[{q[0]}:{q[1]}]')

def spin(body, sleep=0, retry=None, entry=None):
    top = newlabel('spin'); done = newlabel('sdone')
    A(f's_mov_b32 s70, {SPIN}')
    if entry: A(f's_branch {entry}')
    A(f'{top}:')
    body()
    A('s_nop 0')
    A(f's_cbranch_vccz {done}')
    if sleep: A(f's_sleep {sleep}')
    if retry: retry()
    A('s_sub_u32 s70, s70, 1')
    A(f's_cbranch_scc0 {top}')
    if opt['trap']:
        A(f's_lshl_b32 s99, s2, 8\ns_or_b32 s99, s99, s3\ns_lshl_b32 s99, s99, 8\ns_or_b32 s99, s99, {lbl[0] & 255}')
        A(f'v_mov_b32 v166, {4 * (lbl[0] % 64)}\nv_mov_b32 v167, s99')
        A('global_store_dword v166, v167, s[56:57]')
    A(f'{done}:')
def spin2(body, sleep=0, retry=None, local_only=False):
    A(f's_mov_b32 s16, s32\ns_mov_b32 s17, s33\ns_mov_b32 s18, {WSN}\ns_mov_b32 s19, 0x20000')
    def rt():
        if retry: retry()
        A('s_and_b32 s99, s70, 7')
        if local_only:
            A('s_cmp_eq_u32 s46, 1')
            A('s_cselect_b32 s99, 1, s99')
            A('s_cmp_lg_u32 s99, 0')
        A('s_cselect_b32 s16, s32, s24')
        A('s_cselect_b32 s17, s33, s25')
    spin(body, sleep, rt)

def lds_wait_ge(off, n, sleep, dst=4, adr=1):
    A(f'v_mov_b32 v{adr}, 0')
    def body():
        A(f'ds_read_b32 v{dst}, v{adr} offset:{off}')
        A('s_waitcnt lgkmcnt(0)')
        A(f'v_cmp_gt_u32 vcc, {n}, v{dst}')
    spin(body, sleep=sleep)
def get_mode(dst=4, adr=1):
    lds_wait_ge(CNT + 8, 1, 2, dst, adr)
    A(f'v_readfirstlane_b32 s46, v{dst}')
def get_role(sleep, dst=4, adr=1):
    lds_wait_ge(ROLE, 1, sleep, dst, adr)
    A(f'v_readfirstlane_b32 s5, v{dst}')
    A('s_bfe_u32 s47, s5, 0x80008')
    A('s_and_b32 s5, s5, 31')

outline = []
def publish(stores):
    def emit(srdn, fl, AA):
        cur = ALL
        for m, line in stores:
            m = ALL if m is None else m
            if m != cur:
                if m == ALL: AA('s_mov_b64 exec, -1')
                else: AA(f's_mov_b32 exec_lo, 0x{m & 0xffffffff:x}\ns_mov_b32 exec_hi, 0x{m >> 32:x}')
                cur = m
            AA(line.replace('@', f's[{srdn}:{srdn+3}]') + fl)
        if cur != ALL: AA('s_mov_b64 exec, -1')
    if not opt['forceslow']: emit(32, '', A)
    slow = newlabel('slow'); back = newlabel('back')
    A('s_cmp_lg_u32 s46, 1')
    A(f's_cbranch_scc1 {slow}')
    A(f'{back}:')
    blk = [f'{slow}:']
    emit(24, ' sc1', lambda t: blk.append(t))
    blk.append('s_nop 1')
    blk.append(f's_branch {back}')
    outline.append('\n'.join(blk))

A("""
s_cmp_ge_u32 s2, 256
s_cbranch_scc1 L_end
s_load_dwordx2 s[8:9], s[0:1], 8
s_load_dwordx16 s[36:51], s[0:1], 0
s_load_dwordx8 s[52:59], s[0:1], 64
""")
stamp(0)
if opt['dbg']: A('s_memrealtime s[80:81]')
A(f"""
v_lshrrev_b32 v1, 6, v0
v_and_b32 v0, 63, v0
v_readfirstlane_b32 s3, v1
s_and_b32 s4, s2, 7
s_lshr_b32 s79, s2, 6
s_lshl2_add_u32 s6, s4, s79
s_bfe_u32 s7, s2, 0x30003
s_cmp_lg_u32 s3, 3
s_cbranch_scc1 L_nocpf0
s_getpc_b64 s[20:21]
L_pc0:
v_lshlrev_b32 v8, 7, v0
v_add_u32 v9, 8192, v8
v_min_u32 v9, L_codeend-L_pc0-4, v9
global_load_dword v10, v8, s[20:21]
global_load_dword v11, v9, s[20:21]
L_nocpf0:
v_lshlrev_b32 v1, 3, v0
v_mov_b32 v4, 0
v_mov_b32 v5, 0
ds_write_b64 v1, v[4:5] offset:{QF}
s_cmp_lt_u32 s3, 4
s_cbranch_scc1 L_helper
""")

GST = 3072 * 64
A("""
s_sub_u32 s73, s3, 4
s_lshl3_add_u32 s68, s7, s73
s_mul_i32 s60, s6, 12582912
s_mul_i32 s68, s68, 3072
s_add_u32 s60, s60, s68
s_add_u32 s60, s60, 11010048
v_lshrrev_b32 v2, 3, v0
v_mul_u32_u24 v2, 384, v2
v_and_b32 v3, 7, v0
v_lshlrev_b32 v3, 4, v3
v_add_u32 v1, v2, v3
s_mov_b32 s10, 402653184
s_mov_b32 s11, 0x20000
""")
GOFF = [60, 61, 62, 63, 64, 65, 66, 67]
A('s_waitcnt lgkmcnt(0)')

QR = 4; KR = 16
def stream(G, D1, D2, Vpre):
    SC = 168 - G
    VR = KR + 12 * G
    nV1 = min((SC - VR) // 12, G)
    ACC = KR + 12 * (G - 2)
    T = ACC
    half = (G + 1) // 2
    st = dict(n=0)
    def vreg(g): return VR + 12 * g if g < nV1 else KR + 12 * (g - nV1)
    def issue_load(kind, g, j, depth):
        if depth and st['n'] >= depth: A(f's_waitcnt vmcnt({depth-1})')
        r = (KR + 12 * g + 4 * j) if kind == 'K' else vreg(g) + 4 * j
        s = 8 if kind == 'K' else 12
        A(f'buffer_load_dwordx4 v[{r}:{r+3}], v1, s[{s}:{s+3}], s{GOFF[g]} offen offset:{128*j} nt')
        st['n'] += 1
    for g in range(G):
        for j in range(3):
            issue_load('K', g, j, D1)
            if j == 2 and g + 1 < G:
                A(f's_add_u32 s{GOFF[g+1]}, s{GOFF[g]}, {GST}')
            if st['n'] == min(D1, 3): A('s_barrier')
            if g == 1 and j == 0:
                A(f's_load_dwordx2 s[28:29], s[58:59], {EP}')
                ws_srds(); srd(12, 40, 402653184)
    stamp(1)
    nv = 0; NV = 3 * G
    for n in range(min(Vpre, 3 * nV1)):
        issue_load('V', nv // 3, nv % 3, D2); nv += 1
    stamp(2)
    mktag()
    A('v_and_b32 v2, 3, v0\nv_min_u32 v2, 2, v2\nv_lshlrev_b32 v2, 3, v2')
    def body():
        A(f'ds_read_b32 v{QR}, v2 offset:{QF}')
        A('s_waitcnt lgkmcnt(0)')
        A(f'v_cmp_eq_u32 vcc, 0, v{QR}')
    spin(body, sleep=1)
    stamp(3)
    A(f'''
ds_read_b128 v[{QR}:{QR+3}], v3 offset:{QL}
ds_read_b128 v[{QR+4}:{QR+7}], v3 offset:{QL+128}
ds_read_b128 v[{QR+8}:{QR+11}], v3 offset:{QL+256}
''')
    for g in range(G): A(f'v_mov_b32 v{SC+g}, 0')
    A(f's_waitcnt vmcnt({nv}) lgkmcnt(0)')
    for gs in (range(half), range(half, G)):
        for i in range(12):
            for g in gs:
                A(f'v_dot2c_f32_bf16 v{SC+g}, v{KR+12*g+i}, v{QR+i}')
    allreduce8('v_add_f32', [SC + g for g in range(G)])
    A(f's_mov_b32 s68, {f32(192 ** -0.5)}')
    A('v_mov_b32 v2, 0')
    for g in range(G): A(f'v_cvt_pk_bf16_f32 v{SC+g}, v2, v{SC+g}')
    for g in range(G): A(f'v_mul_f32 v{SC+g}, s68, v{SC+g}')
    for g in range(G): A(f'v_cvt_pk_bf16_f32 v{SC+g}, v2, v{SC+g}')
    A(f'v_max_f32 v4, v{SC}, v{SC+1}')
    g = 2
    while g < G:
        if g + 1 < G: A(f'v_max3_f32 v4, v4, v{SC+g}, v{SC+g+1}'); g += 2
        else: A(f'v_max_f32 v4, v4, v{SC+g}'); g += 1
    A(f'v_max_f32_dpp v4, v4, v4 row_ror:8 {DPPM}')
    allreduce_rows('v_max_f32', [4], [T])
    A(f's_mov_b32 s68, {f32(LOG2E)}')
    for g in range(G): A(f'v_sub_f32 v{SC+g}, v{SC+g}, v4')
    for g in range(G): A(f'v_mul_f32 v{SC+g}, s68, v{SC+g}')
    for g in range(G): A(f'v_exp_f32 v{SC+g}, v{SC+g}')
    A(f'v_add_f32 v5, v{SC}, v{SC+1}')
    for g in range(2, G): A(f'v_add_f32 v5, v5, v{SC+g}')
    A(f'v_add_f32_dpp v5, v5, v5 row_ror:8 {DPPM}')
    allreduce_rows('v_add_f32', [5], [T])
    A(f'''
s_lshl_b32 s69, s73, 4
v_mov_b32 v{T}, s69
v_mov_b32 v6, 1
v_mov_b32 v7, 1
ds_write_b128 v{T}, v[4:7] offset:{SL}
''')
    stamp(4)
    for g in range(G): A(f'v_cvt_pk_bf16_f32 v{SC+g}, v{SC+g}, v2')
    for i in range(24): A(f'v_mov_b32 v{ACC+i}, 0')
    A('''
v_and_b32 v8, 7, v0
v_lshlrev_b32 v8, 5, v8
v_lshrrev_b32 v9, 4, v0
v_lshl_add_u32 v8, v9, 3, v8
s_mul_i32 s69, s73, 768
v_add_u32 v8, s69, v8
v_mov_b32 v11, 1
''')
    def pv(idx):
        g, j = divmod(idx, 3)
        r = vreg(g) + 4 * j
        if j == 0: A(f'v_lshlrev_b32 v10, 16, v{SC+g}')
        for e in range(4):
            A(f'v_dot2c_f32_bf16 v{ACC+8*j+2*e}, v{r+e}, v{SC+g}')
            A(f'v_dot2c_f32_bf16 v{ACC+8*j+2*e+1}, v{r+e}, v10')
    done_idx = -1; pv_next = 0
    assert nv < NV - opt['ttrig'] <= NV - opt['wtrig']
    while nv < NV:
        issue_load('V', nv // 3, nv % 3, D2)
        done_idx = nv - D2
        nv += 1
        if nv == NV - opt['ttrig']:
            A(f's_mov_b64 exec, 1\nds_add_u32 v2, v11 offset:{CNT+16}\ns_mov_b64 exec, -1')
        if nv == NV - opt['wtrig']:
            A(f's_mov_b64 exec, 1\nds_add_u32 v2, v11 offset:{CNT+4}\ns_mov_b64 exec, -1')
        cnt = 0
        while pv_next <= done_idx and cnt < 2:
            pv(pv_next); pv_next += 1; cnt += 1
    def scale_factor():
        def body():
            A(f'ds_read_b128 v[12:15], v3 offset:{SL}')
            A('s_waitcnt lgkmcnt(0)')
            A('v_cmp_eq_u32 vcc, 0, v15')
        spin(body, sleep=1)
        allreduce8('v_max_f32', [12])
        A('v_sub_f32 v9, v4, v12\nv_mul_f32 v9, s68, v9\nv_exp_f32 v9, v9')
        get_mode(dst=13, adr=2)
        A(f'''
v_min_u32 v12, 47, v0
v_lshlrev_b32 v13, 7, v12
v_lshlrev_b32 v12, 4, v12
s_mul_i32 s74, s6, 6144
s_lshl4_add_u32 s74, s7, s74
s_add_u32 s74, s74, {OP}
s_mov_b32 s22, 0xaaaaaaaa
s_mov_b32 s23, 0xaaaaaaaa
v_mov_b32 v14, s30
v_mov_b32 v15, s31
''')
    def reduce_j(js):
        for j in js:
            for e in range(4): A(f'{S32} v{ACC+8*j+e}, v{ACC+8*j+e+4}')
        for j in js:
            for e in range(4): A(f'v_add_f32 v{ACC+8*j+e}, v{ACC+8*j+e}, v{ACC+8*j+e+4}')
        for j in js:
            for e in range(2): A(f'{S16} v{ACC+8*j+e}, v{ACC+8*j+e+2}')
        for j in js:
            for e in range(2): A(f'v_add_f32 v{ACC+8*j+e}, v{ACC+8*j+e}, v{ACC+8*j+e+2}')
        for j in js:
            for e in range(2): A(f'v_add_f32_dpp v{ACC+8*j+e}, v{ACC+8*j+e}, v{ACC+8*j+e} row_ror:8 {DPPM}')
        for j in js:
            for e in range(2): A(f'v_mul_f32 v{ACC+8*j+e}, v9, v{ACC+8*j+e}')
            A(f'ds_write_b64 v8, v[{ACC+8*j}:{ACC+8*j+1}] offset:{OL+256*j}')
    fd = False
    while pv_next < NV:
        if pv_next >= NV - 3 and not fd:
            scale_factor(); fd = True
        if pv_next > done_idx:
            A(f's_waitcnt vmcnt({NV - 1 - pv_next})')
            done_idx = pv_next
        pv(pv_next); pv_next += 1
        if pv_next > NV - 3: reduce_j([(pv_next - 1) % 3])
    stamp(5)

stream(8, D1, D2, opt['Vpre'])
A(f'''
s_mov_b64 exec, 1
ds_add_rtn_u32 v10, v2, v11 offset:{CNT}
s_waitcnt lgkmcnt(0)
v_readfirstlane_b32 s68, v10
s_mov_b64 exec, -1
s_cmp_lg_u32 s68, 7
s_cbranch_scc1 L_nopub
''')
for w in range(8): A(f'ds_read_b128 v[{16+4*w}:{19+4*w}], v12 offset:{OL+768*w}')
for w in range(0, 8, 2):
    A(f's_waitcnt lgkmcnt({6-w})')
    for e in range(4): A(f'v_add_f32 v{16+4*w+e}, v{16+4*w+e}, v{20+4*w+e}')
    if w == 2 or w == 6:
        for e in range(4): A(f'v_add_f32 v{8+4*w+e}, v{8+4*w+e}, v{16+4*w+e}')
for e in range(4): A(f'v_add_f32 v{4+e}, v{16+e}, v{32+e}')
A('''
v_cvt_pk_bf16_f32 v8, v4, v5
v_cvt_pk_bf16_f32 v9, v6, v7
v_cndmask_b32 v4, v8, v14, s[22:23]
v_cndmask_b32 v5, v9, v15, s[22:23]
v_cndmask_b32 v6, v14, v8, s[22:23]
v_cndmask_b32 v7, v15, v9, s[22:23]
''')
publish([((1 << 48) - 1, 'buffer_store_dwordx4 v[4:7], v13, @, s74 offen')])
A(f'ds_write_b32 v2, v11 offset:{CNT+28}')
if opt['gdone']:
    A(f'''
s_lshl_b32 s68, s4, 9
s_lshr_b32 s69, s2, 3
s_lshl4_add_u32 s68, s69, s68
s_add_u32 s68, s68, {DN}
s_mov_b64 exec, 1
buffer_store_dwordx4 v[4:7], v12, s[32:35], s68 offen
s_mov_b64 exec, -1
''')
if STAMPS:
    if opt['puback']: A('s_waitcnt vmcnt(0)')
    A('s_memrealtime s[96:97]')
    get_role(1, dst=16, adr=17)
    stamp_val(16, 96, 97)
A('L_nopub:')
stamp(6)
get_role(1, dst=16, adr=17)
A('''
s_cmp_lt_u32 s5, 20
s_cbranch_scc1 L_notf1
s_cmp_lt_u32 s3, 9
s_cbranch_scc1 L_f1
s_branch L_stream_exit
L_notf1:
s_cmp_gt_u32 s5, 11
s_cbranch_scc1 L_stream_exit
s_cmp_gt_u32 s3, 6
s_cbranch_scc1 L_f2
s_endpgm
L_stream_exit:
''')
if STAMPS:
    A(f"s_cmp_eq_u32 s3, {opt['swave']}")
    A('s_cbranch_scc0 L_end')
    stamp(7)
    write_stamps(8)
A('s_endpgm')

A('L_helper:')
A('s_setprio 3')
A('s_cmp_eq_u32 s3, 3')
A('s_cbranch_scc1 L_ids')
A('''
v_lshlrev_b32 v1, 2, v0
v_lshrrev_b32 v2, 3, v0
s_mul_i32 s68, s7, 80
v_add_u32 v3, s68, v2
v_lshlrev_b32 v3, 1, v3
v_mul_u32_u24 v2, 12288, v2
v_and_b32 v7, 7, v0
v_lshl_add_u32 v2, v7, 4, v2
s_mul_i32 s68, s68, 12288
s_mul_i32 s69, s6, 384
s_add_u32 s68, s68, s69
s_lshl_b32 s69, s3, 7
s_add_u32 s68, s68, s69
''')
XS = 64; XU = 70; XR = 8; WQ = 24; QA = 80
A('s_waitcnt lgkmcnt(0)')
A('s_barrier')
srd(8, 42, 640 * 6144 * 2)
for i in range(5): A(f'global_load_dword v{XS+i}, v1, s[36:37] offset:{256*i}')
for r in range(10): A(f'global_load_ushort v{XR+r}, v3, s[36:37] offset:{16*r}')
for r in range(10):
    A(f'buffer_load_dwordx4 v[{WQ+4*r}:{WQ+4*r+3}], v2, s[8:11], s68 offen nt')
    if r < 9: A('s_add_u32 s68, s68, 98304')
A(f's_load_dwordx2 s[28:29], s[58:59], {EP}')
A('s_mov_b32 s69, 0xffff0000')
ws_srds()
mktag()
A('s_waitcnt vmcnt(20)')
for i in range(5):
    A(f'v_lshlrev_b32 v{XU+2*i}, 16, v{XS+i}')
    A(f'v_and_b32 v{XU+1+2*i}, s69, v{XS+i}')
A(f'''
v_add_f32 v4, v{XU}, v{XU+1}
v_add_f32 v5, v{XU+2}, v{XU+3}
v_add_f32 v6, v{XU+4}, v{XU+5}
v_add_f32 v7, v{XU+6}, v{XU+7}
v_add_f32 v4, v4, v5
v_add_f32 v6, v6, v7
v_add_f32 v5, v{XU+8}, v{XU+9}
v_add_f32 v4, v4, v6
v_add_f32 v4, v4, v5
''')
allreduce64('v_add_f32', [4], [5])
A(f'v_mul_f32 v4, {f32(1.0/640)}, v4')
for i in range(10): A(f'v_sub_f32 v{XU+i}, v{XU+i}, v4')
A(f'v_mul_f32 v5, v{XU}, v{XU}')
for i in range(1, 10): A(f'v_fmac_f32 v5, v{XU+i}, v{XU+i}')
allreduce64('v_add_f32', [5], [6])
A(f'v_mul_f32 v5, {f32(1.0/640)}, v5')
bf16r(4, 4); bf16r(5, 5)
A(f'v_add_f32 v5, {f32(1e-5)}, v5')
bf16r(5, 5)
A('v_sqrt_f32 v5, v5')
bf16r(5, 5)
A('v_rcp_f32 v5, v5')
A('v_mov_b32 v6, 0')
A('s_waitcnt vmcnt(10)')
for r in range(10): A(f'v_lshlrev_b32 v{XR+r}, 16, v{XR+r}')
for r in range(10): A(f'v_sub_f32 v{XR+r}, v{XR+r}, v4')
for r in range(10): A(f'v_cvt_pk_bf16_f32 v{XR+r}, v6, v{XR+r}')
for r in range(10): A(f'v_mul_f32 v{XR+r}, v{XR+r}, v5')
for r in range(10):
    A(f'v_cvt_pk_bf16_f32 v{XU+r}, v6, v{XR+r}')
    A(f'v_cvt_pk_bf16_f32 v{XR+r}, v{XR+r}, v6')
for e in range(8): A(f'v_mov_b32 v{QA+e}, 0')
A('''
v_and_b32 v90, 7, v0
v_lshrrev_b32 v6, 4, v0
v_lshl_add_u32 v90, v90, 2, v6
v_lshlrev_b32 v90, 4, v90
s_lshl_b32 s64, s71, 11
s_lshl_b32 s69, s3, 9
s_add_u32 s64, s64, s69
''')
for r in range(10):
    A(f's_waitcnt vmcnt({9-r})')
    for e in range(4):
        A(f'v_dot2c_f32_bf16 v{QA+2*e}, v{WQ+4*r+e}, v{XR+r}')
        A(f'v_dot2c_f32_bf16 v{QA+2*e+1}, v{WQ+4*r+e}, v{XU+r}')
if STAMPS: A('s_lshr_b32 s82, s2, 3\ns_add_u32 s82, s80, s82\ns_addc_u32 s83, s81, 0')
for e in range(4): A(f'{S32} v{QA+e}, v{QA+e+4}')
for e in range(4): A(f'v_add_f32 v{QA+e}, v{QA+e}, v{QA+e+4}')
for e in range(2): A(f'{S16} v{QA+e}, v{QA+e+2}')
for e in range(2): A(f'v_add_f32 v{QA+e}, v{QA+e}, v{QA+e+2}')
for e in range(2): A(f'v_add_f32_dpp v{QA+e}, v{QA+e}, v{QA+e} row_ror:8 {DPPM}')
A(f'v_mov_b32 v{QA+2}, s30\nv_mov_b32 v{QA+3}, s31')
QM = 0x00ff00ff00ff00ff
if not opt['forceslow']:
    setexec(QM)
    A(f'buffer_store_dwordx4 v[{QA}:{QA+3}], v90, s[32:35], s64 offen offset:{QP}')
    setexec(ALL)
A('''
v_and_b32 v3, 31, v0
v_lshrrev_b32 v2, 5, v0
v_lshlrev_b32 v2, 11, v2
v_lshl_add_u32 v2, v3, 4, v2
s_lshl_b32 s68, s6, 14
s_add_u32 s60, s68, s69
s_add_u32 s61, s60, 4096
s_add_u32 s62, s60, 8192
s_add_u32 s63, s60, 12288
v_lshlrev_b32 v3, 2, v3
s_lshl_b32 s69, s3, 7
v_add_u32 v3, s69, v3
v_mov_b32 v1, 0
s_mov_b32 s65, 0
''')
def q_lazy():
    skip = newlabel('qlazy')
    A(f'''
ds_read_b32 v4, v1 offset:{CNT+8}
s_waitcnt lgkmcnt(0)
v_readfirstlane_b32 s46, v4
s_sub_u32 s68, s46, s65
s_cmp_lg_u32 s68, 2
s_cbranch_scc1 {skip}
''')
    setexec(QM)
    A(f'buffer_store_dwordx4 v[{QA}:{QA+3}], v90, s[24:27], s64 offen offset:{QP} sc1')
    setexec(ALL)
    A(f's_mov_b32 s65, 1\n{skip}:')
def body():
    for n in range(4):
        A(f'buffer_load_dwordx4 v[{8+4*n}:{11+4*n}], v2, s[16:19], s{60+n} offen offset:{QP} sc1')
    A('s_waitcnt vmcnt(0)')
    tagcheck([10, 14, 18, 22])
spin2(body, sleep=opt['sleep'], retry=q_lazy)
stamp(2)
A(f'''
v_add_f32 v8, v8, v12
v_add_f32 v9, v9, v13
v_add_f32 v16, v16, v20
v_add_f32 v17, v17, v21
v_add_f32 v8, v8, v16
v_add_f32 v9, v9, v17
''')
swapreduce(S32, 'v_add_f32', [8, 9], [10, 11])
A(f'''
v_cvt_pk_bf16_f32 v8, v8, v9
ds_write_b32 v3, v8 offset:{QL}
s_lshl_b32 s69, s3, 3
v_mov_b32 v4, s69
v_mov_b32 v6, 1
s_waitcnt lgkmcnt(0)
ds_write_b32 v4, v6 offset:{QF}
''')
get_mode()
q_lazy()
A('s_branch L_stats')
A('L_ids:')
A(f'''
s_waitcnt lgkmcnt(0)
s_barrier
s_getreg_b32 s64, hwreg(HW_REG_XCC_ID)
s_load_dwordx2 s[28:29], s[58:59], {EP}
''')
ws_srds()
mktag()
A(f'''
s_and_b32 s64, s64, 15
v_mov_b32 v4, s30
v_mov_b32 v5, s31
v_mov_b32 v6, s64
v_mov_b32 v7, s64
s_lshl_b32 s68, s4, 9
s_add_u32 s68, s68, {ID}
s_lshr_b32 s65, s2, 3
s_lshl_b32 s69, s65, 4
v_mov_b32 v1, s69
s_mov_b64 exec, 1
buffer_store_dwordx4 v[4:7], v1, s[32:35], s68 offen
s_mov_b64 exec, -1
s_mul_i32 s66, s4, 2304
s_add_u32 s66, s66, {TK}
''')
A(f'''
s_cmp_lg_u32 s65, 0
s_cbranch_scc1 L_noinit
v_mov_b32 v12, 0
v_mov_b32 v13, s30
s_mov_b64 exec, 1
buffer_store_dwordx2 v[12:13], v12, s[24:27], s66 offen sc1
s_mov_b64 exec, -1
''')
if opt['pref'] == 2 and opt['prew']:
    A(f'''
v_lshlrev_b32 v12, 8, v0
s_lshl_b32 s69, s4, 15
s_add_u32 s69, s69, {PB}
buffer_store_dword v13, v12, s[24:27], s69 offen sc1
''')
A(f'''
L_noinit:
v_and_b32 v1, 31, v0
v_lshlrev_b32 v1, 4, v1
s_mov_b32 s70, {opt['idtries']}
s_mov_b32 s46, 2
L_idpoll:
s_sleep {opt['idsleep']}
buffer_load_dwordx4 v[8:11], v1, s[32:35], s68 offen sc1
s_waitcnt vmcnt(0)
v_cmp_ne_u64 vcc, s[30:31], v[8:9]
s_nop 0
s_cbranch_vccz L_iddone
s_sub_u32 s70, s70, 1
s_cbranch_scc0 L_idpoll
s_branch L_idset
L_iddone:
v_cmp_ne_u32 vcc, s64, v10
s_nop 0
s_cbranch_vccnz L_idset
s_mov_b32 s46, {2 if opt['forceslow'] else 1}
L_idset:
v_mov_b32 v1, 0
v_mov_b32 v4, s46
ds_write_b32 v1, v4 offset:{CNT+8}
''')
stamp(2)
A('s_cmp_lg_u32 s65, 0\ns_cbranch_scc1 L_stats')
if opt['pref'] == 2:
    A(f'''
s_lshl_b32 s69, s4, 15
s_add_u32 s69, s69, {PB}
s_add_u32 s22, s58, s69
s_addc_u32 s23, s59, 0
s_not_b32 s20, s30
s_mov_b32 s21, 0
s_waitcnt lgkmcnt(0)
''')
    A('s_mov_b32 s8, -1\ns_mov_b32 s9, -1\ns_memtime s[12:13]')
    if opt['diagp']: A('v_mov_b32 v20, 0')
    for k in range(2 * opt['shots']):
        c = (k ^ (k >> 1)) & 1
        i = (k >> 1) * 5 & 31
        a, b = (12, 14) if k % 2 == 0 else (14, 12)
        A('s_waitcnt lgkmcnt(0)')
        A(f's_load_dword s10, s[22:23], {c * 8192 + i * 256}')
        A('s_waitcnt lgkmcnt(0)')
        A(f's_memtime s[{b}:{b+1}]')
        A('s_waitcnt lgkmcnt(0)')
        A(f's_sub_u32 s11, s{b}, s{a}')
        A(f's_min_u32 s{8+c}, s{8+c}, s11')
        if opt['diagp']: A(f'v_writelane_b32 v20, s11, {c * 16 + (k >> 1)}')
    if opt['diagp']:
        A(f'v_writelane_b32 v20, s64, 63\nv_lshlrev_b32 v6, 2, v0\ns_lshl_b32 s69, s4, 8\ns_add_u32 s69, s69, {SP + 0x10000}\nbuffer_store_dword v20, v6, s[24:27], s69 offen')
    A('s_sub_u32 s21, s8, s9')
    A('s_cmp_gt_i32 s21, 0\ns_cselect_b32 s21, 1, 0')
else:
    A(f"s_lshr_b32 s21, s64, 2\ns_xor_b32 s21, s21, {opt['pref']}\ns_and_b32 s21, s21, 1")
A(f'''
v_mov_b32 v4, s21
v_mov_b32 v5, 0
v_mov_b32 v6, s30
v_mov_b32 v7, s31
s_lshl_b32 s69, s4, 4
s_add_u32 s69, s69, {PF}
s_mov_b64 exec, 1
buffer_store_dwordx4 v[4:7], v1, s[24:27], s69 offen sc1
s_mov_b64 exec, -1
''')

A('L_stats:')
A('v_and_b32 v1, 7, v0\nv_lshlrev_b32 v1, 4, v1')
def body():
    A(f'ds_read_b128 v[4:7], v1 offset:{SL}')
    A('s_waitcnt lgkmcnt(0)')
    A('v_cmp_eq_u32 vcc, 0, v7')
spin(body, sleep=4)
A('s_cmp_lg_u32 s3, 3')
A('s_cbranch_scc1 L_nostat')
def combine_stats():
    A(f's_mov_b32 s68, {f32(LOG2E)}')
    A('v_mov_b32 v2, v4')
    allreduce8('v_max_f32', [2])
    A('v_sub_f32 v4, v4, v2\nv_mul_f32 v4, s68, v4\nv_exp_f32 v4, v4\nv_mul_f32 v3, v4, v5')
    allreduce8('v_add_f32', [3])
combine_stats()
A(f'''
s_lshl_b32 s68, s71, 4
s_add_u32 s68, s68, {ST}
v_mov_b32 v4, s30
v_mov_b32 v5, s31
''')
publish([(1, 'buffer_store_dwordx4 v[2:5], v1, @, s68 offen')])
A(f's_mov_b32 s68, {PF}')
def body():
    A('buffer_load_dwordx4 v[8:11], v1, s[24:27], s68 offen sc1')
    A('s_waitcnt vmcnt(0)')
    tagcheck([10])
spin(body, sleep=8)
A('''
v_cmp_ne_u32 vcc, 0, v8
s_nop 0
s_and_b32 s67, vcc_lo, 0xff
s_lshl_b32 s67, s67, 8
s_bitset1_b32 s67, 16
''')
if opt['dyn']:
    lds_wait_ge(CNT + 16, opt['tcnt'], 2)
    stamp(3)
    A('s_mov_b64 exec, 1')
    def body():
        A('v_mov_b32 v8, 1\nv_mov_b32 v9, 0')
        A('buffer_atomic_add_x2 v[8:9], v1, s[24:27], s66 offen sc0 sc1')
        A('s_waitcnt vmcnt(0)')
        A('v_cmp_ne_u32 vcc, s30, v9')
    spin(body, sleep=8)
    A('v_and_b32 v8, 31, v8\nv_or_b32 v8, s67, v8')
else:
    A('''
s_mul_i32 s5, s79, 5
s_add_u32 s5, s5, s7
s_mul_i32 s72, s79, 3
s_add_u32 s72, s72, s7
s_add_u32 s72, s72, 15
s_cmp_lt_u32 s7, 5
s_cselect_b32 s5, s5, s72
s_or_b32 s5, s5, s67
v_mov_b32 v8, s5
v_mov_b32 v1, 0
s_mov_b64 exec, 1
''')
A(f'ds_write_b32 v1, v8 offset:{ROLE}\ns_mov_b64 exec, -1')
A('L_nostat:')
BW = 64
CF = 56
XM = 52
A(f'''
s_cmp_lg_u32 s3, 0
s_cbranch_scc1 L_noc
s_lshl_b32 s73, s4, 9
s_add_u32 s73, s73, {ST}
v_and_b32 v1, 31, v0
v_lshlrev_b32 v1, 4, v1
''')
def body():
    A(f"s_sleep {opt['stsleep']}")
    A('buffer_load_dwordx4 v[4:7], v1, s[16:19], s73 offen sc1')
    A('s_waitcnt vmcnt(0)')
    tagcheck([6])
spin2(body, local_only=True)
stamp(4)
combine_stats()
A(f'''
v_rcp_f32 v3, v3
v_lshrrev_b32 v1, 2, v1
v_mul_f32 v4, v4, v3
v_mov_b32 v2, 0
v_mov_b32 v3, 1
ds_write_b32 v1, v4 offset:{CL}
ds_write_b32 v2, v3 offset:{CNT+24}
L_noc:
''')
get_role(4)
A('''
s_cmp_lt_u32 s5, 20
s_cbranch_scc0 L_helper_exit
''')
def tr_addr(dst, tmp):
    A(f'''
v_lshrrev_b32 v{dst}, 4, v0
v_lshlrev_b32 v{dst}, 10, v{dst}
v_bfe_u32 v{tmp}, v0, 2, 2
v_lshl_add_u32 v{dst}, v{tmp}, 7, v{dst}
v_and_b32 v{tmp}, 3, v0
v_lshl_add_u32 v{dst}, v{tmp}, 3, v{dst}
''')
srd(12, 44, 6144 * 640 * 2)
A(f'''
s_cmp_ge_u32 s5, 10
s_cselect_b32 s76, 1, 0
s_mul_i32 s77, s76, 10
s_sub_u32 s77, s5, s77
s_lshr_b32 s68, s3, 1
s_lshl1_add_u32 s78, s76, s68
v_lshrrev_b32 v21, 3, v0
v_mul_u32_u24 v21, 1280, v21
v_and_b32 v3, 7, v0
v_lshl_add_u32 v21, v3, 4, v21
s_lshl1_add_u32 s60, s4, s76
s_lshl2_add_u32 s60, s60, s3
s_mul_i32 s60, s60, {96*1280}
s_lshl_b32 s69, s77, 7
s_add_u32 s60, s60, s69
s_mul_i32 s61, s3, 12288
s_add_u32 s61, s61, {WL}
v_bfe_u32 v2, v0, 4, 1
v_lshlrev_b32 v2, 4, v2
s_lshl_b32 s68, s78, 5
v_add_u32 v22, s68, v2
''')
A(f'''
v_lshlrev_b32 v60, 4, v0
s_lshl2_add_u32 s73, s4, s78
s_mul_i32 s73, s73, 6144
s_and_b32 s68, s3, 1
s_mul_i32 s68, s68, 3072
s_add_u32 s73, s73, s68
s_add_u32 s73, s73, {OP}
v_lshlrev_b32 v62, 2, v0
s_lshl_b32 s68, s3, 8
v_add_u32 v61, s68, v62
v_lshrrev_b32 v2, 5, v0
v_lshlrev_b32 v2, 11, v2
v_bfe_u32 v3, v0, 2, 3
v_lshl_add_u32 v2, v3, 4, v2
v_and_b32 v3, 1, v0
v_lshl_add_u32 v63, v3, 13, v2
s_lshr_b32 s75, s77, 1
s_lshl_b32 s75, s75, 14
s_and_b32 s68, s77, 1
s_lshl_b32 s68, s68, 12
s_add_u32 s75, s75, s68
s_lshl1_add_u32 s68, s4, s76
s_lshl_b32 s68, s68, 7
s_add_u32 s75, s75, s68
s_add_u32 s75, s75, {YP}
s_mov_b32 s66, 0xff00ff00
s_mov_b32 s67, 0xff00ff00
v_mov_b32 v6, s30
v_mov_b32 v7, s31
v_cndmask_b32 v{XM}, 0, v6, s[66:67]
v_cndmask_b32 v{XM+1}, 0, v7, s[66:67]
v_cndmask_b32 v{XM+2}, v6, 0, s[66:67]
v_cndmask_b32 v{XM+3}, v7, 0, s[66:67]
v_mov_b32 v50, s30
v_mov_b32 v51, s31
''')
tr_addr(24, 25)
A('s_mul_i32 s69, s3, 12288\nv_add_u32 v24, s69, v24')
lds_wait_ge(CNT + 4, 8, 2)
stamp(3)
for n in range(12):
    if n >= opt['DWF']: A(f"s_waitcnt vmcnt({opt['DWF']-1})")
    A('s_mov_b32 m0, s61')
    A('buffer_load_dwordx4 v21, s[12:15], s60 offen nt lds')
    if n < 11:
        A(f's_add_u32 s60, s60, {8*1280}')
        A('s_add_u32 s61, s61, 1024')
lds_wait_ge(CNT + 24, 1, 2)
A(f'ds_read_b128 v[{CF}:{CF+3}], v22 offset:{CL}')
A('s_waitcnt vmcnt(0)')
for t in range(3):
    for u in range(4):
        r = BW + 4 * (4 * t + u)
        A(f'ds_read_b64_tr_b16 v[{r}:{r+1}], v24 offset:{WL + 4096*t + 32*u}')
        A(f'ds_read_b64_tr_b16 v[{r+2}:{r+3}], v24 offset:{WL + 4096*t + 32*u + 512}')
lds_wait_ge(CNT, 8, 1)
stamp(6)
AO = 8
def body():
    stamp(2)
    for t in range(3):
        A(f'buffer_load_dwordx4 v[{AO+4*t}:{AO+4*t+3}], v60, s[16:19], s73 offen offset:{1024*t} sc1')
    for t in range(3):
        A(f's_waitcnt vmcnt({2-t})')
        q = AO + 4 * t
        for e in range(4): A(f'v_xor_b32 v{q+e}, v{q+e}, v{XM+e}')
        for u in range(4):
            r = BW + 4 * (4 * t + u)
            c = '0' if t == 0 else f'v[{32+4*u}:{35+4*u}]'
            A(f'v_mfma_f32_16x16x32_bf16 v[{32+4*u}:{35+4*u}], v[{q}:{q+3}], v[{r}:{r+3}], {c}')
        if t == 0:
            A(f'v_or_b32 v2, v{q}, v{q+1}\nv_or_b32 v3, v{q+2}, v{q+3}')
        else:
            A(f'v_or3_b32 v2, v2, v{q}, v{q+1}\nv_or3_b32 v3, v3, v{q+2}, v{q+3}')
    A('v_cndmask_b32 v2, v3, v2, s[66:67]')
    A('v_cmp_ne_u32 vcc, 0, v2')
spin2(body, local_only=True)
stamp(7)
for u in range(4):
    A(f'v_mul_f32 v{4+u}, v{32+4*u}, v{CF}')
    for r in range(1, 4): A(f'v_fmac_f32 v{4+u}, v{32+4*u+r}, v{CF+r}')
A(f'''
{S32} v4, v6
{S32} v5, v7
v_add_f32 v4, v4, v6
v_add_f32 v5, v5, v7
{S16} v4, v5
v_add_f32 v4, v4, v5
ds_write_b32 v61, v4 offset:{RL}
s_cmp_lg_u32 s3, 0
s_waitcnt lgkmcnt(0)
s_barrier
s_cbranch_scc1 L_post_wo
ds_read_b32 v5, v62 offset:{RL+256}
ds_read_b32 v6, v62 offset:{RL+512}
ds_read_b32 v7, v62 offset:{RL+768}
s_waitcnt lgkmcnt(0)
v_add_f32 v4, v4, v5
v_add_f32 v6, v6, v7
v_add_f32 v4, v4, v6
v_mov_b32_dpp v5, v4 quad_perm:[1,0,3,2] {DPPM}
v_cvt_pk_bf16_f32 v4, v4, v5
v_mov_b32_dpp v48, v4 quad_perm:[0,0,0,0] {DPPM}
v_mov_b32_dpp v49, v4 quad_perm:[2,2,2,2] {DPPM}
''')
setexec(0x3333333333333333)
A('buffer_store_dwordx4 v[48:51], v63, s[24:27], s75 offen sc1')
stamp(5)
A('s_barrier')
write_stamps(0)
A('s_endpgm')
A('L_helper_exit:')
if STAMPS:
    A('s_cmp_lg_u32 s3, 0\ns_cbranch_scc1 L_end')
    write_stamps(0)
A('s_endpgm')

B1R = 64
DR = 16
def gdone_wait(n):
    if not n: return
    lp = newlabel('gpoll'); ld = newlabel('gdone')
    A(f"""
v_and_b32 v1, 31, v0
v_lshlrev_b32 v1, 4, v1
s_lshl_b32 s68, s4, 9
s_add_u32 s68, s68, {DN}
s_mov_b32 s70, 40
s_cmp_lg_u32 s46, 1
s_cbranch_scc1 {ld}
{lp}:
buffer_load_dwordx4 v[4:7], v1, s[32:35], s68 offen sc1
s_waitcnt vmcnt(0)
v_cmp_eq_u64 vcc, s[30:31], v[6:7]
s_nop 0
s_bcnt1_i32_b32 s69, vcc_lo
s_cmp_ge_u32 s69, {n}
s_cbranch_scc1 {ld}
s_sleep 2
s_sub_u32 s70, s70, 1
s_cbranch_scc0 {lp}
{ld}:
""")
def yp_loads():
    A('buffer_load_dwordx4 v[96:99], v55, s[24:27], s60 offen sc1')
    A('buffer_load_dwordx4 v[100:103], v55, s[24:27], s60 offen offset:1024 sc1')
def f1_mfma():
    for k in range(8):
        A(f'v_mfma_f32_16x16x32_bf16 v[{DR+4*k}:{DR+3+4*k}], v[8:11], v[{B1R+4*k}:{B1R+4*k+3}], 0')
def f1_select():
    for m in range(2):
        b = DR + 16 * m
        A(f'v_cndmask_b32 v{12+m}, v{b}, v{b+4}, s[62:63]')
        A(f'v_cndmask_b32 v{12+m}, v{12+m}, v{b+8}, s[64:65]')
        A(f'v_cndmask_b32 v{12+m}, v{12+m}, v{b+12}, s[66:67]')
A('L_f1:')
tr_addr(58, 5)
srd(12, 48, 640 * 1536 * 2); srd(16, 50, 640 * 1536 * 2)
A(f"""
s_mul_i32 s75, s5, 5
s_add_u32 s75, s75, s73
s_sub_u32 s75, s75, 100
s_cmp_ge_u32 s75, 20
s_cselect_b32 s78, 1, 0
s_cmp_ge_u32 s75, 40
s_cselect_b32 s78, 2, s78
s_mul_i32 s68, s78, 20
s_sub_u32 s74, s75, s68
s_mul_i32 s68, s4, 3
s_add_u32 s78, s78, s68
s_lshl_b32 s68, s73, 13
v_add_u32 v58, s68, v58
s_add_u32 s79, s68, {WL}
v_lshrrev_b32 v3, 4, v0
v_and_b32 v2, 7, v0
v_lshl_add_u32 v50, v2, 2, v3
v_lshlrev_b32 v50, 1, v50
s_lshl_b32 s68, s74, 6
v_add_u32 v61, s68, v50
s_lshl_b32 s68, s73, 6
v_add_u32 v51, s68, v50
v_lshlrev_b32 v52, 4, v3
v_add_u32 v52, s68, v52
v_lshlrev_b32 v54, 3, v2
v_add_u32 v54, s68, v54
v_lshrrev_b32 v53, 3, v0
v_mul_u32_u24 v62, 3072, v53
v_lshl_add_u32 v62, v2, 4, v62
s_lshr_b32 s60, s74, 2
s_lshl_b32 s60, s60, 14
s_and_b32 s68, s74, 3
s_lshl_b32 s68, s68, 11
s_add_u32 s60, s60, s68
s_lshr_b32 s68, s47, s4
s_and_b32 s68, s68, 1
s_lshl_b32 s68, s68, 13
s_add_u32 s60, s60, s68
s_add_u32 s60, s60, {YP}
v_lshlrev_b32 v55, 4, v0
v_mov_b32 v57, 0
v_cmp_eq_u32 s[62:63], 1, v3
v_cmp_eq_u32 s[64:65], 2, v3
v_cmp_eq_u32 s[66:67], 3, v3
v_lshrrev_b32 v59, 4, v0
v_mul_u32_u24 v59, 5120, v59
v_bfe_u32 v4, v0, 3, 1
v_lshl_add_u32 v59, v4, 9, v59
v_lshl_add_u32 v59, v2, 4, v59
s_mul_i32 s76, s78, 20480
s_lshr_b32 s68, s74, 2
s_lshl_b32 s68, s68, 10
s_add_u32 s76, s76, s68
s_and_b32 s68, s74, 3
s_lshl_b32 s68, s68, 7
s_add_u32 s76, s76, s68
s_add_u32 s76, s76, {PA}
s_lshl_b32 s72, s78, 9
s_lshl4_add_u32 s72, s74, s72
s_add_u32 s72, s72, {PS}
s_mul_i32 s75, s4, 20
s_add_u32 s75, s75, s74
s_lshl_b32 s75, s75, 7
s_add_u32 s75, s75, {PH}
s_cmp_lt_u32 s5, 24
s_cselect_b32 s75, s75, {PH + 0x6000}
s_mov_b32 s77, 0xffff0000
v_mov_b32 v14, s30
v_mov_b32 v15, s31
s_mul_i32 s61, s74, {32*3072}
s_lshl_b32 s68, s78, 7
s_add_u32 s61, s61, s68
""")
if opt['f1trig'] == 0: lds_wait_ge(CNT + 28, 1, 1)
elif opt['f1trig'] == 1: lds_wait_ge(CNT + 4, 8, 1)
gdone_wait(opt['gdone'])
stamp(3)
for n in range(4):
    for m in range(2):
        A(f's_add_u32 m0, s79, {4096*m + 1024*n}')
        A(f'buffer_load_dwordx4 v62, s[{12+4*m}:{15+4*m}], s61 offen nt lds')
    if n < 3: A(f's_add_u32 s61, s61, {8*3072}')
A('global_load_ushort v56, v61, s[36:37]')
A('s_setprio 3')
A("s_waitcnt vmcnt(0)")
yp_loads()
stamp(6)
for m in range(2):
    for u in range(4):
        r = B1R + 4 * (4 * m + u)
        A(f'ds_read_b64_tr_b16 v[{r}:{r+1}], v58 offset:{WL + 4096*m + 32*u}')
        A(f'ds_read_b64_tr_b16 v[{r+2}:{r+3}], v58 offset:{WL + 4096*m + 32*u + 512}')
A("""
v_mov_b32 v8, 0x3f803f80
v_mov_b32 v9, 0x3f803f80
v_mov_b32 v10, 0x3f803f80
v_mov_b32 v11, 0x3f803f80
s_waitcnt lgkmcnt(0)
""")
f1_mfma()
f1_select()
A('v_cvt_pk_bf16_f32 v60, v12, v13')
def body():
    yp_loads()
    A('L_ypw0:')
    A('s_waitcnt vmcnt(0)')
    tagcheck([98, 102])
spin(body, entry='L_ypw0')
stamp(1)
A(f"""
v_lshlrev_b32 v8, 16, v96
v_lshlrev_b32 v24, 16, v100
v_lshlrev_b32 v10, 16, v97
v_lshlrev_b32 v26, 16, v101
v_and_b32 v9, s77, v96
v_and_b32 v25, s77, v100
v_and_b32 v11, s77, v97
v_and_b32 v27, s77, v101
v_add_f32 v8, v8, v24
v_add_f32 v10, v10, v26
v_add_f32 v9, v9, v25
v_add_f32 v11, v11, v27
v_lshlrev_b32 v56, 16, v56
{S32} v8, v10
{S32} v9, v11
v_add_f32 v8, v8, v10
v_add_f32 v9, v9, v11
{S16} v8, v9
v_add_f32 v8, v8, v9
v_add_f32_dpp v8, v8, v8 row_ror:8 {DPPM}
v_cvt_pk_bf16_f32 v8, v57, v8
v_add_f32 v8, v8, v56
v_cvt_pk_bf16_f32 v8, v8, v8
ds_write_b16 v51, v8 offset:{HL}
v_and_b32 v48, s77, v8
v_mul_f32 v49, v48, v48
s_waitcnt lgkmcnt(0)
ds_read_b128 v[8:11], v52 offset:{HL}
ds_read_b64 v[4:5], v54 offset:{HL}
""")
allreduce8('v_add_f32', [48, 49])
A('s_waitcnt lgkmcnt(0)')
f1_mfma()
swapreduce(S16, 'v_add_f32', [48, 49], [6, 7])
swapreduce(S32, 'v_add_f32', [48, 49], [6, 7])
A('v_mov_b32 v50, s30\nv_mov_b32 v51, s31\nv_mov_b32 v6, s30\nv_mov_b32 v7, s31')
f1_select()
A('v_cvt_pk_bf16_f32 v12, v12, v13\nv_mov_b32 v13, v60')
publish([(None, 'buffer_store_dwordx4 v[12:15], v59, @, s76 offen'),
         (1, 'buffer_store_dwordx4 v[48:51], v55, @, s72 offen'),
         (0xff, 'buffer_store_dwordx4 v[4:7], v55, @, s75 offen')])
if STAMPS:
    stamp_now(13, True)
    stamp_val(18, 82, 83, True)
    stamp_val(23, 92, 93, True)
A('s_endpgm')

A('L_post_wo:')
A("""
s_cmp_gt_u32 s5, 11
s_cbranch_scc1 L_end
s_cmp_eq_u32 s3, 3
s_cbranch_scc1 L_end
v_mov_b32 v57, 0
s_barrier
s_cmp_eq_u32 s3, 1
s_cbranch_scc1 L_hid
""")
A(f"""
s_and_b32 s68, s4, 1
s_lshl_b32 s68, s68, 2
s_sub_u32 s68, 12, s68
s_cmp_ge_u32 s5, s68
s_cbranch_scc1 L_end
s_mul_i32 s72, s4, 5
s_add_u32 s72, s72, 1
s_lshr_b32 s72, s72, 1
s_lshr_b32 s68, s5, 2
s_add_u32 s72, s72, s68
s_and_b32 s73, s5, 3
v_lshrrev_b32 v2, 1, v0
v_lshlrev_b32 v2, 7, v2
v_and_b32 v3, 1, v0
v_lshl_add_u32 v96, v3, 4, v2
s_lshl_b32 s10, s72, 15
s_lshr_b32 s68, s47, s4
s_and_b32 s68, s68, 1
s_lshl_b32 s68, s68, 13
s_add_u32 s10, s10, s68
s_lshl_b32 s68, s73, 5
s_add_u32 s10, s10, s68
s_add_u32 s10, s10, {FP}
s_add_u32 s11, s10, 4096
s_add_u32 s12, s10, 16384
v_lshrrev_b32 v4, 4, v0
v_lshl_add_u32 v97, v3, 2, v4
v_lshlrev_b32 v97, 1, v97
v_lshlrev_b32 v99, 4, v3
v_and_b32 v98, 16, v0
s_mul_i32 s13, s4, 20
s_add_u32 s13, s13, s72
s_lshl_b32 s13, s13, 7
s_add_u32 s13, s13, s68
s_add_u32 s13, s13, {PH}
s_lshl2_add_u32 s14, s72, s73
s_lshl_b32 s14, s14, 4
s_mov_b32 s69, 0xffff0000
""")
FS = 16
srd(64, 54, 1280)
A('v_cmp_lt_u32 s[62:63], 31, v0')
lds_wait_ge(HRDY, 1, 2)
if opt['fsleep']: A(f"s_sleep {opt['fsleep']}")
def body():
    A('buffer_load_dwordx4 v[4:7], v99, s[16:19], s13 offen sc1')
    for n in range(3):
        r = FS + 4 * n
        A(f'buffer_load_dwordx4 v[{r}:{r+3}], v96, s[24:27], s{10+n} offen sc1')
    A('s_waitcnt vmcnt(0)')
    tagcheck([6, FS + 2, FS + 6, FS + 10])
spin2(body, local_only=True)
stamp(5)
for n in range(3):
    A(f'v_lshlrev_b32 v{40+4*n}, 16, v{FS+4*n}')
    A(f'v_and_b32 v{41+4*n}, s69, v{FS+4*n}')
    A(f'v_lshlrev_b32 v{42+4*n}, 16, v{FS+4*n+1}')
    A(f'v_and_b32 v{43+4*n}, s69, v{FS+4*n+1}')
for e in range(4): A(f'v_add_f32 v{8+e}, v{40+e}, v{44+e}')
for e in range(4): A(f'v_add_f32 v{8+e}, v{8+e}, v{48+e}')
A(f"""
v_cndmask_b32 v58, v4, v5, s[62:63]
{S32} v8, v10
{S32} v9, v11
v_add_f32 v8, v8, v10
v_add_f32 v9, v9, v11
v_lshrrev_b32 v58, v98, v58
v_lshlrev_b32 v58, 16, v58
{S16} v8, v9
v_add_f32 v8, v8, v9
v_add_f32_dpp v8, v8, v8 row_ror:8 {DPPM}
v_add_f32_dpp v8, v8, v8 row_ror:4 {DPPM}
v_add_f32_dpp v8, v8, v8 quad_perm:[2,3,0,1] {DPPM}
v_cvt_pk_bf16_f32 v8, v57, v8
v_add_f32 v8, v8, v58
v_cvt_pk_bf16_f32 v8, v8, v8
""")
setexec(0x0003000300030003)
A(f"""
buffer_store_short v8, v97, s[64:67], s14 offen
s_cmp_lg_u32 s14, 0
s_cbranch_scc1 L_fin_exit
s_mov_b64 exec, 1
v_mov_b32 v4, s30
v_mov_b32 v5, s31
s_mov_b32 s68, {EP}
buffer_store_dwordx2 v[4:5], v57, s[24:27], s68 offen
L_fin_exit:
""")
if opt['dbg']:
    A(f'''
s_cmp_lg_u32 s14, 0
s_cbranch_scc1 L_end
s_memrealtime s[82:83]
s_waitcnt lgkmcnt(0)
s_sub_u32 s84, s82, s80
s_sub_u32 s84, s84, 1500
s_mul_i32 s84, s84, {opt['dbg']}
s_min_u32 s84, s84, 20000
L_dbgspin:
s_memrealtime s[86:87]
s_waitcnt lgkmcnt(0)
s_sub_u32 s86, s86, s82
s_cmp_lt_u32 s86, s84
s_cbranch_scc1 L_dbgspin
''')
if STAMPS:
    A('s_waitcnt vmcnt(0)')
    stamp(7)
    write_stamps(8)
A('s_endpgm')

A('L_hid:')
A(f"""
s_mul_i32 s72, s4, 12
s_add_u32 s72, s72, s5
v_lshrrev_b32 v4, 5, v0
v_and_b32 v2, 7, v0
v_lshl_add_u32 v62, v4, 3, v2
v_lshlrev_b32 v62, 1, v62
v_lshlrev_b32 v60, 4, v0
v_and_b32 v3, 31, v0
v_lshlrev_b32 v61, 4, v3
s_lshr_b32 s65, s72, 2
s_lshl_b32 s65, s65, 9
s_add_u32 s65, s65, {PS}
s_mul_i32 s60, s72, 5120
s_add_u32 s60, s60, {PA}
s_add_u32 s61, s60, 4096
v_mov_b32 v36, 0
v_mov_b32 v37, 0
v_mov_b32 v38, s30
v_mov_b32 v39, s31
v_mov_b32 v59, 1
s_mov_b32 s69, 0xffff0000
""")
def body():
    setexec(0x000fffff000fffff)
    A('buffer_load_dwordx4 v[36:39], v61, s[16:19], s65 offen sc1')
    setexec(ALL)
    for n in range(5):
        A(f'buffer_load_dwordx4 v[{16+4*n}:{19+4*n}], v60, s[16:19], s{60+n//4} offen offset:{1024*(n%4)} sc1')
    A('s_waitcnt vmcnt(0)')
    tagcheck([38, 18, 22, 26, 30, 34])
spin2(body, local_only=True)
stamp(7)
def unp(d, n):
    r = 16 + 4 * n
    A(f'v_lshlrev_b32 v{d}, 16, v{r}\nv_and_b32 v{d+1}, s69, v{r}\nv_lshlrev_b32 v{d+2}, 16, v{r+1}\nv_and_b32 v{d+3}, s69, v{r+1}')
pats = ('quad_perm:[1,0,3,2]', 'quad_perm:[2,3,0,1]', 'row_half_mirror', 'row_mirror')
def st_step(i):
    for r in (36, 37): A(f'v_add_f32_dpp v{r}, v{r}, v{r} {pats[i]} {DPPM}')
st_step(0); unp(8, 0); st_step(1); unp(40, 1); st_step(2); unp(44, 2); st_step(3); unp(48, 3)
A('v_mov_b32 v22, v36\nv_mov_b32 v23, v37')
unp(52, 4)
A(f'{S16} v36, v22\n{S16} v37, v23')
for e in range(4): A(f'v_add_f32 v{8+e}, v{8+e}, v{40+e}')
A('v_add_f32 v36, v36, v22\nv_add_f32 v37, v37, v23')
for e in range(4): A(f'v_add_f32 v{44+e}, v{44+e}, v{48+e}')
A(f'v_mul_f32 v20, {f32(1.0/640)}, v36\nv_mul_f32 v21, {f32(1.0/640)}, v37')
for e in range(4): A(f'v_add_f32 v{8+e}, v{8+e}, v{52+e}')
A('v_fma_f32 v21, -v20, v20, v21\nv_max_f32 v21, 0, v21')
for e in range(4): A(f'v_add_f32 v{8+e}, v{8+e}, v{44+e}')
A(f"""
v_cvt_pk_bf16_f32 v20, v57, v20
v_cvt_pk_bf16_f32 v21, v57, v21
v_fma_f32 v8, -v20, v10, v8
v_fma_f32 v9, -v20, v11, v9
v_add_f32 v21, {f32(1e-5)}, v21
v_cvt_pk_bf16_f32 v21, v57, v21
v_add_f32_dpp v8, v8, v8 row_ror:8 {DPPM}
v_add_f32_dpp v9, v9, v9 row_ror:8 {DPPM}
v_sqrt_f32 v21, v21
v_mov_b32 v10, v8
v_mov_b32 v11, v9
v_cvt_pk_bf16_f32 v21, v57, v21
{S16} v8, v10
v_rcp_f32 v21, v21
{S16} v9, v11
v_add_f32 v8, v8, v10
v_add_f32 v9, v9, v11
v_mul_f32 v8, v8, v21
v_mul_f32 v9, v9, v21
v_cvt_pk_bf16_f32 v8, v57, v8
v_cvt_pk_bf16_f32 v9, v57, v9
v_mul_f32 v12, {f32(-LOG2E)}, v8
v_exp_f32 v12, v12
v_add_f32 v12, 1.0, v12
v_rcp_f32 v12, v12
v_mul_f32 v8, v8, v12
v_cvt_pk_bf16_f32 v8, v57, v8
v_mul_f32 v8, v8, v9
v_cvt_pk_bf16_f32 v8, v8, v8
ds_write_b16 v62, v8 offset:{HID}
""")
A(f'ds_write_b32 v57, v59 offset:{HRDY}')
stamp_val(17, 94, 95)
A('s_endpgm')

A('L_f2:')
W2R = 64
srd(8, 52, 1536 * 640 * 2)
A(f"""
s_mul_i32 s72, s4, 12
s_add_u32 s72, s72, s5
v_mov_b32 v57, 0
s_sub_u32 s68, s3, 7
s_lshl_b32 s69, s68, 8
v_lshlrev_b32 v58, 2, v0
v_add_u32 v58, s69, v58
v_lshrrev_b32 v2, 4, v0
v_lshl_add_u32 v2, s68, 2, v2
v_mul_u32_u24 v3, 52, v2
v_lshrrev_b32 v3, 8, v3
v_mul_u32_u24 v4, 5, v3
v_sub_u32 v4, v2, v4
v_cmp_lt_u32 vcc, 2, v4
v_lshlrev_b32 v3, 1, v3
v_addc_co_u32 v3, vcc, 0, v3, vcc
v_lshrrev_b32 v3, v3, s47
v_and_b32 v3, 1, v3
v_lshlrev_b32 v116, 15, v2
v_lshl_add_u32 v116, v3, 13, v116
v_bfe_u32 v3, v0, 1, 3
v_lshl_add_u32 v116, v3, 4, v116
s_lshr_b32 s79, s72, 6
s_lshl_b32 s79, s79, 14
s_and_b32 s68, s72, 63
s_lshl_b32 s68, s68, 7
s_add_u32 s79, s79, s68
s_add_u32 s79, s79, {FP}
s_mov_b32 s60, 0x05040100
s_mov_b32 s61, 0x07060302
s_mul_i32 s62, s72, 20480
""")
def w2_loads():
    for k in range(16):
        A(f'buffer_load_dword v{W2R+k}, v58, s[8:11], s62 offen offset:{1280*(k%3)} nt')
        if k % 3 == 2: A('s_add_u32 s62, s62, 3840')
if opt['w2early']:
    lds_wait_ge(CNT + 28, 1, 2)
    w2_loads()
A('s_barrier\ns_barrier')
if not opt['w2early']: w2_loads()
A('s_setprio 3')
A('s_waitcnt vmcnt(0)')
stamp(6)
for kp in range(8):
    A(f'v_perm_b32 v{80+kp}, v{W2R+2*kp+1}, v{W2R+2*kp}, s60')
    A(f'v_perm_b32 v{88+kp}, v{W2R+2*kp+1}, v{W2R+2*kp}, s61')
A("""
v_mov_b32 v16, 0
v_mov_b32 v17, 0
v_mov_b32 v6, s30
v_mov_b32 v7, s31
""")
def body():
    A(f'ds_read_b32 v4, v57 offset:{HRDY}')
    A(f'ds_read_b128 v[8:11], v57 offset:{HID}')
    A(f'ds_read_b128 v[12:15], v57 offset:{HID+16}')
    A('s_waitcnt lgkmcnt(0)')
    A('v_cmp_eq_u32 vcc, 0, v4')
spin(body)
for kp in range(8):
    A(f'v_dot2c_f32_bf16 v16, v{8+kp}, v{80+kp}')
    A(f'v_dot2c_f32_bf16 v17, v{8+kp}, v{88+kp}')
A(f"""
v_cvt_pk_bf16_f32 v4, v16, v17
v_mov_b32_dpp v5, v4 quad_perm:[1,0,3,2] {DPPM}
""")
setexec(0x5555555555555555)
A('buffer_store_dwordx4 v[4:7], v116, s[24:27], s79 offen sc1')
if STAMPS:
    setexec(ALL)
    stamp_now(20, True)
    stamp_val(15, 92, 93, True)
A('L_end:')
A('s_endpgm')
for blk in outline: A(blk)
A('L_codeend:')

A.raw('.section .rodata,"a"')
A.raw('.p2align 6')
A.raw(f'.amdhsa_kernel {NAME}_kernel')
A.raw('  .amdhsa_next_free_vgpr 168')
A.raw('  .amdhsa_next_free_sgpr 100')
A.raw('  .amdhsa_accum_offset 168')
A.raw('  .amdhsa_group_segment_fixed_size 0')
A.raw('  .amdhsa_kernarg_size 96')
A.raw('  .amdhsa_user_sgpr_count 2')
A.raw('  .amdhsa_user_sgpr_kernarg_segment_ptr 1')
A.raw('  .amdhsa_system_sgpr_workgroup_id_x 1')
A.raw('.end_amdhsa_kernel')
open(sys.argv[1], 'w').write(A.finalize())
```

```python
import sys, struct, os
from asmlib import Asm

NAME = "sequential_preLN__sliding_block_cached__glu_gated_swiglu__decode"
opt = dict(D1=3, D2=3, stamps=0, spin=200007, sleep=2, Vpre=3, swave=11, stsleep=24, wtrig=3, ttrig=9, tcnt=8, DWF=6,
           idtries=12, idsleep=16, forceslow=0, trap=0, fsleep=20, gdone=0, dyn=1, pref=2, prew=1, shots=4,
           w2early=0, f1trig=0, dbg=0, diagp=0, puback=0, dbgptr=0)
for a in sys.argv[2:]:
    k, v = a.split('=')
    assert k in opt, k
    opt[k] = int(v)
D1 = opt['D1']; D2 = opt['D2']; STAMPS = opt['stamps']; SPIN = opt['spin']

def f32(x): return '0x%08x' % struct.unpack('<I', struct.pack('<f', x))[0]
LOG2E = 1.4426950408889634

QP = 0x0
OP = 0x80000
ST = 0xB0000
ID = 0xB8000
DN = 0xBA000
YP = 0xC0000
EP = 0xE0000
TK = 0xE1000
PF = 0xE8000
FP = 0x100000
PB = 0x1A0000
SP = 0x200000
PA = 0x220000
PS = 0x2A0000
PH = 0x2A4000
WSN = 0x400000
FAST = 0x400000
QL = 0
QF = 384
SL = 512
CNT = 640
HRDY = CNT + 12; ROLE = CNT + 20
CL = 768
HID = 896
OL = 1024
RL = 7168
HL = 8192
WL = 8704
LDS = WL + 49152

A = Asm()
A.raw(open(os.path.join(os.path.dirname(os.path.abspath(__file__)), '..', NAME + '.s.ref')).read().split('; Override launch')[0].rstrip())
A.raw(f"; @launch grid=(256,1,1) block=(768,1,1) lds={LDS}")
A.raw('''; Generated by gen/gen12.py (hand-written generator).  One persistent launch, 256 workgroups x 12 waves, 1 per CU.
;  s_sleep is used only as back-off inside / ahead of polling loops.''')
A.raw('.amdgcn_target "amdgcn-amd-amdhsa--gfx950"')
A.raw('.text')
A.raw(f'.globl {NAME}_kernel')
A.raw('.p2align 8')
A.raw(f'.type {NAME}_kernel,@function')
A.raw(f'{NAME}_kernel:')

def stamp(i):
    if STAMPS: A(f's_memrealtime s[{80+2*i}:{81+2*i}]')
def write_stamps(base_idx):
    if not STAMPS: return
    A('s_waitcnt lgkmcnt(0)')
    A('s_mov_b64 exec, 1')
    A('s_lshl3_add_u32 s68, s5, s4')
    A('s_lshl_b32 s68, s68, 8')
    A(f's_add_u32 s68, s68, {SP + base_idx*8}')
    A('v_mov_b32 v1, 0')
    for q in range(4):
        for e in range(4): A(f'v_mov_b32 v{4+e}, s{80+4*q+e}')
        A(f'buffer_store_dwordx4 v[4:7], v1, s[24:27], s68 offen offset:{16*q}')
        A('s_nop 2')
def stamp_val(idx, lo, hi, plus_wave=False):
    if not STAMPS: return
    A('s_lshl3_add_u32 s98, s5, s4')
    A('s_lshl_b32 s98, s98, 8')
    A(f's_add_u32 s98, s98, {SP + idx*8}')
    if plus_wave: A('s_lshl3_add_u32 s98, s3, s98')
    A('s_waitcnt lgkmcnt(0)')
    A(f'v_mov_b32 v120, s{lo}\nv_mov_b32 v121, s{hi}\nv_mov_b32 v122, 0')
    A('s_mov_b64 exec, 1')
    A('buffer_store_dwordx2 v[120:121], v122, s[24:27], s98 offen')
    A('s_mov_b64 exec, -1')
    A('s_nop 1')
def stamp_now(idx, plus_wave=False):
    if not STAMPS: return
    A('s_memrealtime s[96:97]')
    stamp_val(idx, 96, 97, plus_wave)

def srd(d, ptr, nbytes):
    A(f's_mov_b32 s{d}, s{ptr}')
    A(f's_mov_b32 s{d+1}, s{ptr+1}')
    A(f's_mov_b32 s{d+2}, {nbytes}')
    A(f's_mov_b32 s{d+3}, 0x20000')
def ws_srds():
    srd(24, 58, WSN)
    A(f's_add_u32 s32, s58, {FAST}')
    A('s_addc_u32 s33, s59, 0')
    A(f's_mov_b32 s34, {WSN}')
    A('s_mov_b32 s35, 0x20000')
    A('s_lshl3_add_u32 s71, s6, s7')

ALL = (1 << 64) - 1
def setexec(mask):
    if mask == ALL: A('s_mov_b64 exec, -1'); return
    A(f's_mov_b32 exec_lo, 0x{mask & 0xffffffff:x}')
    A(f's_mov_b32 exec_hi, 0x{mask >> 32:x}')

DPPM = 'row_mask:0xf bank_mask:0xf'
def allreduce8(op, regs):
    for pat in ('quad_perm:[1,0,3,2]', 'quad_perm:[2,3,0,1]', 'row_half_mirror'):
        for r in regs: A(f'{op}_dpp v{r}, v{r}, v{r} {pat} {DPPM}')
def allreduce16(op, regs):
    allreduce8(op, regs)
    for r in regs: A(f'{op}_dpp v{r}, v{r}, v{r} row_mirror {DPPM}')
def swapreduce(sw, op, regs, tmps):
    for r, t in zip(regs, tmps): A(f'v_mov_b32 v{t}, v{r}')
    for r, t in zip(regs, tmps): A(f'{sw} v{r}, v{t}')
    for r, t in zip(regs, tmps): A(f'{op} v{r}, v{r}, v{t}')
S16 = 'v_permlane16_swap_b32'; S32 = 'v_permlane32_swap_b32'
def allreduce_rows(op, regs, tmps):
    swapreduce(S16, op, regs, tmps); swapreduce(S32, op, regs, tmps)
def allreduce64(op, regs, tmps):
    allreduce16(op, regs); allreduce_rows(op, regs, tmps)
def bf16r(d, s):
    A(f'v_cvt_pk_bf16_f32 v{d}, v{s}, v{s}')
    A(f'v_lshlrev_b32 v{d}, 16, v{d}')
def mktag():
    A('''
s_waitcnt lgkmcnt(0)
s_mul_i32 s30, s28, 0x2c9277b5
s_add_u32 s30, s30, 0xac564b05
s_mul_i32 s31, s29, 0x0019660d
s_add_u32 s31, s31, 0x3c6ef35f
''')
lbl = [0]
def newlabel(p):
    lbl[0] += 1
    return f'L_{p}_{lbl[0]}'

def tagcheck(pairs):
    A(f'v_cmp_ne_u64 vcc, s[30:31], v[{pairs[0]}:{pairs[0]+1}]')
    tm = [(20, 21), (22, 23)]
    pend = []
    for i, p in enumerate(pairs[1:]):
        t = tm[i % 2]
        if len(pend) == 2:
            q = pend.pop(0); A(f's_or_b64 vcc, vcc, s[{q[0]}:{q[1]}]')
        A(f'v_cmp_ne_u64 s[{t[0]}:{t[1]}], s[30:31], v[{p}:{p+1}]')
        pend.append(t)
    for q in pend: A(f's_or_b64 vcc, vcc, s[{q[0]}:{q[1]}]')

def spin(body, sleep=0, retry=None, entry=None):
    top = newlabel('spin'); done = newlabel('sdone')
    A(f's_mov_b32 s70, {SPIN}')
    if entry: A(f's_branch {entry}')
    A(f'{top}:')
    body()
    A('s_nop 0')
    A(f's_cbranch_vccz {done}')
    if sleep: A(f's_sleep {sleep}')
    if retry: retry()
    A('s_sub_u32 s70, s70, 1')
    A(f's_cbranch_scc0 {top}')
    if opt['trap']:
        A(f's_lshl_b32 s99, s2, 8\ns_or_b32 s99, s99, s3\ns_lshl_b32 s99, s99, 8\ns_or_b32 s99, s99, {lbl[0] & 255}')
        A(f'v_mov_b32 v166, {4 * (lbl[0] % 64)}\nv_mov_b32 v167, s99')
        A('global_store_dword v166, v167, s[56:57]')
    A(f'{done}:')
def spin2(body, sleep=0, retry=None, local_only=False):
    A(f's_mov_b32 s16, s32\ns_mov_b32 s17, s33\ns_mov_b32 s18, {WSN}\ns_mov_b32 s19, 0x20000')
    def rt():
        if retry: retry()
        A('s_and_b32 s99, s70, 7')
        if local_only:
            A('s_cmp_eq_u32 s46, 1')
            A('s_cselect_b32 s99, 1, s99')
            A('s_cmp_lg_u32 s99, 0')
        A('s_cselect_b32 s16, s32, s24')
        A('s_cselect_b32 s17, s33, s25')
    spin(body, sleep, rt)

def lds_wait_ge(off, n, sleep, dst=4, adr=1):
    A(f'v_mov_b32 v{adr}, 0')
    def body():
        A(f'ds_read_b32 v{dst}, v{adr} offset:{off}')
        A('s_waitcnt lgkmcnt(0)')
        A(f'v_cmp_gt_u32 vcc, {n}, v{dst}')
    spin(body, sleep=sleep)
def get_mode(dst=4, adr=1):
    lds_wait_ge(CNT + 8, 1, 2, dst, adr)
    A(f'v_readfirstlane_b32 s46, v{dst}')
def get_role(sleep, dst=4, adr=1):
    lds_wait_ge(ROLE, 1, sleep, dst, adr)
    A(f'v_readfirstlane_b32 s5, v{dst}')
    A('s_bfe_u32 s47, s5, 0x80008')
    A('s_and_b32 s5, s5, 31')

outline = []
def publish(stores):
    def emit(srdn, fl, AA):
        cur = ALL
        for m, line in stores:
            m = ALL if m is None else m
            if m != cur:
                if m == ALL: AA('s_mov_b64 exec, -1')
                else: AA(f's_mov_b32 exec_lo, 0x{m & 0xffffffff:x}\ns_mov_b32 exec_hi, 0x{m >> 32:x}')
                cur = m
            AA(line.replace('@', f's[{srdn}:{srdn+3}]') + fl)
        if cur != ALL: AA('s_mov_b64 exec, -1')
    if not opt['forceslow']: emit(32, '', A)
    slow = newlabel('slow'); back = newlabel('back')
    A('s_cmp_lg_u32 s46, 1')
    A(f's_cbranch_scc1 {slow}')
    A(f'{back}:')
    blk = [f'{slow}:']
    emit(24, ' sc1', lambda t: blk.append(t))
    blk.append('s_nop 1')
    blk.append(f's_branch {back}')
    outline.append('\n'.join(blk))

A("""
s_cmp_ge_u32 s2, 256
s_cbranch_scc1 L_end
s_load_dwordx2 s[8:9], s[0:1], 8
s_load_dwordx16 s[36:51], s[0:1], 0
s_load_dwordx8 s[52:59], s[0:1], 64
""")
stamp(0)
if opt['dbg']: A('s_memrealtime s[80:81]')
A(f"""
v_lshrrev_b32 v1, 6, v0
v_and_b32 v0, 63, v0
v_readfirstlane_b32 s3, v1
s_and_b32 s4, s2, 7
s_lshr_b32 s79, s2, 6
s_lshl2_add_u32 s6, s4, s79
s_bfe_u32 s7, s2, 0x30003
s_cmp_lg_u32 s3, 3
s_cbranch_scc1 L_nocpf0
s_getpc_b64 s[20:21]
L_pc0:
v_lshlrev_b32 v8, 7, v0
v_add_u32 v9, 8192, v8
v_min_u32 v9, L_codeend-L_pc0-4, v9
global_load_dword v10, v8, s[20:21]
global_load_dword v11, v9, s[20:21]
L_nocpf0:
v_lshlrev_b32 v1, 3, v0
v_mov_b32 v4, 0
v_mov_b32 v5, 0
ds_write_b64 v1, v[4:5] offset:{QF}
s_cmp_lt_u32 s3, 4
s_cbranch_scc1 L_helper
""")

GST = 3072 * 64
A("""
s_sub_u32 s73, s3, 4
s_lshl3_add_u32 s68, s7, s73
s_mul_i32 s60, s6, 12582912
s_mul_i32 s68, s68, 3072
s_add_u32 s60, s60, s68
s_add_u32 s60, s60, 11010048
v_lshrrev_b32 v2, 3, v0
v_mul_u32_u24 v2, 384, v2
v_and_b32 v3, 7, v0
v_lshlrev_b32 v3, 4, v3
v_add_u32 v1, v2, v3
s_mov_b32 s10, 402653184
s_mov_b32 s11, 0x20000
""")
GOFF = [60, 61, 62, 63, 64, 65, 66, 67]
A('s_waitcnt lgkmcnt(0)')

QR = 4; KR = 16
def stream(G, D1, D2, Vpre):
    SC = 168 - G
    VR = KR + 12 * G
    nV1 = min((SC - VR) // 12, G)
    ACC = KR + 12 * (G - 2)
    T = ACC
    half = (G + 1) // 2
    st = dict(n=0)
    def vreg(g): return VR + 12 * g if g < nV1 else KR + 12 * (g - nV1)
    def issue_load(kind, g, j, depth):
        if depth and st['n'] >= depth: A(f's_waitcnt vmcnt({depth-1})')
        r = (KR + 12 * g + 4 * j) if kind == 'K' else vreg(g) + 4 * j
        s = 8 if kind == 'K' else 12
        A(f'buffer_load_dwordx4 v[{r}:{r+3}], v1, s[{s}:{s+3}], s{GOFF[g]} offen offset:{128*j} nt')
        st['n'] += 1
    for g in range(G):
        for j in range(3):
            issue_load('K', g, j, D1)
            if j == 2 and g + 1 < G:
                A(f's_add_u32 s{GOFF[g+1]}, s{GOFF[g]}, {GST}')
            if st['n'] == min(D1, 3): A('s_barrier')
            if g == 1 and j == 0:
                A(f's_load_dwordx2 s[28:29], s[58:59], {EP}')
                ws_srds(); srd(12, 40, 402653184)
    stamp(1)
    nv = 0; NV = 3 * G
    for n in range(min(Vpre, 3 * nV1)):
        issue_load('V', nv // 3, nv % 3, D2); nv += 1
    stamp(2)
    mktag()
    A('v_and_b32 v2, 3, v0\nv_min_u32 v2, 2, v2\nv_lshlrev_b32 v2, 3, v2')
    def body():
        A(f'ds_read_b32 v{QR}, v2 offset:{QF}')
        A('s_waitcnt lgkmcnt(0)')
        A(f'v_cmp_eq_u32 vcc, 0, v{QR}')
    spin(body, sleep=1)
    stamp(3)
    A(f'''
ds_read_b128 v[{QR}:{QR+3}], v3 offset:{QL}
ds_read_b128 v[{QR+4}:{QR+7}], v3 offset:{QL+128}
ds_read_b128 v[{QR+8}:{QR+11}], v3 offset:{QL+256}
''')
    for g in range(G): A(f'v_mov_b32 v{SC+g}, 0')
    A(f's_waitcnt vmcnt({nv}) lgkmcnt(0)')
    for gs in (range(half), range(half, G)):
        for i in range(12):
            for g in gs:
                A(f'v_dot2c_f32_bf16 v{SC+g}, v{KR+12*g+i}, v{QR+i}')
    allreduce8('v_add_f32', [SC + g for g in range(G)])
    A(f's_mov_b32 s68, {f32(192 ** -0.5)}')
    A('v_mov_b32 v2, 0')
    for g in range(G): A(f'v_cvt_pk_bf16_f32 v{SC+g}, v2, v{SC+g}')
    for g in range(G): A(f'v_mul_f32 v{SC+g}, s68, v{SC+g}')
    for g in range(G): A(f'v_cvt_pk_bf16_f32 v{SC+g}, v2, v{SC+g}')
    A(f'v_max_f32 v4, v{SC}, v{SC+1}')
    g = 2
    while g < G:
        if g + 1 < G: A(f'v_max3_f32 v4, v4, v{SC+g}, v{SC+g+1}'); g += 2
        else: A(f'v_max_f32 v4, v4, v{SC+g}'); g += 1
    A(f'v_max_f32_dpp v4, v4, v4 row_ror:8 {DPPM}')
    allreduce_rows('v_max_f32', [4], [T])
    A(f's_mov_b32 s68, {f32(LOG2E)}')
    for g in range(G): A(f'v_sub_f32 v{SC+g}, v{SC+g}, v4')
    for g in range(G): A(f'v_mul_f32 v{SC+g}, s68, v{SC+g}')
    for g in range(G): A(f'v_exp_f32 v{SC+g}, v{SC+g}')
    A(f'v_add_f32 v5, v{SC}, v{SC+1}')
    for g in range(2, G): A(f'v_add_f32 v5, v5, v{SC+g}')
    A(f'v_add_f32_dpp v5, v5, v5 row_ror:8 {DPPM}')
    allreduce_rows('v_add_f32', [5], [T])
    A(f'''
s_lshl_b32 s69, s73, 4
v_mov_b32 v{T}, s69
v_mov_b32 v6, 1
v_mov_b32 v7, 1
ds_write_b128 v{T}, v[4:7] offset:{SL}
''')
    stamp(4)
    for g in range(G): A(f'v_cvt_pk_bf16_f32 v{SC+g}, v{SC+g}, v2')
    for i in range(24): A(f'v_mov_b32 v{ACC+i}, 0')
    A('''
v_and_b32 v8, 7, v0
v_lshlrev_b32 v8, 5, v8
v_lshrrev_b32 v9, 4, v0
v_lshl_add_u32 v8, v9, 3, v8
s_mul_i32 s69, s73, 768
v_add_u32 v8, s69, v8
v_mov_b32 v11, 1
''')
    def pv(idx):
        g, j = divmod(idx, 3)
        r = vreg(g) + 4 * j
        if j == 0: A(f'v_lshlrev_b32 v10, 16, v{SC+g}')
        for e in range(4):
            A(f'v_dot2c_f32_bf16 v{ACC+8*j+2*e}, v{r+e}, v{SC+g}')
            A(f'v_dot2c_f32_bf16 v{ACC+8*j+2*e+1}, v{r+e}, v10')
    done_idx = -1; pv_next = 0
    assert nv < NV - opt['ttrig'] <= NV - opt['wtrig']
    while nv < NV:
        issue_load('V', nv // 3, nv % 3, D2)
        done_idx = nv - D2
        nv += 1
        if nv == NV - opt['ttrig']:
            A(f's_mov_b64 exec, 1\nds_add_u32 v2, v11 offset:{CNT+16}\ns_mov_b64 exec, -1')
        if nv == NV - opt['wtrig']:
            A(f's_mov_b64 exec, 1\nds_add_u32 v2, v11 offset:{CNT+4}\ns_mov_b64 exec, -1')
        cnt = 0
        while pv_next <= done_idx and cnt < 2:
            pv(pv_next); pv_next += 1; cnt += 1
    def scale_factor():
        def body():
            A(f'ds_read_b128 v[12:15], v3 offset:{SL}')
            A('s_waitcnt lgkmcnt(0)')
            A('v_cmp_eq_u32 vcc, 0, v15')
        spin(body, sleep=1)
        allreduce8('v_max_f32', [12])
        A('v_sub_f32 v9, v4, v12\nv_mul_f32 v9, s68, v9\nv_exp_f32 v9, v9')
        get_mode(dst=13, adr=2)
        A(f'''
v_min_u32 v12, 47, v0
v_lshlrev_b32 v13, 7, v12
v_lshlrev_b32 v12, 4, v12
s_mul_i32 s74, s6, 6144
s_lshl4_add_u32 s74, s7, s74
s_add_u32 s74, s74, {OP}
s_mov_b32 s22, 0xaaaaaaaa
s_mov_b32 s23, 0xaaaaaaaa
v_mov_b32 v14, s30
v_mov_b32 v15, s31
''')
    def reduce_j(js):
        for j in js:
            for e in range(4): A(f'{S32} v{ACC+8*j+e}, v{ACC+8*j+e+4}')
        for j in js:
            for e in range(4): A(f'v_add_f32 v{ACC+8*j+e}, v{ACC+8*j+e}, v{ACC+8*j+e+4}')
        for j in js:
            for e in range(2): A(f'{S16} v{ACC+8*j+e}, v{ACC+8*j+e+2}')
        for j in js:
            for e in range(2): A(f'v_add_f32 v{ACC+8*j+e}, v{ACC+8*j+e}, v{ACC+8*j+e+2}')
        for j in js:
            for e in range(2): A(f'v_add_f32_dpp v{ACC+8*j+e}, v{ACC+8*j+e}, v{ACC+8*j+e} row_ror:8 {DPPM}')
        for j in js:
            for e in range(2): A(f'v_mul_f32 v{ACC+8*j+e}, v9, v{ACC+8*j+e}')
            A(f'ds_write_b64 v8, v[{ACC+8*j}:{ACC+8*j+1}] offset:{OL+256*j}')
    fd = False
    while pv_next < NV:
        if pv_next >= NV - 3 and not fd:
            scale_factor(); fd = True
        if pv_next > done_idx:
            A(f's_waitcnt vmcnt({NV - 1 - pv_next})')
            done_idx = pv_next
        pv(pv_next); pv_next += 1
        if pv_next > NV - 3: reduce_j([(pv_next - 1) % 3])
    stamp(5)

stream(8, D1, D2, opt['Vpre'])
A(f'''
s_mov_b64 exec, 1
ds_add_rtn_u32 v10, v2, v11 offset:{CNT}
s_waitcnt lgkmcnt(0)
v_readfirstlane_b32 s68, v10
s_mov_b64 exec, -1
s_cmp_lg_u32 s68, 7
s_cbranch_scc1 L_nopub
''')
for w in range(8): A(f'ds_read_b128 v[{16+4*w}:{19+4*w}], v12 offset:{OL+768*w}')
for w in range(0, 8, 2):
    A(f's_waitcnt lgkmcnt({6-w})')
    for e in range(4): A(f'v_add_f32 v{16+4*w+e}, v{16+4*w+e}, v{20+4*w+e}')
    if w == 2 or w == 6:
        for e in range(4): A(f'v_add_f32 v{8+4*w+e}, v{8+4*w+e}, v{16+4*w+e}')
for e in range(4): A(f'v_add_f32 v{4+e}, v{16+e}, v{32+e}')
A('''
v_cvt_pk_bf16_f32 v8, v4, v5
v_cvt_pk_bf16_f32 v9, v6, v7
v_cndmask_b32 v4, v8, v14, s[22:23]
v_cndmask_b32 v5, v9, v15, s[22:23]
v_cndmask_b32 v6, v14, v8, s[22:23]
v_cndmask_b32 v7, v15, v9, s[22:23]
''')
publish([((1 << 48) - 1, 'buffer_store_dwordx4 v[4:7], v13, @, s74 offen')])
A(f'ds_write_b32 v2, v11 offset:{CNT+28}')
if opt['gdone']:
    A(f'''
s_lshl_b32 s68, s4, 9
s_lshr_b32 s69, s2, 3
s_lshl4_add_u32 s68, s69, s68
s_add_u32 s68, s68, {DN}
s_mov_b64 exec, 1
buffer_store_dwordx4 v[4:7], v12, s[32:35], s68 offen
s_mov_b64 exec, -1
''')
if STAMPS:
    if opt['puback']: A('s_waitcnt vmcnt(0)')
    A('s_memrealtime s[96:97]')
    get_role(1, dst=16, adr=17)
    stamp_val(16, 96, 97)
A('L_nopub:')
stamp(6)
get_role(1, dst=16, adr=17)
A('''
s_cmp_lt_u32 s5, 20
s_cbranch_scc1 L_notf1
s_cmp_lt_u32 s3, 9
s_cbranch_scc1 L_f1
s_branch L_stream_exit
L_notf1:
s_cmp_gt_u32 s5, 11
s_cbranch_scc1 L_stream_exit
s_cmp_gt_u32 s3, 6
s_cbranch_scc1 L_f2
s_endpgm
L_stream_exit:
''')
if STAMPS:
    A(f"s_cmp_eq_u32 s3, {opt['swave']}")
    A('s_cbranch_scc0 L_end')
    stamp(7)
    write_stamps(8)
A('s_endpgm')

A('L_helper:')
A('s_setprio 3')
A('s_cmp_eq_u32 s3, 3')
A('s_cbranch_scc1 L_ids')
A('''
v_lshlrev_b32 v1, 2, v0
v_lshrrev_b32 v2, 3, v0
s_mul_i32 s68, s7, 80
v_add_u32 v3, s68, v2
v_lshlrev_b32 v3, 1, v3
v_mul_u32_u24 v2, 12288, v2
v_and_b32 v7, 7, v0
v_lshl_add_u32 v2, v7, 4, v2
s_mul_i32 s68, s68, 12288
s_mul_i32 s69, s6, 384
s_add_u32 s68, s68, s69
s_lshl_b32 s69, s3, 7
s_add_u32 s68, s68, s69
''')
XS = 64; XU = 70; XR = 8; WQ = 24; QA = 80
A('s_waitcnt lgkmcnt(0)')
A('s_barrier')
srd(8, 42, 640 * 6144 * 2)
for i in range(5): A(f'global_load_dword v{XS+i}, v1, s[36:37] offset:{256*i}')
for r in range(10): A(f'global_load_ushort v{XR+r}, v3, s[36:37] offset:{16*r}')
for r in range(10):
    A(f'buffer_load_dwordx4 v[{WQ+4*r}:{WQ+4*r+3}], v2, s[8:11], s68 offen nt')
    if r < 9: A('s_add_u32 s68, s68, 98304')
A(f's_load_dwordx2 s[28:29], s[58:59], {EP}')
A('s_mov_b32 s69, 0xffff0000')
ws_srds()
mktag()
A('s_waitcnt vmcnt(20)')
for i in range(5):
    A(f'v_lshlrev_b32 v{XU+2*i}, 16, v{XS+i}')
    A(f'v_and_b32 v{XU+1+2*i}, s69, v{XS+i}')
A(f'''
v_add_f32 v4, v{XU}, v{XU+1}
v_add_f32 v5, v{XU+2}, v{XU+3}
v_add_f32 v6, v{XU+4}, v{XU+5}
v_add_f32 v7, v{XU+6}, v{XU+7}
v_add_f32 v4, v4, v5
v_add_f32 v6, v6, v7
v_add_f32 v5, v{XU+8}, v{XU+9}
v_add_f32 v4, v4, v6
v_add_f32 v4, v4, v5
''')
allreduce64('v_add_f32', [4], [5])
A(f'v_mul_f32 v4, {f32(1.0/640)}, v4')
for i in range(10): A(f'v_sub_f32 v{XU+i}, v{XU+i}, v4')
A(f'v_mul_f32 v5, v{XU}, v{XU}')
for i in range(1, 10): A(f'v_fmac_f32 v5, v{XU+i}, v{XU+i}')
allreduce64('v_add_f32', [5], [6])
A(f'v_mul_f32 v5, {f32(1.0/640)}, v5')
bf16r(4, 4); bf16r(5, 5)
A(f'v_add_f32 v5, {f32(1e-5)}, v5')
bf16r(5, 5)
A('v_sqrt_f32 v5, v5')
bf16r(5, 5)
A('v_rcp_f32 v5, v5')
A('v_mov_b32 v6, 0')
A('s_waitcnt vmcnt(10)')
for r in range(10): A(f'v_lshlrev_b32 v{XR+r}, 16, v{XR+r}')
for r in range(10): A(f'v_sub_f32 v{XR+r}, v{XR+r}, v4')
for r in range(10): A(f'v_cvt_pk_bf16_f32 v{XR+r}, v6, v{XR+r}')
for r in range(10): A(f'v_mul_f32 v{XR+r}, v{XR+r}, v5')
for r in range(10):
    A(f'v_cvt_pk_bf16_f32 v{XU+r}, v6, v{XR+r}')
    A(f'v_cvt_pk_bf16_f32 v{XR+r}, v{XR+r}, v6')
for e in range(8): A(f'v_mov_b32 v{QA+e}, 0')
A('''
v_and_b32 v90, 7, v0
v_lshrrev_b32 v6, 4, v0
v_lshl_add_u32 v90, v90, 2, v6
v_lshlrev_b32 v90, 4, v90
s_lshl_b32 s64, s71, 11
s_lshl_b32 s69, s3, 9
s_add_u32 s64, s64, s69
''')
for r in range(10):
    A(f's_waitcnt vmcnt({9-r})')
    for e in range(4):
        A(f'v_dot2c_f32_bf16 v{QA+2*e}, v{WQ+4*r+e}, v{XR+r}')
        A(f'v_dot2c_f32_bf16 v{QA+2*e+1}, v{WQ+4*r+e}, v{XU+r}')
if STAMPS: A('s_lshr_b32 s82, s2, 3\ns_add_u32 s82, s80, s82\ns_addc_u32 s83, s81, 0')
for e in range(4): A(f'{S32} v{QA+e}, v{QA+e+4}')
for e in range(4): A(f'v_add_f32 v{QA+e}, v{QA+e}, v{QA+e+4}')
for e in range(2): A(f'{S16} v{QA+e}, v{QA+e+2}')
for e in range(2): A(f'v_add_f32 v{QA+e}, v{QA+e}, v{QA+e+2}')
for e in range(2): A(f'v_add_f32_dpp v{QA+e}, v{QA+e}, v{QA+e} row_ror:8 {DPPM}')
A(f'v_mov_b32 v{QA+2}, s30\nv_mov_b32 v{QA+3}, s31')
QM = 0x00ff00ff00ff00ff
if not opt['forceslow']:
    setexec(QM)
    A(f'buffer_store_dwordx4 v[{QA}:{QA+3}], v90, s[32:35], s64 offen offset:{QP}')
    setexec(ALL)
A('''
v_and_b32 v3, 31, v0
v_lshrrev_b32 v2, 5, v0
v_lshlrev_b32 v2, 11, v2
v_lshl_add_u32 v2, v3, 4, v2
s_lshl_b32 s68, s6, 14
s_add_u32 s60, s68, s69
s_add_u32 s61, s60, 4096
s_add_u32 s62, s60, 8192
s_add_u32 s63, s60, 12288
v_lshlrev_b32 v3, 2, v3
s_lshl_b32 s69, s3, 7
v_add_u32 v3, s69, v3
v_mov_b32 v1, 0
s_mov_b32 s65, 0
''')
def q_lazy():
    skip = newlabel('qlazy')
    A(f'''
ds_read_b32 v4, v1 offset:{CNT+8}
s_waitcnt lgkmcnt(0)
v_readfirstlane_b32 s46, v4
s_sub_u32 s68, s46, s65
s_cmp_lg_u32 s68, 2
s_cbranch_scc1 {skip}
''')
    setexec(QM)
    A(f'buffer_store_dwordx4 v[{QA}:{QA+3}], v90, s[24:27], s64 offen offset:{QP} sc1')
    setexec(ALL)
    A(f's_mov_b32 s65, 1\n{skip}:')
def body():
    for n in range(4):
        A(f'buffer_load_dwordx4 v[{8+4*n}:{11+4*n}], v2, s[16:19], s{60+n} offen offset:{QP} sc1')
    A('s_waitcnt vmcnt(0)')
    tagcheck([10, 14, 18, 22])
spin2(body, sleep=opt['sleep'], retry=q_lazy)
stamp(2)
A(f'''
v_add_f32 v8, v8, v12
v_add_f32 v9, v9, v13
v_add_f32 v16, v16, v20
v_add_f32 v17, v17, v21
v_add_f32 v8, v8, v16
v_add_f32 v9, v9, v17
''')
swapreduce(S32, 'v_add_f32', [8, 9], [10, 11])
A(f'''
v_cvt_pk_bf16_f32 v8, v8, v9
ds_write_b32 v3, v8 offset:{QL}
s_lshl_b32 s69, s3, 3
v_mov_b32 v4, s69
v_mov_b32 v6, 1
s_waitcnt lgkmcnt(0)
ds_write_b32 v4, v6 offset:{QF}
''')
get_mode()
q_lazy()
A('s_branch L_stats')
A('L_ids:')
A(f'''
s_waitcnt lgkmcnt(0)
s_barrier
s_getreg_b32 s64, hwreg(HW_REG_XCC_ID)
s_load_dwordx2 s[28:29], s[58:59], {EP}
''')
ws_srds()
mktag()
A(f'''
s_and_b32 s64, s64, 15
v_mov_b32 v4, s30
v_mov_b32 v5, s31
v_mov_b32 v6, s64
v_mov_b32 v7, s64
s_lshl_b32 s68, s4, 9
s_add_u32 s68, s68, {ID}
s_lshr_b32 s65, s2, 3
s_lshl_b32 s69, s65, 4
v_mov_b32 v1, s69
s_mov_b64 exec, 1
buffer_store_dwordx4 v[4:7], v1, s[32:35], s68 offen
s_mov_b64 exec, -1
s_mul_i32 s66, s4, 2304
s_add_u32 s66, s66, {TK}
''')
A(f'''
s_cmp_lg_u32 s65, 0
s_cbranch_scc1 L_noinit
v_mov_b32 v12, 0
v_mov_b32 v13, s30
s_mov_b64 exec, 1
buffer_store_dwordx2 v[12:13], v12, s[24:27], s66 offen sc1
s_mov_b64 exec, -1
''')
if opt['pref'] == 2 and opt['prew']:
    A(f'''
v_lshlrev_b32 v12, 8, v0
s_lshl_b32 s69, s4, 15
s_add_u32 s69, s69, {PB}
buffer_store_dword v13, v12, s[24:27], s69 offen sc1
''')
A(f'''
L_noinit:
v_and_b32 v1, 31, v0
v_lshlrev_b32 v1, 4, v1
s_mov_b32 s70, {opt['idtries']}
s_mov_b32 s46, 2
L_idpoll:
s_sleep {opt['idsleep']}
buffer_load_dwordx4 v[8:11], v1, s[32:35], s68 offen sc1
s_waitcnt vmcnt(0)
v_cmp_ne_u64 vcc, s[30:31], v[8:9]
s_nop 0
s_cbranch_vccz L_iddone
s_sub_u32 s70, s70, 1
s_cbranch_scc0 L_idpoll
s_branch L_idset
L_iddone:
v_cmp_ne_u32 vcc, s64, v10
s_nop 0
s_cbranch_vccnz L_idset
s_mov_b32 s46, {2 if opt['forceslow'] else 1}
L_idset:
v_mov_b32 v1, 0
v_mov_b32 v4, s46
ds_write_b32 v1, v4 offset:{CNT+8}
''')
stamp(2)
A('s_cmp_lg_u32 s65, 0\ns_cbranch_scc1 L_stats')
if opt['pref'] == 2:
    A(f'''
s_lshl_b32 s69, s4, 15
s_add_u32 s69, s69, {PB}
s_add_u32 s22, s58, s69
s_addc_u32 s23, s59, 0
s_not_b32 s20, s30
s_mov_b32 s21, 0
s_waitcnt lgkmcnt(0)
''')
    A('s_mov_b32 s8, -1\ns_mov_b32 s9, -1\ns_memtime s[12:13]')
    if opt['diagp']: A('v_mov_b32 v20, 0')
    for k in range(2 * opt['shots']):
        c = (k ^ (k >> 1)) & 1
        i = (k >> 1) * 5 & 31
        a, b = (12, 14) if k % 2 == 0 else (14, 12)
        A('s_waitcnt lgkmcnt(0)')
        A(f's_load_dword s10, s[22:23], {c * 8192 + i * 256}')
        A('s_waitcnt lgkmcnt(0)')
        A(f's_memtime s[{b}:{b+1}]')
        A('s_waitcnt lgkmcnt(0)')
        A(f's_sub_u32 s11, s{b}, s{a}')
        A(f's_min_u32 s{8+c}, s{8+c}, s11')
        if opt['diagp']: A(f'v_writelane_b32 v20, s11, {c * 16 + (k >> 1)}')
    if opt['diagp']:
        A(f'v_writelane_b32 v20, s64, 63\nv_lshlrev_b32 v6, 2, v0\ns_lshl_b32 s69, s4, 8\ns_add_u32 s69, s69, {SP + 0x10000}\nbuffer_store_dword v20, v6, s[24:27], s69 offen')
    A('s_sub_u32 s21, s8, s9')
    A('s_cmp_gt_i32 s21, 0\ns_cselect_b32 s21, 1, 0')
else:
    A(f"s_lshr_b32 s21, s64, 2\ns_xor_b32 s21, s21, {opt['pref']}\ns_and_b32 s21, s21, 1")
A(f'''
v_mov_b32 v4, s21
v_mov_b32 v5, 0
v_mov_b32 v6, s30
v_mov_b32 v7, s31
s_lshl_b32 s69, s4, 4
s_add_u32 s69, s69, {PF}
s_mov_b64 exec, 1
buffer_store_dwordx4 v[4:7], v1, s[24:27], s69 offen sc1
s_mov_b64 exec, -1
''')

A('L_stats:')
A('v_and_b32 v1, 7, v0\nv_lshlrev_b32 v1, 4, v1')
def body():
    A(f'ds_read_b128 v[4:7], v1 offset:{SL}')
    A('s_waitcnt lgkmcnt(0)')
    A('v_cmp_eq_u32 vcc, 0, v7')
spin(body, sleep=4)
A('s_cmp_lg_u32 s3, 3')
A('s_cbranch_scc1 L_nostat')
def combine_stats():
    A(f's_mov_b32 s68, {f32(LOG2E)}')
    A('v_mov_b32 v2, v4')
    allreduce8('v_max_f32', [2])
    A('v_sub_f32 v4, v4, v2\nv_mul_f32 v4, s68, v4\nv_exp_f32 v4, v4\nv_mul_f32 v3, v4, v5')
    allreduce8('v_add_f32', [3])
combine_stats()
A(f'''
s_lshl_b32 s68, s71, 4
s_add_u32 s68, s68, {ST}
v_mov_b32 v4, s30
v_mov_b32 v5, s31
''')
publish([(1, 'buffer_store_dwordx4 v[2:5], v1, @, s68 offen')])
A(f's_mov_b32 s68, {PF}')
def body():
    A('buffer_load_dwordx4 v[8:11], v1, s[24:27], s68 offen sc1')
    A('s_waitcnt vmcnt(0)')
    tagcheck([10])
spin(body, sleep=8)
A('''
v_cmp_ne_u32 vcc, 0, v8
s_nop 0
s_and_b32 s67, vcc_lo, 0xff
s_lshl_b32 s67, s67, 8
s_bitset1_b32 s67, 16
''')
if opt['dyn']:
    lds_wait_ge(CNT + 16, opt['tcnt'], 2)
    stamp(3)
    A('s_mov_b64 exec, 1')
    def body():
        A('v_mov_b32 v8, 1\nv_mov_b32 v9, 0')
        A('buffer_atomic_add_x2 v[8:9], v1, s[24:27], s66 offen sc0 sc1')
        A('s_waitcnt vmcnt(0)')
        A('v_cmp_ne_u32 vcc, s30, v9')
    spin(body, sleep=8)
    A('v_and_b32 v8, 31, v8\nv_or_b32 v8, s67, v8')
else:
    A('''
s_mul_i32 s5, s79, 5
s_add_u32 s5, s5, s7
s_mul_i32 s72, s79, 3
s_add_u32 s72, s72, s7
s_add_u32 s72, s72, 15
s_cmp_lt_u32 s7, 5
s_cselect_b32 s5, s5, s72
s_or_b32 s5, s5, s67
v_mov_b32 v8, s5
v_mov_b32 v1, 0
s_mov_b64 exec, 1
''')
A(f'ds_write_b32 v1, v8 offset:{ROLE}\ns_mov_b64 exec, -1')
A('L_nostat:')
BW = 64
CF = 56
XM = 52
A(f'''
s_cmp_lg_u32 s3, 0
s_cbranch_scc1 L_noc
s_lshl_b32 s73, s4, 9
s_add_u32 s73, s73, {ST}
v_and_b32 v1, 31, v0
v_lshlrev_b32 v1, 4, v1
''')
def body():
    A(f"s_sleep {opt['stsleep']}")
    A('buffer_load_dwordx4 v[4:7], v1, s[16:19], s73 offen sc1')
    A('s_waitcnt vmcnt(0)')
    tagcheck([6])
spin2(body, local_only=True)
stamp(4)
combine_stats()
A(f'''
v_rcp_f32 v3, v3
v_lshrrev_b32 v1, 2, v1
v_mul_f32 v4, v4, v3
v_mov_b32 v2, 0
v_mov_b32 v3, 1
ds_write_b32 v1, v4 offset:{CL}
ds_write_b32 v2, v3 offset:{CNT+24}
L_noc:
''')
get_role(4)
A('''
s_cmp_lt_u32 s5, 20
s_cbranch_scc0 L_helper_exit
''')
def tr_addr(dst, tmp):
    A(f'''
v_lshrrev_b32 v{dst}, 4, v0
v_lshlrev_b32 v{dst}, 10, v{dst}
v_bfe_u32 v{tmp}, v0, 2, 2
v_lshl_add_u32 v{dst}, v{tmp}, 7, v{dst}
v_and_b32 v{tmp}, 3, v0
v_lshl_add_u32 v{dst}, v{tmp}, 3, v{dst}
''')
srd(12, 44, 6144 * 640 * 2)
A(f'''
s_cmp_ge_u32 s5, 10
s_cselect_b32 s76, 1, 0
s_mul_i32 s77, s76, 10
s_sub_u32 s77, s5, s77
s_lshr_b32 s68, s3, 1
s_lshl1_add_u32 s78, s76, s68
v_lshrrev_b32 v21, 3, v0
v_mul_u32_u24 v21, 1280, v21
v_and_b32 v3, 7, v0
v_lshl_add_u32 v21, v3, 4, v21
s_lshl1_add_u32 s60, s4, s76
s_lshl2_add_u32 s60, s60, s3
s_mul_i32 s60, s60, {96*1280}
s_lshl_b32 s69, s77, 7
s_add_u32 s60, s60, s69
s_mul_i32 s61, s3, 12288
s_add_u32 s61, s61, {WL}
v_bfe_u32 v2, v0, 4, 1
v_lshlrev_b32 v2, 4, v2
s_lshl_b32 s68, s78, 5
v_add_u32 v22, s68, v2
''')
A(f'''
v_lshlrev_b32 v60, 4, v0
s_lshl2_add_u32 s73, s4, s78
s_mul_i32 s73, s73, 6144
s_and_b32 s68, s3, 1
s_mul_i32 s68, s68, 3072
s_add_u32 s73, s73, s68
s_add_u32 s73, s73, {OP}
v_lshlrev_b32 v62, 2, v0
s_lshl_b32 s68, s3, 8
v_add_u32 v61, s68, v62
v_lshrrev_b32 v2, 5, v0
v_lshlrev_b32 v2, 11, v2
v_bfe_u32 v3, v0, 2, 3
v_lshl_add_u32 v2, v3, 4, v2
v_and_b32 v3, 1, v0
v_lshl_add_u32 v63, v3, 13, v2
s_lshr_b32 s75, s77, 1
s_lshl_b32 s75, s75, 14
s_and_b32 s68, s77, 1
s_lshl_b32 s68, s68, 12
s_add_u32 s75, s75, s68
s_lshl1_add_u32 s68, s4, s76
s_lshl_b32 s68, s68, 7
s_add_u32 s75, s75, s68
s_add_u32 s75, s75, {YP}
s_mov_b32 s66, 0xff00ff00
s_mov_b32 s67, 0xff00ff00
v_mov_b32 v6, s30
v_mov_b32 v7, s31
v_cndmask_b32 v{XM}, 0, v6, s[66:67]
v_cndmask_b32 v{XM+1}, 0, v7, s[66:67]
v_cndmask_b32 v{XM+2}, v6, 0, s[66:67]
v_cndmask_b32 v{XM+3}, v7, 0, s[66:67]
v_mov_b32 v50, s30
v_mov_b32 v51, s31
''')
tr_addr(24, 25)
A('s_mul_i32 s69, s3, 12288\nv_add_u32 v24, s69, v24')
lds_wait_ge(CNT + 4, 8, 2)
stamp(3)
for n in range(12):
    if n >= opt['DWF']: A(f"s_waitcnt vmcnt({opt['DWF']-1})")
    A('s_mov_b32 m0, s61')
    A('buffer_load_dwordx4 v21, s[12:15], s60 offen nt lds')
    if n < 11:
        A(f's_add_u32 s60, s60, {8*1280}')
        A('s_add_u32 s61, s61, 1024')
lds_wait_ge(CNT + 24, 1, 2)
A(f'ds_read_b128 v[{CF}:{CF+3}], v22 offset:{CL}')
A('s_waitcnt vmcnt(0)')
for t in range(3):
    for u in range(4):
        r = BW + 4 * (4 * t + u)
        A(f'ds_read_b64_tr_b16 v[{r}:{r+1}], v24 offset:{WL + 4096*t + 32*u}')
        A(f'ds_read_b64_tr_b16 v[{r+2}:{r+3}], v24 offset:{WL + 4096*t + 32*u + 512}')
lds_wait_ge(CNT, 8, 1)
stamp(6)
AO = 8
def body():
    stamp(2)
    for t in range(3):
        A(f'buffer_load_dwordx4 v[{AO+4*t}:{AO+4*t+3}], v60, s[16:19], s73 offen offset:{1024*t} sc1')
    for t in range(3):
        A(f's_waitcnt vmcnt({2-t})')
        q = AO + 4 * t
        for e in range(4): A(f'v_xor_b32 v{q+e}, v{q+e}, v{XM+e}')
        for u in range(4):
            r = BW + 4 * (4 * t + u)
            c = '0' if t == 0 else f'v[{32+4*u}:{35+4*u}]'
            A(f'v_mfma_f32_16x16x32_bf16 v[{32+4*u}:{35+4*u}], v[{q}:{q+3}], v[{r}:{r+3}], {c}')
        if t == 0:
            A(f'v_or_b32 v2, v{q}, v{q+1}\nv_or_b32 v3, v{q+2}, v{q+3}')
        else:
            A(f'v_or3_b32 v2, v2, v{q}, v{q+1}\nv_or3_b32 v3, v3, v{q+2}, v{q+3}')
    A('v_cndmask_b32 v2, v3, v2, s[66:67]')
    A('v_cmp_ne_u32 vcc, 0, v2')
spin2(body, local_only=True)
stamp(7)
for u in range(4):
    A(f'v_mul_f32 v{4+u}, v{32+4*u}, v{CF}')
    for r in range(1, 4): A(f'v_fmac_f32 v{4+u}, v{32+4*u+r}, v{CF+r}')
A(f'''
{S32} v4, v6
{S32} v5, v7
v_add_f32 v4, v4, v6
v_add_f32 v5, v5, v7
{S16} v4, v5
v_add_f32 v4, v4, v5
ds_write_b32 v61, v4 offset:{RL}
s_cmp_lg_u32 s3, 0
s_waitcnt lgkmcnt(0)
s_barrier
s_cbranch_scc1 L_post_wo
ds_read_b32 v5, v62 offset:{RL+256}
ds_read_b32 v6, v62 offset:{RL+512}
ds_read_b32 v7, v62 offset:{RL+768}
s_waitcnt lgkmcnt(0)
v_add_f32 v4, v4, v5
v_add_f32 v6, v6, v7
v_add_f32 v4, v4, v6
v_mov_b32_dpp v5, v4 quad_perm:[1,0,3,2] {DPPM}
v_cvt_pk_bf16_f32 v4, v4, v5
v_mov_b32_dpp v48, v4 quad_perm:[0,0,0,0] {DPPM}
v_mov_b32_dpp v49, v4 quad_perm:[2,2,2,2] {DPPM}
''')
setexec(0x3333333333333333)
A('buffer_store_dwordx4 v[48:51], v63, s[24:27], s75 offen sc1')
stamp(5)
A('s_barrier')
write_stamps(0)
A('s_endpgm')
A('L_helper_exit:')
if STAMPS:
    A('s_cmp_lg_u32 s3, 0\ns_cbranch_scc1 L_end')
    write_stamps(0)
A('s_endpgm')

B1R = 64
DR = 16
def gdone_wait(n):
    if not n: return
    lp = newlabel('gpoll'); ld = newlabel('gdone')
    A(f"""
v_and_b32 v1, 31, v0
v_lshlrev_b32 v1, 4, v1
s_lshl_b32 s68, s4, 9
s_add_u32 s68, s68, {DN}
s_mov_b32 s70, 40
s_cmp_lg_u32 s46, 1
s_cbranch_scc1 {ld}
{lp}:
buffer_load_dwordx4 v[4:7], v1, s[32:35], s68 offen sc1
s_waitcnt vmcnt(0)
v_cmp_eq_u64 vcc, s[30:31], v[6:7]
s_nop 0
s_bcnt1_i32_b32 s69, vcc_lo
s_cmp_ge_u32 s69, {n}
s_cbranch_scc1 {ld}
s_sleep 2
s_sub_u32 s70, s70, 1
s_cbranch_scc0 {lp}
{ld}:
""")
def yp_loads():
    A('buffer_load_dwordx4 v[96:99], v55, s[24:27], s60 offen sc1')
    A('buffer_load_dwordx4 v[100:103], v55, s[24:27], s60 offen offset:1024 sc1')
def f1_mfma():
    for k in range(8):
        A(f'v_mfma_f32_16x16x32_bf16 v[{DR+4*k}:{DR+3+4*k}], v[8:11], v[{B1R+4*k}:{B1R+4*k+3}], 0')
def f1_select():
    for m in range(2):
        b = DR + 16 * m
        A(f'v_cndmask_b32 v{12+m}, v{b}, v{b+4}, s[62:63]')
        A(f'v_cndmask_b32 v{12+m}, v{12+m}, v{b+8}, s[64:65]')
        A(f'v_cndmask_b32 v{12+m}, v{12+m}, v{b+12}, s[66:67]')
A('L_f1:')
tr_addr(58, 5)
srd(12, 48, 640 * 1536 * 2); srd(16, 50, 640 * 1536 * 2)
A(f"""
s_mul_i32 s75, s5, 5
s_add_u32 s75, s75, s73
s_sub_u32 s75, s75, 100
s_cmp_ge_u32 s75, 20
s_cselect_b32 s78, 1, 0
s_cmp_ge_u32 s75, 40
s_cselect_b32 s78, 2, s78
s_mul_i32 s68, s78, 20
s_sub_u32 s74, s75, s68
s_mul_i32 s68, s4, 3
s_add_u32 s78, s78, s68
s_lshl_b32 s68, s73, 13
v_add_u32 v58, s68, v58
s_add_u32 s79, s68, {WL}
v_lshrrev_b32 v3, 4, v0
v_and_b32 v2, 7, v0
v_lshl_add_u32 v50, v2, 2, v3
v_lshlrev_b32 v50, 1, v50
s_lshl_b32 s68, s74, 6
v_add_u32 v61, s68, v50
s_lshl_b32 s68, s73, 6
v_add_u32 v51, s68, v50
v_lshlrev_b32 v52, 4, v3
v_add_u32 v52, s68, v52
v_lshlrev_b32 v54, 3, v2
v_add_u32 v54, s68, v54
v_lshrrev_b32 v53, 3, v0
v_mul_u32_u24 v62, 3072, v53
v_lshl_add_u32 v62, v2, 4, v62
s_lshr_b32 s60, s74, 2
s_lshl_b32 s60, s60, 14
s_and_b32 s68, s74, 3
s_lshl_b32 s68, s68, 11
s_add_u32 s60, s60, s68
s_lshr_b32 s68, s47, s4
s_and_b32 s68, s68, 1
s_lshl_b32 s68, s68, 13
s_add_u32 s60, s60, s68
s_add_u32 s60, s60, {YP}
v_lshlrev_b32 v55, 4, v0
v_mov_b32 v57, 0
v_cmp_eq_u32 s[62:63], 1, v3
v_cmp_eq_u32 s[64:65], 2, v3
v_cmp_eq_u32 s[66:67], 3, v3
v_lshrrev_b32 v59, 4, v0
v_mul_u32_u24 v59, 5120, v59
v_bfe_u32 v4, v0, 3, 1
v_lshl_add_u32 v59, v4, 9, v59
v_lshl_add_u32 v59, v2, 4, v59
s_mul_i32 s76, s78, 20480
s_lshr_b32 s68, s74, 2
s_lshl_b32 s68, s68, 10
s_add_u32 s76, s76, s68
s_and_b32 s68, s74, 3
s_lshl_b32 s68, s68, 7
s_add_u32 s76, s76, s68
s_add_u32 s76, s76, {PA}
s_lshl_b32 s72, s78, 9
s_lshl4_add_u32 s72, s74, s72
s_add_u32 s72, s72, {PS}
s_mul_i32 s75, s4, 20
s_add_u32 s75, s75, s74
s_lshl_b32 s75, s75, 7
s_add_u32 s75, s75, {PH}
s_cmp_lt_u32 s5, 24
s_cselect_b32 s75, s75, {PH + 0x6000}
s_mov_b32 s77, 0xffff0000
v_mov_b32 v14, s30
v_mov_b32 v15, s31
s_mul_i32 s61, s74, {32*3072}
s_lshl_b32 s68, s78, 7
s_add_u32 s61, s61, s68
""")
if opt['f1trig'] == 0: lds_wait_ge(CNT + 28, 1, 1)
elif opt['f1trig'] == 1: lds_wait_ge(CNT + 4, 8, 1)
gdone_wait(opt['gdone'])
stamp(3)
for n in range(4):
    for m in range(2):
        A(f's_add_u32 m0, s79, {4096*m + 1024*n}')
        A(f'buffer_load_dwordx4 v62, s[{12+4*m}:{15+4*m}], s61 offen nt lds')
    if n < 3: A(f's_add_u32 s61, s61, {8*3072}')
A('global_load_ushort v56, v61, s[36:37]')
A('s_setprio 3')
A("s_waitcnt vmcnt(0)")
yp_loads()
stamp(6)
for m in range(2):
    for u in range(4):
        r = B1R + 4 * (4 * m + u)
        A(f'ds_read_b64_tr_b16 v[{r}:{r+1}], v58 offset:{WL + 4096*m + 32*u}')
        A(f'ds_read_b64_tr_b16 v[{r+2}:{r+3}], v58 offset:{WL + 4096*m + 32*u + 512}')
A("""
v_mov_b32 v8, 0x3f803f80
v_mov_b32 v9, 0x3f803f80
v_mov_b32 v10, 0x3f803f80
v_mov_b32 v11, 0x3f803f80
s_waitcnt lgkmcnt(0)
""")
f1_mfma()
f1_select()
A('v_cvt_pk_bf16_f32 v60, v12, v13')
def body():
    yp_loads()
    A('L_ypw0:')
    A('s_waitcnt vmcnt(0)')
    tagcheck([98, 102])
spin(body, entry='L_ypw0')
stamp(1)
A(f"""
v_lshlrev_b32 v8, 16, v96
v_lshlrev_b32 v24, 16, v100
v_lshlrev_b32 v10, 16, v97
v_lshlrev_b32 v26, 16, v101
v_and_b32 v9, s77, v96
v_and_b32 v25, s77, v100
v_and_b32 v11, s77, v97
v_and_b32 v27, s77, v101
v_add_f32 v8, v8, v24
v_add_f32 v10, v10, v26
v_add_f32 v9, v9, v25
v_add_f32 v11, v11, v27
v_lshlrev_b32 v56, 16, v56
{S32} v8, v10
{S32} v9, v11
v_add_f32 v8, v8, v10
v_add_f32 v9, v9, v11
{S16} v8, v9
v_add_f32 v8, v8, v9
v_add_f32_dpp v8, v8, v8 row_ror:8 {DPPM}
v_cvt_pk_bf16_f32 v8, v57, v8
v_add_f32 v8, v8, v56
v_cvt_pk_bf16_f32 v8, v8, v8
ds_write_b16 v51, v8 offset:{HL}
v_and_b32 v48, s77, v8
v_mul_f32 v49, v48, v48
s_waitcnt lgkmcnt(0)
ds_read_b128 v[8:11], v52 offset:{HL}
ds_read_b64 v[4:5], v54 offset:{HL}
""")
allreduce8('v_add_f32', [48, 49])
A('s_waitcnt lgkmcnt(0)')
f1_mfma()
swapreduce(S16, 'v_add_f32', [48, 49], [6, 7])
swapreduce(S32, 'v_add_f32', [48, 49], [6, 7])
A('v_mov_b32 v50, s30\nv_mov_b32 v51, s31\nv_mov_b32 v6, s30\nv_mov_b32 v7, s31')
f1_select()
A('v_cvt_pk_bf16_f32 v12, v12, v13\nv_mov_b32 v13, v60')
publish([(None, 'buffer_store_dwordx4 v[12:15], v59, @, s76 offen'),
         (1, 'buffer_store_dwordx4 v[48:51], v55, @, s72 offen'),
         (0xff, 'buffer_store_dwordx4 v[4:7], v55, @, s75 offen')])
if STAMPS:
    stamp_now(13, True)
    stamp_val(18, 82, 83, True)
    stamp_val(23, 92, 93, True)
A('s_endpgm')

A('L_post_wo:')
A("""
s_cmp_gt_u32 s5, 11
s_cbranch_scc1 L_end
s_cmp_eq_u32 s3, 3
s_cbranch_scc1 L_end
v_mov_b32 v57, 0
s_barrier
s_cmp_eq_u32 s3, 1
s_cbranch_scc1 L_hid
""")
A(f"""
s_and_b32 s68, s4, 1
s_lshl_b32 s68, s68, 2
s_sub_u32 s68, 12, s68
s_cmp_ge_u32 s5, s68
s_cbranch_scc1 L_end
s_mul_i32 s72, s4, 5
s_add_u32 s72, s72, 1
s_lshr_b32 s72, s72, 1
s_lshr_b32 s68, s5, 2
s_add_u32 s72, s72, s68
s_and_b32 s73, s5, 3
v_lshrrev_b32 v2, 1, v0
v_lshlrev_b32 v2, 7, v2
v_and_b32 v3, 1, v0
v_lshl_add_u32 v96, v3, 4, v2
s_lshl_b32 s10, s72, 15
s_lshr_b32 s68, s47, s4
s_and_b32 s68, s68, 1
s_lshl_b32 s68, s68, 13
s_add_u32 s10, s10, s68
s_lshl_b32 s68, s73, 5
s_add_u32 s10, s10, s68
s_add_u32 s10, s10, {FP}
s_add_u32 s11, s10, 4096
s_add_u32 s12, s10, 16384
v_lshrrev_b32 v4, 4, v0
v_lshl_add_u32 v97, v3, 2, v4
v_lshlrev_b32 v97, 1, v97
v_lshlrev_b32 v99, 4, v3
v_and_b32 v98, 16, v0
s_mul_i32 s13, s4, 20
s_add_u32 s13, s13, s72
s_lshl_b32 s13, s13, 7
s_add_u32 s13, s13, s68
s_add_u32 s13, s13, {PH}
s_lshl2_add_u32 s14, s72, s73
s_lshl_b32 s14, s14, 4
s_mov_b32 s69, 0xffff0000
""")
FS = 16
srd(64, 54, 1280)
A('v_cmp_lt_u32 s[62:63], 31, v0')
lds_wait_ge(HRDY, 1, 2)
if opt['fsleep']: A(f"s_sleep {opt['fsleep']}")
def body():
    A('buffer_load_dwordx4 v[4:7], v99, s[16:19], s13 offen sc1')
    for n in range(3):
        r = FS + 4 * n
        A(f'buffer_load_dwordx4 v[{r}:{r+3}], v96, s[24:27], s{10+n} offen sc1')
    A('s_waitcnt vmcnt(0)')
    tagcheck([6, FS + 2, FS + 6, FS + 10])
spin2(body, local_only=True)
stamp(5)
for n in range(3):
    A(f'v_lshlrev_b32 v{40+4*n}, 16, v{FS+4*n}')
    A(f'v_and_b32 v{41+4*n}, s69, v{FS+4*n}')
    A(f'v_lshlrev_b32 v{42+4*n}, 16, v{FS+4*n+1}')
    A(f'v_and_b32 v{43+4*n}, s69, v{FS+4*n+1}')
for e in range(4): A(f'v_add_f32 v{8+e}, v{40+e}, v{44+e}')
for e in range(4): A(f'v_add_f32 v{8+e}, v{8+e}, v{48+e}')
A(f"""
v_cndmask_b32 v58, v4, v5, s[62:63]
{S32} v8, v10
{S32} v9, v11
v_add_f32 v8, v8, v10
v_add_f32 v9, v9, v11
v_lshrrev_b32 v58, v98, v58
v_lshlrev_b32 v58, 16, v58
{S16} v8, v9
v_add_f32 v8, v8, v9
v_add_f32_dpp v8, v8, v8 row_ror:8 {DPPM}
v_add_f32_dpp v8, v8, v8 row_ror:4 {DPPM}
v_add_f32_dpp v8, v8, v8 quad_perm:[2,3,0,1] {DPPM}
v_cvt_pk_bf16_f32 v8, v57, v8
v_add_f32 v8, v8, v58
v_cvt_pk_bf16_f32 v8, v8, v8
""")
DBGPTR = ''
if opt['dbgptr']:
    DBGPTR = 'v_mov_b32 v8, s58\nv_mov_b32 v9, s38\nv_mov_b32 v10, s40\nv_mov_b32 v11, s47\nglobal_store_dwordx4 v57, v[8:11], s[56:57]\nv_mov_b32 v12, s44\nv_mov_b32 v13, s48\nv_mov_b32 v14, s54\nv_mov_b32 v15, s56\nglobal_store_dwordx4 v57, v[12:15], s[56:57] offset:16'
setexec(0x0003000300030003)
A(f"""
buffer_store_short v8, v97, s[64:67], s14 offen
s_cmp_lg_u32 s14, 0
s_cbranch_scc1 L_fin_exit
s_mov_b64 exec, 1
v_mov_b32 v4, s30
v_mov_b32 v5, s31
s_mov_b32 s68, {EP}
buffer_store_dwordx2 v[4:5], v57, s[24:27], s68 offen
{DBGPTR}
L_fin_exit:
""")
if opt['dbg']:
    A(f'''
s_cmp_lg_u32 s14, 0
s_cbranch_scc1 L_end
s_memrealtime s[82:83]
s_waitcnt lgkmcnt(0)
s_sub_u32 s84, s82, s80
s_sub_u32 s84, s84, 1500
s_mul_i32 s84, s84, {opt['dbg']}
s_min_u32 s84, s84, 20000
L_dbgspin:
s_memrealtime s[86:87]
s_waitcnt lgkmcnt(0)
s_sub_u32 s86, s86, s82
s_cmp_lt_u32 s86, s84
s_cbranch_scc1 L_dbgspin
''')
if STAMPS:
    A('s_waitcnt vmcnt(0)')
    stamp(7)
    write_stamps(8)
A('s_endpgm')

A('L_hid:')
A(f"""
s_mul_i32 s72, s4, 12
s_add_u32 s72, s72, s5
v_lshrrev_b32 v4, 5, v0
v_and_b32 v2, 7, v0
v_lshl_add_u32 v62, v4, 3, v2
v_lshlrev_b32 v62, 1, v62
v_lshlrev_b32 v60, 4, v0
v_and_b32 v3, 31, v0
v_lshlrev_b32 v61, 4, v3
s_lshr_b32 s65, s72, 2
s_lshl_b32 s65, s65, 9
s_add_u32 s65, s65, {PS}
s_mul_i32 s60, s72, 5120
s_add_u32 s60, s60, {PA}
s_add_u32 s61, s60, 4096
v_mov_b32 v36, 0
v_mov_b32 v37, 0
v_mov_b32 v38, s30
v_mov_b32 v39, s31
v_mov_b32 v59, 1
s_mov_b32 s69, 0xffff0000
""")
def body():
    setexec(0x000fffff000fffff)
    A('buffer_load_dwordx4 v[36:39], v61, s[16:19], s65 offen sc1')
    setexec(ALL)
    for n in range(5):
        A(f'buffer_load_dwordx4 v[{16+4*n}:{19+4*n}], v60, s[16:19], s{60+n//4} offen offset:{1024*(n%4)} sc1')
    A('s_waitcnt vmcnt(0)')
    tagcheck([38, 18, 22, 26, 30, 34])
spin2(body, local_only=True)
stamp(7)
def unp(d, n):
    r = 16 + 4 * n
    A(f'v_lshlrev_b32 v{d}, 16, v{r}\nv_and_b32 v{d+1}, s69, v{r}\nv_lshlrev_b32 v{d+2}, 16, v{r+1}\nv_and_b32 v{d+3}, s69, v{r+1}')
pats = ('quad_perm:[1,0,3,2]', 'quad_perm:[2,3,0,1]', 'row_half_mirror', 'row_mirror')
def st_step(i):
    for r in (36, 37): A(f'v_add_f32_dpp v{r}, v{r}, v{r} {pats[i]} {DPPM}')
st_step(0); unp(8, 0); st_step(1); unp(40, 1); st_step(2); unp(44, 2); st_step(3); unp(48, 3)
A('v_mov_b32 v22, v36\nv_mov_b32 v23, v37')
unp(52, 4)
A(f'{S16} v36, v22\n{S16} v37, v23')
for e in range(4): A(f'v_add_f32 v{8+e}, v{8+e}, v{40+e}')
A('v_add_f32 v36, v36, v22\nv_add_f32 v37, v37, v23')
for e in range(4): A(f'v_add_f32 v{44+e}, v{44+e}, v{48+e}')
A(f'v_mul_f32 v20, {f32(1.0/640)}, v36\nv_mul_f32 v21, {f32(1.0/640)}, v37')
for e in range(4): A(f'v_add_f32 v{8+e}, v{8+e}, v{52+e}')
A('v_fma_f32 v21, -v20, v20, v21\nv_max_f32 v21, 0, v21')
for e in range(4): A(f'v_add_f32 v{8+e}, v{8+e}, v{44+e}')
A(f"""
v_cvt_pk_bf16_f32 v20, v57, v20
v_cvt_pk_bf16_f32 v21, v57, v21
v_fma_f32 v8, -v20, v10, v8
v_fma_f32 v9, -v20, v11, v9
v_add_f32 v21, {f32(1e-5)}, v21
v_cvt_pk_bf16_f32 v21, v57, v21
v_add_f32_dpp v8, v8, v8 row_ror:8 {DPPM}
v_add_f32_dpp v9, v9, v9 row_ror:8 {DPPM}
v_sqrt_f32 v21, v21
v_mov_b32 v10, v8
v_mov_b32 v11, v9
v_cvt_pk_bf16_f32 v21, v57, v21
{S16} v8, v10
v_rcp_f32 v21, v21
{S16} v9, v11
v_add_f32 v8, v8, v10
v_add_f32 v9, v9, v11
v_mul_f32 v8, v8, v21
v_mul_f32 v9, v9, v21
v_cvt_pk_bf16_f32 v8, v57, v8
v_cvt_pk_bf16_f32 v9, v57, v9
v_mul_f32 v12, {f32(-LOG2E)}, v8
v_exp_f32 v12, v12
v_add_f32 v12, 1.0, v12
v_rcp_f32 v12, v12
v_mul_f32 v8, v8, v12
v_cvt_pk_bf16_f32 v8, v57, v8
v_mul_f32 v8, v8, v9
v_cvt_pk_bf16_f32 v8, v8, v8
ds_write_b16 v62, v8 offset:{HID}
""")
A(f'ds_write_b32 v57, v59 offset:{HRDY}')
stamp_val(17, 94, 95)
A('s_endpgm')

A('L_f2:')
W2R = 64
srd(8, 52, 1536 * 640 * 2)
A(f"""
s_mul_i32 s72, s4, 12
s_add_u32 s72, s72, s5
v_mov_b32 v57, 0
s_sub_u32 s68, s3, 7
s_lshl_b32 s69, s68, 8
v_lshlrev_b32 v58, 2, v0
v_add_u32 v58, s69, v58
v_lshrrev_b32 v2, 4, v0
v_lshl_add_u32 v2, s68, 2, v2
v_mul_u32_u24 v3, 52, v2
v_lshrrev_b32 v3, 8, v3
v_mul_u32_u24 v4, 5, v3
v_sub_u32 v4, v2, v4
v_cmp_lt_u32 vcc, 2, v4
v_lshlrev_b32 v3, 1, v3
v_addc_co_u32 v3, vcc, 0, v3, vcc
v_lshrrev_b32 v3, v3, s47
v_and_b32 v3, 1, v3
v_lshlrev_b32 v116, 15, v2
v_lshl_add_u32 v116, v3, 13, v116
v_bfe_u32 v3, v0, 1, 3
v_lshl_add_u32 v116, v3, 4, v116
s_lshr_b32 s79, s72, 6
s_lshl_b32 s79, s79, 14
s_and_b32 s68, s72, 63
s_lshl_b32 s68, s68, 7
s_add_u32 s79, s79, s68
s_add_u32 s79, s79, {FP}
s_mov_b32 s60, 0x05040100
s_mov_b32 s61, 0x07060302
s_mul_i32 s62, s72, 20480
""")
def w2_loads():
    for k in range(16):
        A(f'buffer_load_dword v{W2R+k}, v58, s[8:11], s62 offen offset:{1280*(k%3)} nt')
        if k % 3 == 2: A('s_add_u32 s62, s62, 3840')
if opt['w2early']:
    lds_wait_ge(CNT + 28, 1, 2)
    w2_loads()
A('s_barrier\ns_barrier')
if not opt['w2early']: w2_loads()
A('s_setprio 3')
A('s_waitcnt vmcnt(0)')
stamp(6)
for kp in range(8):
    A(f'v_perm_b32 v{80+kp}, v{W2R+2*kp+1}, v{W2R+2*kp}, s60')
    A(f'v_perm_b32 v{88+kp}, v{W2R+2*kp+1}, v{W2R+2*kp}, s61')
A("""
v_mov_b32 v16, 0
v_mov_b32 v17, 0
v_mov_b32 v6, s30
v_mov_b32 v7, s31
""")
def body():
    A(f'ds_read_b32 v4, v57 offset:{HRDY}')
    A(f'ds_read_b128 v[8:11], v57 offset:{HID}')
    A(f'ds_read_b128 v[12:15], v57 offset:{HID+16}')
    A('s_waitcnt lgkmcnt(0)')
    A('v_cmp_eq_u32 vcc, 0, v4')
spin(body)
for kp in range(8):
    A(f'v_dot2c_f32_bf16 v16, v{8+kp}, v{80+kp}')
    A(f'v_dot2c_f32_bf16 v17, v{8+kp}, v{88+kp}')
A(f"""
v_cvt_pk_bf16_f32 v4, v16, v17
v_mov_b32_dpp v5, v4 quad_perm:[1,0,3,2] {DPPM}
""")
setexec(0x5555555555555555)
A('buffer_store_dwordx4 v[4:7], v116, s[24:27], s79 offen sc1')
if STAMPS:
    setexec(ALL)
    stamp_now(20, True)
    stamp_val(15, 92, 93, True)
A('L_end:')
A('s_endpgm')
for blk in outline: A(blk)
A('L_codeend:')

A.raw('.section .rodata,"a"')
A.raw('.p2align 6')
A.raw(f'.amdhsa_kernel {NAME}_kernel')
A.raw('  .amdhsa_next_free_vgpr 168')
A.raw('  .amdhsa_next_free_sgpr 100')
A.raw('  .amdhsa_accum_offset 168')
A.raw('  .amdhsa_group_segment_fixed_size 0')
A.raw('  .amdhsa_kernarg_size 96')
A.raw('  .amdhsa_user_sgpr_count 2')
A.raw('  .amdhsa_user_sgpr_kernarg_segment_ptr 1')
A.raw('  .amdhsa_system_sgpr_workgroup_id_x 1')
A.raw('.end_amdhsa_kernel')
open(sys.argv[1], 'w').write(A.finalize())
```

```python
import sys, struct, os
from asmlib import Asm

NAME = "sequential_preLN__sliding_block_cached__glu_gated_swiglu__decode"
opt = dict(D1=3, D2=3, stamps=0, spin=200007, sleep=2, Vpre=3, swave=11, stsleep=24, wtrig=3, ttrig=9, tcnt=8, DWF=6,
           idtries=12, idsleep=16, forceslow=0, trap=0, fsleep=16, gdone=0, dyn=0, pref=2, prew=1, shots=4,
           w2early=0, f1trig=0, dbg=0, diagp=0, puback=0, dbgptr=0, fro=0, frp=1, frb=12, f2prio=0, f2free=1, tlb=0, cbpa=0, w2trig=1, padelay=0, prepa=0, prer=1, wsoff=0, qnt=0, ont=0, pre1=5, pre2=0, hnt=0, promo=0, ynt=0, cnt=0, opre=0, ogate=1, wopause=0)
for a in sys.argv[2:]:
    k, v = a.split('=')
    assert k in opt, k
    opt[k] = int(v)
D1 = opt['D1']; D2 = opt['D2']; STAMPS = opt['stamps']; SPIN = opt['spin']

def f32(x): return '0x%08x' % struct.unpack('<I', struct.pack('<f', x))[0]
LOG2E = 1.4426950408889634

QP = 0x0
OP = 0x80000
ST = 0xB0000
ID = 0xB8000
DN = 0xBA000
YP = 0xC0000
EP = 0xE0000
TK = 0xE1000
PF = 0xE8000
FP = 0x100000
PB = 0x1A0000
SP = 0x200000
PA = 0x220000
PS = 0x2A0000
PH = 0x2A4000
CB = 0x300000
WSN = 0x400000
FAST = 0x400000
QL = 0
QF = 384
SL = 512
CNT = 640
HRDY = 704 + 32; ROLE = CNT + 20
CL = 768
HID = 704
OL = 1024
RL = 7168
WL = 8704
LDS = WL + 49152

A = Asm()
A.raw(open(os.path.join(os.path.dirname(os.path.abspath(__file__)), '..', NAME + '.s.ref')).read().split('; Override launch')[0].rstrip())
A.raw(f"; @launch grid=(256,1,1) block=(768,1,1) lds={LDS}")
A.raw('''; Generated by gen/gen13.py (hand-written generator).  One persistent launch, 256 workgroups x 12 waves, 1 per CU.
;  s_sleep is used only as back-off inside / ahead of polling loops.''')
A.raw('.amdgcn_target "amdgcn-amd-amdhsa--gfx950"')
A.raw('.text')
A.raw(f'.globl {NAME}_kernel')
A.raw('.p2align 8')
A.raw(f'.type {NAME}_kernel,@function')
A.raw(f'{NAME}_kernel:')

def stamp(i):
    if STAMPS: A(f's_memrealtime s[{80+2*i}:{81+2*i}]')
def write_stamps(base_idx):
    if not STAMPS: return
    A('s_waitcnt lgkmcnt(0)')
    A('s_mov_b64 exec, 1')
    A('s_lshl3_add_u32 s68, s5, s4')
    A('s_lshl_b32 s68, s68, 8')
    A(f's_add_u32 s68, s68, {SP + base_idx*8}')
    A('v_mov_b32 v1, 0')
    for q in range(4):
        for e in range(4): A(f'v_mov_b32 v{4+e}, s{80+4*q+e}')
        A(f'buffer_store_dwordx4 v[4:7], v1, s[24:27], s68 offen offset:{16*q}')
        A('s_nop 2')
def stamp_val(idx, lo, hi, plus_wave=False):
    if not STAMPS: return
    A('s_lshl3_add_u32 s98, s5, s4')
    A('s_lshl_b32 s98, s98, 8')
    A(f's_add_u32 s98, s98, {SP + idx*8}')
    if plus_wave: A('s_lshl3_add_u32 s98, s3, s98')
    A('s_waitcnt lgkmcnt(0)')
    A(f'v_mov_b32 v120, s{lo}\nv_mov_b32 v121, s{hi}\nv_mov_b32 v122, 0')
    A('s_mov_b64 exec, 1')
    A('buffer_store_dwordx2 v[120:121], v122, s[24:27], s98 offen')
    A('s_mov_b64 exec, -1')
    A('s_nop 1')
def stamp_now(idx, plus_wave=False):
    if not STAMPS: return
    A('s_memrealtime s[96:97]')
    stamp_val(idx, 96, 97, plus_wave)

def srd(d, ptr, nbytes):
    A(f's_mov_b32 s{d}, s{ptr}')
    A(f's_mov_b32 s{d+1}, s{ptr+1}')
    A(f's_mov_b32 s{d+2}, {nbytes}')
    A(f's_mov_b32 s{d+3}, 0x20000')
def wsshift():
    if opt['wsoff']: A(f"s_add_u32 s58, s58, {opt['wsoff'] << 20}\ns_addc_u32 s59, s59, 0")
def ws_srds():
    srd(24, 58, WSN)
    A(f's_add_u32 s32, s58, {FAST}')
    A('s_addc_u32 s33, s59, 0')
    A(f's_mov_b32 s34, {WSN}')
    A('s_mov_b32 s35, 0x20000')
    A('s_lshl3_add_u32 s71, s6, s7')

ALL = (1 << 64) - 1
def setexec(mask):
    if mask == ALL: A('s_mov_b64 exec, -1'); return
    A(f's_mov_b32 exec_lo, 0x{mask & 0xffffffff:x}')
    A(f's_mov_b32 exec_hi, 0x{mask >> 32:x}')

DPPM = 'row_mask:0xf bank_mask:0xf'
def allreduce8(op, regs):
    for pat in ('quad_perm:[1,0,3,2]', 'quad_perm:[2,3,0,1]', 'row_half_mirror'):
        for r in regs: A(f'{op}_dpp v{r}, v{r}, v{r} {pat} {DPPM}')
def allreduce16(op, regs):
    allreduce8(op, regs)
    for r in regs: A(f'{op}_dpp v{r}, v{r}, v{r} row_mirror {DPPM}')
def swapreduce(sw, op, regs, tmps):
    for r, t in zip(regs, tmps): A(f'v_mov_b32 v{t}, v{r}')
    for r, t in zip(regs, tmps): A(f'{sw} v{r}, v{t}')
    for r, t in zip(regs, tmps): A(f'{op} v{r}, v{r}, v{t}')
S16 = 'v_permlane16_swap_b32'; S32 = 'v_permlane32_swap_b32'
def allreduce_rows(op, regs, tmps):
    swapreduce(S16, op, regs, tmps); swapreduce(S32, op, regs, tmps)
def allreduce64(op, regs, tmps):
    allreduce16(op, regs); allreduce_rows(op, regs, tmps)
def bf16r(d, s):
    A(f'v_cvt_pk_bf16_f32 v{d}, v{s}, v{s}')
    A(f'v_lshlrev_b32 v{d}, 16, v{d}')
def mktag():
    A('''
s_waitcnt lgkmcnt(0)
s_mul_i32 s30, s28, 0x2c9277b5
s_add_u32 s30, s30, 0xac564b05
s_mul_i32 s31, s29, 0x0019660d
s_add_u32 s31, s31, 0x3c6ef35f
''')
lbl = [0]
def newlabel(p):
    lbl[0] += 1
    return f'L_{p}_{lbl[0]}'

def tagcheck(pairs):
    A(f'v_cmp_ne_u64 vcc, s[30:31], v[{pairs[0]}:{pairs[0]+1}]')
    tm = [(20, 21), (22, 23)]
    pend = []
    for i, p in enumerate(pairs[1:]):
        t = tm[i % 2]
        if len(pend) == 2:
            q = pend.pop(0); A(f's_or_b64 vcc, vcc, s[{q[0]}:{q[1]}]')
        A(f'v_cmp_ne_u64 s[{t[0]}:{t[1]}], s[30:31], v[{p}:{p+1}]')
        pend.append(t)
    for q in pend: A(f's_or_b64 vcc, vcc, s[{q[0]}:{q[1]}]')

def spin(body, sleep=0, retry=None, entry=None):
    top = newlabel('spin'); done = newlabel('sdone')
    A(f's_mov_b32 s70, {SPIN}')
    if entry: A(f's_branch {entry}')
    A(f'{top}:')
    body()
    A('s_nop 0')
    A(f's_cbranch_vccz {done}')
    if sleep: A(f's_sleep {sleep}')
    if retry: retry()
    A('s_sub_u32 s70, s70, 1')
    A(f's_cbranch_scc0 {top}')
    if opt['trap']:
        A(f's_lshl_b32 s99, s2, 8\ns_or_b32 s99, s99, s3\ns_lshl_b32 s99, s99, 8\ns_or_b32 s99, s99, {lbl[0] & 255}')
        A(f'v_mov_b32 v166, {4 * (lbl[0] % 64)}\nv_mov_b32 v167, s99')
        A('global_store_dword v166, v167, s[56:57]')
    A(f'{done}:')
def spin2(body, sleep=0, retry=None, local_only=False, entry=None):
    A(f's_mov_b32 s16, s32\ns_mov_b32 s17, s33\ns_mov_b32 s18, {WSN}\ns_mov_b32 s19, 0x20000')
    def rt():
        if retry: retry()
        A('s_and_b32 s99, s70, 7')
        if local_only:
            A('s_cmp_eq_u32 s46, 1')
            A('s_cselect_b32 s99, 1, s99')
            A('s_cmp_lg_u32 s99, 0')
        A('s_cselect_b32 s16, s32, s24')
        A('s_cselect_b32 s17, s33, s25')
    spin(body, sleep, rt, entry)

def freepoll(issue, check, nchk, done):
    top = newlabel('fp')
    A(f's_mov_b32 s70, {SPIN}')
    A(f'{top}:')
    issue()
    for k in range(nchk):
        check()
        A('s_nop 0')
        A(f's_cbranch_vccz {done}')
    A(f"s_waitcnt vmcnt({opt['frb']})")
    A('s_sub_u32 s70, s70, 1')
    A(f's_cbranch_scc0 {top}')
    A(f's_branch {done}')

def lds_wait_ge(off, n, sleep, dst=4, adr=1):
    A(f'v_mov_b32 v{adr}, 0')
    def body():
        A(f'ds_read_b32 v{dst}, v{adr} offset:{off}')
        A('s_waitcnt lgkmcnt(0)')
        A(f'v_cmp_gt_u32 vcc, {n}, v{dst}')
    spin(body, sleep=sleep)
def get_mode(dst=4, adr=1):
    lds_wait_ge(CNT + 8, 1, 2, dst, adr)
    A(f'v_readfirstlane_b32 s46, v{dst}')
def get_role(sleep, dst=4, adr=1):
    lds_wait_ge(ROLE, 1, sleep, dst, adr)
    A(f'v_readfirstlane_b32 s5, v{dst}')
    A('s_bfe_u32 s47, s5, 0x80008')
    A('s_and_b32 s5, s5, 31')

outline = []
def publish(stores):
    def emit(srdn, fl, AA):
        cur = ALL
        for m, line in stores:
            m = ALL if m is None else m
            if m != cur:
                if m == ALL: AA('s_mov_b64 exec, -1')
                else: AA(f's_mov_b32 exec_lo, 0x{m & 0xffffffff:x}\ns_mov_b32 exec_hi, 0x{m >> 32:x}')
                cur = m
            AA(line.replace('@', f's[{srdn}:{srdn+3}]') + fl)
        if cur != ALL: AA('s_mov_b64 exec, -1')
    if not opt['forceslow']: emit(32, '', A)
    slow = newlabel('slow'); back = newlabel('back')
    A('s_cmp_lg_u32 s46, 1')
    A(f's_cbranch_scc1 {slow}')
    A(f'{back}:')
    blk = [f'{slow}:']
    emit(24, ' sc1', lambda t: blk.append(t))
    blk.append('s_nop 1')
    blk.append(f's_branch {back}')
    outline.append('\n'.join(blk))

A("""
s_cmp_ge_u32 s2, 256
s_cbranch_scc1 L_end
s_load_dwordx2 s[8:9], s[0:1], 8
s_load_dwordx16 s[36:51], s[0:1], 0
s_load_dwordx8 s[52:59], s[0:1], 64
""")
stamp(0)
if opt['dbg']: A('s_memrealtime s[80:81]')
A(f"""
v_lshrrev_b32 v1, 6, v0
v_and_b32 v0, 63, v0
v_readfirstlane_b32 s3, v1
s_and_b32 s4, s2, 7
s_lshr_b32 s79, s2, 6
s_lshl2_add_u32 s6, s4, s79
s_bfe_u32 s7, s2, 0x30003
s_cmp_lg_u32 s3, 3
s_cbranch_scc1 L_nocpf0
s_getpc_b64 s[20:21]
L_pc0:
v_lshlrev_b32 v8, 7, v0
v_add_u32 v9, 8192, v8
v_min_u32 v9, L_codeend-L_pc0-4, v9
global_load_dword v10, v8, s[20:21]
global_load_dword v11, v9, s[20:21]
L_nocpf0:
v_lshlrev_b32 v1, 3, v0
v_mov_b32 v4, 0
v_mov_b32 v5, 0
ds_write_b64 v1, v[4:5] offset:{QF}
s_cmp_lt_u32 s3, 4
s_cbranch_scc1 L_helper
""")

GST = 3072 * 64
A("""
s_sub_u32 s73, s3, 4
s_lshl3_add_u32 s68, s7, s73
s_mul_i32 s60, s6, 12582912
s_mul_i32 s68, s68, 3072
s_add_u32 s60, s60, s68
s_add_u32 s60, s60, 11010048
v_lshrrev_b32 v2, 3, v0
v_mul_u32_u24 v2, 384, v2
v_and_b32 v3, 7, v0
v_lshlrev_b32 v3, 4, v3
v_add_u32 v1, v2, v3
s_mov_b32 s10, 402653184
s_mov_b32 s11, 0x20000
""")
GOFF = [60, 61, 62, 63, 64, 65, 66, 67]
A('s_waitcnt lgkmcnt(0)')

QR = 4; KR = 16
def stream(G, D1, D2, Vpre):
    SC = 168 - G
    VR = KR + 12 * G
    nV1 = min((SC - VR) // 12, G)
    ACC = KR + 12 * (G - 2)
    T = ACC
    half = (G + 1) // 2
    st = dict(n=0)
    def vreg(g): return VR + 12 * g if g < nV1 else KR + 12 * (g - nV1)
    def issue_load(kind, g, j, depth):
        if depth and st['n'] >= depth: A(f's_waitcnt vmcnt({depth-1})')
        r = (KR + 12 * g + 4 * j) if kind == 'K' else vreg(g) + 4 * j
        s = 8 if kind == 'K' else 12
        A(f'buffer_load_dwordx4 v[{r}:{r+3}], v1, s[{s}:{s+3}], s{GOFF[g]} offen offset:{128*j} nt')
        st['n'] += 1
    for g in range(G):
        for j in range(3):
            issue_load('K', g, j, D1)
            if j == 2 and g + 1 < G:
                A(f's_add_u32 s{GOFF[g+1]}, s{GOFF[g]}, {GST}')
            if st['n'] == min(D1, 3): A('s_barrier')
            if g == 1 and j == 0:
                wsshift(); A(f's_load_dwordx2 s[28:29], s[58:59], {EP}')
                ws_srds(); srd(12, 40, 402653184)
    stamp(1)
    nv = 0; NV = 3 * G
    for n in range(min(Vpre, 3 * nV1)):
        issue_load('V', nv // 3, nv % 3, D2); nv += 1
    stamp(2)
    mktag()
    A('v_and_b32 v2, 3, v0\nv_min_u32 v2, 2, v2\nv_lshlrev_b32 v2, 3, v2')
    def body():
        A(f'ds_read_b32 v{QR}, v2 offset:{QF}')
        A('s_waitcnt lgkmcnt(0)')
        A(f'v_cmp_eq_u32 vcc, 0, v{QR}')
    spin(body, sleep=1)
    stamp(3)
    A(f'''
ds_read_b128 v[{QR}:{QR+3}], v3 offset:{QL}
ds_read_b128 v[{QR+4}:{QR+7}], v3 offset:{QL+128}
ds_read_b128 v[{QR+8}:{QR+11}], v3 offset:{QL+256}
''')
    for g in range(G): A(f'v_mov_b32 v{SC+g}, 0')
    A(f's_waitcnt vmcnt({nv}) lgkmcnt(0)')
    for gs in (range(half), range(half, G)):
        for i in range(12):
            for g in gs:
                A(f'v_dot2c_f32_bf16 v{SC+g}, v{KR+12*g+i}, v{QR+i}')
    allreduce8('v_add_f32', [SC + g for g in range(G)])
    A(f's_mov_b32 s68, {f32(192 ** -0.5)}')
    A('v_mov_b32 v2, 0')
    for g in range(G): A(f'v_cvt_pk_bf16_f32 v{SC+g}, v2, v{SC+g}')
    for g in range(G): A(f'v_mul_f32 v{SC+g}, s68, v{SC+g}')
    for g in range(G): A(f'v_cvt_pk_bf16_f32 v{SC+g}, v2, v{SC+g}')
    A(f'v_max_f32 v4, v{SC}, v{SC+1}')
    g = 2
    while g < G:
        if g + 1 < G: A(f'v_max3_f32 v4, v4, v{SC+g}, v{SC+g+1}'); g += 2
        else: A(f'v_max_f32 v4, v4, v{SC+g}'); g += 1
    A(f'v_max_f32_dpp v4, v4, v4 row_ror:8 {DPPM}')
    allreduce_rows('v_max_f32', [4], [T])
    A(f's_mov_b32 s68, {f32(LOG2E)}')
    for g in range(G): A(f'v_sub_f32 v{SC+g}, v{SC+g}, v4')
    for g in range(G): A(f'v_mul_f32 v{SC+g}, s68, v{SC+g}')
    for g in range(G): A(f'v_exp_f32 v{SC+g}, v{SC+g}')
    A(f'v_add_f32 v5, v{SC}, v{SC+1}')
    for g in range(2, G): A(f'v_add_f32 v5, v5, v{SC+g}')
    A(f'v_add_f32_dpp v5, v5, v5 row_ror:8 {DPPM}')
    allreduce_rows('v_add_f32', [5], [T])
    A(f'''
s_lshl_b32 s69, s73, 4
v_mov_b32 v{T}, s69
v_mov_b32 v6, 1
v_mov_b32 v7, 1
ds_write_b128 v{T}, v[4:7] offset:{SL}
''')
    stamp(4)
    for g in range(G): A(f'v_cvt_pk_bf16_f32 v{SC+g}, v{SC+g}, v2')
    for i in range(24): A(f'v_mov_b32 v{ACC+i}, 0')
    A('''
v_and_b32 v8, 7, v0
v_lshlrev_b32 v8, 5, v8
v_lshrrev_b32 v9, 4, v0
v_lshl_add_u32 v8, v9, 3, v8
s_mul_i32 s69, s73, 768
v_add_u32 v8, s69, v8
v_mov_b32 v11, 1
''')
    def pv(idx):
        g, j = divmod(idx, 3)
        r = vreg(g) + 4 * j
        if j == 0: A(f'v_lshlrev_b32 v10, 16, v{SC+g}')
        for e in range(4):
            A(f'v_dot2c_f32_bf16 v{ACC+8*j+2*e}, v{r+e}, v{SC+g}')
            A(f'v_dot2c_f32_bf16 v{ACC+8*j+2*e+1}, v{r+e}, v10')
    done_idx = -1; pv_next = 0
    assert nv < NV - opt['ttrig'] <= NV - opt['wtrig']
    while nv < NV:
        issue_load('V', nv // 3, nv % 3, D2)
        done_idx = nv - D2
        nv += 1
        if nv == NV - opt['ttrig']:
            A(f's_mov_b64 exec, 1\nds_add_u32 v2, v11 offset:{CNT+16}\ns_mov_b64 exec, -1')
        if nv == NV - opt['wtrig']:
            A(f's_mov_b64 exec, 1\nds_add_u32 v2, v11 offset:{CNT+4}\ns_mov_b64 exec, -1')
        cnt = 0
        while pv_next <= done_idx and cnt < 2:
            pv(pv_next); pv_next += 1; cnt += 1
    def scale_factor():
        def body():
            A(f'ds_read_b128 v[12:15], v3 offset:{SL}')
            A('s_waitcnt lgkmcnt(0)')
            A('v_cmp_eq_u32 vcc, 0, v15')
        spin(body, sleep=1)
        allreduce8('v_max_f32', [12])
        A('v_sub_f32 v9, v4, v12\nv_mul_f32 v9, s68, v9\nv_exp_f32 v9, v9')
        get_mode(dst=13, adr=2)
        A(f'''
v_min_u32 v12, 47, v0
v_lshlrev_b32 v13, 7, v12
v_lshlrev_b32 v12, 4, v12
s_mul_i32 s74, s6, 6144
s_lshl4_add_u32 s74, s7, s74
s_add_u32 s74, s74, {OP}
s_mov_b32 s22, 0xaaaaaaaa
s_mov_b32 s23, 0xaaaaaaaa
v_mov_b32 v14, s30
v_mov_b32 v15, s31
''')
    def reduce_j(js):
        for j in js:
            for e in range(4): A(f'{S32} v{ACC+8*j+e}, v{ACC+8*j+e+4}')
        for j in js:
            for e in range(4): A(f'v_add_f32 v{ACC+8*j+e}, v{ACC+8*j+e}, v{ACC+8*j+e+4}')
        for j in js:
            for e in range(2): A(f'{S16} v{ACC+8*j+e}, v{ACC+8*j+e+2}')
        for j in js:
            for e in range(2): A(f'v_add_f32 v{ACC+8*j+e}, v{ACC+8*j+e}, v{ACC+8*j+e+2}')
        for j in js:
            for e in range(2): A(f'v_add_f32_dpp v{ACC+8*j+e}, v{ACC+8*j+e}, v{ACC+8*j+e} row_ror:8 {DPPM}')
        for j in js:
            for e in range(2): A(f'v_mul_f32 v{ACC+8*j+e}, v9, v{ACC+8*j+e}')
            A(f'ds_write_b64 v8, v[{ACC+8*j}:{ACC+8*j+1}] offset:{OL+256*j}')
    fd = False
    while pv_next < NV:
        if pv_next >= NV - 3 and not fd:
            scale_factor(); fd = True
        if pv_next > done_idx:
            A(f's_waitcnt vmcnt({NV - 1 - pv_next})')
            done_idx = pv_next
        pv(pv_next); pv_next += 1
        if pv_next > NV - 3: reduce_j([(pv_next - 1) % 3])
    stamp(5)

stream(8, D1, D2, opt['Vpre'])
A(f'''
s_mov_b64 exec, 1
ds_add_rtn_u32 v10, v2, v11 offset:{CNT}
s_mov_b64 exec, -1
''')
for w in range(8): A(f'ds_read_b128 v[{16+4*w}:{19+4*w}], v12 offset:{OL+768*w}')
A('''
s_waitcnt lgkmcnt(8)
v_readfirstlane_b32 s68, v10
s_cmp_lg_u32 s68, 7
s_cbranch_scc1 L_nopub
''')
def pkadd(d, a, b):
    for e in (0, 2): A(f'v_pk_add_f32 v[{d+e}:{d+e+1}], v[{a+e}:{a+e+1}], v[{b+e}:{b+e+1}]')
for w in range(0, 8, 2):
    A(f's_waitcnt lgkmcnt({6-w})')
    pkadd(16 + 4*w, 16 + 4*w, 20 + 4*w)
    if w == 2 or w == 6: pkadd(8 + 4*w, 8 + 4*w, 16 + 4*w)
pkadd(4, 16, 32)
A('''
v_cvt_pk_bf16_f32 v8, v4, v5
v_cvt_pk_bf16_f32 v9, v6, v7
v_cndmask_b32 v4, v8, v14, s[22:23]
v_cndmask_b32 v5, v9, v15, s[22:23]
v_cndmask_b32 v6, v14, v8, s[22:23]
v_cndmask_b32 v7, v15, v9, s[22:23]
''')
publish([((1 << 48) - 1, 'buffer_store_dwordx4 v[4:7], v13, @, s74 offen')])
A(f'ds_write_b32 v2, v11 offset:{CNT+28}')
if opt['wopause']: A(f'v_mov_b32 v10, 64\nds_write_b32 v2, v10 offset:{CNT}')
if opt['gdone']:
    A(f'''
s_lshl_b32 s68, s4, 9
s_lshr_b32 s69, s2, 3
s_lshl4_add_u32 s68, s69, s68
s_add_u32 s68, s68, {DN}
s_mov_b64 exec, 1
buffer_store_dwordx4 v[4:7], v12, s[32:35], s68 offen
s_mov_b64 exec, -1
''')
if STAMPS:
    A('s_memrealtime s[96:97]')
    if opt['puback']: A('s_waitcnt vmcnt(0)\ns_memrealtime s[94:95]')
    get_role(1, dst=16, adr=17)
    stamp_val(16, 96, 97)
    if opt['puback']:
        A('s_cmp_lt_u32 s5, 20\ns_cbranch_scc1 L_pa1')
        stamp_val(5, 94, 95)
        A('s_branch L_pa2\nL_pa1:')
        stamp_val(18, 94, 95)
        A('L_pa2:')
A('L_nopub:')
A('s_waitcnt lgkmcnt(0)')
stamp(6)
get_role(1, dst=16, adr=17)
A('''
s_cmp_lt_u32 s5, 20
s_cbranch_scc1 L_notf1
s_cmp_lt_u32 s3, 9
s_cbranch_scc1 L_f1
s_branch L_stream_exit
L_notf1:
s_cmp_gt_u32 s5, 11
s_cbranch_scc1 L_stream_exit
s_cmp_gt_u32 s3, 6
s_cbranch_scc1 L_f2
s_endpgm
L_stream_exit:
''')
if STAMPS:
    A(f"s_cmp_eq_u32 s3, {opt['swave']}")
    A('s_cbranch_scc0 L_end')
    stamp(7)
    write_stamps(8)
A('s_endpgm')

A('L_helper:')
A('s_setprio 3')
A('s_cmp_eq_u32 s3, 3')
A('s_cbranch_scc1 L_ids')
A('''
v_lshlrev_b32 v1, 2, v0
v_lshrrev_b32 v2, 3, v0
s_mul_i32 s68, s7, 80
v_add_u32 v3, s68, v2
v_lshlrev_b32 v3, 1, v3
v_mul_u32_u24 v2, 12288, v2
v_and_b32 v7, 7, v0
v_lshl_add_u32 v2, v7, 4, v2
s_mul_i32 s68, s68, 12288
s_mul_i32 s69, s6, 384
s_add_u32 s68, s68, s69
s_lshl_b32 s69, s3, 7
s_add_u32 s68, s68, s69
''')
XS = 64; XU = 70; XR = 8; WQ = 24; QA = 80
A('s_waitcnt lgkmcnt(0)')
A('s_barrier')
srd(8, 42, 640 * 6144 * 2)
for i in range(5): A(f'global_load_dword v{XS+i}, v1, s[36:37] offset:{256*i}')
for r in range(10): A(f'global_load_ushort v{XR+r}, v3, s[36:37] offset:{16*r}')
for r in range(10):
    A(f'buffer_load_dwordx4 v[{WQ+4*r}:{WQ+4*r+3}], v2, s[8:11], s68 offen nt')
    if r < 9: A('s_add_u32 s68, s68, 98304')
wsshift(); A(f's_load_dwordx2 s[28:29], s[58:59], {EP}')
A('s_mov_b32 s69, 0xffff0000')
ws_srds()
mktag()
A('s_waitcnt vmcnt(20)')
for i in range(5):
    A(f'v_lshlrev_b32 v{XU+2*i}, 16, v{XS+i}')
    A(f'v_and_b32 v{XU+1+2*i}, s69, v{XS+i}')
A(f'''
v_add_f32 v4, v{XU}, v{XU+1}
v_add_f32 v5, v{XU+2}, v{XU+3}
v_add_f32 v6, v{XU+4}, v{XU+5}
v_add_f32 v7, v{XU+6}, v{XU+7}
v_add_f32 v4, v4, v5
v_add_f32 v6, v6, v7
v_add_f32 v5, v{XU+8}, v{XU+9}
v_add_f32 v4, v4, v6
v_add_f32 v4, v4, v5
''')
allreduce64('v_add_f32', [4], [5])
A(f'v_mul_f32 v4, {f32(1.0/640)}, v4')
for i in range(10): A(f'v_sub_f32 v{XU+i}, v{XU+i}, v4')
A(f'v_mul_f32 v5, v{XU}, v{XU}')
for i in range(1, 10): A(f'v_fmac_f32 v5, v{XU+i}, v{XU+i}')
allreduce64('v_add_f32', [5], [6])
A(f'v_mul_f32 v5, {f32(1.0/640)}, v5')
bf16r(4, 4); bf16r(5, 5)
A(f'v_add_f32 v5, {f32(1e-5)}, v5')
bf16r(5, 5)
A('v_sqrt_f32 v5, v5')
bf16r(5, 5)
A('v_rcp_f32 v5, v5')
A('v_mov_b32 v6, 0')
A('s_waitcnt vmcnt(10)')
for r in range(10): A(f'v_lshlrev_b32 v{XR+r}, 16, v{XR+r}')
for r in range(10): A(f'v_sub_f32 v{XR+r}, v{XR+r}, v4')
for r in range(10): A(f'v_cvt_pk_bf16_f32 v{XR+r}, v6, v{XR+r}')
for r in range(10): A(f'v_mul_f32 v{XR+r}, v{XR+r}, v5')
for r in range(10):
    A(f'v_cvt_pk_bf16_f32 v{XU+r}, v6, v{XR+r}')
    A(f'v_cvt_pk_bf16_f32 v{XR+r}, v{XR+r}, v6')
for e in range(8): A(f'v_mov_b32 v{QA+e}, 0')
A('''
v_and_b32 v90, 7, v0
v_lshrrev_b32 v6, 4, v0
v_lshl_add_u32 v90, v90, 2, v6
v_lshlrev_b32 v90, 4, v90
s_lshl_b32 s64, s71, 11
s_lshl_b32 s69, s3, 9
s_add_u32 s64, s64, s69
''')
for r in range(10):
    A(f's_waitcnt vmcnt({9-r})')
    for e in range(4):
        A(f'v_dot2c_f32_bf16 v{QA+2*e}, v{WQ+4*r+e}, v{XR+r}')
        A(f'v_dot2c_f32_bf16 v{QA+2*e+1}, v{WQ+4*r+e}, v{XU+r}')
if STAMPS: A('s_lshr_b32 s82, s2, 3\ns_add_u32 s82, s80, s82\ns_addc_u32 s83, s81, 0')
for e in range(4): A(f'{S32} v{QA+e}, v{QA+e+4}')
for e in range(4): A(f'v_add_f32 v{QA+e}, v{QA+e}, v{QA+e+4}')
for e in range(2): A(f'{S16} v{QA+e}, v{QA+e+2}')
for e in range(2): A(f'v_add_f32 v{QA+e}, v{QA+e}, v{QA+e+2}')
for e in range(2): A(f'v_add_f32_dpp v{QA+e}, v{QA+e}, v{QA+e} row_ror:8 {DPPM}')
A(f'v_mov_b32 v{QA+2}, s30\nv_mov_b32 v{QA+3}, s31')
QM = 0x00ff00ff00ff00ff
if not opt['forceslow']:
    setexec(QM)
    A(f'buffer_store_dwordx4 v[{QA}:{QA+3}], v90, s[32:35], s64 offen offset:{QP}')
    setexec(ALL)
A('''
v_and_b32 v3, 31, v0
v_lshrrev_b32 v2, 5, v0
v_lshlrev_b32 v2, 11, v2
v_lshl_add_u32 v2, v3, 4, v2
s_lshl_b32 s68, s6, 14
s_add_u32 s60, s68, s69
s_add_u32 s61, s60, 4096
s_add_u32 s62, s60, 8192
s_add_u32 s63, s60, 12288
v_lshlrev_b32 v3, 2, v3
s_lshl_b32 s69, s3, 7
v_add_u32 v3, s69, v3
v_mov_b32 v1, 0
s_mov_b32 s65, 0
''')
def q_lazy():
    skip = newlabel('qlazy')
    A(f'''
ds_read_b32 v4, v1 offset:{CNT+8}
s_waitcnt lgkmcnt(0)
v_readfirstlane_b32 s46, v4
s_sub_u32 s68, s46, s65
s_cmp_lg_u32 s68, 2
s_cbranch_scc1 {skip}
''')
    setexec(QM)
    A(f'buffer_store_dwordx4 v[{QA}:{QA+3}], v90, s[24:27], s64 offen offset:{QP} sc1')
    setexec(ALL)
    A(f's_mov_b32 s65, 1\n{skip}:')
def body():
    for n in range(4):
        A(f'buffer_load_dwordx4 v[{8+4*n}:{11+4*n}], v2, s[16:19], s{60+n} offen offset:{QP} sc1' + (' nt' if opt['qnt'] else ''))
    A('s_waitcnt vmcnt(0)')
    tagcheck([10, 14, 18, 22])
spin2(body, sleep=opt['sleep'], retry=q_lazy)
stamp(2)
A(f'''
v_add_f32 v8, v8, v12
v_add_f32 v9, v9, v13
v_add_f32 v16, v16, v20
v_add_f32 v17, v17, v21
v_add_f32 v8, v8, v16
v_add_f32 v9, v9, v17
''')
swapreduce(S32, 'v_add_f32', [8, 9], [10, 11])
A(f'''
v_cvt_pk_bf16_f32 v8, v8, v9
ds_write_b32 v3, v8 offset:{QL}
s_lshl_b32 s69, s3, 3
v_mov_b32 v4, s69
v_mov_b32 v6, 1
s_waitcnt lgkmcnt(0)
ds_write_b32 v4, v6 offset:{QF}
''')
get_mode()
q_lazy()
if opt['tlb']:
    A(f'''
s_cmp_lg_u32 s3, 1
s_cbranch_scc1 L_stats
s_mov_b64 exec, 1
s_mul_i32 s68, s4, {768*1280}
v_mov_b32 v8, s68
v_add_u32 v9, {768*1280-4}, v8
global_load_dword v16, v8, s[44:45]
global_load_dword v17, v9, s[44:45]
global_load_dword v18, v1, s[48:49]
global_load_dword v19, v1, s[50:51]
global_load_dword v20, v1, s[52:53]
global_load_dword v21, v1, s[54:55]
s_mov_b32 s68, {EP}
buffer_load_dword v22, v1, s[24:27], s68 offen
s_mov_b32 s68, {WSN - 128}
buffer_load_dword v23, v1, s[32:35], s68 offen
s_mov_b64 exec, -1
s_waitcnt vmcnt(0)
''')
A('s_branch L_stats')
A('L_ids:')
A(f'''
s_waitcnt lgkmcnt(0)
s_barrier
s_getreg_b32 s64, hwreg(HW_REG_XCC_ID)
''')
wsshift(); A(f's_load_dwordx2 s[28:29], s[58:59], {EP}')
ws_srds()
mktag()
A(f'''
s_and_b32 s64, s64, 15
v_mov_b32 v4, s30
v_mov_b32 v5, s31
v_mov_b32 v6, s64
v_mov_b32 v7, s64
s_lshl_b32 s68, s4, 9
s_add_u32 s68, s68, {ID}
s_lshr_b32 s65, s2, 3
s_lshl_b32 s69, s65, 4
v_mov_b32 v1, s69
s_mov_b64 exec, 1
buffer_store_dwordx4 v[4:7], v1, s[32:35], s68 offen
s_mov_b64 exec, -1
s_mul_i32 s66, s4, 2304
s_add_u32 s66, s66, {TK}
''')
A(f'''
s_cmp_lg_u32 s65, 0
s_cbranch_scc1 L_noinit
v_mov_b32 v12, 0
v_mov_b32 v13, s30
s_mov_b64 exec, 1
buffer_store_dwordx2 v[12:13], v12, s[24:27], s66 offen sc1
s_mov_b64 exec, -1
''')
if opt['pref'] == 2 and opt['prew']:
    A(f'''
v_lshlrev_b32 v12, 8, v0
s_lshl_b32 s69, s4, 15
s_add_u32 s69, s69, {PB}
buffer_store_dword v13, v12, s[24:27], s69 offen sc1
''')
A(f'''
L_noinit:
v_and_b32 v1, 31, v0
v_lshlrev_b32 v1, 4, v1
s_mov_b32 s70, {opt['idtries']}
s_mov_b32 s46, 2
L_idpoll:
s_sleep {opt['idsleep']}
buffer_load_dwordx4 v[8:11], v1, s[32:35], s68 offen sc1
s_waitcnt vmcnt(0)
v_cmp_ne_u64 vcc, s[30:31], v[8:9]
s_nop 0
s_cbranch_vccz L_iddone
s_sub_u32 s70, s70, 1
s_cbranch_scc0 L_idpoll
s_branch L_idset
L_iddone:
v_cmp_ne_u32 vcc, s64, v10
s_nop 0
s_cbranch_vccnz L_idset
s_mov_b32 s46, {2 if opt['forceslow'] else 1}
L_idset:
v_mov_b32 v1, 0
v_mov_b32 v4, s46
ds_write_b32 v1, v4 offset:{CNT+8}
''')
stamp(2)
A('s_cmp_lg_u32 s65, 0\ns_cbranch_scc1 L_stats')
if opt['pref'] == 2:
    A(f'''
s_lshl_b32 s69, s4, 15
s_add_u32 s69, s69, {PB}
s_add_u32 s22, s58, s69
s_addc_u32 s23, s59, 0
s_not_b32 s20, s30
s_mov_b32 s21, 0
s_waitcnt lgkmcnt(0)
''')
    A('s_mov_b32 s8, -1\ns_mov_b32 s9, -1\ns_memtime s[12:13]')
    if opt['diagp']: A('v_mov_b32 v20, 0')
    for k in range(2 * opt['shots']):
        c = (k ^ (k >> 1)) & 1
        i = (k >> 1) * 5 & 31
        a, b = (12, 14) if k % 2 == 0 else (14, 12)
        A('s_waitcnt lgkmcnt(0)')
        A(f's_load_dword s10, s[22:23], {c * 8192 + i * 256}')
        A('s_waitcnt lgkmcnt(0)')
        A(f's_memtime s[{b}:{b+1}]')
        A('s_waitcnt lgkmcnt(0)')
        A(f's_sub_u32 s11, s{b}, s{a}')
        A(f's_min_u32 s{8+c}, s{8+c}, s11')
        if opt['diagp']: A(f'v_writelane_b32 v20, s11, {c * 16 + (k >> 1)}')
    if opt['diagp']:
        A(f'v_writelane_b32 v20, s64, 63\nv_lshlrev_b32 v6, 2, v0\ns_lshl_b32 s69, s4, 8\ns_add_u32 s69, s69, {SP + 0x10000}\nbuffer_store_dword v20, v6, s[24:27], s69 offen')
    A('s_sub_u32 s21, s8, s9')
    A('s_cmp_gt_i32 s21, 0\ns_cselect_b32 s21, 1, 0')
else:
    A(f"s_lshr_b32 s21, s64, 2\ns_xor_b32 s21, s21, {opt['pref']}\ns_and_b32 s21, s21, 1")
A(f'''
v_mov_b32 v4, s21
v_mov_b32 v5, 0
v_mov_b32 v6, s30
v_mov_b32 v7, s31
s_lshl_b32 s69, s4, 4
s_add_u32 s69, s69, {PF}
s_mov_b64 exec, 1
buffer_store_dwordx4 v[4:7], v1, s[24:27], s69 offen sc1
s_mov_b64 exec, -1
''')

A('L_stats:')
A('v_and_b32 v1, 7, v0\nv_lshlrev_b32 v1, 4, v1')
def body():
    A(f'ds_read_b128 v[4:7], v1 offset:{SL}')
    A('s_waitcnt lgkmcnt(0)')
    A('v_cmp_eq_u32 vcc, 0, v7')
spin(body, sleep=4)
A('s_cmp_lg_u32 s3, 3')
A('s_cbranch_scc1 L_nostat')
def combine_stats():
    A(f's_mov_b32 s68, {f32(LOG2E)}')
    A('v_mov_b32 v2, v4')
    allreduce8('v_max_f32', [2])
    A('v_sub_f32 v4, v4, v2\nv_mul_f32 v4, s68, v4\nv_exp_f32 v4, v4\nv_mul_f32 v3, v4, v5')
    allreduce8('v_add_f32', [3])
combine_stats()
A(f'''
s_lshl_b32 s68, s71, 4
s_add_u32 s68, s68, {ST}
v_mov_b32 v4, s30
v_mov_b32 v5, s31
''')
publish([(1, 'buffer_store_dwordx4 v[2:5], v1, @, s68 offen')])
A(f's_mov_b32 s68, {PF}')
def body():
    A('buffer_load_dwordx4 v[8:11], v1, s[24:27], s68 offen sc1')
    A('s_waitcnt vmcnt(0)')
    tagcheck([10])
spin(body, sleep=8)
A('''
v_cmp_ne_u32 vcc, 0, v8
s_nop 0
s_and_b32 s67, vcc_lo, 0xff
s_lshl_b32 s67, s67, 8
s_bitset1_b32 s67, 16
''')
if opt['dyn']:
    lds_wait_ge(CNT + 16, opt['tcnt'], 2)
    stamp(3)
    A('s_mov_b64 exec, 1')
    def body():
        A('v_mov_b32 v8, 1\nv_mov_b32 v9, 0')
        A('buffer_atomic_add_x2 v[8:9], v1, s[24:27], s66 offen sc0 sc1')
        A('s_waitcnt vmcnt(0)')
        A('v_cmp_ne_u32 vcc, s30, v9')
    spin(body, sleep=8)
    A('v_and_b32 v8, 31, v8\nv_or_b32 v8, s67, v8')
else:
    A('''
s_mul_i32 s5, s79, 5
s_add_u32 s5, s5, s7
s_mul_i32 s72, s79, 3
s_add_u32 s72, s72, s7
s_add_u32 s72, s72, 15
s_cmp_lt_u32 s7, 5
s_cselect_b32 s5, s5, s72
s_or_b32 s5, s5, s67
v_mov_b32 v8, s5
v_mov_b32 v1, 0
s_mov_b64 exec, 1
''')
A(f'ds_write_b32 v1, v8 offset:{ROLE}\ns_mov_b64 exec, -1')
A('L_nostat:')
BW = 64
CF = 56
XM = 52
A(f'''
s_cmp_lg_u32 s3, 0
s_cbranch_scc1 L_noc
s_lshl_b32 s73, s4, 9
s_add_u32 s73, s73, {ST}
v_and_b32 v1, 31, v0
v_lshlrev_b32 v1, 4, v1
''')
def body():
    A(f"s_sleep {opt['stsleep']}")
    A('buffer_load_dwordx4 v[4:7], v1, s[16:19], s73 offen sc1')
    A('s_waitcnt vmcnt(0)')
    tagcheck([6])
spin2(body, local_only=True)
stamp(4)
combine_stats()
A(f'''
v_rcp_f32 v3, v3
v_lshrrev_b32 v1, 2, v1
v_mul_f32 v4, v4, v3
v_mov_b32 v2, 0
v_mov_b32 v3, 1
ds_write_b32 v1, v4 offset:{CL}
ds_write_b32 v2, v3 offset:{CNT+24}
L_noc:
''')
get_role(4)
A('''
s_cmp_lt_u32 s5, 20
s_cbranch_scc0 L_helper_exit
''')
def tr_addr(dst, tmp):
    A(f'''
v_lshrrev_b32 v{dst}, 4, v0
v_lshlrev_b32 v{dst}, 10, v{dst}
v_bfe_u32 v{tmp}, v0, 2, 2
v_lshl_add_u32 v{dst}, v{tmp}, 7, v{dst}
v_and_b32 v{tmp}, 3, v0
v_lshl_add_u32 v{dst}, v{tmp}, 3, v{dst}
''')
srd(12, 44, 6144 * 640 * 2)
A(f'''
s_cmp_ge_u32 s5, 10
s_cselect_b32 s76, 1, 0
s_mul_i32 s77, s76, 10
s_sub_u32 s77, s5, s77
s_lshr_b32 s68, s3, 1
s_lshl1_add_u32 s78, s76, s68
v_lshrrev_b32 v21, 3, v0
v_mul_u32_u24 v21, 1280, v21
v_and_b32 v3, 7, v0
v_lshl_add_u32 v21, v3, 4, v21
s_lshl1_add_u32 s60, s4, s76
s_lshl2_add_u32 s60, s60, s3
s_mul_i32 s60, s60, {96*1280}
s_lshl_b32 s69, s77, 7
s_add_u32 s60, s60, s69
s_mul_i32 s61, s3, 12288
s_add_u32 s61, s61, {WL}
v_bfe_u32 v2, v0, 4, 1
v_lshlrev_b32 v2, 4, v2
s_lshl_b32 s68, s78, 5
v_add_u32 v22, s68, v2
''')
A(f'''
v_lshlrev_b32 v60, 4, v0
s_lshl2_add_u32 s73, s4, s78
s_mul_i32 s73, s73, 6144
s_and_b32 s68, s3, 1
s_mul_i32 s68, s68, 3072
s_add_u32 s73, s73, s68
s_add_u32 s73, s73, {OP}
v_lshlrev_b32 v62, 2, v0
s_lshl_b32 s68, s3, 8
v_add_u32 v61, s68, v62
v_lshrrev_b32 v2, 5, v0
v_lshlrev_b32 v2, 11, v2
v_bfe_u32 v3, v0, 2, 3
v_lshl_add_u32 v2, v3, 4, v2
v_and_b32 v3, 1, v0
v_lshl_add_u32 v63, v3, 13, v2
s_lshr_b32 s75, s77, 1
s_lshl_b32 s75, s75, 14
s_and_b32 s68, s77, 1
s_lshl_b32 s68, s68, 12
s_add_u32 s75, s75, s68
s_lshl1_add_u32 s68, s4, s76
s_lshl_b32 s68, s68, 7
s_add_u32 s75, s75, s68
s_add_u32 s75, s75, {YP}
s_mov_b32 s66, 0xff00ff00
s_mov_b32 s67, 0xff00ff00
s_mov_b32 s8, 0x33333333
s_mov_b32 s9, 0x33333333
v_mov_b32 v6, s30
v_mov_b32 v7, s31
v_cndmask_b32 v{XM}, 0, v6, s[66:67]
v_cndmask_b32 v{XM+1}, 0, v7, s[66:67]
v_cndmask_b32 v{XM+2}, v6, 0, s[66:67]
v_cndmask_b32 v{XM+3}, v7, 0, s[66:67]
v_mov_b32 v50, s30
v_mov_b32 v51, s31
''')
tr_addr(24, 25)
A('s_mul_i32 s69, s3, 12288\nv_add_u32 v24, s69, v24')
lds_wait_ge(CNT + 4, 8, 2)
stamp(3)
for n in range(12):
    if n >= opt['DWF']:
        A(f"s_waitcnt vmcnt({opt['DWF']-1})")
        if opt['wopause']:
            def body():
                A(f'ds_read_b32 v4, v1 offset:{CNT}')
                A('s_waitcnt lgkmcnt(0)')
                A(f"v_subrev_u32 v4, {opt['wopause']}, v4")
                A(f'v_cmp_gt_u32 vcc, 32, v4')
            spin(body)
    A('s_mov_b32 m0, s61')
    A('buffer_load_dwordx4 v21, s[12:15], s60 offen nt lds')
    if n < 11:
        A(f's_add_u32 s60, s60, {8*1280}')
        A('s_add_u32 s61, s61, 1024')
lds_wait_ge(CNT + 24, 1, 2)
A(f'ds_read_b128 v[{CF}:{CF+3}], v22 offset:{CL}')
def wo_tr(ts):
    for t in ts:
        for u in range(4):
            r = BW + 4 * (4 * t + u)
            A(f'ds_read_b64_tr_b16 v[{r}:{r+1}], v24 offset:{WL + 4096*t + 32*u}')
            A(f'ds_read_b64_tr_b16 v[{r+2}:{r+3}], v24 offset:{WL + 4096*t + 32*u + 512}')
AO = 8
def op_loads(srdn):
    stamp(2)
    for t in range(3):
        A(f'buffer_load_dwordx4 v[{AO+4*t}:{AO+4*t+3}], v60, s[{srdn}:{srdn+3}], s73 offen offset:{1024*t} sc1' + (' nt' if opt['ont'] else ''))
A('v_mov_b32 v23, 1\ns_lshl_b32 s68, s3, 2\nv_mov_b32 v25, s68')
if opt['opre'] < 0:
    A('s_waitcnt vmcnt(0)')
    wo_tr([0, 1, 2])
    lds_wait_ge(CNT, 8, 1)
else:
    A('s_waitcnt vmcnt(4)')
    wo_tr([0, 1])
    if opt['ogate']: lds_wait_ge(CNT + 28, 1, 1)
    else: lds_wait_ge(CNT, 8, 1)
    A(f"s_waitcnt vmcnt({opt['opre']})")
    op_loads(32)
    A('s_waitcnt vmcnt(3)')
    wo_tr([2])
    A('s_waitcnt lgkmcnt(0)')
stamp(6)
def body():
    op_loads(16)
    A('L_opw:')
    for t in range(3):
        A(f's_waitcnt vmcnt({2-t})')
        q = AO + 4 * t
        for e in range(4): A(f'v_xor_b32 v{q+e}, v{q+e}, v{XM+e}')
        for u in range(4):
            r = BW + 4 * (4 * t + u)
            c = '0' if t == 0 else f'v[{32+4*u}:{35+4*u}]'
            A(f'v_mfma_f32_16x16x32_bf16 v[{32+4*u}:{35+4*u}], v[{q}:{q+3}], v[{r}:{r+3}], {c}')
        if t == 0:
            A(f'v_or_b32 v2, v{q}, v{q+1}\nv_or_b32 v3, v{q+2}, v{q+3}')
        else:
            A(f'v_or3_b32 v2, v2, v{q}, v{q+1}\nv_or3_b32 v3, v3, v{q+2}, v{q+3}')
    A('v_cndmask_b32 v2, v3, v2, s[66:67]')
    A('v_cmp_ne_u32 vcc, 0, v2')
spin2(body, local_only=True, entry='L_opw' if opt['opre'] >= 0 else None)
stamp(7)
if opt['w2trig'] == 0: A(f'ds_write_b32 v25, v23 offset:{CNT+32}')
for u in range(4):
    A(f'v_mul_f32 v{4+u}, v{32+4*u}, v{CF}')
    for r in range(1, 4): A(f'v_fmac_f32 v{4+u}, v{32+4*u+r}, v{CF+r}')
A(f'''
{S32} v4, v6
{S32} v5, v7
v_add_f32 v4, v4, v6
v_add_f32 v5, v5, v7
{S16} v4, v5
v_add_f32 v4, v4, v5
ds_write_b32 v61, v4 offset:{RL}
s_cmp_lg_u32 s3, 0
s_waitcnt lgkmcnt(0)
s_barrier
s_cbranch_scc1 L_post_wo
ds_read_b32 v5, v62 offset:{RL+256}
ds_read_b32 v6, v62 offset:{RL+512}
ds_read_b32 v7, v62 offset:{RL+768}
s_waitcnt lgkmcnt(0)
v_add_f32 v4, v4, v5
v_add_f32 v6, v6, v7
v_add_f32 v4, v4, v6
v_mov_b32_dpp v5, v4 quad_perm:[1,0,3,2] {DPPM}
v_cvt_pk_bf16_f32 v4, v4, v5
v_mov_b32_dpp v48, v4 quad_perm:[0,0,0,0] {DPPM}
v_mov_b32_dpp v49, v4 quad_perm:[2,2,2,2] {DPPM}
''')
A('s_mov_b64 exec, s[8:9]')
A('buffer_store_dwordx4 v[48:51], v63, s[24:27], s75 offen sc1')
stamp(5)
A('s_barrier')
if opt['cbpa']: A('s_barrier')
write_stamps(0)
A('s_endpgm')
A('L_helper_exit:')
if opt['prer'] >= 3:
    A('s_cmp_lg_u32 s3, 1\ns_cbranch_scc1 L_noprer')
    if opt['prer'] == 3: lds_wait_ge(CNT + 16, 8, 4)
    if opt['prer'] == 4: lds_wait_ge(CNT + 4, 8, 4)
    A(f'''
s_mul_i32 s68, s4, 12
s_add_u32 s68, s68, s5
s_sub_u32 s68, s68, 20
v_lshlrev_b32 v1, 7, v0
s_mul_i32 s60, s68, 5120
s_add_u32 s61, s60, {CB}
s_add_u32 s60, s60, {PA}
s_lshl_b32 s62, s68, 7
s_add_u32 s62, s62, {PS}
s_mul_i32 s63, s4, 5120
s_add_u32 s63, s63, {PH}
s_mov_b32 exec_lo, -1
s_mov_b32 exec_hi, 0xff
buffer_load_dword v4, v1, s[32:35], s60 offen {'nt' if opt['hnt'] else 'sc1'}
buffer_load_dword v5, v1, s[32:35], s61 offen {'nt' if opt['hnt'] else 'sc1'}
s_cmp_lg_u32 s5, 20
s_cbranch_scc1 L_noph
buffer_load_dword v6, v1, s[32:35], s63 offen sc1
L_noph:
s_mov_b64 exec, 1
buffer_load_dword v7, v1, s[32:35], s62 offen sc1
s_endpgm
L_noprer:
''')
if STAMPS:
    A('s_cmp_lg_u32 s3, 0\ns_cbranch_scc1 L_end')
    write_stamps(0)
A('s_endpgm')

B1R = 64
DR = 16
def gdone_wait(n):
    if not n: return
    lp = newlabel('gpoll'); ld = newlabel('gdone')
    A(f"""
v_and_b32 v1, 31, v0
v_lshlrev_b32 v1, 4, v1
s_lshl_b32 s68, s4, 9
s_add_u32 s68, s68, {DN}
s_mov_b32 s70, 40
s_cmp_lg_u32 s46, 1
s_cbranch_scc1 {ld}
{lp}:
buffer_load_dwordx4 v[4:7], v1, s[32:35], s68 offen sc1
s_waitcnt vmcnt(0)
v_cmp_eq_u64 vcc, s[30:31], v[6:7]
s_nop 0
s_bcnt1_i32_b32 s69, vcc_lo
s_cmp_ge_u32 s69, {n}
s_cbranch_scc1 {ld}
s_sleep 2
s_sub_u32 s70, s70, 1
s_cbranch_scc0 {lp}
{ld}:
""")
def yp_loads(fl=''):
    A('buffer_load_dwordx4 v[96:99], v55, s[24:27], s60 offen sc1' + fl)
    A('buffer_load_dwordx4 v[100:103], v55, s[24:27], s60 offen offset:1024 sc1' + fl)
def f1_mfma():
    for k in range(8):
        A(f'v_mfma_f32_16x16x32_bf16 v[{DR+4*k}:{DR+3+4*k}], v[8:11], v[{B1R+4*k}:{B1R+4*k+3}], 0')
def f1_select(d):
    for m in range(2):
        b = DR + 16 * m
        A(f'v_cndmask_b32 v{d+m}, v{b}, v{b+4}, s[62:63]')
        A(f'v_cndmask_b32 v{d+m}, v{d+m}, v{b+8}, s[64:65]')
        A(f'v_cndmask_b32 v{d+m}, v{d+m}, v{b+12}, s[66:67]')
A('L_f1:')
A('''
v_lshrrev_b32 v58, 4, v0
v_lshlrev_b32 v58, 7, v58
v_bfe_u32 v5, v0, 2, 2
v_lshl_add_u32 v58, v5, 9, v58
v_and_b32 v5, 3, v0
v_lshl_add_u32 v58, v5, 3, v58
''')
srd(12, 48, 640 * 1536 * 2); srd(16, 50, 640 * 1536 * 2)
A(f"""
s_mul_i32 s75, s5, 5
s_add_u32 s75, s75, s73
s_sub_u32 s75, s75, 100
s_cmp_ge_u32 s75, 20
s_cselect_b32 s78, 1, 0
s_cmp_ge_u32 s75, 40
s_cselect_b32 s78, 2, s78
s_mul_i32 s68, s78, 20
s_sub_u32 s74, s75, s68
s_mul_i32 s68, s4, 3
s_add_u32 s78, s78, s68
s_lshl_b32 s68, s73, 13
v_add_u32 v58, s68, v58
s_add_u32 s79, s68, {WL}
v_lshrrev_b32 v3, 4, v0
v_and_b32 v2, 7, v0
v_lshl_add_u32 v50, v2, 2, v3
v_lshlrev_b32 v50, 1, v50
s_lshl_b32 s68, s74, 6
v_add_u32 v61, s68, v50
v_lshlrev_b32 v54, 6, v3
v_lshl_add_u32 v54, v2, 3, v54
v_lshrrev_b32 v53, 3, v0
v_mul_u32_u24 v62, 3072, v53
v_lshl_add_u32 v62, v2, 4, v62
s_lshr_b32 s60, s74, 2
s_lshl_b32 s60, s60, 14
s_and_b32 s68, s74, 3
s_lshl_b32 s68, s68, 11
s_add_u32 s60, s60, s68
s_lshr_b32 s68, s47, s4
s_and_b32 s68, s68, 1
s_lshl_b32 s68, s68, 13
s_add_u32 s60, s60, s68
s_add_u32 s60, s60, {YP}
v_lshlrev_b32 v55, 4, v0
v_mov_b32 v57, 0
v_cmp_eq_u32 s[62:63], 1, v3
v_cmp_eq_u32 s[64:65], 2, v3
v_cmp_eq_u32 s[66:67], 3, v3
v_lshrrev_b32 v59, 4, v0
v_mul_u32_u24 v59, 5120, v59
v_bfe_u32 v4, v0, 3, 1
v_lshl_add_u32 v59, v4, 9, v59
v_lshl_add_u32 v59, v2, 4, v59
s_mul_i32 s76, s78, 20480
s_lshr_b32 s68, s74, 2
s_lshl_b32 s68, s68, 10
s_add_u32 s76, s76, s68
s_and_b32 s68, s74, 3
s_lshl_b32 s68, s68, 7
s_add_u32 s76, s76, s68
s_add_u32 s76, s76, {PA}
s_lshl_b32 s72, s78, 9
s_lshl4_add_u32 s72, s74, s72
s_add_u32 s72, s72, {PS}
s_mul_i32 s75, s4, 20
s_add_u32 s75, s75, s74
s_lshl_b32 s75, s75, 8
s_add_u32 s75, s75, {PH}
s_cmp_lt_u32 s5, 24
s_cselect_b32 s75, s75, {PH + 0xA000}
s_mov_b32 s77, 0x3f80
s_mov_b32 s71, 0x3f800000
v_mov_b32 v14, s30
v_mov_b32 v15, s31
s_mul_i32 s61, s74, {32*3072}
s_lshl_b32 s68, s78, 7
s_add_u32 s61, s61, s68
""")
if opt['f1trig'] == 0: lds_wait_ge(CNT + 28, 1, 1)
elif opt['f1trig'] == 1: lds_wait_ge(CNT + 4, 8, 1)
gdone_wait(opt['gdone'])
stamp(3)
for n in range(4):
    for m in range(2):
        A(f's_add_u32 m0, s79, {4096*m + 1024*n}')
        A(f'buffer_load_dwordx4 v62, s[{12+4*m}:{15+4*m}], s61 offen nt lds')
    if n < 3: A(f's_add_u32 s61, s61, {8*3072}')
A('global_load_ushort v56, v61, s[36:37]')
PFL = ' nt' if opt['prer'] == 2 else ' sc1'
def preread(mask, PFL=None):
    PFL = PFL or globals()['PFL']
    A(f's_add_u32 s68, s76, {CB - PA}\ns_mov_b32 exec_lo, 0x01010101\ns_mov_b32 exec_hi, 0x01010101')
    if mask & 1: A(f'buffer_load_dword v104, v59, s[32:35], s76 offen{PFL}')
    if mask & 2: A(f'buffer_load_dword v105, v59, s[32:35], s68 offen{PFL}')
    if mask & 4: A(f'buffer_load_dword v106, v54, s[32:35], s75 offen{PFL}')
    if mask & 4: A(f's_mov_b64 exec, 1\nbuffer_load_dword v107, v55, s[32:35], s72 offen{PFL}')
    A('s_mov_b64 exec, -1')
    return (mask & 1) + (mask >> 1 & 1) + 2 * (mask >> 2 & 1)
npre = preread(opt['pre1']) if opt['prer'] in (1, 2) and opt['pre1'] else 0
A('s_setprio 3')
A(f"s_waitcnt vmcnt({0 if opt['promo'] else npre})")
if opt['prer'] in (1, 2) and opt['pre2']: preread(opt['pre2'], ' sc1' if opt['promo'] else None)
yp_loads(' nt' if opt['ynt'] else '')
stamp(6)
for m in range(2):
    for u in range(4):
        r = B1R + 4 * (4 * m + u)
        A(f'ds_read_b64_tr_b16 v[{r}:{r+1}], v58 offset:{WL + 4096*m + 32*u}')
        A(f'ds_read_b64_tr_b16 v[{r+2}:{r+3}], v58 offset:{WL + 4096*m + 32*u + 2048}')
A("""
v_mov_b32 v8, 0x3f803f80
v_mov_b32 v9, 0x3f803f80
v_mov_b32 v10, 0x3f803f80
v_mov_b32 v11, 0x3f803f80
s_waitcnt lgkmcnt(0)
""")
f1_mfma()
A('v_mov_b32 v6, s30\nv_mov_b32 v7, s31\nv_mov_b32 v50, s30\nv_mov_b32 v51, s31')
A(f's_add_u32 s68, s76, {CB - PA}')
if opt['prepa'] == 2:
    A('s_waitcnt vmcnt(2)\nv_not_b32 v10, s30\nbuffer_store_dwordx4 v[8:11], v59, s[32:35], s76 offen')
    A('s_mov_b64 exec, 1\nbuffer_store_dwordx4 v[8:11], v55, s[32:35], s72 offen')
    setexec(0x0055005500550055)
    A('buffer_store_dwordx4 v[8:11], v54, s[32:35], s75 offen\ns_mov_b64 exec, -1')
if opt['prepa'] == 1:
    A('v_not_b32 v10, s30\nbuffer_store_dwordx4 v[8:11], v59, s[32:35], s76 offen')
f1_select(12)
publish([(None, 'buffer_store_dwordx4 v[12:15], v59, @, s68 offen')])
A('v_mov_b32 v8, 0\nv_mov_b32 v9, 0\nv_mov_b32 v10, 0\nv_mov_b32 v11, 0\nv_lshlrev_b32 v56, 16, v56')
def body():
    yp_loads()
    A('L_ypw0:')
    A('s_waitcnt vmcnt(0)')
    tagcheck([98, 102])
spin(body, entry='L_ypw0')
stamp(1)
for r in (96, 100):
    A(f'v_dot2c_f32_bf16 v8, s77, v{r}\nv_dot2c_f32_bf16 v10, s77, v{r+1}\nv_dot2c_f32_bf16 v9, s71, v{r}\nv_dot2c_f32_bf16 v11, s71, v{r+1}')
A(f"""
{S32} v8, v10
{S32} v9, v11
v_add_f32 v8, v8, v10
v_add_f32 v9, v9, v11
{S16} v8, v9
v_add_f32 v8, v8, v9
v_add_f32_dpp v8, v8, v8 row_ror:8 {DPPM}
v_cvt_pk_bf16_f32 v8, v57, v8
v_add_f32 v12, v8, v56
v_mov_b32_dpp v13, v12 quad_perm:[1,0,3,2] {DPPM}
v_cvt_pk_bf16_f32 v12, v12, v13
v_lshlrev_b32 v48, 16, v12
v_mul_f32 v49, v48, v48
v_mov_b32_dpp v8, v12 row_newbcast:0 {DPPM}
v_mov_b32_dpp v9, v12 row_newbcast:2 {DPPM}
v_mov_b32_dpp v10, v12 row_newbcast:4 {DPPM}
v_mov_b32_dpp v11, v12 row_newbcast:6 {DPPM}
""")
stat = []
for pat in ('quad_perm:[1,0,3,2]', 'quad_perm:[2,3,0,1]', 'row_half_mirror'):
    stat.append([f'v_add_f32_dpp v{r}, v{r}, v{r} {pat} {DPPM}' for r in (48, 49)])
for sw in (S16, S32):
    stat.append(['v_mov_b32 v52, v48', 'v_mov_b32 v53, v49'])
    stat.append([f'{sw} v48, v52', f'{sw} v49, v53'])
    stat.append(['v_add_f32 v48, v48, v52', 'v_add_f32 v49, v49, v53'])
for l in stat.pop(0): A(l)
for k in range(8):
    A(f'v_mfma_f32_16x16x32_bf16 v[{DR+4*k}:{DR+3+4*k}], v[8:11], v[{B1R+4*k}:{B1R+4*k+3}], 0')
    for l in stat.pop(0): A(l)
f1_select(4)
publish([(None, 'buffer_store_dwordx4 v[4:7], v59, @, s76 offen'),
         (1, 'buffer_store_dwordx4 v[48:51], v55, @, s72 offen'),
         (0x0055005500550055, 'buffer_store_dwordx4 v[12:15], v54, @, s75 offen')])
if STAMPS:
    stamp_now(13, True)
    stamp_val(18, 82, 83, True)
    stamp_val(23, 92, 93, True)
A('s_endpgm')

A('L_post_wo:')
A("""
s_cmp_gt_u32 s5, 11
s_cbranch_scc1 L_end
s_cmp_eq_u32 s3, 3
s_cbranch_scc1 L_end
v_mov_b32 v57, 0
""")
A('s_cmp_eq_u32 s3, 1\ns_cbranch_scc1 L_hid\ns_barrier')
if opt['cbpa']: A('s_barrier')
A(f"""
s_and_b32 s68, s4, 1
s_lshl_b32 s68, s68, 2
s_sub_u32 s68, 12, s68
s_cmp_ge_u32 s5, s68
s_cbranch_scc1 L_end
s_mul_i32 s72, s4, 5
s_add_u32 s72, s72, 1
s_lshr_b32 s72, s72, 1
s_lshr_b32 s68, s5, 2
s_add_u32 s72, s72, s68
s_and_b32 s73, s5, 3
v_lshrrev_b32 v2, 1, v0
v_lshlrev_b32 v2, 7, v2
v_and_b32 v3, 1, v0
v_lshl_add_u32 v96, v3, 4, v2
s_lshl_b32 s10, s72, 15
s_lshr_b32 s68, s47, s4
s_and_b32 s68, s68, 1
s_lshl_b32 s68, s68, 13
s_add_u32 s10, s10, s68
s_lshl_b32 s68, s73, 5
s_add_u32 s10, s10, s68
s_add_u32 s10, s10, {FP}
s_add_u32 s11, s10, 4096
s_add_u32 s12, s10, 16384
v_lshrrev_b32 v4, 4, v0
v_lshl_add_u32 v97, v3, 2, v4
v_lshlrev_b32 v97, 1, v97
v_lshlrev_b32 v99, 6, v4
v_lshlrev_b32 v98, 4, v3
s_mul_i32 s13, s4, 20
s_add_u32 s13, s13, s72
s_lshl_b32 s13, s13, 8
s_lshl4_add_u32 s13, s73, s13
s_add_u32 s13, s13, {PH}
s_lshl2_add_u32 s14, s72, s73
s_lshl_b32 s14, s14, 4
s_mov_b32 s8, 0x30003
s_mov_b32 s9, 0x30003
s_mov_b32 s77, 0x3f80
s_mov_b32 s71, 0x3f800000
v_mov_b32 v8, 0
v_mov_b32 v9, 0
v_mov_b32 v10, 0
v_mov_b32 v11, 0
""")
FS = 16
srd(64, 54, 1280)
lds_wait_ge(HRDY, 1, 2)
if opt['fsleep']: A(f"s_sleep {opt['fsleep']}")
def body():
    A('buffer_load_dwordx4 v[4:7], v99, s[16:19], s13 offen sc1')
    for n in range(3):
        r = FS + 4 * n
        A(f'buffer_load_dwordx4 v[{r}:{r+3}], v96, s[24:27], s{10+n} offen sc1')
    A('s_waitcnt vmcnt(0)')
    tagcheck([6, FS + 2, FS + 6, FS + 10])
spin2(body, local_only=True)
stamp(5)
for n in range(3):
    r = FS + 4 * n
    A(f'v_dot2c_f32_bf16 v8, s77, v{r}\nv_dot2c_f32_bf16 v10, s77, v{r+1}\nv_dot2c_f32_bf16 v9, s71, v{r}\nv_dot2c_f32_bf16 v11, s71, v{r+1}')
A(f"""
v_lshrrev_b32 v58, v98, v4
{S32} v8, v10
{S32} v9, v11
v_add_f32 v8, v8, v10
v_add_f32 v9, v9, v11
v_lshlrev_b32 v58, 16, v58
{S16} v8, v9
v_add_f32 v8, v8, v9
v_add_f32_dpp v8, v8, v8 row_ror:8 {DPPM}
v_add_f32_dpp v8, v8, v8 row_ror:4 {DPPM}
v_add_f32_dpp v8, v8, v8 quad_perm:[2,3,0,1] {DPPM}
v_cvt_pk_bf16_f32 v8, v57, v8
v_add_f32 v8, v8, v58
v_cvt_pk_bf16_f32 v8, v8, v8
""")
DBGPTR = ''
if opt['dbgptr']:
    DBGPTR = 'v_mov_b32 v8, s58\nv_mov_b32 v9, s38\nv_mov_b32 v10, s40\nv_mov_b32 v11, s47\nglobal_store_dwordx4 v57, v[8:11], s[56:57]\nv_mov_b32 v12, s44\nv_mov_b32 v13, s48\nv_mov_b32 v14, s54\nv_mov_b32 v15, s56\nglobal_store_dwordx4 v57, v[12:15], s[56:57] offset:16'
A('s_mov_b64 exec, s[8:9]')
A(f"""
buffer_store_short v8, v97, s[64:67], s14 offen
s_cmp_lg_u32 s14, 0
s_cbranch_scc1 L_fin_exit
s_mov_b64 exec, 1
v_mov_b32 v4, s30
v_mov_b32 v5, s31
s_mov_b32 s68, {EP}
buffer_store_dwordx2 v[4:5], v57, s[24:27], s68 offen
{DBGPTR}
L_fin_exit:
""")
if opt['dbg']:
    A(f'''
s_cmp_lg_u32 s14, 0
s_cbranch_scc1 L_end
s_memrealtime s[82:83]
s_waitcnt lgkmcnt(0)
s_sub_u32 s84, s82, s80
s_sub_u32 s84, s84, 1500
s_mul_i32 s84, s84, {opt['dbg']}
s_min_u32 s84, s84, 20000
L_dbgspin:
s_memrealtime s[86:87]
s_waitcnt lgkmcnt(0)
s_sub_u32 s86, s86, s82
s_cmp_lt_u32 s86, s84
s_cbranch_scc1 L_dbgspin
''')
if STAMPS:
    A('s_waitcnt vmcnt(0)')
    stamp(7)
    write_stamps(8)
A('s_endpgm')

A('L_hid:')
A(f"""
s_mul_i32 s72, s4, 12
s_add_u32 s72, s72, s5
v_lshrrev_b32 v4, 5, v0
v_and_b32 v2, 7, v0
v_lshl_add_u32 v62, v4, 3, v2
v_lshlrev_b32 v62, 1, v62
v_lshlrev_b32 v63, 2, v2
v_lshlrev_b32 v60, 4, v0
v_and_b32 v3, 31, v0
v_lshlrev_b32 v61, 4, v3
s_lshr_b32 s65, s72, 2
s_lshl_b32 s65, s65, 9
s_add_u32 s65, s65, {PS}
s_mul_i32 s60, s72, 5120
s_add_u32 s60, s60, {PA}
s_add_u32 s61, s60, 4096
v_mov_b32 v148, 0
v_mov_b32 v149, 0
v_mov_b32 v150, s30
v_mov_b32 v151, s31
v_mov_b32 v59, 1
""")
A(f's_add_u32 s62, s60, {CB - PA}\ns_add_u32 s63, s61, {CB - PA}')
def issue(srdn=32):
    setexec(0x000fffff000fffff)
    A(f'buffer_load_dwordx4 v[148:151], v61, s[{srdn}:{srdn+3}], s65 offen sc1')
    setexec(ALL)
    for n in range(5):
        A(f'buffer_load_dwordx4 v[{128+4*n}:{131+4*n}], v60, s[{srdn}:{srdn+3}], s{60+n//4} offen offset:{1024*(n%4)} sc1')
def check(): tagcheck([150, 130, 134, 138, 142, 146])
def body():
    for n in range(5):
        A(f'buffer_load_dwordx4 v[{16+4*n}:{19+4*n}], v60, s[16:19], s{62+n//4} offen offset:{1024*(n%4)} sc1' + (' nt' if opt['cnt'] else ''))
    if opt['prepa'] == 1:
        setexec(0x000fffff000fffff)
        A(f'buffer_load_dwordx4 v[148:151], v61, s[16:19], s65 offen sc1')
        setexec(ALL)
    else: issue(16)
    if opt['cbpa']: A('s_cmp_eq_u32 s78, 0\ns_cbranch_scc1 L_nobar\ns_mov_b32 s78, 0\ns_barrier\nL_nobar:')
    A('s_waitcnt vmcnt(0)')
    tagcheck([18, 22, 26, 30, 34])
if opt['prepa']:
    for n in range(5): A(f'v_not_b32 v{130+4*n}, s30')
A('s_mov_b32 s78, 1\ns_barrier')
if opt['padelay']: A(f"s_sleep {opt['padelay']}")
spin2(body, local_only=True)
def sum5(d, r):
    A(f'v_pk_add_f32 v[{d}:{d+1}], v[{r}:{r+1}], v[{r+4}:{r+5}]')
    A(f'v_pk_add_f32 v[{d+2}:{d+3}], v[{r+8}:{r+9}], v[{r+12}:{r+13}]')
    A(f'v_pk_add_f32 v[{d}:{d+1}], v[{d}:{d+1}], v[{r+16}:{r+17}]')
    A(f'v_pk_add_f32 v[{d}:{d+1}], v[{d}:{d+1}], v[{d+2}:{d+3}]')
A('s_cmp_lg_u32 s46, 1\ns_cbranch_scc1 L_nopre')
issue()
A('L_nopre:')
sum5(40, 16)
for r in (40, 41): A(f'v_add_f32_dpp v{r}, v{r}, v{r} row_ror:8 {DPPM}')
swapreduce(S16, 'v_add_f32', [40, 41], [42, 43])
check()
A('s_nop 0\ns_cbranch_vccz L_paok')
A('s_cmp_lg_u32 s46, 1\ns_cbranch_scc1 L_paslow')
freepoll(issue, check, opt['frp'], 'L_paok')
A('L_paslow:')
def body():
    issue(16); A('s_waitcnt vmcnt(0)'); check()
spin2(body, local_only=True)
A('L_paok:')
stamp(7)
A(f"""
v_add_f32_dpp v36, v148, v148 quad_perm:[1,0,3,2] {DPPM}
v_add_f32_dpp v37, v149, v149 quad_perm:[1,0,3,2] {DPPM}
v_pk_add_f32 v[8:9], v[128:129], v[132:133]
v_add_f32_dpp v36, v36, v36 quad_perm:[2,3,0,1] {DPPM}
v_add_f32_dpp v37, v37, v37 quad_perm:[2,3,0,1] {DPPM}
v_pk_add_f32 v[10:11], v[136:137], v[140:141]
v_add_f32_dpp v36, v36, v36 row_half_mirror {DPPM}
v_add_f32_dpp v37, v37, v37 row_half_mirror {DPPM}
v_pk_add_f32 v[8:9], v[8:9], v[144:145]
v_add_f32_dpp v22, v36, v36 row_mirror {DPPM}
v_add_f32_dpp v23, v37, v37 row_mirror {DPPM}
v_add_f32_dpp v36, v36, v36 row_mirror {DPPM}
v_add_f32_dpp v37, v37, v37 row_mirror {DPPM}
v_pk_add_f32 v[8:9], v[8:9], v[10:11]
{S16} v36, v22
{S16} v37, v23
v_pk_add_f32 v[36:37], v[36:37], v[22:23]
v_add_f32_dpp v10, v8, v8 row_ror:8 {DPPM}
v_mul_f32 v20, {f32(1.0/640)}, v36
v_mul_f32 v21, {f32(1.0/640)}, v37
v_add_f32_dpp v11, v9, v9 row_ror:8 {DPPM}
v_fma_f32 v21, -v20, v20, v21
v_add_f32_dpp v8, v8, v8 row_ror:8 {DPPM}
v_max_f32 v21, 0, v21
v_add_f32_dpp v9, v9, v9 row_ror:8 {DPPM}
v_cvt_pk_bf16_f32 v21, v57, v21
v_cvt_pk_bf16_f32 v20, v57, v20
v_add_f32 v21, {f32(1e-5)}, v21
{S16} v8, v10
v_cvt_pk_bf16_f32 v21, v57, v21
{S16} v9, v11
v_sqrt_f32 v21, v21
v_pk_add_f32 v[8:9], v[8:9], v[10:11]
v_cvt_pk_bf16_f32 v21, v57, v21
v_fma_f32 v8, -v20, v40, v8
v_rcp_f32 v21, v21
v_fma_f32 v9, -v20, v41, v9
v_mul_f32 v8, v8, v21
v_mul_f32 v9, v9, v21
v_cvt_pk_bf16_f32 v8, v57, v8
v_mul_f32 v12, {f32(-LOG2E)}, v8
v_exp_f32 v12, v12
v_cvt_pk_bf16_f32 v9, v57, v9
v_add_f32 v12, 1.0, v12
v_rcp_f32 v12, v12
v_mul_f32 v8, v8, v12
v_cvt_pk_bf16_f32 v8, v57, v8
v_mul_f32 v8, v8, v9
v_cvt_pk_bf16_f32 v8, v8, v8
ds_write_b16 v62, v8 offset:{HID}
ds_write_b32 v63, v59 offset:{HRDY}
""")
stamp_val(17, 94, 95)
A('s_endpgm')

A('L_f2:')
W2R = 64
srd(8, 52, 1536 * 640 * 2)
A(f"""
s_mul_i32 s72, s4, 12
s_add_u32 s72, s72, s5
v_mov_b32 v57, 0
s_sub_u32 s68, s3, 7
s_lshl_b32 s69, s68, 8
v_lshlrev_b32 v58, 2, v0
v_add_u32 v58, s69, v58
v_lshrrev_b32 v2, 4, v0
v_lshl_add_u32 v2, s68, 2, v2
v_mul_u32_u24 v3, 52, v2
v_lshrrev_b32 v3, 8, v3
v_mul_u32_u24 v4, 5, v3
v_sub_u32 v4, v2, v4
v_cmp_lt_u32 vcc, 2, v4
v_lshlrev_b32 v3, 1, v3
v_addc_co_u32 v3, vcc, 0, v3, vcc
v_lshrrev_b32 v3, v3, s47
v_and_b32 v3, 1, v3
v_lshlrev_b32 v116, 15, v2
v_lshl_add_u32 v116, v3, 13, v116
v_bfe_u32 v3, v0, 1, 3
v_lshl_add_u32 v116, v3, 4, v116
s_lshr_b32 s79, s72, 6
s_lshl_b32 s79, s79, 14
s_and_b32 s68, s72, 63
s_lshl_b32 s68, s68, 7
s_add_u32 s79, s79, s68
s_add_u32 s79, s79, {FP}
s_mov_b32 s60, 0x05040100
s_mov_b32 s61, 0x07060302
s_mul_i32 s62, s72, 20480
""")
def w2_loads():
    for k in range(16):
        A(f'buffer_load_dword v{W2R+k}, v58, s[8:11], s62 offen offset:{1280*(k%3)} nt')
        if k % 3 == 2: A('s_add_u32 s62, s62, 3840')
if opt['w2early']:
    lds_wait_ge(CNT + 28, 1, 2)
    w2_loads()
if opt['w2trig'] == 0:
    A('v_and_b32 v1, 3, v0\nv_lshlrev_b32 v1, 2, v1')
    def body():
        A(f'ds_read_b32 v4, v1 offset:{CNT+32}')
        A('s_waitcnt lgkmcnt(0)')
        A('v_cmp_eq_u32 vcc, 0, v4')
    spin(body, sleep=1)
    w2_loads()
A('s_barrier')
if opt['w2trig'] == 1: w2_loads()
A('s_barrier')
if opt['cbpa']: A('s_barrier')
if not opt['w2early'] and opt['w2trig'] == 2: w2_loads()
if opt['f2prio']: A(f"s_setprio {opt['f2prio']}")
A('s_waitcnt vmcnt(0)')
stamp(6)
for kp in range(8):
    A(f'v_perm_b32 v{80+kp}, v{W2R+2*kp+1}, v{W2R+2*kp}, s60')
    A(f'v_perm_b32 v{88+kp}, v{W2R+2*kp+1}, v{W2R+2*kp}, s61')
A(f"""
v_mov_b32 v16, 0
v_mov_b32 v17, 0
v_mov_b32 v18, 0
v_mov_b32 v19, 0
s_mov_b32 s66, 0x55555555
s_mov_b32 s67, 0x55555555
v_mov_b32 v6, s30
v_mov_b32 v7, s31
v_and_b32 v9, 15, v0
v_lshlrev_b32 v9, 2, v9
v_mov_b32 v8, 0
s_mov_b32 s64, 0xff00ff00
s_mov_b32 s65, 0xff00ff00
s_mov_b32 s70, {SPIN * 8}
s_waitcnt lgkmcnt(0)
L_f2poll:
ds_read_b32 v8, v9 offset:{HID}
s_waitcnt lgkmcnt({4 if opt['f2free'] else 0})
v_cmp_eq_u32 vcc, 0, v8
s_sub_u32 s70, s70, 1
s_cbranch_scc1 L_f2go
s_and_b64 vcc, vcc, s[64:65]
s_cbranch_scc1 L_f2poll
L_f2go:
""")
for kp in range(8):
    A(f'v_dot2c_f32_bf16_dpp v{16+2*(kp&1)}, v8, v{80+kp} row_newbcast:{kp} {DPPM}')
    A(f'v_dot2c_f32_bf16_dpp v{17+2*(kp&1)}, v8, v{88+kp} row_newbcast:{kp} {DPPM}')
A('v_pk_add_f32 v[16:17], v[16:17], v[18:19]')
A(f"""
v_cvt_pk_bf16_f32 v4, v16, v17
v_mov_b32_dpp v5, v4 quad_perm:[1,0,3,2] {DPPM}
""")
A('s_mov_b64 exec, s[66:67]')
A('buffer_store_dwordx4 v[4:7], v116, s[24:27], s79 offen sc1')
if STAMPS:
    setexec(ALL)
    stamp_now(20, True)
    stamp_val(15, 92, 93, True)
A('L_end:')
A('s_endpgm')
for blk in outline: A(blk)
A('L_codeend:')

A.raw('.section .rodata,"a"')
A.raw('.p2align 6')
A.raw(f'.amdhsa_kernel {NAME}_kernel')
A.raw('  .amdhsa_next_free_vgpr 168')
A.raw('  .amdhsa_next_free_sgpr 100')
A.raw('  .amdhsa_accum_offset 168')
A.raw('  .amdhsa_group_segment_fixed_size 0')
A.raw('  .amdhsa_kernarg_size 96')
A.raw('  .amdhsa_user_sgpr_count 2')
A.raw('  .amdhsa_user_sgpr_kernarg_segment_ptr 1')
A.raw('  .amdhsa_system_sgpr_workgroup_id_x 1')
A.raw('.end_amdhsa_kernel')
open(sys.argv[1], 'w').write(A.finalize())
```

```python
import sys, struct, os
from asmlib import Asm

NAME = "sequential_preLN__sliding_block_cached__glu_gated_swiglu__decode"
opt = dict(D1=3, D2=3, stamps=0, spin=200007, sleep=2, Vpre=3, swave=11, stsleep=24, wtrig=2, ttrig=9, tcnt=8, DWF=5,
           idtries=12, idsleep=16, forceslow=0, trap=0, fsleep=18, gdone=0, dyn=0, pref=2, prew=1, shots=4,
           w2early=0, f1trig=0, dbg=0, diagp=0, puback=0, dbgptr=0, fro=0, frp=1, frb=12, f2prio=0, f2free=1, tlb=0, cbpa=0, w2trig=1, padelay=0, prepa=0, prer=1, wsoff=0, qnt=1, ont=0, pre1=4, pre2=0, hnt=0, promo=0, ynt=0, cnt=0, opre=0, ogate=1, wopause=0, cbred=1, qabl=0, qdelay=0, pant=0, o1nt=1, pbfew=1, clean=0, cldelay=0, trace=0, tauA=0, tauB=0, offA=800, offB=800, lag=480, cfrom=30, cto=48, gorg=0, pftrig=26, DQ=20, QA_=10, NE=0, opre2=0, t27A=0, t27B=0, cal=1, mst=17, tau0=460, D0=550, calsleep=20, gam=80, dA=-8, dB=-28, pick2=4, caltries=2, lead=7, sampf1=1, calpre=0, nostore=0, bis=0, hb=0, calprio=3)
for a in sys.argv[2:]:
    k, v = a.split('=')
    assert k in opt, k
    opt[k] = int(v)
opt['ttrig'] = max(opt['ttrig'], opt['wtrig'])
if opt['t27A']:
    opt['offA'] = opt['t27A'] * 16 - 27 * opt['tauA']; opt['offB'] = (opt['t27B'] or opt['t27A']) * 16 - 27 * opt['tauB']
D1 = opt['D1']; D2 = opt['D2']; STAMPS = opt['stamps']; SPIN = opt['spin']

def f32(x): return '0x%08x' % struct.unpack('<I', struct.pack('<f', x))[0]
LOG2E = 1.4426950408889634

QP = 0x0
OP = 0x80000
ST = 0xB0000
ID = 0xB8000
DN = 0xBA000
YP = 0xC0000
EP = 0xE0000
TK = 0xE1000
CAL = 0xEA000
PF = 0xE8000
FP = 0x100000
PB = 0x1A0000
SP = 0x200000
PA = 0x220000
PS = 0x2A0000
PH = 0x2A4000
CB = 0x300000
WSN = 0x400000
FAST = 0x400000
QL = 0
QF = 384
SL = 512
CNT = 640
ORG = CNT + 40; SUMS = CNT + 56; HRDY = 704 + 32; ROLE = CNT + 20
CL = 768
HID = 704
OL = 1024
RL = 7168
WL = 8704
TRL = WL + 49152
LDS = TRL + (2048 if opt['trace'] else 0)

A = Asm()
A.raw(open(os.path.join(os.path.dirname(os.path.abspath(__file__)), '..', NAME + '.s.ref')).read().split('; Override launch')[0].rstrip())
A.raw(f"; @launch grid=(256,1,1) block=(768,1,1) lds={LDS}")
A.raw('''; Generated by gen/gen18.py (hand-written generator).  One persistent launch, 256 workgroups x 12 waves, 1 per CU.
;  s_sleep is used only as back-off inside / ahead of polling loops.''')
A.raw('.amdgcn_target "amdgcn-amd-amdhsa--gfx950"')
A.raw('.text')
A.raw(f'.globl {NAME}_kernel')
A.raw('.p2align 8')
A.raw(f'.type {NAME}_kernel,@function')
A.raw(f'{NAME}_kernel:')

def stamp(i):
    if STAMPS: A(f's_memrealtime s[{80+2*i}:{81+2*i}]')
def write_stamps(base_idx):
    if not STAMPS: return
    A('s_waitcnt lgkmcnt(0)')
    A('s_mov_b64 exec, 1')
    A('s_lshl3_add_u32 s68, s5, s4')
    A('s_lshl_b32 s68, s68, 8')
    A(f's_add_u32 s68, s68, {SP + base_idx*8}')
    A('v_mov_b32 v1, 0')
    for q in range(4):
        for e in range(4): A(f'v_mov_b32 v{4+e}, s{80+4*q+e}')
        A(f'buffer_store_dwordx4 v[4:7], v1, s[24:27], s68 offen offset:{16*q}')
        A('s_nop 2')
def stamp_val(idx, lo, hi, plus_wave=False):
    if not STAMPS: return
    A('s_lshl3_add_u32 s98, s5, s4')
    A('s_lshl_b32 s98, s98, 8')
    A(f's_add_u32 s98, s98, {SP + idx*8}')
    if plus_wave: A('s_lshl3_add_u32 s98, s3, s98')
    A('s_waitcnt lgkmcnt(0)')
    A(f'v_mov_b32 v120, s{lo}\nv_mov_b32 v121, s{hi}\nv_mov_b32 v122, 0')
    A('s_mov_b64 exec, 1')
    A('buffer_store_dwordx2 v[120:121], v122, s[24:27], s98 offen')
    A('s_mov_b64 exec, -1')
    A('s_nop 1')
def stamp_now(idx, plus_wave=False):
    if not STAMPS: return
    A('s_memrealtime s[96:97]')
    stamp_val(idx, 96, 97, plus_wave)

def srd(d, ptr, nbytes):
    A(f's_mov_b32 s{d}, s{ptr}')
    A(f's_mov_b32 s{d+1}, s{ptr+1}')
    A(f's_mov_b32 s{d+2}, {nbytes}')
    A(f's_mov_b32 s{d+3}, 0x20000')
def wsshift():
    if opt['wsoff']: A(f"s_add_u32 s58, s58, {opt['wsoff'] << 20}\ns_addc_u32 s59, s59, 0")
def ws_srds():
    srd(24, 58, WSN)
    A(f's_add_u32 s32, s58, {FAST}')
    A('s_addc_u32 s33, s59, 0')
    A(f's_mov_b32 s34, {WSN}')
    A('s_mov_b32 s35, 0x20000')
    A('s_lshl3_add_u32 s71, s6, s7')

ALL = (1 << 64) - 1
def setexec(mask):
    if mask == ALL: A('s_mov_b64 exec, -1'); return
    A(f's_mov_b32 exec_lo, 0x{mask & 0xffffffff:x}')
    A(f's_mov_b32 exec_hi, 0x{mask >> 32:x}')

DPPM = 'row_mask:0xf bank_mask:0xf'
def allreduce8(op, regs):
    for pat in ('quad_perm:[1,0,3,2]', 'quad_perm:[2,3,0,1]', 'row_half_mirror'):
        for r in regs: A(f'{op}_dpp v{r}, v{r}, v{r} {pat} {DPPM}')
def allreduce16(op, regs):
    allreduce8(op, regs)
    for r in regs: A(f'{op}_dpp v{r}, v{r}, v{r} row_mirror {DPPM}')
def swapreduce(sw, op, regs, tmps):
    for r, t in zip(regs, tmps): A(f'v_mov_b32 v{t}, v{r}')
    for r, t in zip(regs, tmps): A(f'{sw} v{r}, v{t}')
    for r, t in zip(regs, tmps): A(f'{op} v{r}, v{r}, v{t}')
S16 = 'v_permlane16_swap_b32'; S32 = 'v_permlane32_swap_b32'
def allreduce_rows(op, regs, tmps):
    swapreduce(S16, op, regs, tmps); swapreduce(S32, op, regs, tmps)
def allreduce64(op, regs, tmps):
    allreduce16(op, regs); allreduce_rows(op, regs, tmps)
def bf16r(d, s):
    A(f'v_cvt_pk_bf16_f32 v{d}, v{s}, v{s}')
    A(f'v_lshlrev_b32 v{d}, 16, v{d}')
def mktag():
    A('''
s_waitcnt lgkmcnt(0)
s_mul_i32 s30, s28, 0x2c9277b5
s_add_u32 s30, s30, 0xac564b05
s_mul_i32 s31, s29, 0x0019660d
s_add_u32 s31, s31, 0x3c6ef35f
''')
lbl = [0]
def newlabel(p):
    lbl[0] += 1
    return f'L_{p}_{lbl[0]}'

def tagcheck(pairs):
    A(f'v_cmp_ne_u64 vcc, s[30:31], v[{pairs[0]}:{pairs[0]+1}]')
    tm = [(20, 21), (22, 23)]
    pend = []
    for i, p in enumerate(pairs[1:]):
        t = tm[i % 2]
        if len(pend) == 2:
            q = pend.pop(0); A(f's_or_b64 vcc, vcc, s[{q[0]}:{q[1]}]')
        A(f'v_cmp_ne_u64 s[{t[0]}:{t[1]}], s[30:31], v[{p}:{p+1}]')
        pend.append(t)
    for q in pend: A(f's_or_b64 vcc, vcc, s[{q[0]}:{q[1]}]')

def spin(body, sleep=0, retry=None, entry=None):
    top = newlabel('spin'); done = newlabel('sdone')
    A(f's_mov_b32 s70, {SPIN}')
    if entry: A(f's_branch {entry}')
    A(f'{top}:')
    body()
    A('s_nop 0')
    A(f's_cbranch_vccz {done}')
    if sleep: A(f's_sleep {sleep}')
    if retry: retry()
    A('s_sub_u32 s70, s70, 1')
    A(f's_cbranch_scc0 {top}')
    if opt['trap']:
        A(f's_lshl_b32 s99, s2, 8\ns_or_b32 s99, s99, s3\ns_lshl_b32 s99, s99, 8\ns_or_b32 s99, s99, {lbl[0] & 255}')
        A(f'v_mov_b32 v166, {4 * (lbl[0] % 64)}\nv_mov_b32 v167, s99')
        A('global_store_dword v166, v167, s[56:57]')
    A(f'{done}:')
def spin2(body, sleep=0, retry=None, local_only=False, entry=None):
    A(f's_mov_b32 s16, s32\ns_mov_b32 s17, s33\ns_mov_b32 s18, {WSN}\ns_mov_b32 s19, 0x20000')
    def rt():
        if retry: retry()
        A('s_and_b32 s99, s70, 7')
        if local_only:
            A('s_cmp_eq_u32 s46, 1')
            A('s_cselect_b32 s99, 1, s99')
            A('s_cmp_lg_u32 s99, 0')
        A('s_cselect_b32 s16, s32, s24')
        A('s_cselect_b32 s17, s33, s25')
    spin(body, sleep, rt, entry)

def freepoll(issue, check, nchk, done):
    top = newlabel('fp')
    A(f's_mov_b32 s70, {SPIN}')
    A(f'{top}:')
    issue()
    for k in range(nchk):
        check()
        A('s_nop 0')
        A(f's_cbranch_vccz {done}')
    A(f"s_waitcnt vmcnt({opt['frb']})")
    A('s_sub_u32 s70, s70, 1')
    A(f's_cbranch_scc0 {top}')
    A(f's_branch {done}')

def lds_wait_ge(off, n, sleep, dst=4, adr=1):
    A(f'v_mov_b32 v{adr}, 0')
    def body():
        A(f'ds_read_b32 v{dst}, v{adr} offset:{off}')
        A('s_waitcnt lgkmcnt(0)')
        A(f'v_cmp_gt_u32 vcc, {n}, v{dst}')
    spin(body, sleep=sleep)
def get_mode(dst=4, adr=1):
    lds_wait_ge(CNT + 8, 1, 2, dst, adr)
    A(f'v_readfirstlane_b32 s46, v{dst}')
def get_role(sleep, dst=4, adr=1):
    lds_wait_ge(ROLE, 1, sleep, dst, adr)
    A(f'v_readfirstlane_b32 s5, v{dst}')
    A('s_bfe_u32 s47, s5, 0x80008')
    A('s_and_b32 s5, s5, 31')

outline = []
def publish(stores):
    def emit(srdn, fl, AA):
        cur = ALL
        for m, line in stores:
            m = ALL if m is None else m
            if m != cur:
                if m == ALL: AA('s_mov_b64 exec, -1')
                else: AA(f's_mov_b32 exec_lo, 0x{m & 0xffffffff:x}\ns_mov_b32 exec_hi, 0x{m >> 32:x}')
                cur = m
            AA(line.replace('@', f's[{srdn}:{srdn+3}]') + fl)
        if cur != ALL: AA('s_mov_b64 exec, -1')
    if not opt['forceslow']: emit(32, '', A)
    slow = newlabel('slow'); back = newlabel('back')
    A('s_cmp_lg_u32 s46, 1')
    A(f's_cbranch_scc1 {slow}')
    A(f'{back}:')
    blk = [f'{slow}:']
    emit(24, ' sc1', lambda t: blk.append(t))
    blk.append('s_nop 1')
    blk.append(f's_branch {back}')
    outline.append('\n'.join(blk))

GST = 3072 * 64
GOFF = [60, 61, 62, 63, 64, 65, 66, 67]
A("""
s_load_dwordx2 s[8:9], s[0:1], 8
s_lshr_b32 s79, s2, 6
s_cmp_gt_u32 s79, 3
s_cbranch_scc1 L_end
v_readfirstlane_b32 s3, v0
s_and_b32 s4, s2, 7
s_lshl2_add_u32 s6, s4, s79
s_bfe_u32 s7, s2, 0x30003
s_lshr_b32 s73, s3, 6
s_cmp_gt_u32 s73, 7
s_cbranch_scc1 L_helper0
s_lshl_b32 s60, s6, 9
s_add_u32 s60, s60, s7
s_addk_i32 s60, 448
s_mulk_i32 s60, 24576
v_lshlrev_b32 v3, 4, v0
v_lshrrev_b32 v2, 3, v0
v_lshl_add_u32 v1, v2, 8, v3
s_lshl_b32 s10, 3, 27
s_mov_b32 s11, 0x20000
s_waitcnt lgkmcnt(0)
""")
for j in range(3): A(f'buffer_load_dwordx4 v[{16+4*j}:{19+4*j}], v1, s[8:11], s60 offen offset:{128*j} nt')
def prologue2():
    A("""
s_load_dwordx16 s[36:51], s[0:1], 0
s_load_dwordx8 s[52:59], s[0:1], 64
""")
    stamp(0)
    if opt['dbg']: A('s_memrealtime s[80:81]')
A("""
s_branch L_stream0
L_helper0:
""")
prologue2()
A(f"""
v_and_b32 v0, 63, v0
s_sub_u32 s3, s73, 8
s_cmp_lg_u32 s3, 3
s_cbranch_scc1 L_helper
s_getpc_b64 s[20:21]
L_pc0:
v_lshlrev_b32 v8, 7, v0
v_add_u32 v9, 8192, v8
v_min_u32 v9, L_codeend-L_pc0-4, v9
global_load_dword v10, v8, s[20:21]
global_load_dword v11, v9, s[20:21]
v_add_u32 v9, 16384, v8
v_min_u32 v9, L_codeend-L_pc0-4, v9
global_load_dword v30, v9, s[20:21]
v_lshlrev_b32 v1, 3, v0
v_mov_b32 v4, 0
v_mov_b32 v5, 0
ds_write_b64 v1, v[4:5] offset:{QF}
s_branch L_helper
L_stream0:
""")
prologue2()
if opt['trace'] or (opt['cal'] and not opt['bis'] & 8): A('s_memrealtime s[20:21]')
A("""
v_and_b32 v0, 63, v0
s_add_u32 s3, s73, 4
v_and_b32 v3, 0x70, v3
s_waitcnt lgkmcnt(0)
""")

QR = 4; KR = 16
def stream(G, D1, D2, Vpre):
    SC = 168 - G
    VR = KR + 12 * G
    nV1 = min((SC - VR) // 12, G)
    ACC = KR + 12 * (G - 2)
    T = ACC
    half = (G + 1) // 2
    st = dict(n=0)
    def vreg(g): return VR + 12 * g if g < nV1 else KR + 12 * (g - nV1)
    CTL = bool(opt['cal'])
    def issue_load(kind, g, j, depth):
        n = st['n']
        ctl = CTL and opt['cfrom'] <= n < opt['cto']
        if ctl:
            go = newlabel('go')
            A('s_waitcnt lgkmcnt(0)\ns_lshl_b32 s75, s76, 4\ns_sub_u32 s75, s75, s78\ns_and_b32 s75, s75, s72\ns_add_u32 s78, s78, s79')
            if opt['lag']:
                A(f"s_waitcnt vmcnt({depth})\ns_cmp_gt_i32 s75, {opt['lag']}\ns_cbranch_scc1 {go}")
            A(f's_waitcnt vmcnt({depth-1})\ns_cmp_ge_i32 s75, 0\ns_cbranch_scc1 {go}\ns_waitcnt vmcnt({depth-2})\n{go}:')
        elif depth and n >= depth: A(f's_waitcnt vmcnt({depth-1})')
        r = (KR + 12 * g + 4 * j) if kind == 'K' else vreg(g) + 4 * j
        s = 8 if kind == 'K' else 12
        if n >= 3: A(f'buffer_load_dwordx4 v[{r}:{r+3}], v1, s[{s}:{s+3}], s{GOFF[g]} offen offset:{128*j} nt')
        if opt['trace'] or (CTL and (opt['cfrom'] - 1 <= n < opt['cto'] - 1 or n == opt['mst'])): A('s_memrealtime s[76:77]')
        if opt['trace'] and n >= 3:
            A(f's_waitcnt lgkmcnt(0)\ns_sub_u32 s75, s76, s20\ns_lshl_b32 s77, s73, 8\nv_mov_b32 v6, s77\nv_mov_b32 v7, s75\nds_write_b32 v6, v7 offset:{TRL + 4*n}')
        if CTL and n == opt['mst'] and not opt['bis'] & 1:
            A(f'''
s_waitcnt lgkmcnt(0)
s_sub_u32 s75, s76, s20
s_add_u32 s75, s75, 0x1000000
v_mov_b32 v6, 0
v_mov_b32 v8, s76
v_mov_b32 v9, s75
s_mov_b64 exec, 1
ds_add_u32 v6, v8 offset:{SUMS}
ds_add_u32 v6, v9 offset:{SUMS+4}
s_mov_b64 exec, -1
''')
        if CTL and n in (opt['cfrom'] - 1, opt['cfrom'] - 1 + opt['pick2']) and not opt['bis'] & 2:
            A(f'''
ds_read_b64 v[6:7], v2 offset:{ORG}
s_waitcnt lgkmcnt(0)
v_readfirstlane_b32 s78, v6
v_readfirstlane_b32 s79, v7
s_mul_i32 s75, s79, {n - opt['mst']}
s_add_u32 s78, s78, s75
s_cmp_lg_u32 s79, 0
s_cselect_b32 s72, -1, 0
''')
        if n == opt['pftrig']:
            A(f'v_mov_b32 v6, 0\nv_mov_b32 v7, 1\ns_mov_b64 exec, 1\nds_add_u32 v6, v7 offset:{CNT+52}\ns_mov_b64 exec, -1')
        st['n'] += 1
    for g in range(G):
        for j in range(3):
            issue_load('K', g, j, D1)
            if j == 2 and g + 1 < G:
                A(f's_add_u32 s{GOFF[g+1]}, s{GOFF[g]}, {GST}')
            if st['n'] == min(D1, 3): A('s_barrier')
            if g == 1 and j == 0:
                wsshift(); A(f's_load_dwordx2 s[28:29], s[58:59], {EP}')
                ws_srds(); srd(12, 40, 402653184)
    stamp(1)
    nv = 0; NV = 3 * G
    for n in range(min(Vpre, 3 * nV1)):
        issue_load('V', nv // 3, nv % 3, D2); nv += 1
    stamp(2)
    mktag()
    A('v_and_b32 v2, 3, v0\nv_min_u32 v2, 2, v2\nv_lshlrev_b32 v2, 3, v2')
    def body():
        A(f'ds_read_b32 v{QR}, v2 offset:{QF}')
        A('s_waitcnt lgkmcnt(0)')
        A(f'v_cmp_eq_u32 vcc, 0, v{QR}')
    spin(body, sleep=1)
    stamp(3)
    A(f'''
ds_read_b128 v[{QR}:{QR+3}], v3 offset:{QL}
ds_read_b128 v[{QR+4}:{QR+7}], v3 offset:{QL+128}
ds_read_b128 v[{QR+8}:{QR+11}], v3 offset:{QL+256}
''')
    for g in range(G): A(f'v_mov_b32 v{SC+g}, 0')
    A(f's_waitcnt vmcnt({nv}) lgkmcnt(0)')
    for gs in (range(half), range(half, G)):
        for i in range(12):
            for g in gs:
                A(f'v_dot2c_f32_bf16 v{SC+g}, v{KR+12*g+i}, v{QR+i}')
    allreduce8('v_add_f32', [SC + g for g in range(G)])
    A(f's_mov_b32 s68, {f32(192 ** -0.5)}')
    A('v_mov_b32 v2, 0')
    for g in range(G): A(f'v_cvt_pk_bf16_f32 v{SC+g}, v2, v{SC+g}')
    for g in range(G): A(f'v_mul_f32 v{SC+g}, s68, v{SC+g}')
    for g in range(G): A(f'v_cvt_pk_bf16_f32 v{SC+g}, v2, v{SC+g}')
    A(f'v_max_f32 v4, v{SC}, v{SC+1}')
    g = 2
    while g < G:
        if g + 1 < G: A(f'v_max3_f32 v4, v4, v{SC+g}, v{SC+g+1}'); g += 2
        else: A(f'v_max_f32 v4, v4, v{SC+g}'); g += 1
    A(f'v_max_f32_dpp v4, v4, v4 row_ror:8 {DPPM}')
    allreduce_rows('v_max_f32', [4], [T])
    A(f's_mov_b32 s68, {f32(LOG2E)}')
    for g in range(G): A(f'v_sub_f32 v{SC+g}, v{SC+g}, v4')
    for g in range(G): A(f'v_mul_f32 v{SC+g}, s68, v{SC+g}')
    for g in range(G): A(f'v_exp_f32 v{SC+g}, v{SC+g}')
    A(f'v_add_f32 v5, v{SC}, v{SC+1}')
    for g in range(2, G): A(f'v_add_f32 v5, v5, v{SC+g}')
    A(f'v_add_f32_dpp v5, v5, v5 row_ror:8 {DPPM}')
    allreduce_rows('v_add_f32', [5], [T])
    A(f'''
s_lshl_b32 s69, s73, 4
v_mov_b32 v{T}, s69
v_mov_b32 v6, 1
v_mov_b32 v7, 1
ds_write_b128 v{T}, v[4:7] offset:{SL}
''')
    stamp(4)
    for g in range(G): A(f'v_cvt_pk_bf16_f32 v{SC+g}, v{SC+g}, v2')
    for i in range(24): A(f'v_mov_b32 v{ACC+i}, 0')
    A('''
v_and_b32 v8, 7, v0
v_lshlrev_b32 v8, 5, v8
v_lshrrev_b32 v9, 4, v0
v_lshl_add_u32 v8, v9, 3, v8
s_mul_i32 s69, s73, 768
v_add_u32 v8, s69, v8
v_mov_b32 v11, 1
''')
    def pv(idx):
        g, j = divmod(idx, 3)
        r = vreg(g) + 4 * j
        if j == 0: A(f'v_lshlrev_b32 v10, 16, v{SC+g}')
        for e in range(4):
            A(f'v_dot2c_f32_bf16 v{ACC+8*j+2*e}, v{r+e}, v{SC+g}')
            A(f'v_dot2c_f32_bf16 v{ACC+8*j+2*e+1}, v{r+e}, v10')
    done_idx = -1; pv_next = 0
    assert nv < NV - opt['ttrig'] <= NV - opt['wtrig']
    while nv < NV:
        issue_load('V', nv // 3, nv % 3, D2)
        done_idx = nv - D2 - (1 if (opt['cal'] and opt['lag']) else 0)
        nv += 1
        if nv == NV - opt['ttrig']:
            A(f's_mov_b64 exec, 1\nds_add_u32 v2, v11 offset:{CNT+16}\ns_mov_b64 exec, -1')
        if nv == NV - opt['wtrig']:
            A(f's_mov_b64 exec, 1\nds_add_u32 v2, v11 offset:{CNT+4}\ns_mov_b64 exec, -1')
        cnt = 0
        while pv_next <= done_idx and cnt < 2:
            pv(pv_next); pv_next += 1; cnt += 1
    def scale_factor():
        def body():
            A(f'ds_read_b128 v[12:15], v3 offset:{SL}')
            A('s_waitcnt lgkmcnt(0)')
            A('v_cmp_eq_u32 vcc, 0, v15')
        spin(body, sleep=1)
        allreduce8('v_max_f32', [12])
        A('v_sub_f32 v9, v4, v12\nv_mul_f32 v9, s68, v9\nv_exp_f32 v9, v9')
        get_mode(dst=13, adr=2)
        A(f'''
v_min_u32 v12, 47, v0
v_lshlrev_b32 v13, 7, v12
v_lshlrev_b32 v12, 4, v12
s_mul_i32 s74, s6, 6144
s_lshl4_add_u32 s74, s7, s74
s_add_u32 s74, s74, {OP}
s_mov_b32 s22, 0xaaaaaaaa
s_mov_b32 s23, 0xaaaaaaaa
v_mov_b32 v14, s30
v_mov_b32 v15, s31
''')
    def reduce_j(js):
        for j in js:
            for e in range(4): A(f'{S32} v{ACC+8*j+e}, v{ACC+8*j+e+4}')
        for j in js:
            for e in range(4): A(f'v_add_f32 v{ACC+8*j+e}, v{ACC+8*j+e}, v{ACC+8*j+e+4}')
        for j in js:
            for e in range(2): A(f'{S16} v{ACC+8*j+e}, v{ACC+8*j+e+2}')
        for j in js:
            for e in range(2): A(f'v_add_f32 v{ACC+8*j+e}, v{ACC+8*j+e}, v{ACC+8*j+e+2}')
        for j in js:
            for e in range(2): A(f'v_add_f32_dpp v{ACC+8*j+e}, v{ACC+8*j+e}, v{ACC+8*j+e} row_ror:8 {DPPM}')
        for j in js:
            for e in range(2): A(f'v_mul_f32 v{ACC+8*j+e}, v9, v{ACC+8*j+e}')
            A(f'ds_write_b64 v8, v[{ACC+8*j}:{ACC+8*j+1}] offset:{OL+256*j}')
    fd = False
    while pv_next < NV:
        if pv_next >= NV - 3 and not fd:
            scale_factor(); fd = True
        if pv_next > done_idx:
            A(f's_waitcnt vmcnt({NV - 1 - pv_next})')
            done_idx = pv_next
        pv(pv_next); pv_next += 1
        if pv_next > NV - 3: reduce_j([(pv_next - 1) % 3])
    stamp(5)

stream(8, D1, D2, opt['Vpre'])
A(f'''
s_mov_b64 exec, 1
ds_add_rtn_u32 v10, v2, v11 offset:{CNT}
s_mov_b64 exec, -1
''')
for w in range(8): A(f'ds_read_b128 v[{16+4*w}:{19+4*w}], v12 offset:{OL+768*w}')
A('''
s_waitcnt lgkmcnt(8)
v_readfirstlane_b32 s68, v10
s_cmp_lg_u32 s68, 7
s_cbranch_scc1 L_nopub
''')
def pkadd(d, a, b):
    for e in (0, 2): A(f'v_pk_add_f32 v[{d+e}:{d+e+1}], v[{a+e}:{a+e+1}], v[{b+e}:{b+e+1}]')
for w in range(0, 8, 2):
    A(f's_waitcnt lgkmcnt({6-w})')
    pkadd(16 + 4*w, 16 + 4*w, 20 + 4*w)
    if w == 2 or w == 6: pkadd(8 + 4*w, 8 + 4*w, 16 + 4*w)
pkadd(4, 16, 32)
A('''
v_cvt_pk_bf16_f32 v8, v4, v5
v_cvt_pk_bf16_f32 v9, v6, v7
v_cndmask_b32 v4, v8, v14, s[22:23]
v_cndmask_b32 v5, v9, v15, s[22:23]
v_cndmask_b32 v6, v14, v8, s[22:23]
v_cndmask_b32 v7, v15, v9, s[22:23]
''')
publish([((1 << 48) - 1, 'buffer_store_dwordx4 v[4:7], v13, @, s74 offen')])
A(f'ds_write_b32 v2, v11 offset:{CNT+28}')
if opt['wopause']: A(f'v_mov_b32 v10, 64\nds_write_b32 v2, v10 offset:{CNT}')
if opt['gdone']:
    A(f'''
s_lshl_b32 s68, s4, 9
s_lshr_b32 s69, s2, 3
s_lshl4_add_u32 s68, s69, s68
s_add_u32 s68, s68, {DN}
s_mov_b64 exec, 1
buffer_store_dwordx4 v[4:7], v12, s[32:35], s68 offen
s_mov_b64 exec, -1
''')
if STAMPS:
    A('s_memrealtime s[96:97]')
    if opt['puback']: A('s_waitcnt vmcnt(0)\ns_memrealtime s[94:95]')
    get_role(1, dst=16, adr=17)
    stamp_val(16, 96, 97)
    if opt['puback']:
        A('s_cmp_lt_u32 s5, 20\ns_cbranch_scc1 L_pa1')
        stamp_val(5, 94, 95)
        A('s_branch L_pa2\nL_pa1:')
        stamp_val(18, 94, 95)
        A('L_pa2:')
A('L_nopub:')
A('s_waitcnt lgkmcnt(0)')
if opt['trace']:
    A(f'''
s_lshl_b32 s68, s73, 8
v_lshl_add_u32 v16, v0, 2, s68
ds_read_b32 v17, v16 offset:{TRL}
s_lshl_b32 s68, s2, 11
s_add_u32 s68, s68, {0x380000}
s_waitcnt lgkmcnt(0)
buffer_store_dword v17, v16, s[24:27], s68 offen
s_nop 2
''')
stamp(6)
get_role(1, dst=16, adr=17)
A('''
s_cmp_lt_u32 s5, 20
s_cbranch_scc1 L_notf1
s_cmp_lt_u32 s3, 9
s_cbranch_scc1 L_f1
s_branch L_stream_exit
L_notf1:
s_cmp_gt_u32 s5, 11
s_cbranch_scc1 L_stream_exit
s_cmp_gt_u32 s3, 6
s_cbranch_scc1 L_f2
s_endpgm
L_stream_exit:
''')
if STAMPS:
    A(f"s_cmp_eq_u32 s3, {opt['swave']}")
    A('s_cbranch_scc0 L_end')
    stamp(7)
    write_stamps(8)
A('s_endpgm')

A('L_helper:')
A('s_setprio 3')
A('s_cmp_eq_u32 s3, 3')
A('s_cbranch_scc1 L_ids')
NA = opt['QA_']; NB = (80 - 5 * NA) // 3; assert 5 * NA + 3 * NB == 80 and NA <= NB <= 20
NE = opt['NE']; NL = 4 * NE // 3; assert NE % 3 == 0
DQ = min(opt['DQ'], NB, NA + NL); assert DQ >= NA
A(f'''
v_lshlrev_b32 v1, 2, v0
v_lshrrev_b32 v2, 3, v0
s_mul_i32 s68, s7, {8*NA}
s_mul_i32 s69, s7, {8*NB}
s_sub_u32 s69, s69, {40*(NB-NA)}
s_cmp_lt_u32 s7, 5
s_cselect_b32 s68, s68, s69
v_add_u32 v3, s68, v2
v_lshlrev_b32 v3, 1, v3
v_mul_u32_u24 v21, 1280, v2
v_mul_u32_u24 v2, 12288, v2
v_and_b32 v7, 7, v0
v_lshl_add_u32 v2, v7, 4, v2
v_lshl_add_u32 v21, v7, 4, v21
s_mul_i32 s68, s68, 12288
s_mul_i32 s69, s6, 384
s_add_u32 s68, s68, s69
s_lshl_b32 s69, s3, 7
s_add_u32 s68, s68, s69
s_mul_i32 s5, s79, 5
s_add_u32 s5, s5, s7
s_cmp_ge_u32 s5, 10
s_cselect_b32 s76, 1, 0
s_mul_i32 s77, s76, 10
s_sub_u32 s77, s5, s77
s_lshl1_add_u32 s60, s4, s76
s_mul_i32 s60, s60, {384*1280}
s_lshl_b32 s69, s77, 7
s_add_u32 s60, s60, s69
s_mul_i32 s61, s3, {NL}
''')
XS = 8; XP = 24; XR = 104; XU = 124; WQ = 24; QA = 144; XT = 152
XP = 156
A('s_waitcnt lgkmcnt(0)')
if not opt['hb']: A('s_barrier')
srd(8, 42, 640 * 6144 * 2); srd(12, 44, 6144 * 640 * 2)
for i in range(5): A(f'global_load_dword v{XS+i}, v1, s[36:37] offset:{256*i}')
for r in range(NB): A(f'global_load_ushort v{XR+r}, v3, s[36:37] offset:{16*r}')
def wq_load(r):
    A(f'buffer_load_dwordx4 v[{WQ+4*r}:{WQ+4*r+3}], v2, s[8:11], s68 offen nt')
    A('s_add_u32 s68, s68, 98304')
def wo_load(r):
    A(f's_mul_i32 s62, s61, {(65536 + NE - 1) // NE}\ns_lshr_b32 s62, s62, 16\ns_mul_i32 s62, s62, {12 - NE}\ns_add_u32 s62, s62, s61')
    A(f's_lshl_b32 s63, s62, 10\ns_add_u32 m0, s63, {WL}\ns_mul_i32 s62, s62, {8*1280}\ns_add_u32 s62, s62, s60')
    A('buffer_load_dwordx4 v21, s[12:15], s62 offen nt lds')
    A('s_add_u32 s61, s61, 1')
for r in range(NA): wq_load(r)
if DQ > NA:
    A('s_cmp_lt_u32 s7, 5\ns_cbranch_scc1 L_q1wo')
    for r in range(NA, DQ): wq_load(r)
    A('s_branch L_q1j\nL_q1wo:')
    for r in range(NA, DQ): wo_load(r)
    A('L_q1j:')
wsshift(); A(f's_load_dwordx2 s[28:29], s[58:59], {EP}')
if opt['hb']: A('s_barrier')
A('s_mov_b32 s69, 0xffff0000')
ws_srds()
mktag()
A(f's_waitcnt vmcnt({DQ + NB})')
for i in range(5):
    A(f'v_lshlrev_b32 v{XU+2*i}, 16, v{XS+i}')
    A(f'v_and_b32 v{XU+1+2*i}, s69, v{XS+i}')
A(f'''
v_add_f32 v4, v{XU}, v{XU+1}
v_add_f32 v5, v{XU+2}, v{XU+3}
v_add_f32 v6, v{XU+4}, v{XU+5}
v_add_f32 v7, v{XU+6}, v{XU+7}
v_add_f32 v4, v4, v5
v_add_f32 v6, v6, v7
v_add_f32 v5, v{XU+8}, v{XU+9}
v_add_f32 v4, v4, v6
v_add_f32 v4, v4, v5
''')
allreduce64('v_add_f32', [4], [5])
A(f'v_mul_f32 v4, {f32(1.0/640)}, v4')
for i in range(10): A(f'v_sub_f32 v{XU+i}, v{XU+i}, v4')
A(f'v_mul_f32 v5, v{XU}, v{XU}')
for i in range(1, 10): A(f'v_fmac_f32 v5, v{XU+i}, v{XU+i}')
allreduce64('v_add_f32', [5], [6])
A(f'v_mul_f32 v5, {f32(1.0/640)}, v5')
bf16r(4, 4); bf16r(5, 5)
A(f'v_add_f32 v5, {f32(1e-5)}, v5')
bf16r(5, 5)
A('v_sqrt_f32 v5, v5')
bf16r(5, 5)
A('v_rcp_f32 v5, v5')
A('v_mov_b32 v6, 0')
for e in range(8): A(f'v_mov_b32 v{QA+e}, 0')
A(f'''
v_and_b32 v{XT}, 7, v0
v_lshrrev_b32 v7, 4, v0
v_lshl_add_u32 v{XT}, v{XT}, 2, v7
v_lshlrev_b32 v{XT}, 4, v{XT}
s_lshl_b32 s64, s71, 11
s_lshl_b32 s65, s3, 9
s_add_u32 s64, s64, s65
''')
A(f's_waitcnt vmcnt({DQ})')
def xnorm(rs):
    for r in rs:
        A(f'v_lshlrev_b32 v{XR+r}, 16, v{XR+r}')
    for r in rs: A(f'v_sub_f32 v{XR+r}, v{XR+r}, v4')
    for r in rs: A(f'v_cvt_pk_bf16_f32 v{XR+r}, v6, v{XR+r}')
    for r in rs: A(f'v_mul_f32 v{XR+r}, v{XR+r}, v5')
    for r in rs:
        A(f'v_cvt_pk_bf16_f32 v{XU+r}, v6, v{XR+r}')
        A(f'v_cvt_pk_bf16_f32 v{XR+r}, v{XR+r}, v6')
def qdot(r):
    for e in range(4):
        A(f'v_dot2c_f32_bf16 v{QA+2*e}, v{WQ+4*r+e}, v{XR+r}')
        A(f'v_dot2c_f32_bf16 v{QA+2*e+1}, v{WQ+4*r+e}, v{XU+r}')
xnorm(range(NA))
A('s_cmp_lt_u32 s7, 5\ns_cbranch_scc1 L_q2wo')
xnorm(range(NA, NB))
for r in range(NB):
    A(f's_waitcnt vmcnt({min(DQ - 1, NB - 1 - r)})')
    if r + DQ < NB: wq_load(r + DQ)
    qdot(r)
A('s_branch L_q2j\nL_q2wo:')
NW = NA + NL
for r in range(max(NA, NW - DQ)):
    A(f's_waitcnt vmcnt({min(DQ - 1, NW - 1 - r)})')
    if r + DQ < NW: wo_load(r + DQ)
    if r < NA: qdot(r)
A('L_q2j:\ns_nop 2')
A('s_lshl_b32 s69, s3, 9')
if STAMPS: A('s_lshr_b32 s82, s2, 3\ns_add_u32 s82, s80, s82\ns_addc_u32 s83, s81, 0')
for e in range(4): A(f'{S32} v{QA+e}, v{QA+e+4}')
for e in range(4): A(f'v_add_f32 v{QA+e}, v{QA+e}, v{QA+e+4}')
for e in range(2): A(f'{S16} v{QA+e}, v{QA+e+2}')
for e in range(2): A(f'v_add_f32 v{QA+e}, v{QA+e}, v{QA+e+2}')
for e in range(2): A(f'v_add_f32_dpp v{QA+e}, v{QA+e}, v{QA+e} row_ror:8 {DPPM}')
A(f'v_mov_b32 v{QA+2}, s30\nv_mov_b32 v{QA+3}, s31')
QM = 0x00ff00ff00ff00ff
if not opt['forceslow'] and not opt['qabl'] & 1:
    setexec(QM)
    A(f'buffer_store_dwordx4 v[{QA}:{QA+3}], v{XT}, s[32:35], s64 offen offset:{QP}')
    setexec(ALL)
A('''
v_and_b32 v3, 31, v0
v_lshrrev_b32 v2, 5, v0
v_lshlrev_b32 v2, 11, v2
v_lshl_add_u32 v2, v3, 4, v2
s_lshl_b32 s68, s6, 14
s_add_u32 s60, s68, s69
s_add_u32 s61, s60, 4096
s_add_u32 s62, s60, 8192
s_add_u32 s63, s60, 12288
v_lshlrev_b32 v3, 2, v3
s_lshl_b32 s69, s3, 7
v_add_u32 v3, s69, v3
v_mov_b32 v1, 0
s_mov_b32 s65, 0
''')
def q_lazy():
    skip = newlabel('qlazy')
    A(f'''
ds_read_b32 v4, v1 offset:{CNT+8}
s_waitcnt lgkmcnt(0)
v_readfirstlane_b32 s46, v4
s_sub_u32 s68, s46, s65
s_cmp_lg_u32 s68, 2
s_cbranch_scc1 {skip}
''')
    setexec(QM)
    A(f'buffer_store_dwordx4 v[{QA}:{QA+3}], v{XT}, s[24:27], s64 offen offset:{QP} sc1')
    setexec(ALL)
    A(f's_mov_b32 s65, 1\n{skip}:')
def body():
    for n in range(4):
        A(f'buffer_load_dwordx4 v[{8+4*n}:{11+4*n}], v2, s[16:19], s{60+n} offen offset:{QP} sc1' + (' nt' if opt['qnt'] else ''))
    A('s_waitcnt vmcnt(0)')
    tagcheck([10, 14, 18, 22])
if opt['qdelay']: A(f"s_sleep {opt['qdelay']}")
if not opt['qabl']: spin2(body, sleep=opt['sleep'], retry=q_lazy)
else: A('\n'.join(f'v_mov_b32 v{r}, 0' for r in range(8, 24)))
stamp(2)
A(f'''
v_add_f32 v8, v8, v12
v_add_f32 v9, v9, v13
v_add_f32 v16, v16, v20
v_add_f32 v17, v17, v21
v_add_f32 v8, v8, v16
v_add_f32 v9, v9, v17
''')
swapreduce(S32, 'v_add_f32', [8, 9], [10, 11])
A(f'''
v_cvt_pk_bf16_f32 v8, v8, v9
ds_write_b32 v3, v8 offset:{QL}
s_lshl_b32 s69, s3, 3
v_mov_b32 v4, s69
v_mov_b32 v6, 1
s_waitcnt lgkmcnt(0)
ds_write_b32 v4, v6 offset:{QF}
''')
get_mode()
q_lazy()
if opt['tlb']:
    A(f'''
s_cmp_lg_u32 s3, 1
s_cbranch_scc1 L_stats
s_mov_b64 exec, 1
s_mul_i32 s68, s4, {768*1280}
v_mov_b32 v8, s68
v_add_u32 v9, {768*1280-4}, v8
global_load_dword v16, v8, s[44:45]
global_load_dword v17, v9, s[44:45]
global_load_dword v18, v1, s[48:49]
global_load_dword v19, v1, s[50:51]
global_load_dword v20, v1, s[52:53]
global_load_dword v21, v1, s[54:55]
s_mov_b32 s68, {EP}
buffer_load_dword v22, v1, s[24:27], s68 offen
s_mov_b32 s68, {WSN - 128}
buffer_load_dword v23, v1, s[32:35], s68 offen
s_mov_b64 exec, -1
s_waitcnt vmcnt(0)
''')
A('s_branch L_stats')
A('L_ids:')
A(f'''
s_waitcnt lgkmcnt(0)
s_memrealtime s[62:63]
s_barrier
s_getreg_b32 s64, hwreg(HW_REG_XCC_ID)
''')
wsshift(); A(f's_load_dwordx2 s[28:29], s[58:59], {EP}')
ws_srds()
mktag()
A(f'''
s_and_b32 s64, s64, 15
v_mov_b32 v4, s30
v_mov_b32 v5, s31
v_mov_b32 v6, s64
v_mov_b32 v7, s64
s_lshl_b32 s68, s4, 9
s_add_u32 s68, s68, {ID}
s_lshr_b32 s65, s2, 3
s_lshl_b32 s69, s65, 4
v_mov_b32 v1, s69
s_mov_b64 exec, 1
buffer_store_dwordx4 v[4:7], v1, s[32:35], s68 offen
s_mov_b64 exec, -1
s_mul_i32 s66, s4, 2304
s_add_u32 s66, s66, {TK}
''')
A(f'''
s_cmp_lg_u32 s65, {opt['lead']}
s_cbranch_scc1 L_noinit
v_mov_b32 v13, s30
''')
A('s_mov_b64 exec, -1')
if opt['pref'] == 2 and opt['prew']:
    A(f'''
v_lshlrev_b32 v12, 8, v0
s_lshl_b32 s69, s4, 15
s_add_u32 s69, s69, {PB}
''')
    if opt['pbfew']:
        m = sum(1 << (k * 9 & 31) for k in range(opt['shots']))
        setexec(m | m << 32)
    A('buffer_store_dword v13, v12, s[24:27], s69 offen sc1\ns_mov_b64 exec, -1')
    if opt['calpre']:
        A(f'''
s_cmp_lg_u32 s4, 0
s_cbranch_scc1 L_noinit
v_not_b32 v16, s31
v_not_b32 v17, s31
v_not_b32 v18, s31
v_not_b32 v19, s31
v_lshrrev_b32 v12, 4, v0
v_lshlrev_b32 v12, 9, v12
v_and_b32 v14, 15, v0
v_lshl_add_u32 v12, v14, 4, v12
s_mov_b32 s69, {CAL}
buffer_store_dwordx4 v[16:19], v12, s[24:27], s69 offen sc1
''')
A(f'''
L_noinit:
v_and_b32 v1, 31, v0
v_lshlrev_b32 v1, 4, v1
s_mov_b32 s70, {opt['idtries']}
s_mov_b32 s46, 2
L_idpoll:
s_sleep {opt['idsleep']}
buffer_load_dwordx4 v[8:11], v1, s[32:35], s68 offen sc1
s_waitcnt vmcnt(0)
v_cmp_ne_u64 vcc, s[30:31], v[8:9]
s_nop 0
s_cbranch_vccz L_iddone
s_sub_u32 s70, s70, 1
s_cbranch_scc0 L_idpoll
s_branch L_idset
L_iddone:
v_cmp_ne_u32 vcc, s64, v10
s_nop 0
s_cbranch_vccnz L_idset
s_mov_b32 s46, {2 if opt['forceslow'] else 1}
L_idset:
v_mov_b32 v1, 0
v_mov_b32 v4, s46
ds_write_b32 v1, v4 offset:{CNT+8}
''')
stamp(2)
A(f"s_cmp_lg_u32 s65, {opt['lead']}\ns_cbranch_scc1 L_pf")
if opt['pref'] == 2:
    A(f'''
s_lshl_b32 s69, s4, 15
s_add_u32 s69, s69, {PB}
s_add_u32 s22, s58, s69
s_addc_u32 s23, s59, 0
s_not_b32 s20, s30
s_mov_b32 s21, 0
s_waitcnt lgkmcnt(0)
''')
    A('s_mov_b32 s8, -1\ns_mov_b32 s9, -1\ns_memtime s[12:13]')
    if opt['diagp']: A('v_mov_b32 v20, 0')
    for k in range(2 * opt['shots']):
        c = (k ^ (k >> 1)) & 1
        i = (k >> 1) * 9 & 31
        a, b = (12, 14) if k % 2 == 0 else (14, 12)
        A('s_waitcnt lgkmcnt(0)')
        A(f's_load_dword s10, s[22:23], {c * 8192 + i * 256}')
        A('s_waitcnt lgkmcnt(0)')
        A(f's_memtime s[{b}:{b+1}]')
        A('s_waitcnt lgkmcnt(0)')
        A(f's_sub_u32 s11, s{b}, s{a}')
        A(f's_min_u32 s{8+c}, s{8+c}, s11')
        if opt['diagp']: A(f'v_writelane_b32 v20, s11, {c * 16 + (k >> 1)}')
    if opt['diagp']:
        A(f'v_writelane_b32 v20, s64, 63\nv_lshlrev_b32 v6, 2, v0\ns_lshl_b32 s69, s4, 8\ns_add_u32 s69, s69, {SP + 0x10000}\nbuffer_store_dword v20, v6, s[24:27], s69 offen')
    A('s_sub_u32 s21, s8, s9')
    A('s_cmp_gt_i32 s21, 0\ns_cselect_b32 s21, 1, 0')
else:
    A(f"s_lshr_b32 s21, s64, 2\ns_xor_b32 s21, s21, {opt['pref']}\ns_and_b32 s21, s21, 1")
A(f'''
v_mov_b32 v4, s21
v_mov_b32 v5, s62
v_mov_b32 v6, s30
v_mov_b32 v7, s31
s_lshl_b32 s69, s4, 4
s_add_u32 s69, s69, {PF}
s_mov_b64 exec, 1
buffer_store_dwordx4 v[4:7], v1, s[24:27], s69 offen sc1
s_mov_b64 exec, -1
''')

A('L_pf:')
if opt['cal'] and not opt['bis'] & 1:
    A('s_and_b32 s63, s31, 0xffff0000')
    if opt['sampf1']: A('s_cmp_lg_u32 s7, 6\ns_cbranch_scc1 L_nosample')
    else: A('s_mul_i32 s68, s79, 3\ns_add_u32 s68, s68, s4\ns_and_b32 s68, s68, 7\ns_cmp_lg_u32 s68, s7\ns_cbranch_scc1 L_nosample')
    A('v_mov_b32 v1, 0')
    def body():
        A(f'ds_read_b64 v[4:5], v1 offset:{SUMS}')
        A('s_waitcnt lgkmcnt(0)')
        A('v_cmp_gt_u32 vcc, 0x8000000, v5')
    spin(body, sleep=2)
    A(f'''
v_and_b32 v5, 0xffffff, v5
v_min_u32 v5, 0xffff, v5
v_or_b32 v5, s63, v5
v_lshlrev_b32 v6, 9, v0
s_lshl_b32 s68, s6, 3
s_add_u32 s68, s68, {CAL}
s_mov_b64 exec, {(2 << opt['caltries']) - 1}
{'' if opt['nostore'] else 'buffer_store_dwordx2 v[4:5], v6, s[24:27], s68 offen sc1'}
s_mov_b64 exec, -1
L_nosample:
''')
lds_wait_ge(CNT + 52, 8, 4, dst=12)
if opt['cal']:
    al = opt['tau0'] * opt['gam'] / 100 / (opt['D0'] - 40)
    A(f'''
{'s_branch L_calno' if opt['bis'] & 4 else ''}
s_setprio {opt['calprio']}
s_add_u32 s60, s58, {CAL}
s_addc_u32 s61, s59, 0
s_mov_b32 s70, {opt['caltries']}
L_calpoll:
s_lshl_b32 s96, s62, 8
s_sub_u32 s96, 0, s96
s_mov_b32 s97, 0
s_mov_b32 s98, 0
''')
    for h in range(2):
        A(f's_load_dwordx16 s[8:23], s[60:61], {128*h}\ns_load_dwordx16 s[80:95], s[60:61], {128*h+64}\ns_waitcnt lgkmcnt(0)')
        for b in (8, 80):
            for i in range(8):
                A(f's_add_u32 s96, s96, s{b+2*i}\ns_xor_b32 s{b+2*i+1}, s{b+2*i+1}, s63\ns_add_u32 s97, s97, s{b+2*i+1}\ns_or_b32 s98, s98, s{b+2*i+1}')
    A(f'''
s_cmp_lt_u32 s98, 0x10000
s_cbranch_scc1 L_calok
s_add_u32 s60, s60, 512
s_addc_u32 s61, s61, 0
s_sub_u32 s70, s70, 1
s_cbranch_scc1 L_calno
s_sleep {opt['calsleep']}
s_branch L_calpoll
L_calok:
v_cvt_f32_u32 v13, s97
s_ashr_i32 s96, s96, 4
s_cmp_lt_u32 s7, 5
s_mov_b32 s68, {16 * opt['dB']}
s_cselect_b32 s68, {16 * opt['dA']}, s68
s_lshl4_add_u32 s68, s62, s68
s_add_u32 s68, s68, s96
v_mov_b32 v12, s68
v_mul_f32 v13, {f32(al / 256)}, v13
v_add_f32 v13, {f32(opt['tau0'] - al * opt['D0'])}, v13
v_cvt_u32_f32 v13, v13
ds_write_b64 v1, v[12:13] offset:{ORG}
L_calno:
s_setprio 3
''')

A('L_stats:')
A('v_and_b32 v1, 7, v0\nv_lshlrev_b32 v1, 4, v1')
def body():
    A(f'ds_read_b128 v[4:7], v1 offset:{SL}')
    A('s_waitcnt lgkmcnt(0)')
    A('v_cmp_eq_u32 vcc, 0, v7')
spin(body, sleep=4)
A('s_cmp_lg_u32 s3, 3')
A('s_cbranch_scc1 L_nostat')
def combine_stats():
    A(f's_mov_b32 s68, {f32(LOG2E)}')
    A('v_mov_b32 v2, v4')
    allreduce8('v_max_f32', [2])
    A('v_sub_f32 v4, v4, v2\nv_mul_f32 v4, s68, v4\nv_exp_f32 v4, v4\nv_mul_f32 v3, v4, v5')
    allreduce8('v_add_f32', [3])
combine_stats()
A(f'''
s_lshl_b32 s68, s71, 4
s_add_u32 s68, s68, {ST}
v_mov_b32 v4, s30
v_mov_b32 v5, s31
''')
publish([(1, 'buffer_store_dwordx4 v[2:5], v1, @, s68 offen')])
A(f's_mov_b32 s68, {PF}')
def body():
    A('buffer_load_dwordx4 v[8:11], v1, s[24:27], s68 offen sc1')
    A('s_waitcnt vmcnt(0)')
    tagcheck([10])
spin(body, sleep=8)
A('''
v_cmp_ne_u32 vcc, 0, v8
s_nop 0
s_and_b32 s67, vcc_lo, 0xff
s_lshl_b32 s67, s67, 8
s_bitset1_b32 s67, 16
''')
if opt['dyn']:
    lds_wait_ge(CNT + 16, opt['tcnt'], 2)
    stamp(3)
    A('s_mov_b64 exec, 1')
    def body():
        A('v_mov_b32 v8, 1\nv_mov_b32 v9, 0')
        A('buffer_atomic_add_x2 v[8:9], v1, s[24:27], s66 offen sc0 sc1')
        A('s_waitcnt vmcnt(0)')
        A('v_cmp_ne_u32 vcc, s30, v9')
    spin(body, sleep=8)
    A('v_and_b32 v8, 31, v8\nv_or_b32 v8, s67, v8')
else:
    A('''
s_mul_i32 s5, s79, 5
s_add_u32 s5, s5, s7
s_mul_i32 s72, s79, 3
s_add_u32 s72, s72, s7
s_add_u32 s72, s72, 15
s_cmp_lt_u32 s7, 5
s_cselect_b32 s5, s5, s72
s_or_b32 s5, s5, s67
v_mov_b32 v8, s5
v_mov_b32 v1, 0
s_mov_b64 exec, 1
''')
A(f'ds_write_b32 v1, v8 offset:{ROLE}\ns_mov_b64 exec, -1')
A('L_nostat:')
BW = 64
CF = 56
XM = 52
CFSRC = '# wave 0: stats of the group\'s 4 heads x 8 splits -> c = exp(m-M)/L per lane (lane = 8*head + split) -> LDS\nA(f\'\'\'\ns_cmp_lg_u32 s3, 0\ns_cbranch_scc1 L_noc\ns_lshl_b32 s72, s4, 9\ns_add_u32 s72, s72, {ST}\nv_and_b32 v1, 31, v0\nv_lshlrev_b32 v1, 4, v1\n\'\'\')\ndef body():\n    A(f"s_sleep {opt[\'stsleep\']}")\n    A(\'buffer_load_dwordx4 v[4:7], v1, s[16:19], s72 offen sc1\')\n    A(\'s_waitcnt vmcnt(0)\')\n    tagcheck([6])\nspin2(body, local_only=True)\nstamp(4)\ncombine_stats()\nA(f\'\'\'\nv_rcp_f32 v3, v3\nv_lshrrev_b32 v1, 2, v1\nv_mul_f32 v4, v4, v3\nv_mov_b32 v2, 0\nv_mov_b32 v3, 1\nds_write_b32 v1, v4 offset:{CL}\nds_write_b32 v2, v3 offset:{CNT+24}\nL_noc:\n\'\'\')\n'
get_role(4)
A('''
s_cmp_lt_u32 s5, 20
s_cbranch_scc0 L_helper_exit
''')
def tr_addr(dst, tmp):
    A(f'''
v_lshrrev_b32 v{dst}, 4, v0
v_lshlrev_b32 v{dst}, 10, v{dst}
v_bfe_u32 v{tmp}, v0, 2, 2
v_lshl_add_u32 v{dst}, v{tmp}, 7, v{dst}
v_and_b32 v{tmp}, 3, v0
v_lshl_add_u32 v{dst}, v{tmp}, 3, v{dst}
''')
A(f'''
s_cmp_ge_u32 s5, 10
s_cselect_b32 s76, 1, 0
s_mul_i32 s77, s76, 10
s_sub_u32 s77, s5, s77
s_lshr_b32 s68, s3, 1
s_lshl1_add_u32 s78, s76, s68
v_bfe_u32 v2, v0, 4, 1
v_lshlrev_b32 v2, 4, v2
s_lshl_b32 s68, s78, 5
v_add_u32 v22, s68, v2
''')
A(f'''
v_lshlrev_b32 v60, 4, v0
s_lshl2_add_u32 s73, s4, s78
s_mul_i32 s73, s73, 6144
s_and_b32 s68, s3, 1
s_mul_i32 s68, s68, 3072
s_add_u32 s73, s73, s68
s_add_u32 s73, s73, {OP}
v_lshlrev_b32 v62, 2, v0
s_lshl_b32 s68, s3, 8
v_add_u32 v61, s68, v62
v_lshrrev_b32 v2, 5, v0
v_lshlrev_b32 v2, 11, v2
v_bfe_u32 v3, v0, 2, 3
v_lshl_add_u32 v2, v3, 4, v2
v_and_b32 v3, 1, v0
v_lshl_add_u32 v63, v3, 13, v2
s_lshr_b32 s75, s77, 1
s_lshl_b32 s75, s75, 14
s_and_b32 s68, s77, 1
s_lshl_b32 s68, s68, 12
s_add_u32 s75, s75, s68
s_lshl1_add_u32 s68, s4, s76
s_lshl_b32 s68, s68, 7
s_add_u32 s75, s75, s68
s_add_u32 s75, s75, {YP}
s_mov_b32 s66, 0xff00ff00
s_mov_b32 s67, 0xff00ff00
s_mov_b32 s8, 0x33333333
s_mov_b32 s9, 0x33333333
v_mov_b32 v6, s30
v_mov_b32 v7, s31
v_cndmask_b32 v{XM}, 0, v6, s[66:67]
v_cndmask_b32 v{XM+1}, 0, v7, s[66:67]
v_cndmask_b32 v{XM+2}, v6, 0, s[66:67]
v_cndmask_b32 v{XM+3}, v7, 0, s[66:67]
v_mov_b32 v50, s30
v_mov_b32 v51, s31
''')
tr_addr(24, 25)
A('s_mul_i32 s69, s3, 12288\nv_add_u32 v24, s69, v24')
exec(CFSRC)
lds_wait_ge(CNT + 24, 1, 2)
A(f'ds_read_b128 v[{CF}:{CF+3}], v22 offset:{CL}')
def wo_tr(ts):
    for t in ts:
        for u in range(4):
            r = BW + 4 * (4 * t + u)
            A(f'ds_read_b64_tr_b16 v[{r}:{r+1}], v24 offset:{WL + 4096*t + 32*u}')
            A(f'ds_read_b64_tr_b16 v[{r+2}:{r+3}], v24 offset:{WL + 4096*t + 32*u + 512}')
AO = 8
def op_loads(srdn, first=False):
    stamp(2)
    for t in range(3):
        A(f'buffer_load_dwordx4 v[{AO+4*t}:{AO+4*t+3}], v60, s[{srdn}:{srdn+3}], s73 offen offset:{1024*t} sc1' + (' nt' if opt['ont'] or (first and opt['o1nt']) else ''))
A('v_mov_b32 v23, 1\ns_lshl_b32 s68, s3, 2\nv_mov_b32 v25, s68')
tdone = NE // 4
wo_tr(range(tdone))
if NE < 12:
    srd(12, 44, 6144 * 640 * 2)
    A(f'''
v_lshrrev_b32 v21, 3, v0
v_mul_u32_u24 v21, 1280, v21
v_and_b32 v3, 7, v0
v_lshl_add_u32 v21, v3, 4, v21
s_lshl1_add_u32 s60, s4, s76
s_lshl2_add_u32 s60, s60, s3
s_mul_i32 s60, s60, {96*1280}
s_lshl_b32 s69, s77, 7
s_add_u32 s60, s60, s69
s_add_u32 s60, s60, {NE*8*1280}
s_mul_i32 s61, s3, 12288
s_add_u32 s61, s61, {WL + 1024*NE}
''')
    lds_wait_ge(CNT + 4, 8, 2)
    stamp(3)
    for n in range(12 - NE):
        if n >= opt['DWF']: A(f"s_waitcnt vmcnt({opt['DWF']-1})")
        A('s_mov_b32 m0, s61')
        A('buffer_load_dwordx4 v21, s[12:15], s60 offen nt lds')
        A(f's_add_u32 s60, s60, {8*1280}\ns_add_u32 s61, s61, 1024')
    if opt['opre2']: op_loads(32, True)
    x = 3 if opt['opre2'] else 0
    if tdone < 2:
        A(f's_waitcnt vmcnt({4 + x})')
        wo_tr(range(tdone, 2))
    lds_wait_ge(CNT + 28, 1, 1)
    A('s_waitcnt vmcnt(0)')
    op_loads(32)
    wo_tr([2])
    A('s_waitcnt lgkmcnt(0)')
else:
    if opt['opre2']:
        lds_wait_ge(CNT + 4, 8, 2)
        stamp(3)
        op_loads(32, True)
        A('s_waitcnt vmcnt(0)')
    lds_wait_ge(CNT + 28, 1, 1)
stamp(6)
def body():
    op_loads(16)
    A('L_opw:')
    for t in range(3):
        A(f's_waitcnt vmcnt({2-t})')
        q = AO + 4 * t
        for e in range(4): A(f'v_xor_b32 v{q+e}, v{q+e}, v{XM+e}')
        for u in range(4):
            r = BW + 4 * (4 * t + u)
            c = '0' if t == 0 else f'v[{32+4*u}:{35+4*u}]'
            A(f'v_mfma_f32_16x16x32_bf16 v[{32+4*u}:{35+4*u}], v[{q}:{q+3}], v[{r}:{r+3}], {c}')
        if t == 0:
            A(f'v_or_b32 v2, v{q}, v{q+1}\nv_or_b32 v3, v{q+2}, v{q+3}')
        else:
            A(f'v_or3_b32 v2, v2, v{q}, v{q+1}\nv_or3_b32 v3, v3, v{q+2}, v{q+3}')
    A('v_cndmask_b32 v2, v3, v2, s[66:67]')
    A('v_cmp_ne_u32 vcc, 0, v2')
spin2(body, local_only=True, entry='L_opw' if NE < 12 else None)
stamp(7)
if opt['w2trig'] == 0: A(f'ds_write_b32 v25, v23 offset:{CNT+32}')
for u in range(4):
    A(f'v_mul_f32 v{4+u}, v{32+4*u}, v{CF}')
    for r in range(1, 4): A(f'v_fmac_f32 v{4+u}, v{32+4*u+r}, v{CF+r}')
A(f'''
{S32} v4, v6
{S32} v5, v7
v_add_f32 v4, v4, v6
v_add_f32 v5, v5, v7
{S16} v4, v5
v_add_f32 v4, v4, v5
ds_write_b32 v61, v4 offset:{RL}
s_cmp_lg_u32 s3, 0
s_waitcnt lgkmcnt(0)
s_barrier
s_cbranch_scc1 L_post_wo
ds_read_b32 v5, v62 offset:{RL+256}
ds_read_b32 v6, v62 offset:{RL+512}
ds_read_b32 v7, v62 offset:{RL+768}
s_waitcnt lgkmcnt(0)
v_add_f32 v4, v4, v5
v_add_f32 v6, v6, v7
v_add_f32 v4, v4, v6
v_mov_b32_dpp v5, v4 quad_perm:[1,0,3,2] {DPPM}
v_cvt_pk_bf16_f32 v4, v4, v5
v_mov_b32_dpp v48, v4 quad_perm:[0,0,0,0] {DPPM}
v_mov_b32_dpp v49, v4 quad_perm:[2,2,2,2] {DPPM}
''')
A('s_mov_b64 exec, s[8:9]')
A('buffer_store_dwordx4 v[48:51], v63, s[24:27], s75 offen sc1')
stamp(5)
A('s_barrier')
if opt['cbpa']: A('s_barrier')
write_stamps(0)
A('s_endpgm')
A('L_helper_exit:')
if opt['prer'] >= 3:
    A('s_cmp_lg_u32 s3, 1\ns_cbranch_scc1 L_noprer')
    if opt['prer'] == 3: lds_wait_ge(CNT + 16, 8, 4)
    if opt['prer'] == 4: lds_wait_ge(CNT + 4, 8, 4)
    A(f'''
s_mul_i32 s68, s4, 12
s_add_u32 s68, s68, s5
s_sub_u32 s68, s68, 20
v_lshlrev_b32 v1, 7, v0
s_mul_i32 s60, s68, 5120
s_add_u32 s61, s60, {CB}
s_add_u32 s60, s60, {PA}
s_lshl_b32 s62, s68, 7
s_add_u32 s62, s62, {PS}
s_mul_i32 s63, s4, 5120
s_add_u32 s63, s63, {PH}
s_mov_b32 exec_lo, -1
s_mov_b32 exec_hi, 0xff
buffer_load_dword v4, v1, s[32:35], s60 offen {'nt' if opt['hnt'] else 'sc1'}
buffer_load_dword v5, v1, s[32:35], s61 offen {'nt' if opt['hnt'] else 'sc1'}
s_cmp_lg_u32 s5, 20
s_cbranch_scc1 L_noph
buffer_load_dword v6, v1, s[32:35], s63 offen sc1
L_noph:
s_mov_b64 exec, 1
buffer_load_dword v7, v1, s[32:35], s62 offen sc1
s_endpgm
L_noprer:
''')
if STAMPS:
    A('s_cmp_lg_u32 s3, 0\ns_cbranch_scc1 L_end')
    write_stamps(0)
A('s_endpgm')

B1R = 64
DR = 16
def gdone_wait(n):
    if not n: return
    lp = newlabel('gpoll'); ld = newlabel('gdone')
    A(f"""
v_and_b32 v1, 31, v0
v_lshlrev_b32 v1, 4, v1
s_lshl_b32 s68, s4, 9
s_add_u32 s68, s68, {DN}
s_mov_b32 s70, 40
s_cmp_lg_u32 s46, 1
s_cbranch_scc1 {ld}
{lp}:
buffer_load_dwordx4 v[4:7], v1, s[32:35], s68 offen sc1
s_waitcnt vmcnt(0)
v_cmp_eq_u64 vcc, s[30:31], v[6:7]
s_nop 0
s_bcnt1_i32_b32 s69, vcc_lo
s_cmp_ge_u32 s69, {n}
s_cbranch_scc1 {ld}
s_sleep 2
s_sub_u32 s70, s70, 1
s_cbranch_scc0 {lp}
{ld}:
""")
def yp_loads(fl=''):
    A('buffer_load_dwordx4 v[96:99], v55, s[24:27], s60 offen sc1' + fl)
    A('buffer_load_dwordx4 v[100:103], v55, s[24:27], s60 offen offset:1024 sc1' + fl)
def f1_mfma():
    for k in range(8):
        A(f'v_mfma_f32_16x16x32_bf16 v[{DR+4*k}:{DR+3+4*k}], v[8:11], v[{B1R+4*k}:{B1R+4*k+3}], 0')
def f1_select(d):
    for m in range(2):
        b = DR + 16 * m
        A(f'v_cndmask_b32 v{d+m}, v{b}, v{b+4}, s[62:63]')
        A(f'v_cndmask_b32 v{d+m}, v{d+m}, v{b+8}, s[64:65]')
        A(f'v_cndmask_b32 v{d+m}, v{d+m}, v{b+12}, s[66:67]')
A('L_f1:')
A('''
v_lshrrev_b32 v58, 4, v0
v_lshlrev_b32 v58, 7, v58
v_bfe_u32 v5, v0, 2, 2
v_lshl_add_u32 v58, v5, 9, v58
v_and_b32 v5, 3, v0
v_lshl_add_u32 v58, v5, 3, v58
''')
srd(12, 48, 640 * 1536 * 2); srd(16, 50, 640 * 1536 * 2)
A(f"""
s_mul_i32 s75, s5, 5
s_add_u32 s75, s75, s73
s_sub_u32 s75, s75, 100
s_cmp_ge_u32 s75, 20
s_cselect_b32 s78, 1, 0
s_cmp_ge_u32 s75, 40
s_cselect_b32 s78, 2, s78
s_mul_i32 s68, s78, 20
s_sub_u32 s74, s75, s68
s_mul_i32 s68, s4, 3
s_add_u32 s78, s78, s68
s_lshl_b32 s68, s73, 13
v_add_u32 v58, s68, v58
s_add_u32 s79, s68, {WL}
v_lshrrev_b32 v3, 4, v0
v_and_b32 v2, 7, v0
v_lshl_add_u32 v50, v2, 2, v3
v_lshlrev_b32 v50, 1, v50
s_lshl_b32 s68, s74, 6
v_add_u32 v61, s68, v50
v_lshlrev_b32 v54, 6, v3
v_lshl_add_u32 v54, v2, 3, v54
v_lshrrev_b32 v53, 3, v0
v_mul_u32_u24 v62, 3072, v53
v_lshl_add_u32 v62, v2, 4, v62
s_lshr_b32 s60, s74, 2
s_lshl_b32 s60, s60, 14
s_and_b32 s68, s74, 3
s_lshl_b32 s68, s68, 11
s_add_u32 s60, s60, s68
s_lshr_b32 s68, s47, s4
s_and_b32 s68, s68, 1
s_lshl_b32 s68, s68, 13
s_add_u32 s60, s60, s68
s_add_u32 s60, s60, {YP}
v_lshlrev_b32 v55, 4, v0
v_mov_b32 v57, 0
v_cmp_eq_u32 s[62:63], 1, v3
v_cmp_eq_u32 s[64:65], 2, v3
v_cmp_eq_u32 s[66:67], 3, v3
v_lshrrev_b32 v59, 4, v0
v_mul_u32_u24 v59, 5120, v59
v_bfe_u32 v4, v0, 3, 1
v_lshl_add_u32 v59, v4, 9, v59
v_lshl_add_u32 v59, v2, 4, v59
s_mul_i32 s76, s78, 20480
s_lshr_b32 s68, s74, 2
s_lshl_b32 s68, s68, 10
s_add_u32 s76, s76, s68
s_and_b32 s68, s74, 3
s_lshl_b32 s68, s68, 7
s_add_u32 s76, s76, s68
s_add_u32 s76, s76, {PA}
s_lshl_b32 s72, s78, 9
s_lshl4_add_u32 s72, s74, s72
s_add_u32 s72, s72, {PS}
s_mul_i32 s75, s4, 20
s_add_u32 s75, s75, s74
s_lshl_b32 s75, s75, 8
s_add_u32 s75, s75, {PH}
s_cmp_lt_u32 s5, 24
s_cselect_b32 s75, s75, {PH + 0xA000}
s_mov_b32 s77, 0x3f80
s_mov_b32 s71, 0x3f800000
v_mov_b32 v14, s30
v_mov_b32 v15, s31
s_mul_i32 s61, s74, {32*3072}
s_lshl_b32 s68, s78, 7
s_add_u32 s61, s61, s68
""")
if opt['f1trig'] == 0: lds_wait_ge(CNT + 28, 1, 1)
elif opt['f1trig'] == 1: lds_wait_ge(CNT + 4, 8, 1)
gdone_wait(opt['gdone'])
stamp(3)
for n in range(4):
    for m in range(2):
        A(f's_add_u32 m0, s79, {4096*m + 1024*n}')
        A(f'buffer_load_dwordx4 v62, s[{12+4*m}:{15+4*m}], s61 offen nt lds')
    if n < 3: A(f's_add_u32 s61, s61, {8*3072}')
A('global_load_ushort v56, v61, s[36:37]')
PFL = ' nt' if opt['prer'] == 2 else ' sc1'
def preread(mask, PFL=None):
    PFL = PFL or globals()['PFL']
    A(f's_add_u32 s68, s76, {CB - PA}\ns_mov_b32 exec_lo, 0x01010101\ns_mov_b32 exec_hi, 0x01010101')
    if mask & 1: A(f'buffer_load_dword v104, v59, s[32:35], s76 offen{PFL}')
    if mask & 2: A(f'buffer_load_dword v105, v59, s[32:35], s68 offen{PFL}')
    if mask & 4: A(f'buffer_load_dword v106, v54, s[32:35], s75 offen{PFL}')
    if mask & 4: A(f's_mov_b64 exec, 1\nbuffer_load_dword v107, v55, s[32:35], s72 offen{PFL}')
    A('s_mov_b64 exec, -1')
    return (mask & 1) + (mask >> 1 & 1) + 2 * (mask >> 2 & 1)
npre = preread(opt['pre1']) if opt['prer'] in (1, 2) and opt['pre1'] else 0
A('s_setprio 3')
A(f"s_waitcnt vmcnt({0 if opt['promo'] else npre})")
if opt['prer'] in (1, 2) and opt['pre2']: preread(opt['pre2'], ' sc1' if opt['promo'] else None)
yp_loads(' nt' if opt['ynt'] else '')
stamp(6)
for m in range(2):
    for u in range(4):
        r = B1R + 4 * (4 * m + u)
        A(f'ds_read_b64_tr_b16 v[{r}:{r+1}], v58 offset:{WL + 4096*m + 32*u}')
        A(f'ds_read_b64_tr_b16 v[{r+2}:{r+3}], v58 offset:{WL + 4096*m + 32*u + 2048}')
A("""
v_mov_b32 v8, 0x3f803f80
v_mov_b32 v9, 0x3f803f80
v_mov_b32 v10, 0x3f803f80
v_mov_b32 v11, 0x3f803f80
s_waitcnt lgkmcnt(0)
""")
f1_mfma()
A('v_mov_b32 v6, s30\nv_mov_b32 v7, s31\nv_mov_b32 v50, s30\nv_mov_b32 v51, s31')
A(f's_add_u32 s68, s76, {CB - PA}')
if opt['prepa'] == 2:
    A('s_waitcnt vmcnt(2)\nv_not_b32 v10, s30\nbuffer_store_dwordx4 v[8:11], v59, s[32:35], s76 offen')
    A('s_mov_b64 exec, 1\nbuffer_store_dwordx4 v[8:11], v55, s[32:35], s72 offen')
    setexec(0x0055005500550055)
    A('buffer_store_dwordx4 v[8:11], v54, s[32:35], s75 offen\ns_mov_b64 exec, -1')
if opt['prepa'] == 1:
    A('v_not_b32 v10, s30\nbuffer_store_dwordx4 v[8:11], v59, s[32:35], s76 offen')
f1_select(12)
if opt['cbred']:
    A(f'''
v_lshlrev_b32 v4, 3, v0
s_lshl_b32 s68, s73, 9
v_add_u32 v5, s68, v4
v_mov_b32 v8, 1
ds_write_b64 v5, v[12:13] offset:{OL}
s_mov_b64 exec, 1
ds_add_rtn_u32 v9, v57, v8 offset:{CNT+12}
s_mov_b64 exec, -1
''')
    for w in range(5): A(f'ds_read_b64 v[{16+2*w}:{17+2*w}], v4 offset:{OL + 512*w}')
    A(f'''
v_lshrrev_b32 v4, 4, v0
v_lshlrev_b32 v4, 10, v4
v_bfe_u32 v5, v0, 3, 1
v_lshl_add_u32 v4, v5, 9, v4
v_and_b32 v5, 7, v0
v_lshl_add_u32 v4, v5, 4, v4
s_lshl_b32 s68, s78, 12
s_and_b32 s69, s5, 3
s_lshl_b32 s69, s69, 7
s_add_u32 s68, s68, s69
s_add_u32 s68, s68, {CB}
s_waitcnt lgkmcnt(0)
v_readfirstlane_b32 s69, v9
s_cmp_lg_u32 s69, 4
s_cbranch_scc1 L_nocb
v_pk_add_f32 v[16:17], v[16:17], v[18:19]
v_pk_add_f32 v[20:21], v[20:21], v[22:23]
v_pk_add_f32 v[16:17], v[16:17], v[24:25]
v_pk_add_f32 v[12:13], v[16:17], v[20:21]
''')
    publish([(None, 'buffer_store_dwordx4 v[12:15], v4, @, s68 offen')])
    A('L_nocb:')
else:
    publish([(None, 'buffer_store_dwordx4 v[12:15], v59, @, s68 offen')])
A('v_mov_b32 v8, 0\nv_mov_b32 v9, 0\nv_mov_b32 v10, 0\nv_mov_b32 v11, 0\nv_lshlrev_b32 v56, 16, v56')
def body():
    yp_loads()
    A('L_ypw0:')
    A('s_waitcnt vmcnt(0)')
    tagcheck([98, 102])
spin(body, entry='L_ypw0')
stamp(1)
for r in (96, 100):
    A(f'v_dot2c_f32_bf16 v8, s77, v{r}\nv_dot2c_f32_bf16 v10, s77, v{r+1}\nv_dot2c_f32_bf16 v9, s71, v{r}\nv_dot2c_f32_bf16 v11, s71, v{r+1}')
A(f"""
{S32} v8, v10
{S32} v9, v11
v_add_f32 v8, v8, v10
v_add_f32 v9, v9, v11
{S16} v8, v9
v_add_f32 v8, v8, v9
v_add_f32_dpp v8, v8, v8 row_ror:8 {DPPM}
v_cvt_pk_bf16_f32 v8, v57, v8
v_add_f32 v12, v8, v56
v_mov_b32_dpp v13, v12 quad_perm:[1,0,3,2] {DPPM}
v_cvt_pk_bf16_f32 v12, v12, v13
v_lshlrev_b32 v48, 16, v12
v_mul_f32 v49, v48, v48
v_mov_b32_dpp v8, v12 row_newbcast:0 {DPPM}
v_mov_b32_dpp v9, v12 row_newbcast:2 {DPPM}
v_mov_b32_dpp v10, v12 row_newbcast:4 {DPPM}
v_mov_b32_dpp v11, v12 row_newbcast:6 {DPPM}
""")
stat = []
for pat in ('quad_perm:[1,0,3,2]', 'quad_perm:[2,3,0,1]', 'row_half_mirror'):
    stat.append([f'v_add_f32_dpp v{r}, v{r}, v{r} {pat} {DPPM}' for r in (48, 49)])
for sw in (S16, S32):
    stat.append(['v_mov_b32 v52, v48', 'v_mov_b32 v53, v49'])
    stat.append([f'{sw} v48, v52', f'{sw} v49, v53'])
    stat.append(['v_add_f32 v48, v48, v52', 'v_add_f32 v49, v49, v53'])
for l in stat.pop(0): A(l)
for k in range(8):
    A(f'v_mfma_f32_16x16x32_bf16 v[{DR+4*k}:{DR+3+4*k}], v[8:11], v[{B1R+4*k}:{B1R+4*k+3}], 0')
    for l in stat.pop(0): A(l)
f1_select(4)
publish([(None, 'buffer_store_dwordx4 v[4:7], v59, @, s76 offen'),
         (1, 'buffer_store_dwordx4 v[48:51], v55, @, s72 offen'),
         (0x0055005500550055, 'buffer_store_dwordx4 v[12:15], v54, @, s75 offen')])
if opt['clean'] & 1:
    A(f'''
s_mul_i32 s68, s5, 5
s_add_u32 s68, s68, s73
s_sub_u32 s68, s68, 100
s_cmp_ge_u32 s68, 48
s_cbranch_scc1 L_noclean
s_lshl_b32 s69, s68, 3
v_add_u32 v2, s69, v0
v_mul_u32_u24 v3, 0x5556, v2
v_lshrrev_b32 v3, 18, v3
v_lshl_add_u32 v2, v3, 2, v2
v_lshlrev_b32 v2, 7, v2
s_lshl_b32 s69, s4, 16
s_mov_b64 exec, 0xff
buffer_store_dword v14, v2, s[32:35], s69 offen offset:{QP + 8} sc1
v_lshlrev_b32 v2, 7, v0
v_and_b32 v3, 1, v0
v_lshlrev_b32 v3, 3, v3
v_sub_u32 v2, v2, v3
s_mul_i32 s69, s4, 24576
s_lshl_b32 s68, s68, 9
s_add_u32 s69, s69, s68
s_add_u32 s69, s69, {OP}
s_mov_b64 exec, 0xf
buffer_store_dword v14, v2, s[32:35], s69 offen offset:8 sc1
s_mov_b64 exec, -1
L_noclean:
''')
if STAMPS:
    stamp_now(13, True)
    stamp_val(18, 82, 83, True)
    stamp_val(23, 92, 93, True)
A('s_endpgm')

A('L_post_wo:')
A("""
s_cmp_gt_u32 s5, 11
s_cbranch_scc1 L_end
s_cmp_eq_u32 s3, 3
s_cbranch_scc1 L_end
v_mov_b32 v57, 0
""")
A('s_cmp_eq_u32 s3, 1\ns_cbranch_scc1 L_hid\ns_barrier')
if opt['cbpa']: A('s_barrier')
A(f"""
s_and_b32 s68, s4, 1
s_lshl_b32 s68, s68, 2
s_sub_u32 s68, 12, s68
s_cmp_ge_u32 s5, s68
s_cbranch_scc1 L_end
s_mul_i32 s72, s4, 5
s_add_u32 s72, s72, 1
s_lshr_b32 s72, s72, 1
s_lshr_b32 s68, s5, 2
s_add_u32 s72, s72, s68
s_and_b32 s73, s5, 3
v_lshrrev_b32 v2, 1, v0
v_lshlrev_b32 v2, 7, v2
v_and_b32 v3, 1, v0
v_lshl_add_u32 v96, v3, 4, v2
s_lshl_b32 s10, s72, 15
s_lshr_b32 s68, s47, s4
s_and_b32 s68, s68, 1
s_lshl_b32 s68, s68, 13
s_add_u32 s10, s10, s68
s_lshl_b32 s68, s73, 5
s_add_u32 s10, s10, s68
s_add_u32 s10, s10, {FP}
s_add_u32 s11, s10, 4096
s_add_u32 s12, s10, 16384
v_lshrrev_b32 v4, 4, v0
v_lshl_add_u32 v97, v3, 2, v4
v_lshlrev_b32 v97, 1, v97
v_lshlrev_b32 v99, 6, v4
v_lshlrev_b32 v98, 4, v3
s_mul_i32 s13, s4, 20
s_add_u32 s13, s13, s72
s_lshl_b32 s13, s13, 8
s_lshl4_add_u32 s13, s73, s13
s_add_u32 s13, s13, {PH}
s_lshl2_add_u32 s14, s72, s73
s_lshl_b32 s14, s14, 4
s_mov_b32 s8, 0x30003
s_mov_b32 s9, 0x30003
s_mov_b32 s77, 0x3f80
s_mov_b32 s71, 0x3f800000
v_mov_b32 v8, 0
v_mov_b32 v9, 0
v_mov_b32 v10, 0
v_mov_b32 v11, 0
""")
FS = 16
srd(64, 54, 1280)
lds_wait_ge(HRDY, 1, 2)
if opt['fsleep']: A(f"s_sleep {opt['fsleep']}")
def body():
    A('buffer_load_dwordx4 v[4:7], v99, s[16:19], s13 offen sc1')
    for n in range(3):
        r = FS + 4 * n
        A(f'buffer_load_dwordx4 v[{r}:{r+3}], v96, s[24:27], s{10+n} offen sc1')
    A('s_waitcnt vmcnt(0)')
    tagcheck([6, FS + 2, FS + 6, FS + 10])
spin2(body, local_only=True)
stamp(5)
for n in range(3):
    r = FS + 4 * n
    A(f'v_dot2c_f32_bf16 v8, s77, v{r}\nv_dot2c_f32_bf16 v10, s77, v{r+1}\nv_dot2c_f32_bf16 v9, s71, v{r}\nv_dot2c_f32_bf16 v11, s71, v{r+1}')
A(f"""
v_lshrrev_b32 v58, v98, v4
{S32} v8, v10
{S32} v9, v11
v_add_f32 v8, v8, v10
v_add_f32 v9, v9, v11
v_lshlrev_b32 v58, 16, v58
{S16} v8, v9
v_add_f32 v8, v8, v9
v_add_f32_dpp v8, v8, v8 row_ror:8 {DPPM}
v_add_f32_dpp v8, v8, v8 row_ror:4 {DPPM}
v_add_f32_dpp v8, v8, v8 quad_perm:[2,3,0,1] {DPPM}
v_cvt_pk_bf16_f32 v8, v57, v8
v_add_f32 v8, v8, v58
v_cvt_pk_bf16_f32 v8, v8, v8
""")
DBGPTR = ''
if opt['dbgptr']:
    DBGPTR = 'v_mov_b32 v8, s58\nv_mov_b32 v9, s38\nv_mov_b32 v10, s40\nv_mov_b32 v11, s47\nglobal_store_dwordx4 v57, v[8:11], s[56:57]\nv_mov_b32 v12, s44\nv_mov_b32 v13, s48\nv_mov_b32 v14, s54\nv_mov_b32 v15, s56\nglobal_store_dwordx4 v57, v[12:15], s[56:57] offset:16'
A('s_mov_b64 exec, s[8:9]')
A(f"""
buffer_store_short v8, v97, s[64:67], s14 offen
s_cmp_lg_u32 s14, 0
s_cbranch_scc1 L_fin_exit
s_mov_b64 exec, 1
v_mov_b32 v4, s30
v_mov_b32 v5, s31
s_mov_b32 s68, {EP}
buffer_store_dwordx2 v[4:5], v57, s[24:27], s68 offen
{DBGPTR}
L_fin_exit:
""")
if opt['dbg']:
    A(f'''
s_cmp_lg_u32 s14, 0
s_cbranch_scc1 L_end
s_memrealtime s[82:83]
s_waitcnt lgkmcnt(0)
s_sub_u32 s84, s82, s80
s_sub_u32 s84, s84, 1500
s_mul_i32 s84, s84, {opt['dbg']}
s_min_u32 s84, s84, 20000
L_dbgspin:
s_memrealtime s[86:87]
s_waitcnt lgkmcnt(0)
s_sub_u32 s86, s86, s82
s_cmp_lt_u32 s86, s84
s_cbranch_scc1 L_dbgspin
''')
if STAMPS:
    A('s_waitcnt vmcnt(0)')
    stamp(7)
    write_stamps(8)
A('s_endpgm')

A('L_hid:')
A(f"""
s_mul_i32 s72, s4, 12
s_add_u32 s72, s72, s5
v_lshrrev_b32 v4, 5, v0
v_and_b32 v2, 7, v0
v_lshl_add_u32 v62, v4, 3, v2
v_lshlrev_b32 v62, 1, v62
v_lshlrev_b32 v63, 2, v2
v_lshlrev_b32 v60, 4, v0
v_and_b32 v3, 31, v0
v_lshlrev_b32 v61, 4, v3
s_lshr_b32 s65, s72, 2
s_lshl_b32 s65, s65, 9
s_add_u32 s65, s65, {PS}
s_mul_i32 s60, s72, 5120
s_add_u32 s60, s60, {PA}
s_add_u32 s61, s60, 4096
v_mov_b32 v148, 0
v_mov_b32 v149, 0
v_mov_b32 v150, s30
v_mov_b32 v151, s31
v_mov_b32 v59, 1
""")
if opt['cbred']: A(f's_lshl_b32 s62, s72, 10\ns_add_u32 s62, s62, {CB}')
else: A(f's_add_u32 s62, s60, {CB - PA}\ns_add_u32 s63, s61, {CB - PA}')
NCB = 1 if opt['cbred'] else 5
def issue(srdn=32, fl=''):
    setexec(0x000fffff000fffff)
    A(f'buffer_load_dwordx4 v[148:151], v61, s[{srdn}:{srdn+3}], s65 offen sc1')
    setexec(ALL)
    for n in range(5):
        A(f'buffer_load_dwordx4 v[{128+4*n}:{131+4*n}], v60, s[{srdn}:{srdn+3}], s{60+n//4} offen offset:{1024*(n%4)} sc1' + fl)
def check(): tagcheck([150, 130, 134, 138, 142, 146])
def body():
    for n in range(NCB):
        A(f'buffer_load_dwordx4 v[{16+4*n}:{19+4*n}], v60, s[16:19], s{62+n//4} offen offset:{1024*(n%4)} sc1' + (' nt' if opt['cnt'] else ''))
    if opt['prepa'] == 1:
        setexec(0x000fffff000fffff)
        A(f'buffer_load_dwordx4 v[148:151], v61, s[16:19], s65 offen sc1')
        setexec(ALL)
    else: issue(16, ' nt' if opt['pant'] else '')
    if opt['cbpa']: A('s_cmp_eq_u32 s78, 0\ns_cbranch_scc1 L_nobar\ns_mov_b32 s78, 0\ns_barrier\nL_nobar:')
    A('s_waitcnt vmcnt(0)')
    tagcheck([18, 22, 26, 30, 34][:NCB])
if opt['prepa']:
    for n in range(5): A(f'v_not_b32 v{130+4*n}, s30')
A('s_mov_b32 s78, 1\ns_barrier')
if opt['padelay']: A(f"s_sleep {opt['padelay']}")
spin2(body, local_only=True)
def sum5(d, r):
    A(f'v_pk_add_f32 v[{d}:{d+1}], v[{r}:{r+1}], v[{r+4}:{r+5}]')
    A(f'v_pk_add_f32 v[{d+2}:{d+3}], v[{r+8}:{r+9}], v[{r+12}:{r+13}]')
    A(f'v_pk_add_f32 v[{d}:{d+1}], v[{d}:{d+1}], v[{r+16}:{r+17}]')
    A(f'v_pk_add_f32 v[{d}:{d+1}], v[{d}:{d+1}], v[{d+2}:{d+3}]')
A('s_cmp_lg_u32 s46, 1\ns_cbranch_scc1 L_nopre')
issue()
A('L_nopre:')
if opt['cbred']: A('v_mov_b32 v40, v16\nv_mov_b32 v41, v17')
else: sum5(40, 16)
for r in (40, 41): A(f'v_add_f32_dpp v{r}, v{r}, v{r} row_ror:8 {DPPM}')
swapreduce(S16, 'v_add_f32', [40, 41], [42, 43])
check()
A('s_nop 0\ns_cbranch_vccz L_paok')
A('s_cmp_lg_u32 s46, 1\ns_cbranch_scc1 L_paslow')
freepoll(issue, check, opt['frp'], 'L_paok')
A('L_paslow:')
def body():
    issue(16); A('s_waitcnt vmcnt(0)'); check()
spin2(body, local_only=True)
A('L_paok:')
stamp(7)
A(f"""
v_add_f32_dpp v36, v148, v148 quad_perm:[1,0,3,2] {DPPM}
v_add_f32_dpp v37, v149, v149 quad_perm:[1,0,3,2] {DPPM}
v_pk_add_f32 v[8:9], v[128:129], v[132:133]
v_add_f32_dpp v36, v36, v36 quad_perm:[2,3,0,1] {DPPM}
v_add_f32_dpp v37, v37, v37 quad_perm:[2,3,0,1] {DPPM}
v_pk_add_f32 v[10:11], v[136:137], v[140:141]
v_add_f32_dpp v36, v36, v36 row_half_mirror {DPPM}
v_add_f32_dpp v37, v37, v37 row_half_mirror {DPPM}
v_pk_add_f32 v[8:9], v[8:9], v[144:145]
v_add_f32_dpp v22, v36, v36 row_mirror {DPPM}
v_add_f32_dpp v23, v37, v37 row_mirror {DPPM}
v_add_f32_dpp v36, v36, v36 row_mirror {DPPM}
v_add_f32_dpp v37, v37, v37 row_mirror {DPPM}
v_pk_add_f32 v[8:9], v[8:9], v[10:11]
{S16} v36, v22
{S16} v37, v23
v_pk_add_f32 v[36:37], v[36:37], v[22:23]
v_add_f32_dpp v10, v8, v8 row_ror:8 {DPPM}
v_mul_f32 v20, {f32(1.0/640)}, v36
v_mul_f32 v21, {f32(1.0/640)}, v37
v_add_f32_dpp v11, v9, v9 row_ror:8 {DPPM}
v_fma_f32 v21, -v20, v20, v21
v_add_f32_dpp v8, v8, v8 row_ror:8 {DPPM}
v_max_f32 v21, 0, v21
v_add_f32_dpp v9, v9, v9 row_ror:8 {DPPM}
v_cvt_pk_bf16_f32 v21, v57, v21
v_cvt_pk_bf16_f32 v20, v57, v20
v_add_f32 v21, {f32(1e-5)}, v21
{S16} v8, v10
v_cvt_pk_bf16_f32 v21, v57, v21
{S16} v9, v11
v_sqrt_f32 v21, v21
v_pk_add_f32 v[8:9], v[8:9], v[10:11]
v_cvt_pk_bf16_f32 v21, v57, v21
v_fma_f32 v8, -v20, v40, v8
v_rcp_f32 v21, v21
v_fma_f32 v9, -v20, v41, v9
v_mul_f32 v8, v8, v21
v_mul_f32 v9, v9, v21
v_cvt_pk_bf16_f32 v8, v57, v8
v_mul_f32 v12, {f32(-LOG2E)}, v8
v_exp_f32 v12, v12
v_cvt_pk_bf16_f32 v9, v57, v9
v_add_f32 v12, 1.0, v12
v_rcp_f32 v12, v12
v_mul_f32 v8, v8, v12
v_cvt_pk_bf16_f32 v8, v57, v8
v_mul_f32 v8, v8, v9
v_cvt_pk_bf16_f32 v8, v8, v8
ds_write_b16 v62, v8 offset:{HID}
ds_write_b32 v63, v59 offset:{HRDY}
""")
if opt['clean'] & 2:
    if opt['cldelay']: A(f"s_sleep {opt['cldelay']}")
    A(f'''
v_lshlrev_b32 v2, 7, v0
v_mov_b32 v3, s30
s_mov_b32 exec_hi, 0xff
buffer_store_dword v3, v2, s[32:35], s60 offen offset:8 sc1
s_mov_b64 exec, 0xff
buffer_store_dword v3, v2, s[32:35], s62 offen offset:8 sc1
s_mov_b64 exec, -1
''')
stamp_val(17, 94, 95)
A('s_endpgm')

A('L_f2:')
W2R = 64
srd(8, 52, 1536 * 640 * 2)
A(f"""
s_mul_i32 s72, s4, 12
s_add_u32 s72, s72, s5
v_mov_b32 v57, 0
s_sub_u32 s68, s3, 7
s_lshl_b32 s69, s68, 8
v_lshlrev_b32 v58, 2, v0
v_add_u32 v58, s69, v58
v_lshrrev_b32 v2, 4, v0
v_lshl_add_u32 v2, s68, 2, v2
v_mul_u32_u24 v3, 52, v2
v_lshrrev_b32 v3, 8, v3
v_mul_u32_u24 v4, 5, v3
v_sub_u32 v4, v2, v4
v_cmp_lt_u32 vcc, 2, v4
v_lshlrev_b32 v3, 1, v3
v_addc_co_u32 v3, vcc, 0, v3, vcc
v_lshrrev_b32 v3, v3, s47
v_and_b32 v3, 1, v3
v_lshlrev_b32 v116, 15, v2
v_lshl_add_u32 v116, v3, 13, v116
v_bfe_u32 v3, v0, 1, 3
v_lshl_add_u32 v116, v3, 4, v116
s_lshr_b32 s79, s72, 6
s_lshl_b32 s79, s79, 14
s_and_b32 s68, s72, 63
s_lshl_b32 s68, s68, 7
s_add_u32 s79, s79, s68
s_add_u32 s79, s79, {FP}
s_mov_b32 s60, 0x05040100
s_mov_b32 s61, 0x07060302
s_mul_i32 s62, s72, 20480
""")
def w2_loads():
    for k in range(16):
        A(f'buffer_load_dword v{W2R+k}, v58, s[8:11], s62 offen offset:{1280*(k%3)} nt')
        if k % 3 == 2: A('s_add_u32 s62, s62, 3840')
if opt['w2early']:
    lds_wait_ge(CNT + 28, 1, 2)
    w2_loads()
if opt['w2trig'] == 0:
    A('v_and_b32 v1, 3, v0\nv_lshlrev_b32 v1, 2, v1')
    def body():
        A(f'ds_read_b32 v4, v1 offset:{CNT+32}')
        A('s_waitcnt lgkmcnt(0)')
        A('v_cmp_eq_u32 vcc, 0, v4')
    spin(body, sleep=1)
    w2_loads()
A('s_barrier')
if opt['w2trig'] == 1: w2_loads()
A('s_barrier')
if opt['cbpa']: A('s_barrier')
if not opt['w2early'] and opt['w2trig'] == 2: w2_loads()
if opt['f2prio']: A(f"s_setprio {opt['f2prio']}")
A('s_waitcnt vmcnt(0)')
stamp(6)
for kp in range(8):
    A(f'v_perm_b32 v{80+kp}, v{W2R+2*kp+1}, v{W2R+2*kp}, s60')
    A(f'v_perm_b32 v{88+kp}, v{W2R+2*kp+1}, v{W2R+2*kp}, s61')
A(f"""
v_mov_b32 v16, 0
v_mov_b32 v17, 0
v_mov_b32 v18, 0
v_mov_b32 v19, 0
s_mov_b32 s66, 0x55555555
s_mov_b32 s67, 0x55555555
v_mov_b32 v6, s30
v_mov_b32 v7, s31
v_and_b32 v9, 15, v0
v_lshlrev_b32 v9, 2, v9
v_mov_b32 v8, 0
s_mov_b32 s64, 0xff00ff00
s_mov_b32 s65, 0xff00ff00
s_mov_b32 s70, {SPIN * 8}
s_waitcnt lgkmcnt(0)
L_f2poll:
ds_read_b32 v8, v9 offset:{HID}
s_waitcnt lgkmcnt({4 if opt['f2free'] else 0})
v_cmp_eq_u32 vcc, 0, v8
s_sub_u32 s70, s70, 1
s_cbranch_scc1 L_f2go
s_and_b64 vcc, vcc, s[64:65]
s_cbranch_scc1 L_f2poll
L_f2go:
""")
for kp in range(8):
    A(f'v_dot2c_f32_bf16_dpp v{16+2*(kp&1)}, v8, v{80+kp} row_newbcast:{kp} {DPPM}')
    A(f'v_dot2c_f32_bf16_dpp v{17+2*(kp&1)}, v8, v{88+kp} row_newbcast:{kp} {DPPM}')
A('v_pk_add_f32 v[16:17], v[16:17], v[18:19]')
A(f"""
v_cvt_pk_bf16_f32 v4, v16, v17
v_mov_b32_dpp v5, v4 quad_perm:[1,0,3,2] {DPPM}
""")
A('s_mov_b64 exec, s[66:67]')
A('buffer_store_dwordx4 v[4:7], v116, s[24:27], s79 offen sc1')
if STAMPS:
    setexec(ALL)
    stamp_now(20, True)
    stamp_val(15, 92, 93, True)
A('L_end:')
A('s_endpgm')
for blk in outline: A(blk)
A('L_codeend:')

A.raw('.section .rodata,"a"')
A.raw('.p2align 6')
A.raw(f'.amdhsa_kernel {NAME}_kernel')
A.raw('  .amdhsa_next_free_vgpr 168')
A.raw('  .amdhsa_next_free_sgpr 100')
A.raw('  .amdhsa_accum_offset 168')
A.raw('  .amdhsa_group_segment_fixed_size 0')
A.raw('  .amdhsa_kernarg_size 96')
A.raw('  .amdhsa_user_sgpr_count 2')
A.raw('  .amdhsa_user_sgpr_kernarg_segment_ptr 1')
A.raw('  .amdhsa_system_sgpr_workgroup_id_x 1')
A.raw('.end_amdhsa_kernel')
open(sys.argv[1], 'w').write(A.finalize())
```

```python
import sys, struct, os
from asmlib import Asm

NAME = "sequential_preLN__sliding_block_cached__glu_gated_swiglu__decode"
opt = dict(D1=3, D2=3, stamps=0, spin=200007, sleep=2, Vpre=3, swave=11, stsleep=24, wtrig=2, ttrig=9, tcnt=8, DWF=5,
           idtries=12, idsleep=16, forceslow=0, trap=0, fsleep=18, gdone=0, dyn=0, pref=2, prew=1, shots=4,
           w2early=0, f1trig=0, dbg=0, diagp=0, puback=0, dbgptr=0, fro=0, frp=1, frb=12, f2prio=0, f2free=1, tlb=0, cbpa=0, w2trig=1, padelay=0, prepa=0, prer=1, wsoff=0, qnt=1, ont=0, pre1=4, pre2=0, hnt=0, promo=0, ynt=0, cnt=0, opre=0, ogate=1, wopause=0, cbred=1, qabl=0, qdelay=0, pant=0, o1nt=1, pbfew=1, clean=0, cldelay=0, trace=0, tauA=0, tauB=0, offA=800, offB=800, lag=480, cfrom=30, cto=48, gorg=0, pftrig=26, DQ=20, QA_=10, NE=0, opre2=0, t27A=0, t27B=0, cal=1, mst=17, tau0=460, D0=550, calsleep=20, gam=80, dA=-8, dB=-28, pick2=4, caltries=2, lead=7, sampf1=1, calpre=0, nostore=0, bis=0, hb=0, dbgn=0, dbgx=0, calprio=3)
for a in sys.argv[2:]:
    k, v = a.split('=')
    assert k in opt, k
    opt[k] = int(v)
opt['ttrig'] = max(opt['ttrig'], opt['wtrig'])
if opt['t27A']:
    opt['offA'] = opt['t27A'] * 16 - 27 * opt['tauA']; opt['offB'] = (opt['t27B'] or opt['t27A']) * 16 - 27 * opt['tauB']
D1 = opt['D1']; D2 = opt['D2']; STAMPS = opt['stamps']; SPIN = opt['spin']

def f32(x): return '0x%08x' % struct.unpack('<I', struct.pack('<f', x))[0]
LOG2E = 1.4426950408889634

QP = 0x0
OP = 0x80000
ST = 0xB0000
ID = 0xB8000
DN = 0xBA000
YP = 0xC0000
EP = 0xE0000
TK = 0xE1000
CAL = 0xEA000
PF = 0xE8000
FP = 0x100000
PB = 0x1A0000
SP = 0x200000
PA = 0x220000
PS = 0x2A0000
PH = 0x2A4000
CB = 0x300000
WSN = 0x400000
FAST = 0x400000
QL = 0
QF = 384
SL = 512
CNT = 640
ORG = CNT + 40; SUMS = CNT + 56; HRDY = 704 + 32; ROLE = CNT + 20
CL = 768
HID = 704
OL = 1024
RL = 7168
WL = 8704
TRL = WL + 49152
LDS = TRL + (2048 if opt['trace'] else 0)

A = Asm()
A.raw(open(os.path.join(os.path.dirname(os.path.abspath(__file__)), '..', NAME + '.s.ref')).read().split('; Override launch')[0].rstrip())
A.raw(f"; @launch grid=(256,1,1) block=(768,1,1) lds={LDS}")
A.raw('''; Generated by gen/gen18.py (hand-written generator).  One persistent launch, 256 workgroups x 12 waves, 1 per CU.
;  s_sleep is used only as back-off inside / ahead of polling loops.''')
A.raw('.amdgcn_target "amdgcn-amd-amdhsa--gfx950"')
A.raw('.text')
A.raw(f'.globl {NAME}_kernel')
A.raw('.p2align 8')
A.raw(f'.type {NAME}_kernel,@function')
A.raw(f'{NAME}_kernel:')

def stamp(i):
    if STAMPS: A(f's_memrealtime s[{80+2*i}:{81+2*i}]')
def write_stamps(base_idx):
    if not STAMPS: return
    A('s_waitcnt lgkmcnt(0)')
    A('s_mov_b64 exec, 1')
    A('s_lshl3_add_u32 s68, s5, s4')
    A('s_lshl_b32 s68, s68, 8')
    A(f's_add_u32 s68, s68, {SP + base_idx*8}')
    A('v_mov_b32 v1, 0')
    for q in range(4):
        for e in range(4): A(f'v_mov_b32 v{4+e}, s{80+4*q+e}')
        A(f'buffer_store_dwordx4 v[4:7], v1, s[24:27], s68 offen offset:{16*q}')
        A('s_nop 2')
def stamp_val(idx, lo, hi, plus_wave=False):
    if not STAMPS: return
    A('s_lshl3_add_u32 s98, s5, s4')
    A('s_lshl_b32 s98, s98, 8')
    A(f's_add_u32 s98, s98, {SP + idx*8}')
    if plus_wave: A('s_lshl3_add_u32 s98, s3, s98')
    A('s_waitcnt lgkmcnt(0)')
    A(f'v_mov_b32 v120, s{lo}\nv_mov_b32 v121, s{hi}\nv_mov_b32 v122, 0')
    A('s_mov_b64 exec, 1')
    A('buffer_store_dwordx2 v[120:121], v122, s[24:27], s98 offen')
    A('s_mov_b64 exec, -1')
    A('s_nop 1')
def stamp_now(idx, plus_wave=False):
    if not STAMPS: return
    A('s_memrealtime s[96:97]')
    stamp_val(idx, 96, 97, plus_wave)

def srd(d, ptr, nbytes):
    A(f's_mov_b32 s{d}, s{ptr}')
    A(f's_mov_b32 s{d+1}, s{ptr+1}')
    A(f's_mov_b32 s{d+2}, {nbytes}')
    A(f's_mov_b32 s{d+3}, 0x20000')
def wsshift():
    if opt['wsoff']: A(f"s_add_u32 s58, s58, {opt['wsoff'] << 20}\ns_addc_u32 s59, s59, 0")
def ws_srds():
    srd(24, 58, WSN)
    A(f's_add_u32 s32, s58, {FAST}')
    A('s_addc_u32 s33, s59, 0')
    A(f's_mov_b32 s34, {WSN}')
    A('s_mov_b32 s35, 0x20000')
    A('s_lshl3_add_u32 s71, s6, s7')

ALL = (1 << 64) - 1
def setexec(mask):
    if mask == ALL: A('s_mov_b64 exec, -1'); return
    A(f's_mov_b32 exec_lo, 0x{mask & 0xffffffff:x}')
    A(f's_mov_b32 exec_hi, 0x{mask >> 32:x}')

DPPM = 'row_mask:0xf bank_mask:0xf'
def allreduce8(op, regs):
    for pat in ('quad_perm:[1,0,3,2]', 'quad_perm:[2,3,0,1]', 'row_half_mirror'):
        for r in regs: A(f'{op}_dpp v{r}, v{r}, v{r} {pat} {DPPM}')
def allreduce16(op, regs):
    allreduce8(op, regs)
    for r in regs: A(f'{op}_dpp v{r}, v{r}, v{r} row_mirror {DPPM}')
def swapreduce(sw, op, regs, tmps):
    for r, t in zip(regs, tmps): A(f'v_mov_b32 v{t}, v{r}')
    for r, t in zip(regs, tmps): A(f'{sw} v{r}, v{t}')
    for r, t in zip(regs, tmps): A(f'{op} v{r}, v{r}, v{t}')
S16 = 'v_permlane16_swap_b32'; S32 = 'v_permlane32_swap_b32'
def allreduce_rows(op, regs, tmps):
    swapreduce(S16, op, regs, tmps); swapreduce(S32, op, regs, tmps)
def allreduce64(op, regs, tmps):
    allreduce16(op, regs); allreduce_rows(op, regs, tmps)
def bf16r(d, s):
    A(f'v_cvt_pk_bf16_f32 v{d}, v{s}, v{s}')
    A(f'v_lshlrev_b32 v{d}, 16, v{d}')
def mktag():
    A('''
s_waitcnt lgkmcnt(0)
s_mul_i32 s30, s28, 0x2c9277b5
s_add_u32 s30, s30, 0xac564b05
s_mul_i32 s31, s29, 0x0019660d
s_add_u32 s31, s31, 0x3c6ef35f
''')
lbl = [0]
def newlabel(p):
    lbl[0] += 1
    return f'L_{p}_{lbl[0]}'

def tagcheck(pairs):
    A(f'v_cmp_ne_u64 vcc, s[30:31], v[{pairs[0]}:{pairs[0]+1}]')
    tm = [(20, 21), (22, 23)]
    pend = []
    for i, p in enumerate(pairs[1:]):
        t = tm[i % 2]
        if len(pend) == 2:
            q = pend.pop(0); A(f's_or_b64 vcc, vcc, s[{q[0]}:{q[1]}]')
        A(f'v_cmp_ne_u64 s[{t[0]}:{t[1]}], s[30:31], v[{p}:{p+1}]')
        pend.append(t)
    for q in pend: A(f's_or_b64 vcc, vcc, s[{q[0]}:{q[1]}]')

def spin(body, sleep=0, retry=None, entry=None):
    top = newlabel('spin'); done = newlabel('sdone')
    A(f's_mov_b32 s70, {SPIN}')
    if entry: A(f's_branch {entry}')
    A(f'{top}:')
    body()
    A('s_nop 0')
    A(f's_cbranch_vccz {done}')
    if sleep: A(f's_sleep {sleep}')
    if retry: retry()
    A('s_sub_u32 s70, s70, 1')
    A(f's_cbranch_scc0 {top}')
    if opt['trap']:
        A(f's_lshl_b32 s99, s2, 8\ns_or_b32 s99, s99, s3\ns_lshl_b32 s99, s99, 8\ns_or_b32 s99, s99, {lbl[0] & 255}')
        A(f'v_mov_b32 v166, {4 * (lbl[0] % 64)}\nv_mov_b32 v167, s99')
        A('global_store_dword v166, v167, s[56:57]')
    A(f'{done}:')
def spin2(body, sleep=0, retry=None, local_only=False, entry=None):
    A(f's_mov_b32 s16, s32\ns_mov_b32 s17, s33\ns_mov_b32 s18, {WSN}\ns_mov_b32 s19, 0x20000')
    def rt():
        if retry: retry()
        A('s_and_b32 s99, s70, 7')
        if local_only:
            A('s_cmp_eq_u32 s46, 1')
            A('s_cselect_b32 s99, 1, s99')
            A('s_cmp_lg_u32 s99, 0')
        A('s_cselect_b32 s16, s32, s24')
        A('s_cselect_b32 s17, s33, s25')
    spin(body, sleep, rt, entry)

def freepoll(issue, check, nchk, done):
    top = newlabel('fp')
    A(f's_mov_b32 s70, {SPIN}')
    A(f'{top}:')
    issue()
    for k in range(nchk):
        check()
        A('s_nop 0')
        A(f's_cbranch_vccz {done}')
    A(f"s_waitcnt vmcnt({opt['frb']})")
    A('s_sub_u32 s70, s70, 1')
    A(f's_cbranch_scc0 {top}')
    A(f's_branch {done}')

def lds_wait_ge(off, n, sleep, dst=4, adr=1):
    A(f'v_mov_b32 v{adr}, 0')
    def body():
        A(f'ds_read_b32 v{dst}, v{adr} offset:{off}')
        A('s_waitcnt lgkmcnt(0)')
        A(f'v_cmp_gt_u32 vcc, {n}, v{dst}')
    spin(body, sleep=sleep)
def get_mode(dst=4, adr=1):
    lds_wait_ge(CNT + 8, 1, 2, dst, adr)
    A(f'v_readfirstlane_b32 s46, v{dst}')
def get_role(sleep, dst=4, adr=1):
    lds_wait_ge(ROLE, 1, sleep, dst, adr)
    A(f'v_readfirstlane_b32 s5, v{dst}')
    A('s_bfe_u32 s47, s5, 0x80008')
    A('s_and_b32 s5, s5, 31')

outline = []
def publish(stores):
    def emit(srdn, fl, AA):
        cur = ALL
        for m, line in stores:
            m = ALL if m is None else m
            if m != cur:
                if m == ALL: AA('s_mov_b64 exec, -1')
                else: AA(f's_mov_b32 exec_lo, 0x{m & 0xffffffff:x}\ns_mov_b32 exec_hi, 0x{m >> 32:x}')
                cur = m
            AA(line.replace('@', f's[{srdn}:{srdn+3}]') + fl)
        if cur != ALL: AA('s_mov_b64 exec, -1')
    if not opt['forceslow']: emit(32, '', A)
    slow = newlabel('slow'); back = newlabel('back')
    A('s_cmp_lg_u32 s46, 1')
    A(f's_cbranch_scc1 {slow}')
    A(f'{back}:')
    blk = [f'{slow}:']
    emit(24, ' sc1', lambda t: blk.append(t))
    blk.append('s_nop 1')
    blk.append(f's_branch {back}')
    outline.append('\n'.join(blk))

GST = 3072 * 64
GOFF = [60, 61, 62, 63, 64, 65, 66, 67]
A("""
s_load_dwordx2 s[8:9], s[0:1], 8
s_lshr_b32 s79, s2, 6
s_cmp_gt_u32 s79, 3
s_cbranch_scc1 L_end
v_readfirstlane_b32 s3, v0
s_and_b32 s4, s2, 7
s_lshl2_add_u32 s6, s4, s79
s_bfe_u32 s7, s2, 0x30003
s_lshr_b32 s73, s3, 6
s_cmp_gt_u32 s73, 7
s_cbranch_scc1 L_helper0
s_lshl_b32 s60, s6, 9
s_add_u32 s60, s60, s7
s_addk_i32 s60, 448
s_mulk_i32 s60, 24576
v_lshlrev_b32 v3, 4, v0
v_lshrrev_b32 v2, 3, v0
v_lshl_add_u32 v1, v2, 8, v3
s_lshl_b32 s10, 3, 27
s_mov_b32 s11, 0x20000
s_waitcnt lgkmcnt(0)
""")
for j in range(3): A(f'buffer_load_dwordx4 v[{16+4*j}:{19+4*j}], v1, s[8:11], s60 offen offset:{128*j} nt')
def prologue2():
    A("""
s_load_dwordx16 s[36:51], s[0:1], 0
s_load_dwordx8 s[52:59], s[0:1], 64
""")
    stamp(0)
    if opt['dbg']: A('s_memrealtime s[80:81]')
A("""
s_branch L_stream0
L_helper0:
""")
prologue2()
A(f"""
v_and_b32 v0, 63, v0
s_sub_u32 s3, s73, 8
s_cmp_lg_u32 s3, 3
s_cbranch_scc1 L_helper
s_getpc_b64 s[20:21]
L_pc0:
v_lshlrev_b32 v8, 7, v0
v_add_u32 v9, 8192, v8
v_min_u32 v9, L_codeend-L_pc0-4, v9
global_load_dword v10, v8, s[20:21]
global_load_dword v11, v9, s[20:21]
v_add_u32 v9, 16384, v8
v_min_u32 v9, L_codeend-L_pc0-4, v9
global_load_dword v30, v9, s[20:21]
v_lshlrev_b32 v1, 3, v0
v_mov_b32 v4, 0
v_mov_b32 v5, 0
ds_write_b64 v1, v[4:5] offset:{QF}
s_branch L_helper
L_stream0:
""")
prologue2()
if opt['trace'] or (opt['cal'] and not opt['bis'] & 8): A('s_memrealtime s[20:21]')
A("""
v_and_b32 v0, 63, v0
s_add_u32 s3, s73, 4
v_and_b32 v3, 0x70, v3
s_waitcnt lgkmcnt(0)
""")

QR = 4; KR = 16
def stream(G, D1, D2, Vpre):
    SC = 168 - G
    VR = KR + 12 * G
    nV1 = min((SC - VR) // 12, G)
    ACC = KR + 12 * (G - 2)
    T = ACC
    half = (G + 1) // 2
    st = dict(n=0)
    def vreg(g): return VR + 12 * g if g < nV1 else KR + 12 * (g - nV1)
    CTL = bool(opt['cal'])
    def issue_load(kind, g, j, depth):
        n = st['n']
        ctl = CTL and opt['cfrom'] <= n < opt['cto']
        if ctl:
            go = newlabel('go')
            A('s_waitcnt lgkmcnt(0)\ns_lshl_b32 s75, s76, 4\ns_sub_u32 s75, s75, s78\ns_and_b32 s75, s75, s72\ns_add_u32 s78, s78, s79')
            if opt['lag']:
                A(f"s_waitcnt vmcnt({depth})\ns_cmp_gt_i32 s75, {opt['lag']}\ns_cbranch_scc1 {go}")
            A(f's_waitcnt vmcnt({depth-1})\ns_cmp_ge_i32 s75, 0\ns_cbranch_scc1 {go}\ns_waitcnt vmcnt({depth-2})\n{go}:')
        elif depth and n >= depth: A(f's_waitcnt vmcnt({depth-1})')
        r = (KR + 12 * g + 4 * j) if kind == 'K' else vreg(g) + 4 * j
        s = 8 if kind == 'K' else 12
        if n >= 3: A(f'buffer_load_dwordx4 v[{r}:{r+3}], v1, s[{s}:{s+3}], s{GOFF[g]} offen offset:{128*j} nt')
        if opt['trace'] or (CTL and (opt['cfrom'] - 1 <= n < opt['cto'] - 1 or n == opt['mst'])): A('s_memrealtime s[76:77]')
        if opt['trace'] and n >= 3:
            A(f's_waitcnt lgkmcnt(0)\ns_sub_u32 s75, s76, s20\ns_lshl_b32 s77, s73, 8\nv_mov_b32 v6, s77\nv_mov_b32 v7, s75\nds_write_b32 v6, v7 offset:{TRL + 4*n}')
        if CTL and n == opt['mst'] and not opt['bis'] & 1:
            A(f'''
s_waitcnt lgkmcnt(0)
s_sub_u32 s75, s76, s20
s_add_u32 s75, s75, 0x1000000
v_mov_b32 v6, 0
v_mov_b32 v8, s76
v_mov_b32 v9, s75
s_mov_b64 exec, 1
ds_add_u32 v6, v8 offset:{SUMS}
ds_add_u32 v6, v9 offset:{SUMS+4}
s_mov_b64 exec, -1
''')
        if CTL and n in (opt['cfrom'] - 1, opt['cfrom'] - 1 + opt['pick2']) and not opt['bis'] & 2:
            A(f'''
ds_read_b64 v[6:7], v2 offset:{ORG}
s_waitcnt lgkmcnt(0)
v_readfirstlane_b32 s78, v6
v_readfirstlane_b32 s79, v7
s_mul_i32 s75, s79, {n - opt['mst']}
s_add_u32 s78, s78, s75
s_cmp_lg_u32 s79, 0
s_cselect_b32 s72, -1, 0
''')
        if opt['dbgn'] and n == opt['dbgn']:
            A(f's_memrealtime s[76:77]\ns_waitcnt lgkmcnt(0)\ns_sub_u32 s75, s76, s80\nv_mov_b32 v6, 0\nv_mov_b32 v7, s75\ns_mov_b64 exec, 1\nds_add_u32 v6, v7 offset:{CNT+36}\ns_mov_b64 exec, -1')
        if n == opt['pftrig']:
            A(f'v_mov_b32 v6, 0\nv_mov_b32 v7, 1\ns_mov_b64 exec, 1\nds_add_u32 v6, v7 offset:{CNT+52}\ns_mov_b64 exec, -1')
        st['n'] += 1
    for g in range(G):
        for j in range(3):
            issue_load('K', g, j, D1)
            if j == 2 and g + 1 < G:
                A(f's_add_u32 s{GOFF[g+1]}, s{GOFF[g]}, {GST}')
            if st['n'] == min(D1, 3): A('s_barrier')
            if g == 1 and j == 0:
                wsshift(); A(f's_load_dwordx2 s[28:29], s[58:59], {EP}')
                ws_srds(); srd(12, 40, 402653184)
    stamp(1)
    nv = 0; NV = 3 * G
    for n in range(min(Vpre, 3 * nV1)):
        issue_load('V', nv // 3, nv % 3, D2); nv += 1
    stamp(2)
    mktag()
    A('v_and_b32 v2, 3, v0\nv_min_u32 v2, 2, v2\nv_lshlrev_b32 v2, 3, v2')
    def body():
        A(f'ds_read_b32 v{QR}, v2 offset:{QF}')
        A('s_waitcnt lgkmcnt(0)')
        A(f'v_cmp_eq_u32 vcc, 0, v{QR}')
    spin(body, sleep=1)
    stamp(3)
    A(f'''
ds_read_b128 v[{QR}:{QR+3}], v3 offset:{QL}
ds_read_b128 v[{QR+4}:{QR+7}], v3 offset:{QL+128}
ds_read_b128 v[{QR+8}:{QR+11}], v3 offset:{QL+256}
''')
    for g in range(G): A(f'v_mov_b32 v{SC+g}, 0')
    A(f's_waitcnt vmcnt({nv}) lgkmcnt(0)')
    for gs in (range(half), range(half, G)):
        for i in range(12):
            for g in gs:
                A(f'v_dot2c_f32_bf16 v{SC+g}, v{KR+12*g+i}, v{QR+i}')
    allreduce8('v_add_f32', [SC + g for g in range(G)])
    A(f's_mov_b32 s68, {f32(192 ** -0.5)}')
    A('v_mov_b32 v2, 0')
    for g in range(G): A(f'v_cvt_pk_bf16_f32 v{SC+g}, v2, v{SC+g}')
    for g in range(G): A(f'v_mul_f32 v{SC+g}, s68, v{SC+g}')
    for g in range(G): A(f'v_cvt_pk_bf16_f32 v{SC+g}, v2, v{SC+g}')
    A(f'v_max_f32 v4, v{SC}, v{SC+1}')
    g = 2
    while g < G:
        if g + 1 < G: A(f'v_max3_f32 v4, v4, v{SC+g}, v{SC+g+1}'); g += 2
        else: A(f'v_max_f32 v4, v4, v{SC+g}'); g += 1
    A(f'v_max_f32_dpp v4, v4, v4 row_ror:8 {DPPM}')
    allreduce_rows('v_max_f32', [4], [T])
    A(f's_mov_b32 s68, {f32(LOG2E)}')
    for g in range(G): A(f'v_sub_f32 v{SC+g}, v{SC+g}, v4')
    for g in range(G): A(f'v_mul_f32 v{SC+g}, s68, v{SC+g}')
    for g in range(G): A(f'v_exp_f32 v{SC+g}, v{SC+g}')
    A(f'v_add_f32 v5, v{SC}, v{SC+1}')
    for g in range(2, G): A(f'v_add_f32 v5, v5, v{SC+g}')
    A(f'v_add_f32_dpp v5, v5, v5 row_ror:8 {DPPM}')
    allreduce_rows('v_add_f32', [5], [T])
    A(f'''
s_lshl_b32 s69, s73, 4
v_mov_b32 v{T}, s69
v_mov_b32 v6, 1
v_mov_b32 v7, 1
ds_write_b128 v{T}, v[4:7] offset:{SL}
''')
    stamp(4)
    for g in range(G): A(f'v_cvt_pk_bf16_f32 v{SC+g}, v{SC+g}, v2')
    for i in range(24): A(f'v_mov_b32 v{ACC+i}, 0')
    A('''
v_and_b32 v8, 7, v0
v_lshlrev_b32 v8, 5, v8
v_lshrrev_b32 v9, 4, v0
v_lshl_add_u32 v8, v9, 3, v8
s_mul_i32 s69, s73, 768
v_add_u32 v8, s69, v8
v_mov_b32 v11, 1
''')
    def pv(idx):
        g, j = divmod(idx, 3)
        r = vreg(g) + 4 * j
        if j == 0: A(f'v_lshlrev_b32 v10, 16, v{SC+g}')
        for e in range(4):
            A(f'v_dot2c_f32_bf16 v{ACC+8*j+2*e}, v{r+e}, v{SC+g}')
            A(f'v_dot2c_f32_bf16 v{ACC+8*j+2*e+1}, v{r+e}, v10')
    done_idx = -1; pv_next = 0
    assert nv < NV - opt['ttrig'] <= NV - opt['wtrig']
    while nv < NV:
        issue_load('V', nv // 3, nv % 3, D2)
        done_idx = nv - D2 - (1 if (opt['cal'] and opt['lag']) else 0)
        nv += 1
        if nv == NV - opt['ttrig']:
            A(f's_mov_b64 exec, 1\nds_add_u32 v2, v11 offset:{CNT+16}\ns_mov_b64 exec, -1')
        if nv == NV - opt['wtrig']:
            A(f's_mov_b64 exec, 1\nds_add_u32 v2, v11 offset:{CNT+4}\ns_mov_b64 exec, -1')
        cnt = 0
        while pv_next <= done_idx and cnt < 2:
            pv(pv_next); pv_next += 1; cnt += 1
    def scale_factor():
        def body():
            A(f'ds_read_b128 v[12:15], v3 offset:{SL}')
            A('s_waitcnt lgkmcnt(0)')
            A('v_cmp_eq_u32 vcc, 0, v15')
        spin(body, sleep=1)
        allreduce8('v_max_f32', [12])
        A('v_sub_f32 v9, v4, v12\nv_mul_f32 v9, s68, v9\nv_exp_f32 v9, v9')
        get_mode(dst=13, adr=2)
        A(f'''
v_min_u32 v12, 47, v0
v_lshlrev_b32 v13, 7, v12
v_lshlrev_b32 v12, 4, v12
s_mul_i32 s74, s6, 6144
s_lshl4_add_u32 s74, s7, s74
s_add_u32 s74, s74, {OP}
s_mov_b32 s22, 0xaaaaaaaa
s_mov_b32 s23, 0xaaaaaaaa
v_mov_b32 v14, s30
v_mov_b32 v15, s31
''')
    def reduce_j(js):
        for j in js:
            for e in range(4): A(f'{S32} v{ACC+8*j+e}, v{ACC+8*j+e+4}')
        for j in js:
            for e in range(4): A(f'v_add_f32 v{ACC+8*j+e}, v{ACC+8*j+e}, v{ACC+8*j+e+4}')
        for j in js:
            for e in range(2): A(f'{S16} v{ACC+8*j+e}, v{ACC+8*j+e+2}')
        for j in js:
            for e in range(2): A(f'v_add_f32 v{ACC+8*j+e}, v{ACC+8*j+e}, v{ACC+8*j+e+2}')
        for j in js:
            for e in range(2): A(f'v_add_f32_dpp v{ACC+8*j+e}, v{ACC+8*j+e}, v{ACC+8*j+e} row_ror:8 {DPPM}')
        for j in js:
            for e in range(2): A(f'v_mul_f32 v{ACC+8*j+e}, v9, v{ACC+8*j+e}')
            A(f'ds_write_b64 v8, v[{ACC+8*j}:{ACC+8*j+1}] offset:{OL+256*j}')
    fd = False
    while pv_next < NV:
        if pv_next >= NV - 3 and not fd:
            scale_factor(); fd = True
        if pv_next > done_idx:
            A(f's_waitcnt vmcnt({NV - 1 - pv_next})')
            done_idx = pv_next
        pv(pv_next); pv_next += 1
        if pv_next > NV - 3: reduce_j([(pv_next - 1) % 3])
    stamp(5)

stream(8, D1, D2, opt['Vpre'])
A(f'''
s_mov_b64 exec, 1
ds_add_rtn_u32 v10, v2, v11 offset:{CNT}
s_mov_b64 exec, -1
''')
for w in range(8): A(f'ds_read_b128 v[{16+4*w}:{19+4*w}], v12 offset:{OL+768*w}')
A('''
s_waitcnt lgkmcnt(8)
v_readfirstlane_b32 s68, v10
s_cmp_lg_u32 s68, 7
s_cbranch_scc1 L_nopub
''')
def pkadd(d, a, b):
    for e in (0, 2): A(f'v_pk_add_f32 v[{d+e}:{d+e+1}], v[{a+e}:{a+e+1}], v[{b+e}:{b+e+1}]')
for w in range(0, 8, 2):
    A(f's_waitcnt lgkmcnt({6-w})')
    pkadd(16 + 4*w, 16 + 4*w, 20 + 4*w)
    if w == 2 or w == 6: pkadd(8 + 4*w, 8 + 4*w, 16 + 4*w)
pkadd(4, 16, 32)
A('''
v_cvt_pk_bf16_f32 v8, v4, v5
v_cvt_pk_bf16_f32 v9, v6, v7
v_cndmask_b32 v4, v8, v14, s[22:23]
v_cndmask_b32 v5, v9, v15, s[22:23]
v_cndmask_b32 v6, v14, v8, s[22:23]
v_cndmask_b32 v7, v15, v9, s[22:23]
''')
publish([((1 << 48) - 1, 'buffer_store_dwordx4 v[4:7], v13, @, s74 offen')])
A(f'ds_write_b32 v2, v11 offset:{CNT+28}')
if opt['wopause']: A(f'v_mov_b32 v10, 64\nds_write_b32 v2, v10 offset:{CNT}')
if opt['gdone']:
    A(f'''
s_lshl_b32 s68, s4, 9
s_lshr_b32 s69, s2, 3
s_lshl4_add_u32 s68, s69, s68
s_add_u32 s68, s68, {DN}
s_mov_b64 exec, 1
buffer_store_dwordx4 v[4:7], v12, s[32:35], s68 offen
s_mov_b64 exec, -1
''')
if STAMPS:
    A('s_memrealtime s[96:97]')
    if opt['puback']: A('s_waitcnt vmcnt(0)\ns_memrealtime s[94:95]')
    get_role(1, dst=16, adr=17)
    stamp_val(16, 96, 97)
    if opt['puback']:
        A('s_cmp_lt_u32 s5, 20\ns_cbranch_scc1 L_pa1')
        stamp_val(5, 94, 95)
        A('s_branch L_pa2\nL_pa1:')
        stamp_val(18, 94, 95)
        A('L_pa2:')
A('L_nopub:')
A('s_waitcnt lgkmcnt(0)')
if opt['trace']:
    A(f'''
s_lshl_b32 s68, s73, 8
v_lshl_add_u32 v16, v0, 2, s68
ds_read_b32 v17, v16 offset:{TRL}
s_lshl_b32 s68, s2, 11
s_add_u32 s68, s68, {0x380000}
s_waitcnt lgkmcnt(0)
buffer_store_dword v17, v16, s[24:27], s68 offen
s_nop 2
''')
stamp(6)
get_role(1, dst=16, adr=17)
A('''
s_cmp_lt_u32 s5, 20
s_cbranch_scc1 L_notf1
s_cmp_lt_u32 s3, 9
s_cbranch_scc1 L_f1
s_branch L_stream_exit
L_notf1:
s_cmp_gt_u32 s5, 11
s_cbranch_scc1 L_stream_exit
s_cmp_gt_u32 s3, 6
s_cbranch_scc1 L_f2
s_endpgm
L_stream_exit:
''')
if STAMPS:
    A(f"s_cmp_eq_u32 s3, {opt['swave']}")
    A('s_cbranch_scc0 L_end')
    stamp(7)
    write_stamps(8)
A('s_endpgm')

A('L_helper:')
A('s_setprio 3')
A('s_cmp_eq_u32 s3, 3')
A('s_cbranch_scc1 L_ids')
NA = opt['QA_']; NB = (80 - 5 * NA) // 3; assert 5 * NA + 3 * NB == 80 and NA <= NB <= 20
NE = opt['NE']; NL = 4 * NE // 3; assert NE % 3 == 0
DQ = min(opt['DQ'], NB, NA + NL); assert DQ >= NA
A(f'''
v_lshlrev_b32 v1, 2, v0
v_lshrrev_b32 v2, 3, v0
s_mul_i32 s68, s7, {8*NA}
s_mul_i32 s69, s7, {8*NB}
s_sub_u32 s69, s69, {40*(NB-NA)}
s_cmp_lt_u32 s7, 5
s_cselect_b32 s68, s68, s69
v_add_u32 v3, s68, v2
v_lshlrev_b32 v3, 1, v3
v_mul_u32_u24 v21, 1280, v2
v_mul_u32_u24 v2, 12288, v2
v_and_b32 v7, 7, v0
v_lshl_add_u32 v2, v7, 4, v2
v_lshl_add_u32 v21, v7, 4, v21
s_mul_i32 s68, s68, 12288
s_mul_i32 s69, s6, 384
s_add_u32 s68, s68, s69
s_lshl_b32 s69, s3, 7
s_add_u32 s68, s68, s69
s_mul_i32 s5, s79, 5
s_add_u32 s5, s5, s7
s_cmp_ge_u32 s5, 10
s_cselect_b32 s76, 1, 0
s_mul_i32 s77, s76, 10
s_sub_u32 s77, s5, s77
s_lshl1_add_u32 s60, s4, s76
s_mul_i32 s60, s60, {384*1280}
s_lshl_b32 s69, s77, 7
s_add_u32 s60, s60, s69
s_mul_i32 s61, s3, {NL}
''')
XS = 8; XP = 24; XR = 104; XU = 124; WQ = 24; QA = 144; XT = 152
XP = 156
A('s_waitcnt lgkmcnt(0)')
if not opt['hb']: A('s_barrier')
srd(8, 42, 640 * 6144 * 2); srd(12, 44, 6144 * 640 * 2)
for i in range(5): A(f'global_load_dword v{XS+i}, v1, s[36:37] offset:{256*i}')
for r in range(NB): A(f'global_load_ushort v{XR+r}, v3, s[36:37] offset:{16*r}')
def wq_load(r):
    A(f'buffer_load_dwordx4 v[{WQ+4*r}:{WQ+4*r+3}], v2, s[8:11], s68 offen nt')
    A('s_add_u32 s68, s68, 98304')
def wo_load(r):
    A(f's_mul_i32 s62, s61, {(65536 + NE - 1) // NE}\ns_lshr_b32 s62, s62, 16\ns_mul_i32 s62, s62, {12 - NE}\ns_add_u32 s62, s62, s61')
    A(f's_lshl_b32 s63, s62, 10\ns_add_u32 m0, s63, {WL}\ns_mul_i32 s62, s62, {8*1280}\ns_add_u32 s62, s62, s60')
    A('buffer_load_dwordx4 v21, s[12:15], s62 offen nt lds')
    A('s_add_u32 s61, s61, 1')
for r in range(NA): wq_load(r)
if DQ > NA:
    A('s_cmp_lt_u32 s7, 5\ns_cbranch_scc1 L_q1wo')
    for r in range(NA, DQ): wq_load(r)
    A('s_branch L_q1j\nL_q1wo:')
    for r in range(NA, DQ): wo_load(r)
    A('L_q1j:')
wsshift(); A(f's_load_dwordx2 s[28:29], s[58:59], {EP}')
if opt['hb']: A('s_barrier')
A('s_mov_b32 s69, 0xffff0000')
ws_srds()
mktag()
A(f's_waitcnt vmcnt({DQ + NB})')
for i in range(5):
    A(f'v_lshlrev_b32 v{XU+2*i}, 16, v{XS+i}')
    A(f'v_and_b32 v{XU+1+2*i}, s69, v{XS+i}')
A(f'''
v_add_f32 v4, v{XU}, v{XU+1}
v_add_f32 v5, v{XU+2}, v{XU+3}
v_add_f32 v6, v{XU+4}, v{XU+5}
v_add_f32 v7, v{XU+6}, v{XU+7}
v_add_f32 v4, v4, v5
v_add_f32 v6, v6, v7
v_add_f32 v5, v{XU+8}, v{XU+9}
v_add_f32 v4, v4, v6
v_add_f32 v4, v4, v5
''')
allreduce64('v_add_f32', [4], [5])
A(f'v_mul_f32 v4, {f32(1.0/640)}, v4')
for i in range(10): A(f'v_sub_f32 v{XU+i}, v{XU+i}, v4')
A(f'v_mul_f32 v5, v{XU}, v{XU}')
for i in range(1, 10): A(f'v_fmac_f32 v5, v{XU+i}, v{XU+i}')
allreduce64('v_add_f32', [5], [6])
A(f'v_mul_f32 v5, {f32(1.0/640)}, v5')
bf16r(4, 4); bf16r(5, 5)
A(f'v_add_f32 v5, {f32(1e-5)}, v5')
bf16r(5, 5)
A('v_sqrt_f32 v5, v5')
bf16r(5, 5)
A('v_rcp_f32 v5, v5')
A('v_mov_b32 v6, 0')
for e in range(8): A(f'v_mov_b32 v{QA+e}, 0')
A(f'''
v_and_b32 v{XT}, 7, v0
v_lshrrev_b32 v7, 4, v0
v_lshl_add_u32 v{XT}, v{XT}, 2, v7
v_lshlrev_b32 v{XT}, 4, v{XT}
s_lshl_b32 s64, s71, 11
s_lshl_b32 s65, s3, 9
s_add_u32 s64, s64, s65
''')
A(f's_waitcnt vmcnt({DQ})')
def xnorm(rs):
    for r in rs:
        A(f'v_lshlrev_b32 v{XR+r}, 16, v{XR+r}')
    for r in rs: A(f'v_sub_f32 v{XR+r}, v{XR+r}, v4')
    for r in rs: A(f'v_cvt_pk_bf16_f32 v{XR+r}, v6, v{XR+r}')
    for r in rs: A(f'v_mul_f32 v{XR+r}, v{XR+r}, v5')
    for r in rs:
        A(f'v_cvt_pk_bf16_f32 v{XU+r}, v6, v{XR+r}')
        A(f'v_cvt_pk_bf16_f32 v{XR+r}, v{XR+r}, v6')
def qdot(r):
    for e in range(4):
        A(f'v_dot2c_f32_bf16 v{QA+2*e}, v{WQ+4*r+e}, v{XR+r}')
        A(f'v_dot2c_f32_bf16 v{QA+2*e+1}, v{WQ+4*r+e}, v{XU+r}')
xnorm(range(NA))
A('s_cmp_lt_u32 s7, 5\ns_cbranch_scc1 L_q2wo')
xnorm(range(NA, NB))
for r in range(NB):
    A(f's_waitcnt vmcnt({min(DQ - 1, NB - 1 - r)})')
    if r + DQ < NB: wq_load(r + DQ)
    qdot(r)
A('s_branch L_q2j\nL_q2wo:')
NW = NA + NL
for r in range(max(NA, NW - DQ)):
    A(f's_waitcnt vmcnt({min(DQ - 1, NW - 1 - r)})')
    if r + DQ < NW: wo_load(r + DQ)
    if r < NA: qdot(r)
A('L_q2j:\ns_nop 2')
A('s_lshl_b32 s69, s3, 9')
if STAMPS: A('s_lshr_b32 s82, s2, 3\ns_add_u32 s82, s80, s82\ns_addc_u32 s83, s81, 0')
for e in range(4): A(f'{S32} v{QA+e}, v{QA+e+4}')
for e in range(4): A(f'v_add_f32 v{QA+e}, v{QA+e}, v{QA+e+4}')
for e in range(2): A(f'{S16} v{QA+e}, v{QA+e+2}')
for e in range(2): A(f'v_add_f32 v{QA+e}, v{QA+e}, v{QA+e+2}')
for e in range(2): A(f'v_add_f32_dpp v{QA+e}, v{QA+e}, v{QA+e} row_ror:8 {DPPM}')
A(f'v_mov_b32 v{QA+2}, s30\nv_mov_b32 v{QA+3}, s31')
QM = 0x00ff00ff00ff00ff
if not opt['forceslow'] and not opt['qabl'] & 1:
    setexec(QM)
    A(f'buffer_store_dwordx4 v[{QA}:{QA+3}], v{XT}, s[32:35], s64 offen offset:{QP}')
    setexec(ALL)
A('''
v_and_b32 v3, 31, v0
v_lshrrev_b32 v2, 5, v0
v_lshlrev_b32 v2, 11, v2
v_lshl_add_u32 v2, v3, 4, v2
s_lshl_b32 s68, s6, 14
s_add_u32 s60, s68, s69
s_add_u32 s61, s60, 4096
s_add_u32 s62, s60, 8192
s_add_u32 s63, s60, 12288
v_lshlrev_b32 v3, 2, v3
s_lshl_b32 s69, s3, 7
v_add_u32 v3, s69, v3
v_mov_b32 v1, 0
s_mov_b32 s65, 0
''')
def q_lazy():
    skip = newlabel('qlazy')
    A(f'''
ds_read_b32 v4, v1 offset:{CNT+8}
s_waitcnt lgkmcnt(0)
v_readfirstlane_b32 s46, v4
s_sub_u32 s68, s46, s65
s_cmp_lg_u32 s68, 2
s_cbranch_scc1 {skip}
''')
    setexec(QM)
    A(f'buffer_store_dwordx4 v[{QA}:{QA+3}], v{XT}, s[24:27], s64 offen offset:{QP} sc1')
    setexec(ALL)
    A(f's_mov_b32 s65, 1\n{skip}:')
def body():
    for n in range(4):
        A(f'buffer_load_dwordx4 v[{8+4*n}:{11+4*n}], v2, s[16:19], s{60+n} offen offset:{QP} sc1' + (' nt' if opt['qnt'] else ''))
    A('s_waitcnt vmcnt(0)')
    tagcheck([10, 14, 18, 22])
if opt['qdelay']: A(f"s_sleep {opt['qdelay']}")
if not opt['qabl']: spin2(body, sleep=opt['sleep'], retry=q_lazy)
else: A('\n'.join(f'v_mov_b32 v{r}, 0' for r in range(8, 24)))
stamp(2)
A(f'''
v_add_f32 v8, v8, v12
v_add_f32 v9, v9, v13
v_add_f32 v16, v16, v20
v_add_f32 v17, v17, v21
v_add_f32 v8, v8, v16
v_add_f32 v9, v9, v17
''')
swapreduce(S32, 'v_add_f32', [8, 9], [10, 11])
A(f'''
v_cvt_pk_bf16_f32 v8, v8, v9
ds_write_b32 v3, v8 offset:{QL}
s_lshl_b32 s69, s3, 3
v_mov_b32 v4, s69
v_mov_b32 v6, 1
s_waitcnt lgkmcnt(0)
ds_write_b32 v4, v6 offset:{QF}
''')
get_mode()
q_lazy()
if opt['tlb']:
    A(f'''
s_cmp_lg_u32 s3, 1
s_cbranch_scc1 L_stats
s_mov_b64 exec, 1
s_mul_i32 s68, s4, {768*1280}
v_mov_b32 v8, s68
v_add_u32 v9, {768*1280-4}, v8
global_load_dword v16, v8, s[44:45]
global_load_dword v17, v9, s[44:45]
global_load_dword v18, v1, s[48:49]
global_load_dword v19, v1, s[50:51]
global_load_dword v20, v1, s[52:53]
global_load_dword v21, v1, s[54:55]
s_mov_b32 s68, {EP}
buffer_load_dword v22, v1, s[24:27], s68 offen
s_mov_b32 s68, {WSN - 128}
buffer_load_dword v23, v1, s[32:35], s68 offen
s_mov_b64 exec, -1
s_waitcnt vmcnt(0)
''')
A('s_branch L_stats')
A('L_ids:')
A(f'''
s_waitcnt lgkmcnt(0)
s_memrealtime s[62:63]
s_barrier
s_getreg_b32 s64, hwreg(HW_REG_XCC_ID)
''')
wsshift(); A(f's_load_dwordx2 s[28:29], s[58:59], {EP}')
ws_srds()
mktag()
A(f'''
s_and_b32 s64, s64, 15
v_mov_b32 v4, s30
v_mov_b32 v5, s31
v_mov_b32 v6, s64
v_mov_b32 v7, s64
s_lshl_b32 s68, s4, 9
s_add_u32 s68, s68, {ID}
s_lshr_b32 s65, s2, 3
s_lshl_b32 s69, s65, 4
v_mov_b32 v1, s69
s_mov_b64 exec, 1
buffer_store_dwordx4 v[4:7], v1, s[32:35], s68 offen
s_mov_b64 exec, -1
s_mul_i32 s66, s4, 2304
s_add_u32 s66, s66, {TK}
''')
A(f'''
s_cmp_lg_u32 s65, {opt['lead']}
s_cbranch_scc1 L_noinit
v_mov_b32 v13, s30
''')
A('s_mov_b64 exec, -1')
if opt['pref'] == 2 and opt['prew']:
    A(f'''
v_lshlrev_b32 v12, 8, v0
s_lshl_b32 s69, s4, 15
s_add_u32 s69, s69, {PB}
''')
    if opt['pbfew']:
        m = sum(1 << (k * 9 & 31) for k in range(opt['shots']))
        setexec(m | m << 32)
    A('buffer_store_dword v13, v12, s[24:27], s69 offen sc1\ns_mov_b64 exec, -1')
    if opt['calpre']:
        A(f'''
s_cmp_lg_u32 s4, 0
s_cbranch_scc1 L_noinit
v_not_b32 v16, s31
v_not_b32 v17, s31
v_not_b32 v18, s31
v_not_b32 v19, s31
v_lshrrev_b32 v12, 4, v0
v_lshlrev_b32 v12, 9, v12
v_and_b32 v14, 15, v0
v_lshl_add_u32 v12, v14, 4, v12
s_mov_b32 s69, {CAL}
buffer_store_dwordx4 v[16:19], v12, s[24:27], s69 offen sc1
''')
A(f'''
L_noinit:
v_and_b32 v1, 31, v0
v_lshlrev_b32 v1, 4, v1
s_mov_b32 s70, {opt['idtries']}
s_mov_b32 s46, 2
L_idpoll:
s_sleep {opt['idsleep']}
buffer_load_dwordx4 v[8:11], v1, s[32:35], s68 offen sc1
s_waitcnt vmcnt(0)
v_cmp_ne_u64 vcc, s[30:31], v[8:9]
s_nop 0
s_cbranch_vccz L_iddone
s_sub_u32 s70, s70, 1
s_cbranch_scc0 L_idpoll
s_branch L_idset
L_iddone:
v_cmp_ne_u32 vcc, s64, v10
s_nop 0
s_cbranch_vccnz L_idset
s_mov_b32 s46, {2 if opt['forceslow'] else 1}
L_idset:
v_mov_b32 v1, 0
v_mov_b32 v4, s46
ds_write_b32 v1, v4 offset:{CNT+8}
''')
stamp(2)
A(f"s_cmp_lg_u32 s65, {opt['lead']}\ns_cbranch_scc1 L_pf")
if opt['pref'] == 2:
    A(f'''
s_lshl_b32 s69, s4, 15
s_add_u32 s69, s69, {PB}
s_add_u32 s22, s58, s69
s_addc_u32 s23, s59, 0
s_not_b32 s20, s30
s_mov_b32 s21, 0
s_waitcnt lgkmcnt(0)
''')
    A('s_mov_b32 s8, -1\ns_mov_b32 s9, -1\ns_memtime s[12:13]')
    if opt['diagp']: A('v_mov_b32 v20, 0')
    for k in range(2 * opt['shots']):
        c = (k ^ (k >> 1)) & 1
        i = (k >> 1) * 9 & 31
        a, b = (12, 14) if k % 2 == 0 else (14, 12)
        A('s_waitcnt lgkmcnt(0)')
        A(f's_load_dword s10, s[22:23], {c * 8192 + i * 256}')
        A('s_waitcnt lgkmcnt(0)')
        A(f's_memtime s[{b}:{b+1}]')
        A('s_waitcnt lgkmcnt(0)')
        A(f's_sub_u32 s11, s{b}, s{a}')
        A(f's_min_u32 s{8+c}, s{8+c}, s11')
        if opt['diagp']: A(f'v_writelane_b32 v20, s11, {c * 16 + (k >> 1)}')
    if opt['diagp']:
        A(f'v_writelane_b32 v20, s64, 63\nv_lshlrev_b32 v6, 2, v0\ns_lshl_b32 s69, s4, 8\ns_add_u32 s69, s69, {SP + 0x10000}\nbuffer_store_dword v20, v6, s[24:27], s69 offen')
    A('s_sub_u32 s21, s8, s9')
    A('s_cmp_gt_i32 s21, 0\ns_cselect_b32 s21, 1, 0')
else:
    A(f"s_lshr_b32 s21, s64, 2\ns_xor_b32 s21, s21, {opt['pref']}\ns_and_b32 s21, s21, 1")
A(f'''
v_mov_b32 v4, s21
v_mov_b32 v5, s62
v_mov_b32 v6, s30
v_mov_b32 v7, s31
s_lshl_b32 s69, s4, 4
s_add_u32 s69, s69, {PF}
s_mov_b64 exec, 1
buffer_store_dwordx4 v[4:7], v1, s[24:27], s69 offen sc1
s_mov_b64 exec, -1
''')

A('L_pf:')
if opt['cal'] and not opt['bis'] & 1:
    A('s_and_b32 s63, s31, 0xffff0000')
    if opt['sampf1']: A('s_cmp_lg_u32 s7, 6\ns_cbranch_scc1 L_nosample')
    else: A('s_mul_i32 s68, s79, 3\ns_add_u32 s68, s68, s4\ns_and_b32 s68, s68, 7\ns_cmp_lg_u32 s68, s7\ns_cbranch_scc1 L_nosample')
    A('v_mov_b32 v1, 0')
    def body():
        A(f'ds_read_b64 v[4:5], v1 offset:{SUMS}')
        A('s_waitcnt lgkmcnt(0)')
        A('v_cmp_gt_u32 vcc, 0x8000000, v5')
    spin(body, sleep=2)
    A(f'''
v_and_b32 v5, 0xffffff, v5
v_min_u32 v5, 0xffff, v5
v_or_b32 v5, s63, v5
v_lshlrev_b32 v6, 9, v0
s_lshl_b32 s68, s6, 3
s_add_u32 s68, s68, {CAL}
s_mov_b64 exec, {(2 << opt['caltries']) - 1}
{'' if opt['nostore'] else 'buffer_store_dwordx2 v[4:5], v6, s[24:27], s68 offen sc1'}
s_mov_b64 exec, -1
L_nosample:
''')
lds_wait_ge(CNT + 52, 8, 4, dst=12)
if opt['cal']:
    al = opt['tau0'] * opt['gam'] / 100 / (opt['D0'] - 40)
    A(f'''
{'s_branch L_calno' if opt['bis'] & 4 else ''}
s_setprio {opt['calprio']}
s_add_u32 s60, s58, {CAL}
s_addc_u32 s61, s59, 0
s_mov_b32 s70, {opt['caltries']}
L_calpoll:
s_lshl_b32 s96, s62, 8
s_sub_u32 s96, 0, s96
s_mov_b32 s97, 0
s_mov_b32 s98, 0
''')
    for h in range(2):
        A(f's_load_dwordx16 s[8:23], s[60:61], {128*h}\ns_load_dwordx16 s[80:95], s[60:61], {128*h+64}\ns_waitcnt lgkmcnt(0)')
        for b in (8, 80):
            for i in range(8):
                A(f's_add_u32 s96, s96, s{b+2*i}\ns_xor_b32 s{b+2*i+1}, s{b+2*i+1}, s63\ns_add_u32 s97, s97, s{b+2*i+1}\ns_or_b32 s98, s98, s{b+2*i+1}')
    A(f'''
s_cmp_lt_u32 s98, 0x10000
s_cbranch_scc1 L_calok
s_add_u32 s60, s60, 512
s_addc_u32 s61, s61, 0
s_sub_u32 s70, s70, 1
s_cbranch_scc1 L_calno
s_sleep {opt['calsleep']}
s_branch L_calpoll
L_calok:
v_cvt_f32_u32 v13, s97
s_ashr_i32 s96, s96, 4
s_cmp_lt_u32 s7, 5
s_mov_b32 s68, {16 * opt['dB']}
s_cselect_b32 s68, {16 * opt['dA']}, s68
s_lshl4_add_u32 s68, s62, s68
s_add_u32 s68, s68, s96
v_mov_b32 v12, s68
v_mul_f32 v13, {f32(al / 256)}, v13
v_add_f32 v13, {f32(opt['tau0'] - al * opt['D0'])}, v13
v_cvt_u32_f32 v13, v13
ds_write_b64 v1, v[12:13] offset:{ORG}
L_calno:
s_setprio 3
''')

A('L_stats:')
A('v_and_b32 v1, 7, v0\nv_lshlrev_b32 v1, 4, v1')
def body():
    A(f'ds_read_b128 v[4:7], v1 offset:{SL}')
    A('s_waitcnt lgkmcnt(0)')
    A('v_cmp_eq_u32 vcc, 0, v7')
spin(body, sleep=4)
A('s_cmp_lg_u32 s3, 3')
A('s_cbranch_scc1 L_nostat')
def combine_stats():
    A(f's_mov_b32 s68, {f32(LOG2E)}')
    A('v_mov_b32 v2, v4')
    allreduce8('v_max_f32', [2])
    A('v_sub_f32 v4, v4, v2\nv_mul_f32 v4, s68, v4\nv_exp_f32 v4, v4\nv_mul_f32 v3, v4, v5')
    allreduce8('v_add_f32', [3])
combine_stats()
A(f'''
s_lshl_b32 s68, s71, 4
s_add_u32 s68, s68, {ST}
v_mov_b32 v4, s30
v_mov_b32 v5, s31
''')
publish([(1, 'buffer_store_dwordx4 v[2:5], v1, @, s68 offen')])
A(f's_mov_b32 s68, {PF}')
def body():
    A('buffer_load_dwordx4 v[8:11], v1, s[24:27], s68 offen sc1')
    A('s_waitcnt vmcnt(0)')
    tagcheck([10])
spin(body, sleep=8)
A('''
v_cmp_ne_u32 vcc, 0, v8
s_nop 0
s_and_b32 s67, vcc_lo, 0xff
s_lshl_b32 s67, s67, 8
s_bitset1_b32 s67, 16
''')
if opt['dyn']:
    lds_wait_ge(CNT + 16, opt['tcnt'], 2)
    stamp(3)
    A('s_mov_b64 exec, 1')
    def body():
        A('v_mov_b32 v8, 1\nv_mov_b32 v9, 0')
        A('buffer_atomic_add_x2 v[8:9], v1, s[24:27], s66 offen sc0 sc1')
        A('s_waitcnt vmcnt(0)')
        A('v_cmp_ne_u32 vcc, s30, v9')
    spin(body, sleep=8)
    A('v_and_b32 v8, 31, v8\nv_or_b32 v8, s67, v8')
else:
    A('''
s_mul_i32 s5, s79, 5
s_add_u32 s5, s5, s7
s_mul_i32 s72, s79, 3
s_add_u32 s72, s72, s7
s_add_u32 s72, s72, 15
s_cmp_lt_u32 s7, 5
s_cselect_b32 s5, s5, s72
s_or_b32 s5, s5, s67
v_mov_b32 v8, s5
v_mov_b32 v1, 0
s_mov_b64 exec, 1
''')
A(f'ds_write_b32 v1, v8 offset:{ROLE}\ns_mov_b64 exec, -1')
A('L_nostat:')
BW = 64
CF = 56
XM = 52
CFSRC = '# wave 0: stats of the group\'s 4 heads x 8 splits -> c = exp(m-M)/L per lane (lane = 8*head + split) -> LDS\nA(f\'\'\'\ns_cmp_lg_u32 s3, 0\ns_cbranch_scc1 L_noc\ns_lshl_b32 s72, s4, 9\ns_add_u32 s72, s72, {ST}\nv_and_b32 v1, 31, v0\nv_lshlrev_b32 v1, 4, v1\n\'\'\')\ndef body():\n    A(f"s_sleep {opt[\'stsleep\']}")\n    A(\'buffer_load_dwordx4 v[4:7], v1, s[16:19], s72 offen sc1\')\n    A(\'s_waitcnt vmcnt(0)\')\n    tagcheck([6])\nspin2(body, local_only=True)\nstamp(4)\ncombine_stats()\nA(f\'\'\'\nv_rcp_f32 v3, v3\nv_lshrrev_b32 v1, 2, v1\nv_mul_f32 v4, v4, v3\nv_mov_b32 v2, 0\nv_mov_b32 v3, 1\nds_write_b32 v1, v4 offset:{CL}\nds_write_b32 v2, v3 offset:{CNT+24}\nL_noc:\n\'\'\')\n'
get_role(4)
A('''
s_cmp_lt_u32 s5, 20
s_cbranch_scc0 L_helper_exit
''')
def tr_addr(dst, tmp):
    A(f'''
v_lshrrev_b32 v{dst}, 4, v0
v_lshlrev_b32 v{dst}, 10, v{dst}
v_bfe_u32 v{tmp}, v0, 2, 2
v_lshl_add_u32 v{dst}, v{tmp}, 7, v{dst}
v_and_b32 v{tmp}, 3, v0
v_lshl_add_u32 v{dst}, v{tmp}, 3, v{dst}
''')
A(f'''
s_cmp_ge_u32 s5, 10
s_cselect_b32 s76, 1, 0
s_mul_i32 s77, s76, 10
s_sub_u32 s77, s5, s77
s_lshr_b32 s68, s3, 1
s_lshl1_add_u32 s78, s76, s68
v_bfe_u32 v2, v0, 4, 1
v_lshlrev_b32 v2, 4, v2
s_lshl_b32 s68, s78, 5
v_add_u32 v22, s68, v2
''')
A(f'''
v_lshlrev_b32 v60, 4, v0
s_lshl2_add_u32 s73, s4, s78
s_mul_i32 s73, s73, 6144
s_and_b32 s68, s3, 1
s_mul_i32 s68, s68, 3072
s_add_u32 s73, s73, s68
s_add_u32 s73, s73, {OP}
v_lshlrev_b32 v62, 2, v0
s_lshl_b32 s68, s3, 8
v_add_u32 v61, s68, v62
v_lshrrev_b32 v2, 5, v0
v_lshlrev_b32 v2, 11, v2
v_bfe_u32 v3, v0, 2, 3
v_lshl_add_u32 v2, v3, 4, v2
v_and_b32 v3, 1, v0
v_lshl_add_u32 v63, v3, 13, v2
s_lshr_b32 s75, s77, 1
s_lshl_b32 s75, s75, 14
s_and_b32 s68, s77, 1
s_lshl_b32 s68, s68, 12
s_add_u32 s75, s75, s68
s_lshl1_add_u32 s68, s4, s76
s_lshl_b32 s68, s68, 7
s_add_u32 s75, s75, s68
s_add_u32 s75, s75, {YP}
s_mov_b32 s66, 0xff00ff00
s_mov_b32 s67, 0xff00ff00
s_mov_b32 s8, 0x33333333
s_mov_b32 s9, 0x33333333
v_mov_b32 v6, s30
v_mov_b32 v7, s31
v_cndmask_b32 v{XM}, 0, v6, s[66:67]
v_cndmask_b32 v{XM+1}, 0, v7, s[66:67]
v_cndmask_b32 v{XM+2}, v6, 0, s[66:67]
v_cndmask_b32 v{XM+3}, v7, 0, s[66:67]
v_mov_b32 v50, s30
v_mov_b32 v51, s31
''')
tr_addr(24, 25)
A('s_mul_i32 s69, s3, 12288\nv_add_u32 v24, s69, v24')
exec(CFSRC)
lds_wait_ge(CNT + 24, 1, 2)
A(f'ds_read_b128 v[{CF}:{CF+3}], v22 offset:{CL}')
def wo_tr(ts):
    for t in ts:
        for u in range(4):
            r = BW + 4 * (4 * t + u)
            A(f'ds_read_b64_tr_b16 v[{r}:{r+1}], v24 offset:{WL + 4096*t + 32*u}')
            A(f'ds_read_b64_tr_b16 v[{r+2}:{r+3}], v24 offset:{WL + 4096*t + 32*u + 512}')
AO = 8
def op_loads(srdn, first=False):
    stamp(2)
    for t in range(3):
        A(f'buffer_load_dwordx4 v[{AO+4*t}:{AO+4*t+3}], v60, s[{srdn}:{srdn+3}], s73 offen offset:{1024*t} sc1' + (' nt' if opt['ont'] or (first and opt['o1nt']) else ''))
A('v_mov_b32 v23, 1\ns_lshl_b32 s68, s3, 2\nv_mov_b32 v25, s68')
tdone = NE // 4
wo_tr(range(tdone))
if NE < 12:
    srd(12, 44, 6144 * 640 * 2)
    A(f'''
v_lshrrev_b32 v21, 3, v0
v_mul_u32_u24 v21, 1280, v21
v_and_b32 v3, 7, v0
v_lshl_add_u32 v21, v3, 4, v21
s_lshl1_add_u32 s60, s4, s76
s_lshl2_add_u32 s60, s60, s3
s_mul_i32 s60, s60, {96*1280}
s_lshl_b32 s69, s77, 7
s_add_u32 s60, s60, s69
s_add_u32 s60, s60, {NE*8*1280}
s_mul_i32 s61, s3, 12288
s_add_u32 s61, s61, {WL + 1024*NE}
''')
    lds_wait_ge(CNT + 4, 8, 2)
    stamp(3)
    for n in range(12 - NE):
        if n >= opt['DWF']: A(f"s_waitcnt vmcnt({opt['DWF']-1})")
        A('s_mov_b32 m0, s61')
        A('buffer_load_dwordx4 v21, s[12:15], s60 offen nt lds')
        A(f's_add_u32 s60, s60, {8*1280}\ns_add_u32 s61, s61, 1024')
    if opt['opre2']: op_loads(32, True)
    x = 3 if opt['opre2'] else 0
    if tdone < 2:
        A(f's_waitcnt vmcnt({4 + x})')
        wo_tr(range(tdone, 2))
    lds_wait_ge(CNT + 28, 1, 1)
    A('s_waitcnt vmcnt(0)')
    op_loads(32)
    wo_tr([2])
    A('s_waitcnt lgkmcnt(0)')
else:
    if opt['opre2']:
        lds_wait_ge(CNT + 4, 8, 2)
        stamp(3)
        op_loads(32, True)
        A('s_waitcnt vmcnt(0)')
    lds_wait_ge(CNT + 28, 1, 1)
stamp(6)
def body():
    op_loads(16)
    A('L_opw:')
    for t in range(3):
        A(f's_waitcnt vmcnt({2-t})')
        q = AO + 4 * t
        for e in range(4): A(f'v_xor_b32 v{q+e}, v{q+e}, v{XM+e}')
        for u in range(4):
            r = BW + 4 * (4 * t + u)
            c = '0' if t == 0 else f'v[{32+4*u}:{35+4*u}]'
            A(f'v_mfma_f32_16x16x32_bf16 v[{32+4*u}:{35+4*u}], v[{q}:{q+3}], v[{r}:{r+3}], {c}')
        if t == 0:
            A(f'v_or_b32 v2, v{q}, v{q+1}\nv_or_b32 v3, v{q+2}, v{q+3}')
        else:
            A(f'v_or3_b32 v2, v2, v{q}, v{q+1}\nv_or3_b32 v3, v3, v{q+2}, v{q+3}')
    A('v_cndmask_b32 v2, v3, v2, s[66:67]')
    A('v_cmp_ne_u32 vcc, 0, v2')
spin2(body, local_only=True, entry='L_opw' if NE < 12 else None)
stamp(7)
if opt['w2trig'] == 0: A(f'ds_write_b32 v25, v23 offset:{CNT+32}')
for u in range(4):
    A(f'v_mul_f32 v{4+u}, v{32+4*u}, v{CF}')
    for r in range(1, 4): A(f'v_fmac_f32 v{4+u}, v{32+4*u+r}, v{CF+r}')
A(f'''
{S32} v4, v6
{S32} v5, v7
v_add_f32 v4, v4, v6
v_add_f32 v5, v5, v7
{S16} v4, v5
v_add_f32 v4, v4, v5
ds_write_b32 v61, v4 offset:{RL}
s_cmp_lg_u32 s3, 0
s_waitcnt lgkmcnt(0)
s_barrier
s_cbranch_scc1 L_post_wo
ds_read_b32 v5, v62 offset:{RL+256}
ds_read_b32 v6, v62 offset:{RL+512}
ds_read_b32 v7, v62 offset:{RL+768}
s_waitcnt lgkmcnt(0)
v_add_f32 v4, v4, v5
v_add_f32 v6, v6, v7
v_add_f32 v4, v4, v6
v_mov_b32_dpp v5, v4 quad_perm:[1,0,3,2] {DPPM}
v_cvt_pk_bf16_f32 v4, v4, v5
v_mov_b32_dpp v48, v4 quad_perm:[0,0,0,0] {DPPM}
v_mov_b32_dpp v49, v4 quad_perm:[2,2,2,2] {DPPM}
''')
A('s_mov_b64 exec, s[8:9]')
A('buffer_store_dwordx4 v[48:51], v63, s[24:27], s75 offen sc1')
stamp(5)
A('s_barrier')
if opt['cbpa']: A('s_barrier')
write_stamps(0)
A('s_endpgm')
A('L_helper_exit:')
if opt['prer'] >= 3:
    A('s_cmp_lg_u32 s3, 1\ns_cbranch_scc1 L_noprer')
    if opt['prer'] == 3: lds_wait_ge(CNT + 16, 8, 4)
    if opt['prer'] == 4: lds_wait_ge(CNT + 4, 8, 4)
    A(f'''
s_mul_i32 s68, s4, 12
s_add_u32 s68, s68, s5
s_sub_u32 s68, s68, 20
v_lshlrev_b32 v1, 7, v0
s_mul_i32 s60, s68, 5120
s_add_u32 s61, s60, {CB}
s_add_u32 s60, s60, {PA}
s_lshl_b32 s62, s68, 7
s_add_u32 s62, s62, {PS}
s_mul_i32 s63, s4, 5120
s_add_u32 s63, s63, {PH}
s_mov_b32 exec_lo, -1
s_mov_b32 exec_hi, 0xff
buffer_load_dword v4, v1, s[32:35], s60 offen {'nt' if opt['hnt'] else 'sc1'}
buffer_load_dword v5, v1, s[32:35], s61 offen {'nt' if opt['hnt'] else 'sc1'}
s_cmp_lg_u32 s5, 20
s_cbranch_scc1 L_noph
buffer_load_dword v6, v1, s[32:35], s63 offen sc1
L_noph:
s_mov_b64 exec, 1
buffer_load_dword v7, v1, s[32:35], s62 offen sc1
s_endpgm
L_noprer:
''')
if STAMPS:
    A('s_cmp_lg_u32 s3, 0\ns_cbranch_scc1 L_end')
    write_stamps(0)
A('s_endpgm')

B1R = 64
DR = 16
def gdone_wait(n):
    if not n: return
    lp = newlabel('gpoll'); ld = newlabel('gdone')
    A(f"""
v_and_b32 v1, 31, v0
v_lshlrev_b32 v1, 4, v1
s_lshl_b32 s68, s4, 9
s_add_u32 s68, s68, {DN}
s_mov_b32 s70, 40
s_cmp_lg_u32 s46, 1
s_cbranch_scc1 {ld}
{lp}:
buffer_load_dwordx4 v[4:7], v1, s[32:35], s68 offen sc1
s_waitcnt vmcnt(0)
v_cmp_eq_u64 vcc, s[30:31], v[6:7]
s_nop 0
s_bcnt1_i32_b32 s69, vcc_lo
s_cmp_ge_u32 s69, {n}
s_cbranch_scc1 {ld}
s_sleep 2
s_sub_u32 s70, s70, 1
s_cbranch_scc0 {lp}
{ld}:
""")
def yp_loads(fl=''):
    A('buffer_load_dwordx4 v[96:99], v55, s[24:27], s60 offen sc1' + fl)
    A('buffer_load_dwordx4 v[100:103], v55, s[24:27], s60 offen offset:1024 sc1' + fl)
def f1_mfma():
    for k in range(8):
        A(f'v_mfma_f32_16x16x32_bf16 v[{DR+4*k}:{DR+3+4*k}], v[8:11], v[{B1R+4*k}:{B1R+4*k+3}], 0')
def f1_select(d):
    for m in range(2):
        b = DR + 16 * m
        A(f'v_cndmask_b32 v{d+m}, v{b}, v{b+4}, s[62:63]')
        A(f'v_cndmask_b32 v{d+m}, v{d+m}, v{b+8}, s[64:65]')
        A(f'v_cndmask_b32 v{d+m}, v{d+m}, v{b+12}, s[66:67]')
A('L_f1:')
A('''
v_lshrrev_b32 v58, 4, v0
v_lshlrev_b32 v58, 7, v58
v_bfe_u32 v5, v0, 2, 2
v_lshl_add_u32 v58, v5, 9, v58
v_and_b32 v5, 3, v0
v_lshl_add_u32 v58, v5, 3, v58
''')
srd(12, 48, 640 * 1536 * 2); srd(16, 50, 640 * 1536 * 2)
A(f"""
s_mul_i32 s75, s5, 5
s_add_u32 s75, s75, s73
s_sub_u32 s75, s75, 100
s_cmp_ge_u32 s75, 20
s_cselect_b32 s78, 1, 0
s_cmp_ge_u32 s75, 40
s_cselect_b32 s78, 2, s78
s_mul_i32 s68, s78, 20
s_sub_u32 s74, s75, s68
s_mul_i32 s68, s4, 3
s_add_u32 s78, s78, s68
s_lshl_b32 s68, s73, 13
v_add_u32 v58, s68, v58
s_add_u32 s79, s68, {WL}
v_lshrrev_b32 v3, 4, v0
v_and_b32 v2, 7, v0
v_lshl_add_u32 v50, v2, 2, v3
v_lshlrev_b32 v50, 1, v50
s_lshl_b32 s68, s74, 6
v_add_u32 v61, s68, v50
v_lshlrev_b32 v54, 6, v3
v_lshl_add_u32 v54, v2, 3, v54
v_lshrrev_b32 v53, 3, v0
v_mul_u32_u24 v62, 3072, v53
v_lshl_add_u32 v62, v2, 4, v62
s_lshr_b32 s60, s74, 2
s_lshl_b32 s60, s60, 14
s_and_b32 s68, s74, 3
s_lshl_b32 s68, s68, 11
s_add_u32 s60, s60, s68
s_lshr_b32 s68, s47, s4
s_and_b32 s68, s68, 1
s_lshl_b32 s68, s68, 13
s_add_u32 s60, s60, s68
s_add_u32 s60, s60, {YP}
v_lshlrev_b32 v55, 4, v0
v_mov_b32 v57, 0
v_cmp_eq_u32 s[62:63], 1, v3
v_cmp_eq_u32 s[64:65], 2, v3
v_cmp_eq_u32 s[66:67], 3, v3
v_lshrrev_b32 v59, 4, v0
v_mul_u32_u24 v59, 5120, v59
v_bfe_u32 v4, v0, 3, 1
v_lshl_add_u32 v59, v4, 9, v59
v_lshl_add_u32 v59, v2, 4, v59
s_mul_i32 s76, s78, 20480
s_lshr_b32 s68, s74, 2
s_lshl_b32 s68, s68, 10
s_add_u32 s76, s76, s68
s_and_b32 s68, s74, 3
s_lshl_b32 s68, s68, 7
s_add_u32 s76, s76, s68
s_add_u32 s76, s76, {PA}
s_lshl_b32 s72, s78, 9
s_lshl4_add_u32 s72, s74, s72
s_add_u32 s72, s72, {PS}
s_mul_i32 s75, s4, 20
s_add_u32 s75, s75, s74
s_lshl_b32 s75, s75, 8
s_add_u32 s75, s75, {PH}
s_cmp_lt_u32 s5, 24
s_cselect_b32 s75, s75, {PH + 0xA000}
s_mov_b32 s77, 0x3f80
s_mov_b32 s71, 0x3f800000
v_mov_b32 v14, s30
v_mov_b32 v15, s31
s_mul_i32 s61, s74, {32*3072}
s_lshl_b32 s68, s78, 7
s_add_u32 s61, s61, s68
""")
if opt['f1trig'] == 0: lds_wait_ge(CNT + 28, 1, 1)
elif opt['f1trig'] == 1: lds_wait_ge(CNT + 4, 8, 1)
gdone_wait(opt['gdone'])
stamp(3)
for n in range(4):
    for m in range(2):
        A(f's_add_u32 m0, s79, {4096*m + 1024*n}')
        A(f'buffer_load_dwordx4 v62, s[{12+4*m}:{15+4*m}], s61 offen nt lds')
    if n < 3: A(f's_add_u32 s61, s61, {8*3072}')
A('global_load_ushort v56, v61, s[36:37]')
PFL = ' nt' if opt['prer'] == 2 else ' sc1'
def preread(mask, PFL=None):
    PFL = PFL or globals()['PFL']
    A(f's_add_u32 s68, s76, {CB - PA}\ns_mov_b32 exec_lo, 0x01010101\ns_mov_b32 exec_hi, 0x01010101')
    if mask & 1: A(f'buffer_load_dword v104, v59, s[32:35], s76 offen{PFL}')
    if mask & 2: A(f'buffer_load_dword v105, v59, s[32:35], s68 offen{PFL}')
    if mask & 4: A(f'buffer_load_dword v106, v54, s[32:35], s75 offen{PFL}')
    if mask & 4: A(f's_mov_b64 exec, 1\nbuffer_load_dword v107, v55, s[32:35], s72 offen{PFL}')
    A('s_mov_b64 exec, -1')
    return (mask & 1) + (mask >> 1 & 1) + 2 * (mask >> 2 & 1)
npre = preread(opt['pre1']) if opt['prer'] in (1, 2) and opt['pre1'] else 0
A('s_setprio 3')
A(f"s_waitcnt vmcnt({0 if opt['promo'] else npre})")
if opt['prer'] in (1, 2) and opt['pre2']: preread(opt['pre2'], ' sc1' if opt['promo'] else None)
yp_loads(' nt' if opt['ynt'] else '')
stamp(6)
for m in range(2):
    for u in range(4):
        r = B1R + 4 * (4 * m + u)
        A(f'ds_read_b64_tr_b16 v[{r}:{r+1}], v58 offset:{WL + 4096*m + 32*u}')
        A(f'ds_read_b64_tr_b16 v[{r+2}:{r+3}], v58 offset:{WL + 4096*m + 32*u + 2048}')
A("""
v_mov_b32 v8, 0x3f803f80
v_mov_b32 v9, 0x3f803f80
v_mov_b32 v10, 0x3f803f80
v_mov_b32 v11, 0x3f803f80
s_waitcnt lgkmcnt(0)
""")
f1_mfma()
A('v_mov_b32 v6, s30\nv_mov_b32 v7, s31\nv_mov_b32 v50, s30\nv_mov_b32 v51, s31')
A(f's_add_u32 s68, s76, {CB - PA}')
if opt['prepa'] == 2:
    A('s_waitcnt vmcnt(2)\nv_not_b32 v10, s30\nbuffer_store_dwordx4 v[8:11], v59, s[32:35], s76 offen')
    A('s_mov_b64 exec, 1\nbuffer_store_dwordx4 v[8:11], v55, s[32:35], s72 offen')
    setexec(0x0055005500550055)
    A('buffer_store_dwordx4 v[8:11], v54, s[32:35], s75 offen\ns_mov_b64 exec, -1')
if opt['prepa'] == 1:
    A('v_not_b32 v10, s30\nbuffer_store_dwordx4 v[8:11], v59, s[32:35], s76 offen')
f1_select(12)
if opt['cbred']:
    A(f'''
v_lshlrev_b32 v4, 3, v0
s_lshl_b32 s68, s73, 9
v_add_u32 v5, s68, v4
v_mov_b32 v8, 1
ds_write_b64 v5, v[12:13] offset:{OL}
s_mov_b64 exec, 1
ds_add_rtn_u32 v9, v57, v8 offset:{CNT+12}
s_mov_b64 exec, -1
''')
    for w in range(5): A(f'ds_read_b64 v[{16+2*w}:{17+2*w}], v4 offset:{OL + 512*w}')
    A(f'''
v_lshrrev_b32 v4, 4, v0
v_lshlrev_b32 v4, 10, v4
v_bfe_u32 v5, v0, 3, 1
v_lshl_add_u32 v4, v5, 9, v4
v_and_b32 v5, 7, v0
v_lshl_add_u32 v4, v5, 4, v4
s_lshl_b32 s68, s78, 12
s_and_b32 s69, s5, 3
s_lshl_b32 s69, s69, 7
s_add_u32 s68, s68, s69
s_add_u32 s68, s68, {CB}
s_waitcnt lgkmcnt(0)
v_readfirstlane_b32 s69, v9
s_cmp_lg_u32 s69, 4
s_cbranch_scc1 L_nocb
v_pk_add_f32 v[16:17], v[16:17], v[18:19]
v_pk_add_f32 v[20:21], v[20:21], v[22:23]
v_pk_add_f32 v[16:17], v[16:17], v[24:25]
v_pk_add_f32 v[12:13], v[16:17], v[20:21]
''')
    publish([(None, 'buffer_store_dwordx4 v[12:15], v4, @, s68 offen')])
    A('L_nocb:')
else:
    publish([(None, 'buffer_store_dwordx4 v[12:15], v59, @, s68 offen')])
A('v_mov_b32 v8, 0\nv_mov_b32 v9, 0\nv_mov_b32 v10, 0\nv_mov_b32 v11, 0\nv_lshlrev_b32 v56, 16, v56')
def body():
    yp_loads()
    A('L_ypw0:')
    A('s_waitcnt vmcnt(0)')
    tagcheck([98, 102])
spin(body, entry='L_ypw0')
stamp(1)
for r in (96, 100):
    A(f'v_dot2c_f32_bf16 v8, s77, v{r}\nv_dot2c_f32_bf16 v10, s77, v{r+1}\nv_dot2c_f32_bf16 v9, s71, v{r}\nv_dot2c_f32_bf16 v11, s71, v{r+1}')
A(f"""
{S32} v8, v10
{S32} v9, v11
v_add_f32 v8, v8, v10
v_add_f32 v9, v9, v11
{S16} v8, v9
v_add_f32 v8, v8, v9
v_add_f32_dpp v8, v8, v8 row_ror:8 {DPPM}
v_cvt_pk_bf16_f32 v8, v57, v8
v_add_f32 v12, v8, v56
v_mov_b32_dpp v13, v12 quad_perm:[1,0,3,2] {DPPM}
v_cvt_pk_bf16_f32 v12, v12, v13
v_lshlrev_b32 v48, 16, v12
v_mul_f32 v49, v48, v48
v_mov_b32_dpp v8, v12 row_newbcast:0 {DPPM}
v_mov_b32_dpp v9, v12 row_newbcast:2 {DPPM}
v_mov_b32_dpp v10, v12 row_newbcast:4 {DPPM}
v_mov_b32_dpp v11, v12 row_newbcast:6 {DPPM}
""")
stat = []
for pat in ('quad_perm:[1,0,3,2]', 'quad_perm:[2,3,0,1]', 'row_half_mirror'):
    stat.append([f'v_add_f32_dpp v{r}, v{r}, v{r} {pat} {DPPM}' for r in (48, 49)])
for sw in (S16, S32):
    stat.append(['v_mov_b32 v52, v48', 'v_mov_b32 v53, v49'])
    stat.append([f'{sw} v48, v52', f'{sw} v49, v53'])
    stat.append(['v_add_f32 v48, v48, v52', 'v_add_f32 v49, v49, v53'])
for l in stat.pop(0): A(l)
for k in range(8):
    A(f'v_mfma_f32_16x16x32_bf16 v[{DR+4*k}:{DR+3+4*k}], v[8:11], v[{B1R+4*k}:{B1R+4*k+3}], 0')
    for l in stat.pop(0): A(l)
f1_select(4)
publish([(None, 'buffer_store_dwordx4 v[4:7], v59, @, s76 offen'),
         (1, 'buffer_store_dwordx4 v[48:51], v55, @, s72 offen'),
         (0x0055005500550055, 'buffer_store_dwordx4 v[12:15], v54, @, s75 offen')])
if opt['clean'] & 1:
    A(f'''
s_mul_i32 s68, s5, 5
s_add_u32 s68, s68, s73
s_sub_u32 s68, s68, 100
s_cmp_ge_u32 s68, 48
s_cbranch_scc1 L_noclean
s_lshl_b32 s69, s68, 3
v_add_u32 v2, s69, v0
v_mul_u32_u24 v3, 0x5556, v2
v_lshrrev_b32 v3, 18, v3
v_lshl_add_u32 v2, v3, 2, v2
v_lshlrev_b32 v2, 7, v2
s_lshl_b32 s69, s4, 16
s_mov_b64 exec, 0xff
buffer_store_dword v14, v2, s[32:35], s69 offen offset:{QP + 8} sc1
v_lshlrev_b32 v2, 7, v0
v_and_b32 v3, 1, v0
v_lshlrev_b32 v3, 3, v3
v_sub_u32 v2, v2, v3
s_mul_i32 s69, s4, 24576
s_lshl_b32 s68, s68, 9
s_add_u32 s69, s69, s68
s_add_u32 s69, s69, {OP}
s_mov_b64 exec, 0xf
buffer_store_dword v14, v2, s[32:35], s69 offen offset:8 sc1
s_mov_b64 exec, -1
L_noclean:
''')
if STAMPS:
    stamp_now(13, True)
    stamp_val(18, 82, 83, True)
    stamp_val(23, 92, 93, True)
A('s_endpgm')

A('L_post_wo:')
A("""
s_cmp_gt_u32 s5, 11
s_cbranch_scc1 L_end
s_cmp_eq_u32 s3, 3
s_cbranch_scc1 L_end
v_mov_b32 v57, 0
""")
A('s_cmp_eq_u32 s3, 1\ns_cbranch_scc1 L_hid\ns_barrier')
if opt['cbpa']: A('s_barrier')
A(f"""
s_and_b32 s68, s4, 1
s_lshl_b32 s68, s68, 2
s_sub_u32 s68, 12, s68
s_cmp_ge_u32 s5, s68
s_cbranch_scc1 L_end
s_mul_i32 s72, s4, 5
s_add_u32 s72, s72, 1
s_lshr_b32 s72, s72, 1
s_lshr_b32 s68, s5, 2
s_add_u32 s72, s72, s68
s_and_b32 s73, s5, 3
v_lshrrev_b32 v2, 1, v0
v_lshlrev_b32 v2, 7, v2
v_and_b32 v3, 1, v0
v_lshl_add_u32 v96, v3, 4, v2
s_lshl_b32 s10, s72, 15
s_lshr_b32 s68, s47, s4
s_and_b32 s68, s68, 1
s_lshl_b32 s68, s68, 13
s_add_u32 s10, s10, s68
s_lshl_b32 s68, s73, 5
s_add_u32 s10, s10, s68
s_add_u32 s10, s10, {FP}
s_add_u32 s11, s10, 4096
s_add_u32 s12, s10, 16384
v_lshrrev_b32 v4, 4, v0
v_lshl_add_u32 v97, v3, 2, v4
v_lshlrev_b32 v97, 1, v97
v_lshlrev_b32 v99, 6, v4
v_lshlrev_b32 v98, 4, v3
s_mul_i32 s13, s4, 20
s_add_u32 s13, s13, s72
s_lshl_b32 s13, s13, 8
s_lshl4_add_u32 s13, s73, s13
s_add_u32 s13, s13, {PH}
s_lshl2_add_u32 s14, s72, s73
s_lshl_b32 s14, s14, 4
s_mov_b32 s8, 0x30003
s_mov_b32 s9, 0x30003
s_mov_b32 s77, 0x3f80
s_mov_b32 s71, 0x3f800000
v_mov_b32 v8, 0
v_mov_b32 v9, 0
v_mov_b32 v10, 0
v_mov_b32 v11, 0
""")
FS = 16
srd(64, 54, 1280)
lds_wait_ge(HRDY, 1, 2)
if opt['fsleep']: A(f"s_sleep {opt['fsleep']}")
def body():
    A('buffer_load_dwordx4 v[4:7], v99, s[16:19], s13 offen sc1')
    for n in range(3):
        r = FS + 4 * n
        A(f'buffer_load_dwordx4 v[{r}:{r+3}], v96, s[24:27], s{10+n} offen sc1')
    A('s_waitcnt vmcnt(0)')
    tagcheck([6, FS + 2, FS + 6, FS + 10])
spin2(body, local_only=True)
stamp(5)
for n in range(3):
    r = FS + 4 * n
    A(f'v_dot2c_f32_bf16 v8, s77, v{r}\nv_dot2c_f32_bf16 v10, s77, v{r+1}\nv_dot2c_f32_bf16 v9, s71, v{r}\nv_dot2c_f32_bf16 v11, s71, v{r+1}')
A(f"""
v_lshrrev_b32 v58, v98, v4
{S32} v8, v10
{S32} v9, v11
v_add_f32 v8, v8, v10
v_add_f32 v9, v9, v11
v_lshlrev_b32 v58, 16, v58
{S16} v8, v9
v_add_f32 v8, v8, v9
v_add_f32_dpp v8, v8, v8 row_ror:8 {DPPM}
v_add_f32_dpp v8, v8, v8 row_ror:4 {DPPM}
v_add_f32_dpp v8, v8, v8 quad_perm:[2,3,0,1] {DPPM}
v_cvt_pk_bf16_f32 v8, v57, v8
v_add_f32 v8, v8, v58
v_cvt_pk_bf16_f32 v8, v8, v8
""")
DBGPTR = ''
if opt['dbgptr']:
    DBGPTR = 'v_mov_b32 v8, s58\nv_mov_b32 v9, s38\nv_mov_b32 v10, s40\nv_mov_b32 v11, s47\nglobal_store_dwordx4 v57, v[8:11], s[56:57]\nv_mov_b32 v12, s44\nv_mov_b32 v13, s48\nv_mov_b32 v14, s54\nv_mov_b32 v15, s56\nglobal_store_dwordx4 v57, v[12:15], s[56:57] offset:16'
A('s_mov_b64 exec, s[8:9]')
A(f"""
buffer_store_short v8, v97, s[64:67], s14 offen
s_cmp_lg_u32 s14, 0
s_cbranch_scc1 L_fin_exit
s_mov_b64 exec, 1
v_mov_b32 v4, s30
v_mov_b32 v5, s31
s_mov_b32 s68, {EP}
buffer_store_dwordx2 v[4:5], v57, s[24:27], s68 offen
{DBGPTR}
L_fin_exit:
""")
if opt['dbg']:
    A(f'''
s_cmp_lg_u32 s14, {64 * ((5 * opt['dbgx'] + 1) >> 1)}
s_cbranch_scc1 L_end
s_mov_b64 exec, -1
ds_read_b32 v4, v57 offset:{CNT+36}
s_memrealtime s[82:83]
s_waitcnt lgkmcnt(0)
v_readfirstlane_b32 s85, v4
s_sub_u32 s84, s82, s80
s_lshr_b32 s85, s85, 3
{'s_mov_b32 s84, s85' if opt['dbgn'] else ''}
v_mov_b32 v4, s84
global_store_dword v57, v4, s[56:57]
s_mul_i32 s84, s84, {opt['dbg']}
s_min_u32 s84, s84, 40000
L_dbgspin:
s_memrealtime s[86:87]
s_waitcnt lgkmcnt(0)
s_sub_u32 s86, s86, s82
s_cmp_lt_u32 s86, s84
s_cbranch_scc1 L_dbgspin
''')
if STAMPS:
    A('s_waitcnt vmcnt(0)')
    stamp(7)
    write_stamps(8)
A('s_endpgm')

A('L_hid:')
A(f"""
s_mul_i32 s72, s4, 12
s_add_u32 s72, s72, s5
v_lshrrev_b32 v4, 5, v0
v_and_b32 v2, 7, v0
v_lshl_add_u32 v62, v4, 3, v2
v_lshlrev_b32 v62, 1, v62
v_lshlrev_b32 v63, 2, v2
v_lshlrev_b32 v60, 4, v0
v_and_b32 v3, 31, v0
v_lshlrev_b32 v61, 4, v3
s_lshr_b32 s65, s72, 2
s_lshl_b32 s65, s65, 9
s_add_u32 s65, s65, {PS}
s_mul_i32 s60, s72, 5120
s_add_u32 s60, s60, {PA}
s_add_u32 s61, s60, 4096
v_mov_b32 v148, 0
v_mov_b32 v149, 0
v_mov_b32 v150, s30
v_mov_b32 v151, s31
v_mov_b32 v59, 1
""")
if opt['cbred']: A(f's_lshl_b32 s62, s72, 10\ns_add_u32 s62, s62, {CB}')
else: A(f's_add_u32 s62, s60, {CB - PA}\ns_add_u32 s63, s61, {CB - PA}')
NCB = 1 if opt['cbred'] else 5
def issue(srdn=32, fl=''):
    setexec(0x000fffff000fffff)
    A(f'buffer_load_dwordx4 v[148:151], v61, s[{srdn}:{srdn+3}], s65 offen sc1')
    setexec(ALL)
    for n in range(5):
        A(f'buffer_load_dwordx4 v[{128+4*n}:{131+4*n}], v60, s[{srdn}:{srdn+3}], s{60+n//4} offen offset:{1024*(n%4)} sc1' + fl)
def check(): tagcheck([150, 130, 134, 138, 142, 146])
def body():
    for n in range(NCB):
        A(f'buffer_load_dwordx4 v[{16+4*n}:{19+4*n}], v60, s[16:19], s{62+n//4} offen offset:{1024*(n%4)} sc1' + (' nt' if opt['cnt'] else ''))
    if opt['prepa'] == 1:
        setexec(0x000fffff000fffff)
        A(f'buffer_load_dwordx4 v[148:151], v61, s[16:19], s65 offen sc1')
        setexec(ALL)
    else: issue(16, ' nt' if opt['pant'] else '')
    if opt['cbpa']: A('s_cmp_eq_u32 s78, 0\ns_cbranch_scc1 L_nobar\ns_mov_b32 s78, 0\ns_barrier\nL_nobar:')
    A('s_waitcnt vmcnt(0)')
    tagcheck([18, 22, 26, 30, 34][:NCB])
if opt['prepa']:
    for n in range(5): A(f'v_not_b32 v{130+4*n}, s30')
A('s_mov_b32 s78, 1\ns_barrier')
if opt['padelay']: A(f"s_sleep {opt['padelay']}")
spin2(body, local_only=True)
def sum5(d, r):
    A(f'v_pk_add_f32 v[{d}:{d+1}], v[{r}:{r+1}], v[{r+4}:{r+5}]')
    A(f'v_pk_add_f32 v[{d+2}:{d+3}], v[{r+8}:{r+9}], v[{r+12}:{r+13}]')
    A(f'v_pk_add_f32 v[{d}:{d+1}], v[{d}:{d+1}], v[{r+16}:{r+17}]')
    A(f'v_pk_add_f32 v[{d}:{d+1}], v[{d}:{d+1}], v[{d+2}:{d+3}]')
A('s_cmp_lg_u32 s46, 1\ns_cbranch_scc1 L_nopre')
issue()
A('L_nopre:')
if opt['cbred']: A('v_mov_b32 v40, v16\nv_mov_b32 v41, v17')
else: sum5(40, 16)
for r in (40, 41): A(f'v_add_f32_dpp v{r}, v{r}, v{r} row_ror:8 {DPPM}')
swapreduce(S16, 'v_add_f32', [40, 41], [42, 43])
check()
A('s_nop 0\ns_cbranch_vccz L_paok')
A('s_cmp_lg_u32 s46, 1\ns_cbranch_scc1 L_paslow')
freepoll(issue, check, opt['frp'], 'L_paok')
A('L_paslow:')
def body():
    issue(16); A('s_waitcnt vmcnt(0)'); check()
spin2(body, local_only=True)
A('L_paok:')
stamp(7)
A(f"""
v_add_f32_dpp v36, v148, v148 quad_perm:[1,0,3,2] {DPPM}
v_add_f32_dpp v37, v149, v149 quad_perm:[1,0,3,2] {DPPM}
v_pk_add_f32 v[8:9], v[128:129], v[132:133]
v_add_f32_dpp v36, v36, v36 quad_perm:[2,3,0,1] {DPPM}
v_add_f32_dpp v37, v37, v37 quad_perm:[2,3,0,1] {DPPM}
v_pk_add_f32 v[10:11], v[136:137], v[140:141]
v_add_f32_dpp v36, v36, v36 row_half_mirror {DPPM}
v_add_f32_dpp v37, v37, v37 row_half_mirror {DPPM}
v_pk_add_f32 v[8:9], v[8:9], v[144:145]
v_add_f32_dpp v22, v36, v36 row_mirror {DPPM}
v_add_f32_dpp v23, v37, v37 row_mirror {DPPM}
v_add_f32_dpp v36, v36, v36 row_mirror {DPPM}
v_add_f32_dpp v37, v37, v37 row_mirror {DPPM}
v_pk_add_f32 v[8:9], v[8:9], v[10:11]
{S16} v36, v22
{S16} v37, v23
v_pk_add_f32 v[36:37], v[36:37], v[22:23]
v_add_f32_dpp v10, v8, v8 row_ror:8 {DPPM}
v_mul_f32 v20, {f32(1.0/640)}, v36
v_mul_f32 v21, {f32(1.0/640)}, v37
v_add_f32_dpp v11, v9, v9 row_ror:8 {DPPM}
v_fma_f32 v21, -v20, v20, v21
v_add_f32_dpp v8, v8, v8 row_ror:8 {DPPM}
v_max_f32 v21, 0, v21
v_add_f32_dpp v9, v9, v9 row_ror:8 {DPPM}
v_cvt_pk_bf16_f32 v21, v57, v21
v_cvt_pk_bf16_f32 v20, v57, v20
v_add_f32 v21, {f32(1e-5)}, v21
{S16} v8, v10
v_cvt_pk_bf16_f32 v21, v57, v21
{S16} v9, v11
v_sqrt_f32 v21, v21
v_pk_add_f32 v[8:9], v[8:9], v[10:11]
v_cvt_pk_bf16_f32 v21, v57, v21
v_fma_f32 v8, -v20, v40, v8
v_rcp_f32 v21, v21
v_fma_f32 v9, -v20, v41, v9
v_mul_f32 v8, v8, v21
v_mul_f32 v9, v9, v21
v_cvt_pk_bf16_f32 v8, v57, v8
v_mul_f32 v12, {f32(-LOG2E)}, v8
v_exp_f32 v12, v12
v_cvt_pk_bf16_f32 v9, v57, v9
v_add_f32 v12, 1.0, v12
v_rcp_f32 v12, v12
v_mul_f32 v8, v8, v12
v_cvt_pk_bf16_f32 v8, v57, v8
v_mul_f32 v8, v8, v9
v_cvt_pk_bf16_f32 v8, v8, v8
ds_write_b16 v62, v8 offset:{HID}
ds_write_b32 v63, v59 offset:{HRDY}
""")
if opt['clean'] & 2:
    if opt['cldelay']: A(f"s_sleep {opt['cldelay']}")
    A(f'''
v_lshlrev_b32 v2, 7, v0
v_mov_b32 v3, s30
s_mov_b32 exec_hi, 0xff
buffer_store_dword v3, v2, s[32:35], s60 offen offset:8 sc1
s_mov_b64 exec, 0xff
buffer_store_dword v3, v2, s[32:35], s62 offen offset:8 sc1
s_mov_b64 exec, -1
''')
stamp_val(17, 94, 95)
A('s_endpgm')

A('L_f2:')
W2R = 64
srd(8, 52, 1536 * 640 * 2)
A(f"""
s_mul_i32 s72, s4, 12
s_add_u32 s72, s72, s5
v_mov_b32 v57, 0
s_sub_u32 s68, s3, 7
s_lshl_b32 s69, s68, 8
v_lshlrev_b32 v58, 2, v0
v_add_u32 v58, s69, v58
v_lshrrev_b32 v2, 4, v0
v_lshl_add_u32 v2, s68, 2, v2
v_mul_u32_u24 v3, 52, v2
v_lshrrev_b32 v3, 8, v3
v_mul_u32_u24 v4, 5, v3
v_sub_u32 v4, v2, v4
v_cmp_lt_u32 vcc, 2, v4
v_lshlrev_b32 v3, 1, v3
v_addc_co_u32 v3, vcc, 0, v3, vcc
v_lshrrev_b32 v3, v3, s47
v_and_b32 v3, 1, v3
v_lshlrev_b32 v116, 15, v2
v_lshl_add_u32 v116, v3, 13, v116
v_bfe_u32 v3, v0, 1, 3
v_lshl_add_u32 v116, v3, 4, v116
s_lshr_b32 s79, s72, 6
s_lshl_b32 s79, s79, 14
s_and_b32 s68, s72, 63
s_lshl_b32 s68, s68, 7
s_add_u32 s79, s79, s68
s_add_u32 s79, s79, {FP}
s_mov_b32 s60, 0x05040100
s_mov_b32 s61, 0x07060302
s_mul_i32 s62, s72, 20480
""")
def w2_loads():
    for k in range(16):
        A(f'buffer_load_dword v{W2R+k}, v58, s[8:11], s62 offen offset:{1280*(k%3)} nt')
        if k % 3 == 2: A('s_add_u32 s62, s62, 3840')
if opt['w2early']:
    lds_wait_ge(CNT + 28, 1, 2)
    w2_loads()
if opt['w2trig'] == 0:
    A('v_and_b32 v1, 3, v0\nv_lshlrev_b32 v1, 2, v1')
    def body():
        A(f'ds_read_b32 v4, v1 offset:{CNT+32}')
        A('s_waitcnt lgkmcnt(0)')
        A('v_cmp_eq_u32 vcc, 0, v4')
    spin(body, sleep=1)
    w2_loads()
A('s_barrier')
if opt['w2trig'] == 1: w2_loads()
A('s_barrier')
if opt['cbpa']: A('s_barrier')
if not opt['w2early'] and opt['w2trig'] == 2: w2_loads()
if opt['f2prio']: A(f"s_setprio {opt['f2prio']}")
A('s_waitcnt vmcnt(0)')
stamp(6)
for kp in range(8):
    A(f'v_perm_b32 v{80+kp}, v{W2R+2*kp+1}, v{W2R+2*kp}, s60')
    A(f'v_perm_b32 v{88+kp}, v{W2R+2*kp+1}, v{W2R+2*kp}, s61')
A(f"""
v_mov_b32 v16, 0
v_mov_b32 v17, 0
v_mov_b32 v18, 0
v_mov_b32 v19, 0
s_mov_b32 s66, 0x55555555
s_mov_b32 s67, 0x55555555
v_mov_b32 v6, s30
v_mov_b32 v7, s31
v_and_b32 v9, 15, v0
v_lshlrev_b32 v9, 2, v9
v_mov_b32 v8, 0
s_mov_b32 s64, 0xff00ff00
s_mov_b32 s65, 0xff00ff00
s_mov_b32 s70, {SPIN * 8}
s_waitcnt lgkmcnt(0)
L_f2poll:
ds_read_b32 v8, v9 offset:{HID}
s_waitcnt lgkmcnt({4 if opt['f2free'] else 0})
v_cmp_eq_u32 vcc, 0, v8
s_sub_u32 s70, s70, 1
s_cbranch_scc1 L_f2go
s_and_b64 vcc, vcc, s[64:65]
s_cbranch_scc1 L_f2poll
L_f2go:
""")
for kp in range(8):
    A(f'v_dot2c_f32_bf16_dpp v{16+2*(kp&1)}, v8, v{80+kp} row_newbcast:{kp} {DPPM}')
    A(f'v_dot2c_f32_bf16_dpp v{17+2*(kp&1)}, v8, v{88+kp} row_newbcast:{kp} {DPPM}')
A('v_pk_add_f32 v[16:17], v[16:17], v[18:19]')
A(f"""
v_cvt_pk_bf16_f32 v4, v16, v17
v_mov_b32_dpp v5, v4 quad_perm:[1,0,3,2] {DPPM}
""")
A('s_mov_b64 exec, s[66:67]')
A('buffer_store_dwordx4 v[4:7], v116, s[24:27], s79 offen sc1')
if STAMPS:
    setexec(ALL)
    stamp_now(20, True)
    stamp_val(15, 92, 93, True)
A('L_end:')
A('s_endpgm')
for blk in outline: A(blk)
A('L_codeend:')

A.raw('.section .rodata,"a"')
A.raw('.p2align 6')
A.raw(f'.amdhsa_kernel {NAME}_kernel')
A.raw('  .amdhsa_next_free_vgpr 168')
A.raw('  .amdhsa_next_free_sgpr 100')
A.raw('  .amdhsa_accum_offset 168')
A.raw('  .amdhsa_group_segment_fixed_size 0')
A.raw('  .amdhsa_kernarg_size 96')
A.raw('  .amdhsa_user_sgpr_count 2')
A.raw('  .amdhsa_user_sgpr_kernarg_segment_ptr 1')
A.raw('  .amdhsa_system_sgpr_workgroup_id_x 1')
A.raw('.end_amdhsa_kernel')
open(sys.argv[1], 'w').write(A.finalize())
```

```python
import sys, struct, os
from asmlib import Asm

NAME = "sequential_preLN__sliding_block_cached__glu_gated_swiglu__decode"
opt = dict(D1=3, D2=3, stamps=0, spin=200007, sleep=2, Vpre=3, swave=11, stsleep=24, wtrig=2, ttrig=9, tcnt=8, DWF=5,
           idtries=12, idsleep=16, forceslow=0, trap=0, fsleep=18, gdone=0, dyn=0, pref=2, prew=1, shots=4,
           w2early=0, f1trig=0, dbg=0, diagp=0, puback=0, dbgptr=0, fro=0, frp=1, frb=12, f2prio=0, f2free=1, tlb=0, cbpa=0, w2trig=1, padelay=0, prepa=0, prer=1, wsoff=0, qnt=1, ont=0, pre1=4, pre2=0, hnt=0, promo=0, ynt=0, cnt=0, opre=0, ogate=1, wopause=0, cbred=1, qabl=0, qdelay=0, pant=0, o1nt=1, pbfew=1, clean=0, cldelay=0, trace=0, tauA=0, tauB=0, offA=800, offB=800, lag=480, cfrom=30, cto=48, gorg=0, pftrig=26, DQ=20, QA_=10, NE=0, opre2=0, t27A=0, t27B=0, cal=1, mst=17, tau0=460, D0=550, calsleep=20, gam=80, dA=-8, dB=-28, pick2=4, caltries=2, lead=7, sampf1=1, calpre=0, nostore=0, bis=0, hb=0, dbgn=0, dbgx=0, calprio=3)
for a in sys.argv[2:]:
    k, v = a.split('=')
    assert k in opt, k
    opt[k] = int(v)
opt['ttrig'] = max(opt['ttrig'], opt['wtrig'])
if opt['t27A']:
    opt['offA'] = opt['t27A'] * 16 - 27 * opt['tauA']; opt['offB'] = (opt['t27B'] or opt['t27A']) * 16 - 27 * opt['tauB']
D1 = opt['D1']; D2 = opt['D2']; STAMPS = opt['stamps']; SPIN = opt['spin']

def f32(x): return '0x%08x' % struct.unpack('<I', struct.pack('<f', x))[0]
LOG2E = 1.4426950408889634

QP = 0x0
OP = 0x80000
ST = 0xB0000
ID = 0xB8000
DN = 0xBA000
YP = 0xC0000
EP = 0xE0000
TK = 0xE1000
CAL = 0xEA000
PF = 0xE8000
FP = 0x100000
PB = 0x1A0000
SP = 0x200000
PA = 0x220000
PS = 0x2A0000
PH = 0x2A4000
CB = 0x300000
WSN = 0x400000
FAST = 0x400000
QL = 0
QF = 384
SL = 512
CNT = 640
ORG = CNT + 40; SUMS = CNT + 56; HRDY = 704 + 32; ROLE = CNT + 20
CL = 768
HID = 704
OL = 1024
RL = 7168
WL = 8704
TRL = WL + 49152
LDS = TRL + (2048 if opt['trace'] else 0)

A = Asm()
A.raw(open(os.path.join(os.path.dirname(os.path.abspath(__file__)), '..', NAME + '.s.ref')).read().split('; Override launch')[0].rstrip())
A.raw(f"; @launch grid=(256,1,1) block=(768,1,1) lds={LDS}")
A.raw('''; Generated by gen/gen18.py (hand-written generator).  One persistent launch, 256 workgroups x 12 waves, 1 per CU.
;  s_sleep is used only as back-off inside / ahead of polling loops.''')
A.raw('.amdgcn_target "amdgcn-amd-amdhsa--gfx950"')
A.raw('.text')
A.raw(f'.globl {NAME}_kernel')
A.raw('.p2align 8')
A.raw(f'.type {NAME}_kernel,@function')
A.raw(f'{NAME}_kernel:')

def stamp(i):
    if STAMPS: A(f's_memrealtime s[{80+2*i}:{81+2*i}]')
def write_stamps(base_idx):
    if not STAMPS: return
    A('s_waitcnt lgkmcnt(0)')
    A('s_mov_b64 exec, 1')
    A('s_lshl3_add_u32 s68, s5, s4')
    A('s_lshl_b32 s68, s68, 8')
    A(f's_add_u32 s68, s68, {SP + base_idx*8}')
    A('v_mov_b32 v1, 0')
    for q in range(4):
        for e in range(4): A(f'v_mov_b32 v{4+e}, s{80+4*q+e}')
        A(f'buffer_store_dwordx4 v[4:7], v1, s[24:27], s68 offen offset:{16*q}')
        A('s_nop 2')
def stamp_val(idx, lo, hi, plus_wave=False):
    if not STAMPS: return
    A('s_lshl3_add_u32 s98, s5, s4')
    A('s_lshl_b32 s98, s98, 8')
    A(f's_add_u32 s98, s98, {SP + idx*8}')
    if plus_wave: A('s_lshl3_add_u32 s98, s3, s98')
    A('s_waitcnt lgkmcnt(0)')
    A(f'v_mov_b32 v120, s{lo}\nv_mov_b32 v121, s{hi}\nv_mov_b32 v122, 0')
    A('s_mov_b64 exec, 1')
    A('buffer_store_dwordx2 v[120:121], v122, s[24:27], s98 offen')
    A('s_mov_b64 exec, -1')
    A('s_nop 1')
def stamp_now(idx, plus_wave=False):
    if not STAMPS: return
    A('s_memrealtime s[96:97]')
    stamp_val(idx, 96, 97, plus_wave)

def srd(d, ptr, nbytes):
    A(f's_mov_b32 s{d}, s{ptr}')
    A(f's_mov_b32 s{d+1}, s{ptr+1}')
    A(f's_mov_b32 s{d+2}, {nbytes}')
    A(f's_mov_b32 s{d+3}, 0x20000')
def wsshift():
    if opt['wsoff']: A(f"s_add_u32 s58, s58, {opt['wsoff'] << 20}\ns_addc_u32 s59, s59, 0")
def ws_srds():
    srd(24, 58, WSN)
    A(f's_add_u32 s32, s58, {FAST}')
    A('s_addc_u32 s33, s59, 0')
    A(f's_mov_b32 s34, {WSN}')
    A('s_mov_b32 s35, 0x20000')
    A('s_lshl3_add_u32 s71, s6, s7')

ALL = (1 << 64) - 1
def setexec(mask):
    if mask == ALL: A('s_mov_b64 exec, -1'); return
    A(f's_mov_b32 exec_lo, 0x{mask & 0xffffffff:x}')
    A(f's_mov_b32 exec_hi, 0x{mask >> 32:x}')

DPPM = 'row_mask:0xf bank_mask:0xf'
def allreduce8(op, regs):
    for pat in ('quad_perm:[1,0,3,2]', 'quad_perm:[2,3,0,1]', 'row_half_mirror'):
        for r in regs: A(f'{op}_dpp v{r}, v{r}, v{r} {pat} {DPPM}')
def allreduce16(op, regs):
    allreduce8(op, regs)
    for r in regs: A(f'{op}_dpp v{r}, v{r}, v{r} row_mirror {DPPM}')
def swapreduce(sw, op, regs, tmps):
    for r, t in zip(regs, tmps): A(f'v_mov_b32 v{t}, v{r}')
    for r, t in zip(regs, tmps): A(f'{sw} v{r}, v{t}')
    for r, t in zip(regs, tmps): A(f'{op} v{r}, v{r}, v{t}')
S16 = 'v_permlane16_swap_b32'; S32 = 'v_permlane32_swap_b32'
def allreduce_rows(op, regs, tmps):
    swapreduce(S16, op, regs, tmps); swapreduce(S32, op, regs, tmps)
def allreduce64(op, regs, tmps):
    allreduce16(op, regs); allreduce_rows(op, regs, tmps)
def bf16r(d, s):
    A(f'v_cvt_pk_bf16_f32 v{d}, v{s}, v{s}')
    A(f'v_lshlrev_b32 v{d}, 16, v{d}')
def mktag():
    A('''
s_waitcnt lgkmcnt(0)
s_mul_i32 s30, s28, 0x2c9277b5
s_add_u32 s30, s30, 0xac564b05
s_mul_i32 s31, s29, 0x0019660d
s_add_u32 s31, s31, 0x3c6ef35f
''')
lbl = [0]
def newlabel(p):
    lbl[0] += 1
    return f'L_{p}_{lbl[0]}'

def tagcheck(pairs):
    A(f'v_cmp_ne_u64 vcc, s[30:31], v[{pairs[0]}:{pairs[0]+1}]')
    tm = [(20, 21), (22, 23)]
    pend = []
    for i, p in enumerate(pairs[1:]):
        t = tm[i % 2]
        if len(pend) == 2:
            q = pend.pop(0); A(f's_or_b64 vcc, vcc, s[{q[0]}:{q[1]}]')
        A(f'v_cmp_ne_u64 s[{t[0]}:{t[1]}], s[30:31], v[{p}:{p+1}]')
        pend.append(t)
    for q in pend: A(f's_or_b64 vcc, vcc, s[{q[0]}:{q[1]}]')

def spin(body, sleep=0, retry=None, entry=None):
    top = newlabel('spin'); done = newlabel('sdone')
    A(f's_mov_b32 s70, {SPIN}')
    if entry: A(f's_branch {entry}')
    A(f'{top}:')
    body()
    A('s_nop 0')
    A(f's_cbranch_vccz {done}')
    if sleep: A(f's_sleep {sleep}')
    if retry: retry()
    A('s_sub_u32 s70, s70, 1')
    A(f's_cbranch_scc0 {top}')
    if opt['trap']:
        A(f's_lshl_b32 s99, s2, 8\ns_or_b32 s99, s99, s3\ns_lshl_b32 s99, s99, 8\ns_or_b32 s99, s99, {lbl[0] & 255}')
        A(f'v_mov_b32 v166, {4 * (lbl[0] % 64)}\nv_mov_b32 v167, s99')
        A('global_store_dword v166, v167, s[56:57]')
    A(f'{done}:')
def spin2(body, sleep=0, retry=None, local_only=False, entry=None):
    A(f's_mov_b32 s16, s32\ns_mov_b32 s17, s33\ns_mov_b32 s18, {WSN}\ns_mov_b32 s19, 0x20000')
    def rt():
        if retry: retry()
        A('s_and_b32 s99, s70, 7')
        if local_only:
            A('s_cmp_eq_u32 s46, 1')
            A('s_cselect_b32 s99, 1, s99')
            A('s_cmp_lg_u32 s99, 0')
        A('s_cselect_b32 s16, s32, s24')
        A('s_cselect_b32 s17, s33, s25')
    spin(body, sleep, rt, entry)

def freepoll(issue, check, nchk, done):
    top = newlabel('fp')
    A(f's_mov_b32 s70, {SPIN}')
    A(f'{top}:')
    issue()
    for k in range(nchk):
        check()
        A('s_nop 0')
        A(f's_cbranch_vccz {done}')
    A(f"s_waitcnt vmcnt({opt['frb']})")
    A('s_sub_u32 s70, s70, 1')
    A(f's_cbranch_scc0 {top}')
    A(f's_branch {done}')

def lds_wait_ge(off, n, sleep, dst=4, adr=1):
    A(f'v_mov_b32 v{adr}, 0')
    def body():
        A(f'ds_read_b32 v{dst}, v{adr} offset:{off}')
        A('s_waitcnt lgkmcnt(0)')
        A(f'v_cmp_gt_u32 vcc, {n}, v{dst}')
    spin(body, sleep=sleep)
def get_mode(dst=4, adr=1):
    lds_wait_ge(CNT + 8, 1, 2, dst, adr)
    A(f'v_readfirstlane_b32 s46, v{dst}')
def get_role(sleep, dst=4, adr=1):
    lds_wait_ge(ROLE, 1, sleep, dst, adr)
    A(f'v_readfirstlane_b32 s5, v{dst}')
    A('s_bfe_u32 s47, s5, 0x80008')
    A('s_and_b32 s5, s5, 31')

outline = []
def publish(stores):
    def emit(srdn, fl, AA):
        cur = ALL
        for m, line in stores:
            m = ALL if m is None else m
            if m != cur:
                if m == ALL: AA('s_mov_b64 exec, -1')
                else: AA(f's_mov_b32 exec_lo, 0x{m & 0xffffffff:x}\ns_mov_b32 exec_hi, 0x{m >> 32:x}')
                cur = m
            AA(line.replace('@', f's[{srdn}:{srdn+3}]') + fl)
        if cur != ALL: AA('s_mov_b64 exec, -1')
    if not opt['forceslow']: emit(32, '', A)
    slow = newlabel('slow'); back = newlabel('back')
    A('s_cmp_lg_u32 s46, 1')
    A(f's_cbranch_scc1 {slow}')
    A(f'{back}:')
    blk = [f'{slow}:']
    emit(24, ' sc1', lambda t: blk.append(t))
    blk.append('s_nop 1')
    blk.append(f's_branch {back}')
    outline.append('\n'.join(blk))

GST = 3072 * 64
GOFF = [60, 61, 62, 63, 64, 65, 66, 67]
A("""
s_load_dwordx2 s[8:9], s[0:1], 8
s_lshr_b32 s79, s2, 6
s_cmp_gt_u32 s79, 3
s_cbranch_scc1 L_end
v_readfirstlane_b32 s3, v0
s_and_b32 s4, s2, 7
s_lshl2_add_u32 s6, s4, s79
s_bfe_u32 s7, s2, 0x30003
s_lshr_b32 s73, s3, 6
s_cmp_gt_u32 s73, 7
s_cbranch_scc1 L_helper0
s_lshl_b32 s60, s6, 9
s_add_u32 s60, s60, s7
s_addk_i32 s60, 448
s_mulk_i32 s60, 24576
v_lshlrev_b32 v3, 4, v0
v_lshrrev_b32 v2, 3, v0
v_lshl_add_u32 v1, v2, 8, v3
s_lshl_b32 s10, 3, 27
s_mov_b32 s11, 0x20000
s_waitcnt lgkmcnt(0)
""")
for j in range(3): A(f'buffer_load_dwordx4 v[{16+4*j}:{19+4*j}], v1, s[8:11], s60 offen offset:{128*j} nt')
def prologue2():
    A("""
s_load_dwordx16 s[36:51], s[0:1], 0
s_load_dwordx8 s[52:59], s[0:1], 64
""")
    stamp(0)
    if opt['dbg']: A('s_memrealtime s[80:81]')
A("""
s_branch L_stream0
L_helper0:
""")
prologue2()
A(f"""
v_and_b32 v0, 63, v0
s_sub_u32 s3, s73, 8
s_cmp_lg_u32 s3, 3
s_cbranch_scc1 L_helper
s_getpc_b64 s[20:21]
L_pc0:
v_lshlrev_b32 v8, 7, v0
v_add_u32 v9, 8192, v8
v_min_u32 v9, L_codeend-L_pc0-4, v9
global_load_dword v10, v8, s[20:21]
global_load_dword v11, v9, s[20:21]
v_add_u32 v9, 16384, v8
v_min_u32 v9, L_codeend-L_pc0-4, v9
global_load_dword v30, v9, s[20:21]
v_lshlrev_b32 v1, 3, v0
v_mov_b32 v4, 0
v_mov_b32 v5, 0
ds_write_b64 v1, v[4:5] offset:{QF}
s_branch L_helper
L_stream0:
""")
prologue2()
if opt['trace'] or (opt['cal'] and not opt['bis'] & 8): A('s_memrealtime s[20:21]')
A("""
v_and_b32 v0, 63, v0
s_add_u32 s3, s73, 4
v_and_b32 v3, 0x70, v3
s_waitcnt lgkmcnt(0)
""")

QR = 4; KR = 16
def stream(G, D1, D2, Vpre):
    SC = 168 - G
    VR = KR + 12 * G
    nV1 = min((SC - VR) // 12, G)
    ACC = KR + 12 * (G - 2)
    T = ACC
    half = (G + 1) // 2
    st = dict(n=0)
    def vreg(g): return VR + 12 * g if g < nV1 else KR + 12 * (g - nV1)
    CTL = bool(opt['cal'])
    def issue_load(kind, g, j, depth):
        n = st['n']
        ctl = CTL and opt['cfrom'] <= n < opt['cto']
        if ctl:
            go = newlabel('go')
            A('s_waitcnt lgkmcnt(0)\ns_lshl_b32 s75, s76, 4\ns_sub_u32 s75, s75, s78\ns_and_b32 s75, s75, s72\ns_add_u32 s78, s78, s79')
            if opt['lag']:
                A(f"s_waitcnt vmcnt({depth})\ns_cmp_gt_i32 s75, {opt['lag']}\ns_cbranch_scc1 {go}")
            A(f's_waitcnt vmcnt({depth-1})\ns_cmp_ge_i32 s75, 0\ns_cbranch_scc1 {go}\ns_waitcnt vmcnt({depth-2})\n{go}:')
        elif depth and n >= depth: A(f's_waitcnt vmcnt({depth-1})')
        r = (KR + 12 * g + 4 * j) if kind == 'K' else vreg(g) + 4 * j
        s = 8 if kind == 'K' else 12
        if n >= 3: A(f'buffer_load_dwordx4 v[{r}:{r+3}], v1, s[{s}:{s+3}], s{GOFF[g]} offen offset:{128*j} nt')
        if opt['trace'] or (CTL and (opt['cfrom'] - 1 <= n < opt['cto'] - 1 or n == opt['mst'])): A('s_memrealtime s[76:77]')
        if opt['trace'] and n >= 3:
            A(f's_waitcnt lgkmcnt(0)\ns_sub_u32 s75, s76, s20\ns_lshl_b32 s77, s73, 8\nv_mov_b32 v6, s77\nv_mov_b32 v7, s75\nds_write_b32 v6, v7 offset:{TRL + 4*n}')
        if CTL and n == opt['mst'] and not opt['bis'] & 1:
            A(f'''
s_waitcnt lgkmcnt(0)
s_sub_u32 s75, s76, s20
s_add_u32 s75, s75, 0x1000000
v_mov_b32 v6, 0
v_mov_b32 v8, s76
v_mov_b32 v9, s75
s_mov_b64 exec, 1
ds_add_u32 v6, v8 offset:{SUMS}
ds_add_u32 v6, v9 offset:{SUMS+4}
s_mov_b64 exec, -1
''')
        if CTL and n in (opt['cfrom'] - 1, opt['cfrom'] - 1 + opt['pick2']) and not opt['bis'] & 2:
            A(f'''
ds_read_b64 v[6:7], v2 offset:{ORG}
s_waitcnt lgkmcnt(0)
v_readfirstlane_b32 s78, v6
v_readfirstlane_b32 s79, v7
s_mul_i32 s75, s79, {n - opt['mst']}
s_add_u32 s78, s78, s75
s_cmp_lg_u32 s79, 0
s_cselect_b32 s72, -1, 0
''')
        if opt['dbgn'] and n == opt['dbgn']:
            A(f's_memrealtime s[76:77]\ns_waitcnt lgkmcnt(0)\ns_sub_u32 s75, s76, s80\nv_mov_b32 v6, 0\nv_mov_b32 v7, s75\ns_mov_b64 exec, 1\nds_add_u32 v6, v7 offset:{CNT+36}\ns_mov_b64 exec, -1')
        if n == opt['pftrig']:
            A(f'v_mov_b32 v6, 0\nv_mov_b32 v7, 1\ns_mov_b64 exec, 1\nds_add_u32 v6, v7 offset:{CNT+52}\ns_mov_b64 exec, -1')
        st['n'] += 1
    for g in range(G):
        for j in range(3):
            issue_load('K', g, j, D1)
            if j == 2 and g + 1 < G:
                A(f's_add_u32 s{GOFF[g+1]}, s{GOFF[g]}, {GST}')
            if st['n'] == min(D1, 3): A('s_barrier')
            if g == 1 and j == 0:
                wsshift(); A(f's_load_dwordx2 s[28:29], s[58:59], {EP}')
                ws_srds(); srd(12, 40, 402653184)
    stamp(1)
    nv = 0; NV = 3 * G
    for n in range(min(Vpre, 3 * nV1)):
        issue_load('V', nv // 3, nv % 3, D2); nv += 1
    stamp(2)
    mktag()
    A('v_and_b32 v2, 3, v0\nv_min_u32 v2, 2, v2\nv_lshlrev_b32 v2, 3, v2')
    def body():
        A(f'ds_read_b32 v{QR}, v2 offset:{QF}')
        A('s_waitcnt lgkmcnt(0)')
        A(f'v_cmp_eq_u32 vcc, 0, v{QR}')
    spin(body, sleep=1)
    stamp(3)
    A(f'''
ds_read_b128 v[{QR}:{QR+3}], v3 offset:{QL}
ds_read_b128 v[{QR+4}:{QR+7}], v3 offset:{QL+128}
ds_read_b128 v[{QR+8}:{QR+11}], v3 offset:{QL+256}
''')
    for g in range(G): A(f'v_mov_b32 v{SC+g}, 0')
    A(f's_waitcnt vmcnt({nv}) lgkmcnt(0)')
    for gs in (range(half), range(half, G)):
        for i in range(12):
            for g in gs:
                A(f'v_dot2c_f32_bf16 v{SC+g}, v{KR+12*g+i}, v{QR+i}')
    allreduce8('v_add_f32', [SC + g for g in range(G)])
    A(f's_mov_b32 s68, {f32(192 ** -0.5)}')
    A('v_mov_b32 v2, 0')
    for g in range(G): A(f'v_cvt_pk_bf16_f32 v{SC+g}, v2, v{SC+g}')
    for g in range(G): A(f'v_mul_f32 v{SC+g}, s68, v{SC+g}')
    for g in range(G): A(f'v_cvt_pk_bf16_f32 v{SC+g}, v2, v{SC+g}')
    A(f'v_max_f32 v4, v{SC}, v{SC+1}')
    g = 2
    while g < G:
        if g + 1 < G: A(f'v_max3_f32 v4, v4, v{SC+g}, v{SC+g+1}'); g += 2
        else: A(f'v_max_f32 v4, v4, v{SC+g}'); g += 1
    A(f'v_max_f32_dpp v4, v4, v4 row_ror:8 {DPPM}')
    allreduce_rows('v_max_f32', [4], [T])
    A(f's_mov_b32 s68, {f32(LOG2E)}')
    for g in range(G): A(f'v_sub_f32 v{SC+g}, v{SC+g}, v4')
    for g in range(G): A(f'v_mul_f32 v{SC+g}, s68, v{SC+g}')
    for g in range(G): A(f'v_exp_f32 v{SC+g}, v{SC+g}')
    A(f'v_add_f32 v5, v{SC}, v{SC+1}')
    for g in range(2, G): A(f'v_add_f32 v5, v5, v{SC+g}')
    A(f'v_add_f32_dpp v5, v5, v5 row_ror:8 {DPPM}')
    allreduce_rows('v_add_f32', [5], [T])
    A(f'''
s_lshl_b32 s69, s73, 4
v_mov_b32 v{T}, s69
v_mov_b32 v6, 1
v_mov_b32 v7, 1
ds_write_b128 v{T}, v[4:7] offset:{SL}
''')
    stamp(4)
    for g in range(G): A(f'v_cvt_pk_bf16_f32 v{SC+g}, v{SC+g}, v2')
    for i in range(24): A(f'v_mov_b32 v{ACC+i}, 0')
    A('''
v_and_b32 v8, 7, v0
v_lshlrev_b32 v8, 5, v8
v_lshrrev_b32 v9, 4, v0
v_lshl_add_u32 v8, v9, 3, v8
s_mul_i32 s69, s73, 768
v_add_u32 v8, s69, v8
v_mov_b32 v11, 1
''')
    def pv(idx):
        g, j = divmod(idx, 3)
        r = vreg(g) + 4 * j
        if j == 0: A(f'v_lshlrev_b32 v10, 16, v{SC+g}')
        for e in range(4):
            A(f'v_dot2c_f32_bf16 v{ACC+8*j+2*e}, v{r+e}, v{SC+g}')
            A(f'v_dot2c_f32_bf16 v{ACC+8*j+2*e+1}, v{r+e}, v10')
    done_idx = -1; pv_next = 0
    assert nv < NV - opt['ttrig'] <= NV - opt['wtrig']
    while nv < NV:
        issue_load('V', nv // 3, nv % 3, D2)
        done_idx = nv - D2 - (1 if (opt['cal'] and opt['lag']) else 0)
        nv += 1
        if nv == NV - opt['ttrig']:
            A(f's_mov_b64 exec, 1\nds_add_u32 v2, v11 offset:{CNT+16}\ns_mov_b64 exec, -1')
        if nv == NV - opt['wtrig']:
            A(f's_mov_b64 exec, 1\nds_add_u32 v2, v11 offset:{CNT+4}\ns_mov_b64 exec, -1')
        cnt = 0
        while pv_next <= done_idx and cnt < 2:
            pv(pv_next); pv_next += 1; cnt += 1
    def scale_factor():
        def body():
            A(f'ds_read_b128 v[12:15], v3 offset:{SL}')
            A('s_waitcnt lgkmcnt(0)')
            A('v_cmp_eq_u32 vcc, 0, v15')
        spin(body, sleep=1)
        allreduce8('v_max_f32', [12])
        A('v_sub_f32 v9, v4, v12\nv_mul_f32 v9, s68, v9\nv_exp_f32 v9, v9')
        get_mode(dst=13, adr=2)
        A(f'''
v_min_u32 v12, 47, v0
v_lshlrev_b32 v13, 7, v12
v_lshlrev_b32 v12, 4, v12
s_mul_i32 s74, s6, 6144
s_lshl4_add_u32 s74, s7, s74
s_add_u32 s74, s74, {OP}
s_mov_b32 s22, 0xaaaaaaaa
s_mov_b32 s23, 0xaaaaaaaa
v_mov_b32 v14, s30
v_mov_b32 v15, s31
''')
    def reduce_j(js):
        for j in js:
            for e in range(4): A(f'{S32} v{ACC+8*j+e}, v{ACC+8*j+e+4}')
        for j in js:
            for e in range(4): A(f'v_add_f32 v{ACC+8*j+e}, v{ACC+8*j+e}, v{ACC+8*j+e+4}')
        for j in js:
            for e in range(2): A(f'{S16} v{ACC+8*j+e}, v{ACC+8*j+e+2}')
        for j in js:
            for e in range(2): A(f'v_add_f32 v{ACC+8*j+e}, v{ACC+8*j+e}, v{ACC+8*j+e+2}')
        for j in js:
            for e in range(2): A(f'v_add_f32_dpp v{ACC+8*j+e}, v{ACC+8*j+e}, v{ACC+8*j+e} row_ror:8 {DPPM}')
        for j in js:
            for e in range(2): A(f'v_mul_f32 v{ACC+8*j+e}, v9, v{ACC+8*j+e}')
            A(f'ds_write_b64 v8, v[{ACC+8*j}:{ACC+8*j+1}] offset:{OL+256*j}')
    fd = False
    while pv_next < NV:
        if pv_next >= NV - 3 and not fd:
            scale_factor(); fd = True
        if pv_next > done_idx:
            A(f's_waitcnt vmcnt({NV - 1 - pv_next})')
            done_idx = pv_next
        pv(pv_next); pv_next += 1
        if pv_next > NV - 3: reduce_j([(pv_next - 1) % 3])
    stamp(5)

stream(8, D1, D2, opt['Vpre'])
A(f'''
s_mov_b64 exec, 1
ds_add_rtn_u32 v10, v2, v11 offset:{CNT}
s_mov_b64 exec, -1
''')
for w in range(8): A(f'ds_read_b128 v[{16+4*w}:{19+4*w}], v12 offset:{OL+768*w}')
A('''
s_waitcnt lgkmcnt(8)
v_readfirstlane_b32 s68, v10
s_cmp_lg_u32 s68, 7
s_cbranch_scc1 L_nopub
''')
def pkadd(d, a, b):
    for e in (0, 2): A(f'v_pk_add_f32 v[{d+e}:{d+e+1}], v[{a+e}:{a+e+1}], v[{b+e}:{b+e+1}]')
for w in range(0, 8, 2):
    A(f's_waitcnt lgkmcnt({6-w})')
    pkadd(16 + 4*w, 16 + 4*w, 20 + 4*w)
    if w == 2 or w == 6: pkadd(8 + 4*w, 8 + 4*w, 16 + 4*w)
pkadd(4, 16, 32)
A('''
v_cvt_pk_bf16_f32 v8, v4, v5
v_cvt_pk_bf16_f32 v9, v6, v7
v_cndmask_b32 v4, v8, v14, s[22:23]
v_cndmask_b32 v5, v9, v15, s[22:23]
v_cndmask_b32 v6, v14, v8, s[22:23]
v_cndmask_b32 v7, v15, v9, s[22:23]
''')
publish([((1 << 48) - 1, 'buffer_store_dwordx4 v[4:7], v13, @, s74 offen')])
A(f'ds_write_b32 v2, v11 offset:{CNT+28}')
if opt['wopause']: A(f'v_mov_b32 v10, 64\nds_write_b32 v2, v10 offset:{CNT}')
if opt['gdone']:
    A(f'''
s_lshl_b32 s68, s4, 9
s_lshr_b32 s69, s2, 3
s_lshl4_add_u32 s68, s69, s68
s_add_u32 s68, s68, {DN}
s_mov_b64 exec, 1
buffer_store_dwordx4 v[4:7], v12, s[32:35], s68 offen
s_mov_b64 exec, -1
''')
if STAMPS:
    A('s_memrealtime s[96:97]')
    if opt['puback']: A('s_waitcnt vmcnt(0)\ns_memrealtime s[94:95]')
    get_role(1, dst=16, adr=17)
    stamp_val(16, 96, 97)
    if opt['puback']:
        A('s_cmp_lt_u32 s5, 20\ns_cbranch_scc1 L_pa1')
        stamp_val(5, 94, 95)
        A('s_branch L_pa2\nL_pa1:')
        stamp_val(18, 94, 95)
        A('L_pa2:')
A('L_nopub:')
A('s_waitcnt lgkmcnt(0)')
if opt['trace']:
    A(f'''
s_lshl_b32 s68, s73, 8
v_lshl_add_u32 v16, v0, 2, s68
ds_read_b32 v17, v16 offset:{TRL}
s_lshl_b32 s68, s2, 11
s_add_u32 s68, s68, {0x380000}
s_waitcnt lgkmcnt(0)
buffer_store_dword v17, v16, s[24:27], s68 offen
s_nop 2
''')
stamp(6)
get_role(1, dst=16, adr=17)
A('''
s_cmp_lt_u32 s5, 20
s_cbranch_scc1 L_notf1
s_cmp_lt_u32 s3, 9
s_cbranch_scc1 L_f1
s_branch L_stream_exit
L_notf1:
s_cmp_gt_u32 s5, 11
s_cbranch_scc1 L_stream_exit
s_cmp_gt_u32 s3, 6
s_cbranch_scc1 L_f2
s_endpgm
L_stream_exit:
''')
if STAMPS:
    A(f"s_cmp_eq_u32 s3, {opt['swave']}")
    A('s_cbranch_scc0 L_end')
    stamp(7)
    write_stamps(8)
A('s_endpgm')

A('L_helper:')
A('s_setprio 3')
A('s_cmp_eq_u32 s3, 3')
A('s_cbranch_scc1 L_ids')
NA = opt['QA_']; NB = (80 - 5 * NA) // 3; assert 5 * NA + 3 * NB == 80 and NA <= NB <= 20
NE = opt['NE']; NL = 4 * NE // 3; assert NE % 3 == 0
DQ = min(opt['DQ'], NB, NA + NL); assert DQ >= NA
A(f'''
v_lshlrev_b32 v1, 2, v0
v_lshrrev_b32 v2, 3, v0
s_mul_i32 s68, s7, {8*NA}
s_mul_i32 s69, s7, {8*NB}
s_sub_u32 s69, s69, {40*(NB-NA)}
s_cmp_lt_u32 s7, 5
s_cselect_b32 s68, s68, s69
v_add_u32 v3, s68, v2
v_lshlrev_b32 v3, 1, v3
v_mul_u32_u24 v21, 1280, v2
v_mul_u32_u24 v2, 12288, v2
v_and_b32 v7, 7, v0
v_lshl_add_u32 v2, v7, 4, v2
v_lshl_add_u32 v21, v7, 4, v21
s_mul_i32 s68, s68, 12288
s_mul_i32 s69, s6, 384
s_add_u32 s68, s68, s69
s_lshl_b32 s69, s3, 7
s_add_u32 s68, s68, s69
s_mul_i32 s5, s79, 5
s_add_u32 s5, s5, s7
s_cmp_ge_u32 s5, 10
s_cselect_b32 s76, 1, 0
s_mul_i32 s77, s76, 10
s_sub_u32 s77, s5, s77
s_lshl1_add_u32 s60, s4, s76
s_mul_i32 s60, s60, {384*1280}
s_lshl_b32 s69, s77, 7
s_add_u32 s60, s60, s69
s_mul_i32 s61, s3, {NL}
''')
XS = 8; XP = 24; XR = 104; XU = 124; WQ = 24; QA = 144; XT = 152
XP = 156
A('s_waitcnt lgkmcnt(0)')
if not opt['hb']: A('s_barrier')
srd(8, 42, 640 * 6144 * 2); srd(12, 44, 6144 * 640 * 2)
for i in range(5): A(f'global_load_dword v{XS+i}, v1, s[36:37] offset:{256*i}')
for r in range(NB): A(f'global_load_ushort v{XR+r}, v3, s[36:37] offset:{16*r}')
def wq_load(r):
    A(f'buffer_load_dwordx4 v[{WQ+4*r}:{WQ+4*r+3}], v2, s[8:11], s68 offen nt')
    A('s_add_u32 s68, s68, 98304')
def wo_load(r):
    A(f's_mul_i32 s62, s61, {(65536 + NE - 1) // NE}\ns_lshr_b32 s62, s62, 16\ns_mul_i32 s62, s62, {12 - NE}\ns_add_u32 s62, s62, s61')
    A(f's_lshl_b32 s63, s62, 10\ns_add_u32 m0, s63, {WL}\ns_mul_i32 s62, s62, {8*1280}\ns_add_u32 s62, s62, s60')
    A('buffer_load_dwordx4 v21, s[12:15], s62 offen nt lds')
    A('s_add_u32 s61, s61, 1')
for r in range(NA): wq_load(r)
if DQ > NA:
    A('s_cmp_lt_u32 s7, 5\ns_cbranch_scc1 L_q1wo')
    for r in range(NA, DQ): wq_load(r)
    A('s_branch L_q1j\nL_q1wo:')
    for r in range(NA, DQ): wo_load(r)
    A('L_q1j:')
wsshift(); A(f's_load_dwordx2 s[28:29], s[58:59], {EP}')
if opt['hb']: A('s_barrier')
A('s_mov_b32 s69, 0xffff0000')
ws_srds()
mktag()
A(f's_waitcnt vmcnt({DQ + NB})')
for i in range(5):
    A(f'v_lshlrev_b32 v{XU+2*i}, 16, v{XS+i}')
    A(f'v_and_b32 v{XU+1+2*i}, s69, v{XS+i}')
A(f'''
v_add_f32 v4, v{XU}, v{XU+1}
v_add_f32 v5, v{XU+2}, v{XU+3}
v_add_f32 v6, v{XU+4}, v{XU+5}
v_add_f32 v7, v{XU+6}, v{XU+7}
v_add_f32 v4, v4, v5
v_add_f32 v6, v6, v7
v_add_f32 v5, v{XU+8}, v{XU+9}
v_add_f32 v4, v4, v6
v_add_f32 v4, v4, v5
''')
allreduce64('v_add_f32', [4], [5])
A(f'v_mul_f32 v4, {f32(1.0/640)}, v4')
for i in range(10): A(f'v_sub_f32 v{XU+i}, v{XU+i}, v4')
A(f'v_mul_f32 v5, v{XU}, v{XU}')
for i in range(1, 10): A(f'v_fmac_f32 v5, v{XU+i}, v{XU+i}')
allreduce64('v_add_f32', [5], [6])
A(f'v_mul_f32 v5, {f32(1.0/640)}, v5')
bf16r(4, 4); bf16r(5, 5)
A(f'v_add_f32 v5, {f32(1e-5)}, v5')
bf16r(5, 5)
A('v_sqrt_f32 v5, v5')
bf16r(5, 5)
A('v_rcp_f32 v5, v5')
A('v_mov_b32 v6, 0')
for e in range(8): A(f'v_mov_b32 v{QA+e}, 0')
A(f'''
v_and_b32 v{XT}, 7, v0
v_lshrrev_b32 v7, 4, v0
v_lshl_add_u32 v{XT}, v{XT}, 2, v7
v_lshlrev_b32 v{XT}, 4, v{XT}
s_lshl_b32 s64, s71, 11
s_lshl_b32 s65, s3, 9
s_add_u32 s64, s64, s65
''')
A(f's_waitcnt vmcnt({DQ})')
def xnorm(rs):
    for r in rs:
        A(f'v_lshlrev_b32 v{XR+r}, 16, v{XR+r}')
    for r in rs: A(f'v_sub_f32 v{XR+r}, v{XR+r}, v4')
    for r in rs: A(f'v_cvt_pk_bf16_f32 v{XR+r}, v6, v{XR+r}')
    for r in rs: A(f'v_mul_f32 v{XR+r}, v{XR+r}, v5')
    for r in rs:
        A(f'v_cvt_pk_bf16_f32 v{XU+r}, v6, v{XR+r}')
        A(f'v_cvt_pk_bf16_f32 v{XR+r}, v{XR+r}, v6')
def qdot(r):
    for e in range(4):
        A(f'v_dot2c_f32_bf16 v{QA+2*e}, v{WQ+4*r+e}, v{XR+r}')
        A(f'v_dot2c_f32_bf16 v{QA+2*e+1}, v{WQ+4*r+e}, v{XU+r}')
xnorm(range(NA))
A('s_cmp_lt_u32 s7, 5\ns_cbranch_scc1 L_q2wo')
xnorm(range(NA, NB))
for r in range(NB):
    A(f's_waitcnt vmcnt({min(DQ - 1, NB - 1 - r)})')
    if r + DQ < NB: wq_load(r + DQ)
    qdot(r)
A('s_branch L_q2j\nL_q2wo:')
NW = NA + NL
for r in range(max(NA, NW - DQ)):
    A(f's_waitcnt vmcnt({min(DQ - 1, NW - 1 - r)})')
    if r + DQ < NW: wo_load(r + DQ)
    if r < NA: qdot(r)
A('L_q2j:\ns_nop 2')
A('s_lshl_b32 s69, s3, 9')
if STAMPS: A('s_lshr_b32 s82, s2, 3\ns_add_u32 s82, s80, s82\ns_addc_u32 s83, s81, 0')
for e in range(4): A(f'{S32} v{QA+e}, v{QA+e+4}')
for e in range(4): A(f'v_add_f32 v{QA+e}, v{QA+e}, v{QA+e+4}')
for e in range(2): A(f'{S16} v{QA+e}, v{QA+e+2}')
for e in range(2): A(f'v_add_f32 v{QA+e}, v{QA+e}, v{QA+e+2}')
for e in range(2): A(f'v_add_f32_dpp v{QA+e}, v{QA+e}, v{QA+e} row_ror:8 {DPPM}')
A(f'v_mov_b32 v{QA+2}, s30\nv_mov_b32 v{QA+3}, s31')
QM = 0x00ff00ff00ff00ff
if not opt['forceslow'] and not opt['qabl'] & 1:
    setexec(QM)
    A(f'buffer_store_dwordx4 v[{QA}:{QA+3}], v{XT}, s[32:35], s64 offen offset:{QP}')
    setexec(ALL)
A('''
v_and_b32 v3, 31, v0
v_lshrrev_b32 v2, 5, v0
v_lshlrev_b32 v2, 11, v2
v_lshl_add_u32 v2, v3, 4, v2
s_lshl_b32 s68, s6, 14
s_add_u32 s60, s68, s69
s_add_u32 s61, s60, 4096
s_add_u32 s62, s60, 8192
s_add_u32 s63, s60, 12288
v_lshlrev_b32 v3, 2, v3
s_lshl_b32 s69, s3, 7
v_add_u32 v3, s69, v3
v_mov_b32 v1, 0
s_mov_b32 s65, 0
''')
def q_lazy():
    skip = newlabel('qlazy')
    A(f'''
ds_read_b32 v4, v1 offset:{CNT+8}
s_waitcnt lgkmcnt(0)
v_readfirstlane_b32 s46, v4
s_sub_u32 s68, s46, s65
s_cmp_lg_u32 s68, 2
s_cbranch_scc1 {skip}
''')
    setexec(QM)
    A(f'buffer_store_dwordx4 v[{QA}:{QA+3}], v{XT}, s[24:27], s64 offen offset:{QP} sc1')
    setexec(ALL)
    A(f's_mov_b32 s65, 1\n{skip}:')
def body():
    for n in range(4):
        A(f'buffer_load_dwordx4 v[{8+4*n}:{11+4*n}], v2, s[16:19], s{60+n} offen offset:{QP} sc1' + (' nt' if opt['qnt'] else ''))
    A('s_waitcnt vmcnt(0)')
    tagcheck([10, 14, 18, 22])
if opt['qdelay']: A(f"s_sleep {opt['qdelay']}")
if not opt['qabl']: spin2(body, sleep=opt['sleep'], retry=q_lazy)
else: A('\n'.join(f'v_mov_b32 v{r}, 0' for r in range(8, 24)))
stamp(2)
A(f'''
v_add_f32 v8, v8, v12
v_add_f32 v9, v9, v13
v_add_f32 v16, v16, v20
v_add_f32 v17, v17, v21
v_add_f32 v8, v8, v16
v_add_f32 v9, v9, v17
''')
swapreduce(S32, 'v_add_f32', [8, 9], [10, 11])
A(f'''
v_cvt_pk_bf16_f32 v8, v8, v9
ds_write_b32 v3, v8 offset:{QL}
s_lshl_b32 s69, s3, 3
v_mov_b32 v4, s69
v_mov_b32 v6, 1
s_waitcnt lgkmcnt(0)
ds_write_b32 v4, v6 offset:{QF}
''')
get_mode()
q_lazy()
if opt['tlb']:
    A(f'''
s_cmp_lg_u32 s3, 1
s_cbranch_scc1 L_stats
s_mov_b64 exec, 1
s_mul_i32 s68, s4, {768*1280}
v_mov_b32 v8, s68
v_add_u32 v9, {768*1280-4}, v8
global_load_dword v16, v8, s[44:45]
global_load_dword v17, v9, s[44:45]
global_load_dword v18, v1, s[48:49]
global_load_dword v19, v1, s[50:51]
global_load_dword v20, v1, s[52:53]
global_load_dword v21, v1, s[54:55]
s_mov_b32 s68, {EP}
buffer_load_dword v22, v1, s[24:27], s68 offen
s_mov_b32 s68, {WSN - 128}
buffer_load_dword v23, v1, s[32:35], s68 offen
s_mov_b64 exec, -1
s_waitcnt vmcnt(0)
''')
A('s_branch L_stats')
A('L_ids:')
A(f'''
s_waitcnt lgkmcnt(0)
s_memrealtime s[62:63]
s_barrier
s_getreg_b32 s64, hwreg(HW_REG_XCC_ID)
''')
wsshift(); A(f's_load_dwordx2 s[28:29], s[58:59], {EP}')
ws_srds()
mktag()
A(f'''
s_and_b32 s64, s64, 15
v_mov_b32 v4, s30
v_mov_b32 v5, s31
v_mov_b32 v6, s64
v_mov_b32 v7, s64
s_lshl_b32 s68, s4, 9
s_add_u32 s68, s68, {ID}
s_lshr_b32 s65, s2, 3
s_lshl_b32 s69, s65, 4
v_mov_b32 v1, s69
s_mov_b64 exec, 1
buffer_store_dwordx4 v[4:7], v1, s[32:35], s68 offen
s_mov_b64 exec, -1
s_mul_i32 s66, s4, 2304
s_add_u32 s66, s66, {TK}
''')
A(f'''
s_cmp_lg_u32 s65, {opt['lead']}
s_cbranch_scc1 L_noinit
v_mov_b32 v13, s30
''')
A('s_mov_b64 exec, -1')
if opt['pref'] == 2 and opt['prew']:
    A(f'''
v_lshlrev_b32 v12, 8, v0
s_lshl_b32 s69, s4, 15
s_add_u32 s69, s69, {PB}
''')
    if opt['pbfew']:
        m = sum(1 << (k * 9 & 31) for k in range(opt['shots']))
        setexec(m | m << 32)
    A('buffer_store_dword v13, v12, s[24:27], s69 offen sc1\ns_mov_b64 exec, -1')
    if opt['calpre']:
        A(f'''
s_cmp_lg_u32 s4, 0
s_cbranch_scc1 L_noinit
v_not_b32 v16, s31
v_not_b32 v17, s31
v_not_b32 v18, s31
v_not_b32 v19, s31
v_lshrrev_b32 v12, 4, v0
v_lshlrev_b32 v12, 9, v12
v_and_b32 v14, 15, v0
v_lshl_add_u32 v12, v14, 4, v12
s_mov_b32 s69, {CAL}
buffer_store_dwordx4 v[16:19], v12, s[24:27], s69 offen sc1
''')
A(f'''
L_noinit:
v_and_b32 v1, 31, v0
v_lshlrev_b32 v1, 4, v1
s_mov_b32 s70, {opt['idtries']}
s_mov_b32 s46, 2
L_idpoll:
s_sleep {opt['idsleep']}
buffer_load_dwordx4 v[8:11], v1, s[32:35], s68 offen sc1
s_waitcnt vmcnt(0)
v_cmp_ne_u64 vcc, s[30:31], v[8:9]
s_nop 0
s_cbranch_vccz L_iddone
s_sub_u32 s70, s70, 1
s_cbranch_scc0 L_idpoll
s_branch L_idset
L_iddone:
v_cmp_ne_u32 vcc, s64, v10
s_nop 0
s_cbranch_vccnz L_idset
s_mov_b32 s46, {2 if opt['forceslow'] else 1}
L_idset:
v_mov_b32 v1, 0
v_mov_b32 v4, s46
ds_write_b32 v1, v4 offset:{CNT+8}
''')
stamp(2)
A(f"s_cmp_lg_u32 s65, {opt['lead']}\ns_cbranch_scc1 L_pf")
if opt['pref'] == 2:
    A(f'''
s_lshl_b32 s69, s4, 15
s_add_u32 s69, s69, {PB}
s_add_u32 s22, s58, s69
s_addc_u32 s23, s59, 0
s_not_b32 s20, s30
s_mov_b32 s21, 0
s_waitcnt lgkmcnt(0)
''')
    A('s_mov_b32 s8, -1\ns_mov_b32 s9, -1\ns_memtime s[12:13]')
    if opt['diagp']: A('v_mov_b32 v20, 0')
    for k in range(2 * opt['shots']):
        c = (k ^ (k >> 1)) & 1
        i = (k >> 1) * 9 & 31
        a, b = (12, 14) if k % 2 == 0 else (14, 12)
        A('s_waitcnt lgkmcnt(0)')
        A(f's_load_dword s10, s[22:23], {c * 8192 + i * 256}')
        A('s_waitcnt lgkmcnt(0)')
        A(f's_memtime s[{b}:{b+1}]')
        A('s_waitcnt lgkmcnt(0)')
        A(f's_sub_u32 s11, s{b}, s{a}')
        A(f's_min_u32 s{8+c}, s{8+c}, s11')
        if opt['diagp']: A(f'v_writelane_b32 v20, s11, {c * 16 + (k >> 1)}')
    if opt['diagp']:
        A(f'v_writelane_b32 v20, s64, 63\nv_lshlrev_b32 v6, 2, v0\ns_lshl_b32 s69, s4, 8\ns_add_u32 s69, s69, {SP + 0x10000}\nbuffer_store_dword v20, v6, s[24:27], s69 offen')
    A('s_sub_u32 s21, s8, s9')
    A('s_cmp_gt_i32 s21, 0\ns_cselect_b32 s21, 1, 0')
else:
    A(f"s_lshr_b32 s21, s64, 2\ns_xor_b32 s21, s21, {opt['pref']}\ns_and_b32 s21, s21, 1")
A(f'''
v_mov_b32 v4, s21
v_mov_b32 v5, s62
v_mov_b32 v6, s30
v_mov_b32 v7, s31
s_lshl_b32 s69, s4, 4
s_add_u32 s69, s69, {PF}
s_mov_b64 exec, 1
buffer_store_dwordx4 v[4:7], v1, s[24:27], s69 offen sc1
s_mov_b64 exec, -1
''')

A('L_pf:')
if opt['cal'] and not opt['bis'] & 1:
    A('s_and_b32 s63, s31, 0xffff0000')
    if opt['sampf1']: A('s_cmp_lg_u32 s7, 6\ns_cbranch_scc1 L_nosample')
    else: A('s_mul_i32 s68, s79, 3\ns_add_u32 s68, s68, s4\ns_and_b32 s68, s68, 7\ns_cmp_lg_u32 s68, s7\ns_cbranch_scc1 L_nosample')
    A('v_mov_b32 v1, 0')
    def body():
        A(f'ds_read_b64 v[4:5], v1 offset:{SUMS}')
        A('s_waitcnt lgkmcnt(0)')
        A('v_cmp_gt_u32 vcc, 0x8000000, v5')
    spin(body, sleep=2)
    A(f'''
v_and_b32 v5, 0xffffff, v5
v_min_u32 v5, 0xffff, v5
v_or_b32 v5, s63, v5
v_lshlrev_b32 v6, 9, v0
s_lshl_b32 s68, s6, 3
s_add_u32 s68, s68, {CAL}
s_mov_b64 exec, {(2 << opt['caltries']) - 1}
{'' if opt['nostore'] else 'buffer_store_dwordx2 v[4:5], v6, s[24:27], s68 offen sc1'}
s_mov_b64 exec, -1
L_nosample:
''')
lds_wait_ge(CNT + 52, 8, 4, dst=12)
if opt['cal']:
    al = opt['tau0'] * opt['gam'] / 100 / (opt['D0'] - 40)
    A(f'''
{'s_branch L_calno' if opt['bis'] & 4 else ''}
s_setprio {opt['calprio']}
s_add_u32 s60, s58, {CAL}
s_addc_u32 s61, s59, 0
s_mov_b32 s70, {opt['caltries']}
L_calpoll:
s_lshl_b32 s96, s62, 8
s_sub_u32 s96, 0, s96
s_mov_b32 s97, 0
s_mov_b32 s98, 0
''')
    for h in range(2):
        A(f's_load_dwordx16 s[8:23], s[60:61], {128*h}\ns_load_dwordx16 s[80:95], s[60:61], {128*h+64}\ns_waitcnt lgkmcnt(0)')
        for b in (8, 80):
            for i in range(8):
                A(f's_add_u32 s96, s96, s{b+2*i}\ns_xor_b32 s{b+2*i+1}, s{b+2*i+1}, s63\ns_add_u32 s97, s97, s{b+2*i+1}\ns_or_b32 s98, s98, s{b+2*i+1}')
    A(f'''
s_cmp_lt_u32 s98, 0x10000
s_cbranch_scc1 L_calok
s_add_u32 s60, s60, 512
s_addc_u32 s61, s61, 0
s_sub_u32 s70, s70, 1
s_cbranch_scc1 L_calno
s_sleep {opt['calsleep']}
s_branch L_calpoll
L_calok:
v_cvt_f32_u32 v13, s97
s_ashr_i32 s96, s96, 4
s_cmp_lt_u32 s7, 5
s_mov_b32 s68, {16 * opt['dB']}
s_cselect_b32 s68, {16 * opt['dA']}, s68
s_lshl4_add_u32 s68, s62, s68
s_add_u32 s68, s68, s96
v_mov_b32 v12, s68
v_mul_f32 v13, {f32(al / 256)}, v13
v_add_f32 v13, {f32(opt['tau0'] - al * opt['D0'])}, v13
v_cvt_u32_f32 v13, v13
ds_write_b64 v1, v[12:13] offset:{ORG}
L_calno:
s_setprio 3
''')

A('L_stats:')
A('v_and_b32 v1, 7, v0\nv_lshlrev_b32 v1, 4, v1')
def body():
    A(f'ds_read_b128 v[4:7], v1 offset:{SL}')
    A('s_waitcnt lgkmcnt(0)')
    A('v_cmp_eq_u32 vcc, 0, v7')
spin(body, sleep=4)
A('s_cmp_lg_u32 s3, 3')
A('s_cbranch_scc1 L_nostat')
def combine_stats():
    A(f's_mov_b32 s68, {f32(LOG2E)}')
    A('v_mov_b32 v2, v4')
    allreduce8('v_max_f32', [2])
    A('v_sub_f32 v4, v4, v2\nv_mul_f32 v4, s68, v4\nv_exp_f32 v4, v4\nv_mul_f32 v3, v4, v5')
    allreduce8('v_add_f32', [3])
combine_stats()
A(f'''
s_lshl_b32 s68, s71, 4
s_add_u32 s68, s68, {ST}
v_mov_b32 v4, s30
v_mov_b32 v5, s31
''')
publish([(1, 'buffer_store_dwordx4 v[2:5], v1, @, s68 offen')])
A(f's_mov_b32 s68, {PF}')
def body():
    A('buffer_load_dwordx4 v[8:11], v1, s[24:27], s68 offen sc1')
    A('s_waitcnt vmcnt(0)')
    tagcheck([10])
spin(body, sleep=8)
A('''
v_cmp_ne_u32 vcc, 0, v8
s_nop 0
s_and_b32 s67, vcc_lo, 0xff
s_lshl_b32 s67, s67, 8
s_bitset1_b32 s67, 16
''')
if opt['dbg'] and not opt['dbgn']:
    A('v_subrev_u32 v9, s62, v9')
    allreduce8('v_min_i32', [9])
    A(f'v_add_u32 v9, s62, v9\nv_mov_b32 v10, 0\nds_write_b32 v10, v9 offset:{CNT+36}')
if opt['dyn']:
    lds_wait_ge(CNT + 16, opt['tcnt'], 2)
    stamp(3)
    A('s_mov_b64 exec, 1')
    def body():
        A('v_mov_b32 v8, 1\nv_mov_b32 v9, 0')
        A('buffer_atomic_add_x2 v[8:9], v1, s[24:27], s66 offen sc0 sc1')
        A('s_waitcnt vmcnt(0)')
        A('v_cmp_ne_u32 vcc, s30, v9')
    spin(body, sleep=8)
    A('v_and_b32 v8, 31, v8\nv_or_b32 v8, s67, v8')
else:
    A('''
s_mul_i32 s5, s79, 5
s_add_u32 s5, s5, s7
s_mul_i32 s72, s79, 3
s_add_u32 s72, s72, s7
s_add_u32 s72, s72, 15
s_cmp_lt_u32 s7, 5
s_cselect_b32 s5, s5, s72
s_or_b32 s5, s5, s67
v_mov_b32 v8, s5
v_mov_b32 v1, 0
s_mov_b64 exec, 1
''')
A(f'ds_write_b32 v1, v8 offset:{ROLE}\ns_mov_b64 exec, -1')
A('L_nostat:')
BW = 64
CF = 56
XM = 52
CFSRC = '# wave 0: stats of the group\'s 4 heads x 8 splits -> c = exp(m-M)/L per lane (lane = 8*head + split) -> LDS\nA(f\'\'\'\ns_cmp_lg_u32 s3, 0\ns_cbranch_scc1 L_noc\ns_lshl_b32 s72, s4, 9\ns_add_u32 s72, s72, {ST}\nv_and_b32 v1, 31, v0\nv_lshlrev_b32 v1, 4, v1\n\'\'\')\ndef body():\n    A(f"s_sleep {opt[\'stsleep\']}")\n    A(\'buffer_load_dwordx4 v[4:7], v1, s[16:19], s72 offen sc1\')\n    A(\'s_waitcnt vmcnt(0)\')\n    tagcheck([6])\nspin2(body, local_only=True)\nstamp(4)\ncombine_stats()\nA(f\'\'\'\nv_rcp_f32 v3, v3\nv_lshrrev_b32 v1, 2, v1\nv_mul_f32 v4, v4, v3\nv_mov_b32 v2, 0\nv_mov_b32 v3, 1\nds_write_b32 v1, v4 offset:{CL}\nds_write_b32 v2, v3 offset:{CNT+24}\nL_noc:\n\'\'\')\n'
get_role(4)
A('''
s_cmp_lt_u32 s5, 20
s_cbranch_scc0 L_helper_exit
''')
def tr_addr(dst, tmp):
    A(f'''
v_lshrrev_b32 v{dst}, 4, v0
v_lshlrev_b32 v{dst}, 10, v{dst}
v_bfe_u32 v{tmp}, v0, 2, 2
v_lshl_add_u32 v{dst}, v{tmp}, 7, v{dst}
v_and_b32 v{tmp}, 3, v0
v_lshl_add_u32 v{dst}, v{tmp}, 3, v{dst}
''')
A(f'''
s_cmp_ge_u32 s5, 10
s_cselect_b32 s76, 1, 0
s_mul_i32 s77, s76, 10
s_sub_u32 s77, s5, s77
s_lshr_b32 s68, s3, 1
s_lshl1_add_u32 s78, s76, s68
v_bfe_u32 v2, v0, 4, 1
v_lshlrev_b32 v2, 4, v2
s_lshl_b32 s68, s78, 5
v_add_u32 v22, s68, v2
''')
A(f'''
v_lshlrev_b32 v60, 4, v0
s_lshl2_add_u32 s73, s4, s78
s_mul_i32 s73, s73, 6144
s_and_b32 s68, s3, 1
s_mul_i32 s68, s68, 3072
s_add_u32 s73, s73, s68
s_add_u32 s73, s73, {OP}
v_lshlrev_b32 v62, 2, v0
s_lshl_b32 s68, s3, 8
v_add_u32 v61, s68, v62
v_lshrrev_b32 v2, 5, v0
v_lshlrev_b32 v2, 11, v2
v_bfe_u32 v3, v0, 2, 3
v_lshl_add_u32 v2, v3, 4, v2
v_and_b32 v3, 1, v0
v_lshl_add_u32 v63, v3, 13, v2
s_lshr_b32 s75, s77, 1
s_lshl_b32 s75, s75, 14
s_and_b32 s68, s77, 1
s_lshl_b32 s68, s68, 12
s_add_u32 s75, s75, s68
s_lshl1_add_u32 s68, s4, s76
s_lshl_b32 s68, s68, 7
s_add_u32 s75, s75, s68
s_add_u32 s75, s75, {YP}
s_mov_b32 s66, 0xff00ff00
s_mov_b32 s67, 0xff00ff00
s_mov_b32 s8, 0x33333333
s_mov_b32 s9, 0x33333333
v_mov_b32 v6, s30
v_mov_b32 v7, s31
v_cndmask_b32 v{XM}, 0, v6, s[66:67]
v_cndmask_b32 v{XM+1}, 0, v7, s[66:67]
v_cndmask_b32 v{XM+2}, v6, 0, s[66:67]
v_cndmask_b32 v{XM+3}, v7, 0, s[66:67]
v_mov_b32 v50, s30
v_mov_b32 v51, s31
''')
tr_addr(24, 25)
A('s_mul_i32 s69, s3, 12288\nv_add_u32 v24, s69, v24')
exec(CFSRC)
lds_wait_ge(CNT + 24, 1, 2)
A(f'ds_read_b128 v[{CF}:{CF+3}], v22 offset:{CL}')
def wo_tr(ts):
    for t in ts:
        for u in range(4):
            r = BW + 4 * (4 * t + u)
            A(f'ds_read_b64_tr_b16 v[{r}:{r+1}], v24 offset:{WL + 4096*t + 32*u}')
            A(f'ds_read_b64_tr_b16 v[{r+2}:{r+3}], v24 offset:{WL + 4096*t + 32*u + 512}')
AO = 8
def op_loads(srdn, first=False):
    stamp(2)
    for t in range(3):
        A(f'buffer_load_dwordx4 v[{AO+4*t}:{AO+4*t+3}], v60, s[{srdn}:{srdn+3}], s73 offen offset:{1024*t} sc1' + (' nt' if opt['ont'] or (first and opt['o1nt']) else ''))
A('v_mov_b32 v23, 1\ns_lshl_b32 s68, s3, 2\nv_mov_b32 v25, s68')
tdone = NE // 4
wo_tr(range(tdone))
if NE < 12:
    srd(12, 44, 6144 * 640 * 2)
    A(f'''
v_lshrrev_b32 v21, 3, v0
v_mul_u32_u24 v21, 1280, v21
v_and_b32 v3, 7, v0
v_lshl_add_u32 v21, v3, 4, v21
s_lshl1_add_u32 s60, s4, s76
s_lshl2_add_u32 s60, s60, s3
s_mul_i32 s60, s60, {96*1280}
s_lshl_b32 s69, s77, 7
s_add_u32 s60, s60, s69
s_add_u32 s60, s60, {NE*8*1280}
s_mul_i32 s61, s3, 12288
s_add_u32 s61, s61, {WL + 1024*NE}
''')
    lds_wait_ge(CNT + 4, 8, 2)
    stamp(3)
    for n in range(12 - NE):
        if n >= opt['DWF']: A(f"s_waitcnt vmcnt({opt['DWF']-1})")
        A('s_mov_b32 m0, s61')
        A('buffer_load_dwordx4 v21, s[12:15], s60 offen nt lds')
        A(f's_add_u32 s60, s60, {8*1280}\ns_add_u32 s61, s61, 1024')
    if opt['opre2']: op_loads(32, True)
    x = 3 if opt['opre2'] else 0
    if tdone < 2:
        A(f's_waitcnt vmcnt({4 + x})')
        wo_tr(range(tdone, 2))
    lds_wait_ge(CNT + 28, 1, 1)
    A('s_waitcnt vmcnt(0)')
    op_loads(32)
    wo_tr([2])
    A('s_waitcnt lgkmcnt(0)')
else:
    if opt['opre2']:
        lds_wait_ge(CNT + 4, 8, 2)
        stamp(3)
        op_loads(32, True)
        A('s_waitcnt vmcnt(0)')
    lds_wait_ge(CNT + 28, 1, 1)
stamp(6)
def body():
    op_loads(16)
    A('L_opw:')
    for t in range(3):
        A(f's_waitcnt vmcnt({2-t})')
        q = AO + 4 * t
        for e in range(4): A(f'v_xor_b32 v{q+e}, v{q+e}, v{XM+e}')
        for u in range(4):
            r = BW + 4 * (4 * t + u)
            c = '0' if t == 0 else f'v[{32+4*u}:{35+4*u}]'
            A(f'v_mfma_f32_16x16x32_bf16 v[{32+4*u}:{35+4*u}], v[{q}:{q+3}], v[{r}:{r+3}], {c}')
        if t == 0:
            A(f'v_or_b32 v2, v{q}, v{q+1}\nv_or_b32 v3, v{q+2}, v{q+3}')
        else:
            A(f'v_or3_b32 v2, v2, v{q}, v{q+1}\nv_or3_b32 v3, v3, v{q+2}, v{q+3}')
    A('v_cndmask_b32 v2, v3, v2, s[66:67]')
    A('v_cmp_ne_u32 vcc, 0, v2')
spin2(body, local_only=True, entry='L_opw' if NE < 12 else None)
stamp(7)
if opt['w2trig'] == 0: A(f'ds_write_b32 v25, v23 offset:{CNT+32}')
for u in range(4):
    A(f'v_mul_f32 v{4+u}, v{32+4*u}, v{CF}')
    for r in range(1, 4): A(f'v_fmac_f32 v{4+u}, v{32+4*u+r}, v{CF+r}')
A(f'''
{S32} v4, v6
{S32} v5, v7
v_add_f32 v4, v4, v6
v_add_f32 v5, v5, v7
{S16} v4, v5
v_add_f32 v4, v4, v5
ds_write_b32 v61, v4 offset:{RL}
s_cmp_lg_u32 s3, 0
s_waitcnt lgkmcnt(0)
s_barrier
s_cbranch_scc1 L_post_wo
ds_read_b32 v5, v62 offset:{RL+256}
ds_read_b32 v6, v62 offset:{RL+512}
ds_read_b32 v7, v62 offset:{RL+768}
s_waitcnt lgkmcnt(0)
v_add_f32 v4, v4, v5
v_add_f32 v6, v6, v7
v_add_f32 v4, v4, v6
v_mov_b32_dpp v5, v4 quad_perm:[1,0,3,2] {DPPM}
v_cvt_pk_bf16_f32 v4, v4, v5
v_mov_b32_dpp v48, v4 quad_perm:[0,0,0,0] {DPPM}
v_mov_b32_dpp v49, v4 quad_perm:[2,2,2,2] {DPPM}
''')
A('s_mov_b64 exec, s[8:9]')
A('buffer_store_dwordx4 v[48:51], v63, s[24:27], s75 offen sc1')
stamp(5)
A('s_barrier')
if opt['cbpa']: A('s_barrier')
write_stamps(0)
A('s_endpgm')
A('L_helper_exit:')
if opt['prer'] >= 3:
    A('s_cmp_lg_u32 s3, 1\ns_cbranch_scc1 L_noprer')
    if opt['prer'] == 3: lds_wait_ge(CNT + 16, 8, 4)
    if opt['prer'] == 4: lds_wait_ge(CNT + 4, 8, 4)
    A(f'''
s_mul_i32 s68, s4, 12
s_add_u32 s68, s68, s5
s_sub_u32 s68, s68, 20
v_lshlrev_b32 v1, 7, v0
s_mul_i32 s60, s68, 5120
s_add_u32 s61, s60, {CB}
s_add_u32 s60, s60, {PA}
s_lshl_b32 s62, s68, 7
s_add_u32 s62, s62, {PS}
s_mul_i32 s63, s4, 5120
s_add_u32 s63, s63, {PH}
s_mov_b32 exec_lo, -1
s_mov_b32 exec_hi, 0xff
buffer_load_dword v4, v1, s[32:35], s60 offen {'nt' if opt['hnt'] else 'sc1'}
buffer_load_dword v5, v1, s[32:35], s61 offen {'nt' if opt['hnt'] else 'sc1'}
s_cmp_lg_u32 s5, 20
s_cbranch_scc1 L_noph
buffer_load_dword v6, v1, s[32:35], s63 offen sc1
L_noph:
s_mov_b64 exec, 1
buffer_load_dword v7, v1, s[32:35], s62 offen sc1
s_endpgm
L_noprer:
''')
if STAMPS:
    A('s_cmp_lg_u32 s3, 0\ns_cbranch_scc1 L_end')
    write_stamps(0)
A('s_endpgm')

B1R = 64
DR = 16
def gdone_wait(n):
    if not n: return
    lp = newlabel('gpoll'); ld = newlabel('gdone')
    A(f"""
v_and_b32 v1, 31, v0
v_lshlrev_b32 v1, 4, v1
s_lshl_b32 s68, s4, 9
s_add_u32 s68, s68, {DN}
s_mov_b32 s70, 40
s_cmp_lg_u32 s46, 1
s_cbranch_scc1 {ld}
{lp}:
buffer_load_dwordx4 v[4:7], v1, s[32:35], s68 offen sc1
s_waitcnt vmcnt(0)
v_cmp_eq_u64 vcc, s[30:31], v[6:7]
s_nop 0
s_bcnt1_i32_b32 s69, vcc_lo
s_cmp_ge_u32 s69, {n}
s_cbranch_scc1 {ld}
s_sleep 2
s_sub_u32 s70, s70, 1
s_cbranch_scc0 {lp}
{ld}:
""")
def yp_loads(fl=''):
    A('buffer_load_dwordx4 v[96:99], v55, s[24:27], s60 offen sc1' + fl)
    A('buffer_load_dwordx4 v[100:103], v55, s[24:27], s60 offen offset:1024 sc1' + fl)
def f1_mfma():
    for k in range(8):
        A(f'v_mfma_f32_16x16x32_bf16 v[{DR+4*k}:{DR+3+4*k}], v[8:11], v[{B1R+4*k}:{B1R+4*k+3}], 0')
def f1_select(d):
    for m in range(2):
        b = DR + 16 * m
        A(f'v_cndmask_b32 v{d+m}, v{b}, v{b+4}, s[62:63]')
        A(f'v_cndmask_b32 v{d+m}, v{d+m}, v{b+8}, s[64:65]')
        A(f'v_cndmask_b32 v{d+m}, v{d+m}, v{b+12}, s[66:67]')
A('L_f1:')
A('''
v_lshrrev_b32 v58, 4, v0
v_lshlrev_b32 v58, 7, v58
v_bfe_u32 v5, v0, 2, 2
v_lshl_add_u32 v58, v5, 9, v58
v_and_b32 v5, 3, v0
v_lshl_add_u32 v58, v5, 3, v58
''')
srd(12, 48, 640 * 1536 * 2); srd(16, 50, 640 * 1536 * 2)
A(f"""
s_mul_i32 s75, s5, 5
s_add_u32 s75, s75, s73
s_sub_u32 s75, s75, 100
s_cmp_ge_u32 s75, 20
s_cselect_b32 s78, 1, 0
s_cmp_ge_u32 s75, 40
s_cselect_b32 s78, 2, s78
s_mul_i32 s68, s78, 20
s_sub_u32 s74, s75, s68
s_mul_i32 s68, s4, 3
s_add_u32 s78, s78, s68
s_lshl_b32 s68, s73, 13
v_add_u32 v58, s68, v58
s_add_u32 s79, s68, {WL}
v_lshrrev_b32 v3, 4, v0
v_and_b32 v2, 7, v0
v_lshl_add_u32 v50, v2, 2, v3
v_lshlrev_b32 v50, 1, v50
s_lshl_b32 s68, s74, 6
v_add_u32 v61, s68, v50
v_lshlrev_b32 v54, 6, v3
v_lshl_add_u32 v54, v2, 3, v54
v_lshrrev_b32 v53, 3, v0
v_mul_u32_u24 v62, 3072, v53
v_lshl_add_u32 v62, v2, 4, v62
s_lshr_b32 s60, s74, 2
s_lshl_b32 s60, s60, 14
s_and_b32 s68, s74, 3
s_lshl_b32 s68, s68, 11
s_add_u32 s60, s60, s68
s_lshr_b32 s68, s47, s4
s_and_b32 s68, s68, 1
s_lshl_b32 s68, s68, 13
s_add_u32 s60, s60, s68
s_add_u32 s60, s60, {YP}
v_lshlrev_b32 v55, 4, v0
v_mov_b32 v57, 0
v_cmp_eq_u32 s[62:63], 1, v3
v_cmp_eq_u32 s[64:65], 2, v3
v_cmp_eq_u32 s[66:67], 3, v3
v_lshrrev_b32 v59, 4, v0
v_mul_u32_u24 v59, 5120, v59
v_bfe_u32 v4, v0, 3, 1
v_lshl_add_u32 v59, v4, 9, v59
v_lshl_add_u32 v59, v2, 4, v59
s_mul_i32 s76, s78, 20480
s_lshr_b32 s68, s74, 2
s_lshl_b32 s68, s68, 10
s_add_u32 s76, s76, s68
s_and_b32 s68, s74, 3
s_lshl_b32 s68, s68, 7
s_add_u32 s76, s76, s68
s_add_u32 s76, s76, {PA}
s_lshl_b32 s72, s78, 9
s_lshl4_add_u32 s72, s74, s72
s_add_u32 s72, s72, {PS}
s_mul_i32 s75, s4, 20
s_add_u32 s75, s75, s74
s_lshl_b32 s75, s75, 8
s_add_u32 s75, s75, {PH}
s_cmp_lt_u32 s5, 24
s_cselect_b32 s75, s75, {PH + 0xA000}
s_mov_b32 s77, 0x3f80
s_mov_b32 s71, 0x3f800000
v_mov_b32 v14, s30
v_mov_b32 v15, s31
s_mul_i32 s61, s74, {32*3072}
s_lshl_b32 s68, s78, 7
s_add_u32 s61, s61, s68
""")
if opt['f1trig'] == 0: lds_wait_ge(CNT + 28, 1, 1)
elif opt['f1trig'] == 1: lds_wait_ge(CNT + 4, 8, 1)
gdone_wait(opt['gdone'])
stamp(3)
for n in range(4):
    for m in range(2):
        A(f's_add_u32 m0, s79, {4096*m + 1024*n}')
        A(f'buffer_load_dwordx4 v62, s[{12+4*m}:{15+4*m}], s61 offen nt lds')
    if n < 3: A(f's_add_u32 s61, s61, {8*3072}')
A('global_load_ushort v56, v61, s[36:37]')
PFL = ' nt' if opt['prer'] == 2 else ' sc1'
def preread(mask, PFL=None):
    PFL = PFL or globals()['PFL']
    A(f's_add_u32 s68, s76, {CB - PA}\ns_mov_b32 exec_lo, 0x01010101\ns_mov_b32 exec_hi, 0x01010101')
    if mask & 1: A(f'buffer_load_dword v104, v59, s[32:35], s76 offen{PFL}')
    if mask & 2: A(f'buffer_load_dword v105, v59, s[32:35], s68 offen{PFL}')
    if mask & 4: A(f'buffer_load_dword v106, v54, s[32:35], s75 offen{PFL}')
    if mask & 4: A(f's_mov_b64 exec, 1\nbuffer_load_dword v107, v55, s[32:35], s72 offen{PFL}')
    A('s_mov_b64 exec, -1')
    return (mask & 1) + (mask >> 1 & 1) + 2 * (mask >> 2 & 1)
npre = preread(opt['pre1']) if opt['prer'] in (1, 2) and opt['pre1'] else 0
A('s_setprio 3')
A(f"s_waitcnt vmcnt({0 if opt['promo'] else npre})")
if opt['prer'] in (1, 2) and opt['pre2']: preread(opt['pre2'], ' sc1' if opt['promo'] else None)
yp_loads(' nt' if opt['ynt'] else '')
stamp(6)
for m in range(2):
    for u in range(4):
        r = B1R + 4 * (4 * m + u)
        A(f'ds_read_b64_tr_b16 v[{r}:{r+1}], v58 offset:{WL + 4096*m + 32*u}')
        A(f'ds_read_b64_tr_b16 v[{r+2}:{r+3}], v58 offset:{WL + 4096*m + 32*u + 2048}')
A("""
v_mov_b32 v8, 0x3f803f80
v_mov_b32 v9, 0x3f803f80
v_mov_b32 v10, 0x3f803f80
v_mov_b32 v11, 0x3f803f80
s_waitcnt lgkmcnt(0)
""")
f1_mfma()
A('v_mov_b32 v6, s30\nv_mov_b32 v7, s31\nv_mov_b32 v50, s30\nv_mov_b32 v51, s31')
A(f's_add_u32 s68, s76, {CB - PA}')
if opt['prepa'] == 2:
    A('s_waitcnt vmcnt(2)\nv_not_b32 v10, s30\nbuffer_store_dwordx4 v[8:11], v59, s[32:35], s76 offen')
    A('s_mov_b64 exec, 1\nbuffer_store_dwordx4 v[8:11], v55, s[32:35], s72 offen')
    setexec(0x0055005500550055)
    A('buffer_store_dwordx4 v[8:11], v54, s[32:35], s75 offen\ns_mov_b64 exec, -1')
if opt['prepa'] == 1:
    A('v_not_b32 v10, s30\nbuffer_store_dwordx4 v[8:11], v59, s[32:35], s76 offen')
f1_select(12)
if opt['cbred']:
    A(f'''
v_lshlrev_b32 v4, 3, v0
s_lshl_b32 s68, s73, 9
v_add_u32 v5, s68, v4
v_mov_b32 v8, 1
ds_write_b64 v5, v[12:13] offset:{OL}
s_mov_b64 exec, 1
ds_add_rtn_u32 v9, v57, v8 offset:{CNT+12}
s_mov_b64 exec, -1
''')
    for w in range(5): A(f'ds_read_b64 v[{16+2*w}:{17+2*w}], v4 offset:{OL + 512*w}')
    A(f'''
v_lshrrev_b32 v4, 4, v0
v_lshlrev_b32 v4, 10, v4
v_bfe_u32 v5, v0, 3, 1
v_lshl_add_u32 v4, v5, 9, v4
v_and_b32 v5, 7, v0
v_lshl_add_u32 v4, v5, 4, v4
s_lshl_b32 s68, s78, 12
s_and_b32 s69, s5, 3
s_lshl_b32 s69, s69, 7
s_add_u32 s68, s68, s69
s_add_u32 s68, s68, {CB}
s_waitcnt lgkmcnt(0)
v_readfirstlane_b32 s69, v9
s_cmp_lg_u32 s69, 4
s_cbranch_scc1 L_nocb
v_pk_add_f32 v[16:17], v[16:17], v[18:19]
v_pk_add_f32 v[20:21], v[20:21], v[22:23]
v_pk_add_f32 v[16:17], v[16:17], v[24:25]
v_pk_add_f32 v[12:13], v[16:17], v[20:21]
''')
    publish([(None, 'buffer_store_dwordx4 v[12:15], v4, @, s68 offen')])
    A('L_nocb:')
else:
    publish([(None, 'buffer_store_dwordx4 v[12:15], v59, @, s68 offen')])
A('v_mov_b32 v8, 0\nv_mov_b32 v9, 0\nv_mov_b32 v10, 0\nv_mov_b32 v11, 0\nv_lshlrev_b32 v56, 16, v56')
def body():
    yp_loads()
    A('L_ypw0:')
    A('s_waitcnt vmcnt(0)')
    tagcheck([98, 102])
spin(body, entry='L_ypw0')
stamp(1)
for r in (96, 100):
    A(f'v_dot2c_f32_bf16 v8, s77, v{r}\nv_dot2c_f32_bf16 v10, s77, v{r+1}\nv_dot2c_f32_bf16 v9, s71, v{r}\nv_dot2c_f32_bf16 v11, s71, v{r+1}')
A(f"""
{S32} v8, v10
{S32} v9, v11
v_add_f32 v8, v8, v10
v_add_f32 v9, v9, v11
{S16} v8, v9
v_add_f32 v8, v8, v9
v_add_f32_dpp v8, v8, v8 row_ror:8 {DPPM}
v_cvt_pk_bf16_f32 v8, v57, v8
v_add_f32 v12, v8, v56
v_mov_b32_dpp v13, v12 quad_perm:[1,0,3,2] {DPPM}
v_cvt_pk_bf16_f32 v12, v12, v13
v_lshlrev_b32 v48, 16, v12
v_mul_f32 v49, v48, v48
v_mov_b32_dpp v8, v12 row_newbcast:0 {DPPM}
v_mov_b32_dpp v9, v12 row_newbcast:2 {DPPM}
v_mov_b32_dpp v10, v12 row_newbcast:4 {DPPM}
v_mov_b32_dpp v11, v12 row_newbcast:6 {DPPM}
""")
stat = []
for pat in ('quad_perm:[1,0,3,2]', 'quad_perm:[2,3,0,1]', 'row_half_mirror'):
    stat.append([f'v_add_f32_dpp v{r}, v{r}, v{r} {pat} {DPPM}' for r in (48, 49)])
for sw in (S16, S32):
    stat.append(['v_mov_b32 v52, v48', 'v_mov_b32 v53, v49'])
    stat.append([f'{sw} v48, v52', f'{sw} v49, v53'])
    stat.append(['v_add_f32 v48, v48, v52', 'v_add_f32 v49, v49, v53'])
for l in stat.pop(0): A(l)
for k in range(8):
    A(f'v_mfma_f32_16x16x32_bf16 v[{DR+4*k}:{DR+3+4*k}], v[8:11], v[{B1R+4*k}:{B1R+4*k+3}], 0')
    for l in stat.pop(0): A(l)
f1_select(4)
publish([(None, 'buffer_store_dwordx4 v[4:7], v59, @, s76 offen'),
         (1, 'buffer_store_dwordx4 v[48:51], v55, @, s72 offen'),
         (0x0055005500550055, 'buffer_store_dwordx4 v[12:15], v54, @, s75 offen')])
if opt['clean'] & 1:
    A(f'''
s_mul_i32 s68, s5, 5
s_add_u32 s68, s68, s73
s_sub_u32 s68, s68, 100
s_cmp_ge_u32 s68, 48
s_cbranch_scc1 L_noclean
s_lshl_b32 s69, s68, 3
v_add_u32 v2, s69, v0
v_mul_u32_u24 v3, 0x5556, v2
v_lshrrev_b32 v3, 18, v3
v_lshl_add_u32 v2, v3, 2, v2
v_lshlrev_b32 v2, 7, v2
s_lshl_b32 s69, s4, 16
s_mov_b64 exec, 0xff
buffer_store_dword v14, v2, s[32:35], s69 offen offset:{QP + 8} sc1
v_lshlrev_b32 v2, 7, v0
v_and_b32 v3, 1, v0
v_lshlrev_b32 v3, 3, v3
v_sub_u32 v2, v2, v3
s_mul_i32 s69, s4, 24576
s_lshl_b32 s68, s68, 9
s_add_u32 s69, s69, s68
s_add_u32 s69, s69, {OP}
s_mov_b64 exec, 0xf
buffer_store_dword v14, v2, s[32:35], s69 offen offset:8 sc1
s_mov_b64 exec, -1
L_noclean:
''')
if STAMPS:
    stamp_now(13, True)
    stamp_val(18, 82, 83, True)
    stamp_val(23, 92, 93, True)
A('s_endpgm')

A('L_post_wo:')
A("""
s_cmp_gt_u32 s5, 11
s_cbranch_scc1 L_end
s_cmp_eq_u32 s3, 3
s_cbranch_scc1 L_end
v_mov_b32 v57, 0
""")
A('s_cmp_eq_u32 s3, 1\ns_cbranch_scc1 L_hid\ns_barrier')
if opt['cbpa']: A('s_barrier')
A(f"""
s_and_b32 s68, s4, 1
s_lshl_b32 s68, s68, 2
s_sub_u32 s68, 12, s68
s_cmp_ge_u32 s5, s68
s_cbranch_scc1 L_end
s_mul_i32 s72, s4, 5
s_add_u32 s72, s72, 1
s_lshr_b32 s72, s72, 1
s_lshr_b32 s68, s5, 2
s_add_u32 s72, s72, s68
s_and_b32 s73, s5, 3
v_lshrrev_b32 v2, 1, v0
v_lshlrev_b32 v2, 7, v2
v_and_b32 v3, 1, v0
v_lshl_add_u32 v96, v3, 4, v2
s_lshl_b32 s10, s72, 15
s_lshr_b32 s68, s47, s4
s_and_b32 s68, s68, 1
s_lshl_b32 s68, s68, 13
s_add_u32 s10, s10, s68
s_lshl_b32 s68, s73, 5
s_add_u32 s10, s10, s68
s_add_u32 s10, s10, {FP}
s_add_u32 s11, s10, 4096
s_add_u32 s12, s10, 16384
v_lshrrev_b32 v4, 4, v0
v_lshl_add_u32 v97, v3, 2, v4
v_lshlrev_b32 v97, 1, v97
v_lshlrev_b32 v99, 6, v4
v_lshlrev_b32 v98, 4, v3
s_mul_i32 s13, s4, 20
s_add_u32 s13, s13, s72
s_lshl_b32 s13, s13, 8
s_lshl4_add_u32 s13, s73, s13
s_add_u32 s13, s13, {PH}
s_lshl2_add_u32 s14, s72, s73
s_lshl_b32 s14, s14, 4
s_mov_b32 s8, 0x30003
s_mov_b32 s9, 0x30003
s_mov_b32 s77, 0x3f80
s_mov_b32 s71, 0x3f800000
v_mov_b32 v8, 0
v_mov_b32 v9, 0
v_mov_b32 v10, 0
v_mov_b32 v11, 0
""")
FS = 16
srd(64, 54, 1280)
lds_wait_ge(HRDY, 1, 2)
if opt['fsleep']: A(f"s_sleep {opt['fsleep']}")
def body():
    A('buffer_load_dwordx4 v[4:7], v99, s[16:19], s13 offen sc1')
    for n in range(3):
        r = FS + 4 * n
        A(f'buffer_load_dwordx4 v[{r}:{r+3}], v96, s[24:27], s{10+n} offen sc1')
    A('s_waitcnt vmcnt(0)')
    tagcheck([6, FS + 2, FS + 6, FS + 10])
spin2(body, local_only=True)
stamp(5)
for n in range(3):
    r = FS + 4 * n
    A(f'v_dot2c_f32_bf16 v8, s77, v{r}\nv_dot2c_f32_bf16 v10, s77, v{r+1}\nv_dot2c_f32_bf16 v9, s71, v{r}\nv_dot2c_f32_bf16 v11, s71, v{r+1}')
A(f"""
v_lshrrev_b32 v58, v98, v4
{S32} v8, v10
{S32} v9, v11
v_add_f32 v8, v8, v10
v_add_f32 v9, v9, v11
v_lshlrev_b32 v58, 16, v58
{S16} v8, v9
v_add_f32 v8, v8, v9
v_add_f32_dpp v8, v8, v8 row_ror:8 {DPPM}
v_add_f32_dpp v8, v8, v8 row_ror:4 {DPPM}
v_add_f32_dpp v8, v8, v8 quad_perm:[2,3,0,1] {DPPM}
v_cvt_pk_bf16_f32 v8, v57, v8
v_add_f32 v8, v8, v58
v_cvt_pk_bf16_f32 v8, v8, v8
""")
DBGPTR = ''
if opt['dbgptr']:
    DBGPTR = 'v_mov_b32 v8, s58\nv_mov_b32 v9, s38\nv_mov_b32 v10, s40\nv_mov_b32 v11, s47\nglobal_store_dwordx4 v57, v[8:11], s[56:57]\nv_mov_b32 v12, s44\nv_mov_b32 v13, s48\nv_mov_b32 v14, s54\nv_mov_b32 v15, s56\nglobal_store_dwordx4 v57, v[12:15], s[56:57] offset:16'
A('s_mov_b64 exec, s[8:9]')
A(f"""
buffer_store_short v8, v97, s[64:67], s14 offen
s_cmp_lg_u32 s14, 0
s_cbranch_scc1 L_fin_exit
s_mov_b64 exec, 1
v_mov_b32 v4, s30
v_mov_b32 v5, s31
s_mov_b32 s68, {EP}
buffer_store_dwordx2 v[4:5], v57, s[24:27], s68 offen
{DBGPTR}
L_fin_exit:
""")
if opt['dbg']:
    A(f'''
s_cmp_lg_u32 s14, {64 * ((5 * opt['dbgx'] + 1) >> 1)}
s_cbranch_scc1 L_end
s_mov_b64 exec, -1
ds_read_b32 v4, v57 offset:{CNT+36}
s_memrealtime s[82:83]
s_waitcnt lgkmcnt(0)
v_readfirstlane_b32 s85, v4
s_sub_u32 s84, s82, s85
s_lshr_b32 s85, s85, 3
{'s_mov_b32 s84, s85' if opt['dbgn'] else ''}
v_mov_b32 v4, s84
global_store_dword v57, v4, s[56:57]
s_mul_i32 s84, s84, {opt['dbg']}
s_min_u32 s84, s84, 40000
L_dbgspin:
s_memrealtime s[86:87]
s_waitcnt lgkmcnt(0)
s_sub_u32 s86, s86, s82
s_cmp_lt_u32 s86, s84
s_cbranch_scc1 L_dbgspin
''')
if STAMPS:
    A('s_waitcnt vmcnt(0)')
    stamp(7)
    write_stamps(8)
A('s_endpgm')

A('L_hid:')
A(f"""
s_mul_i32 s72, s4, 12
s_add_u32 s72, s72, s5
v_lshrrev_b32 v4, 5, v0
v_and_b32 v2, 7, v0
v_lshl_add_u32 v62, v4, 3, v2
v_lshlrev_b32 v62, 1, v62
v_lshlrev_b32 v63, 2, v2
v_lshlrev_b32 v60, 4, v0
v_and_b32 v3, 31, v0
v_lshlrev_b32 v61, 4, v3
s_lshr_b32 s65, s72, 2
s_lshl_b32 s65, s65, 9
s_add_u32 s65, s65, {PS}
s_mul_i32 s60, s72, 5120
s_add_u32 s60, s60, {PA}
s_add_u32 s61, s60, 4096
v_mov_b32 v148, 0
v_mov_b32 v149, 0
v_mov_b32 v150, s30
v_mov_b32 v151, s31
v_mov_b32 v59, 1
""")
if opt['cbred']: A(f's_lshl_b32 s62, s72, 10\ns_add_u32 s62, s62, {CB}')
else: A(f's_add_u32 s62, s60, {CB - PA}\ns_add_u32 s63, s61, {CB - PA}')
NCB = 1 if opt['cbred'] else 5
def issue(srdn=32, fl=''):
    setexec(0x000fffff000fffff)
    A(f'buffer_load_dwordx4 v[148:151], v61, s[{srdn}:{srdn+3}], s65 offen sc1')
    setexec(ALL)
    for n in range(5):
        A(f'buffer_load_dwordx4 v[{128+4*n}:{131+4*n}], v60, s[{srdn}:{srdn+3}], s{60+n//4} offen offset:{1024*(n%4)} sc1' + fl)
def check(): tagcheck([150, 130, 134, 138, 142, 146])
def body():
    for n in range(NCB):
        A(f'buffer_load_dwordx4 v[{16+4*n}:{19+4*n}], v60, s[16:19], s{62+n//4} offen offset:{1024*(n%4)} sc1' + (' nt' if opt['cnt'] else ''))
    if opt['prepa'] == 1:
        setexec(0x000fffff000fffff)
        A(f'buffer_load_dwordx4 v[148:151], v61, s[16:19], s65 offen sc1')
        setexec(ALL)
    else: issue(16, ' nt' if opt['pant'] else '')
    if opt['cbpa']: A('s_cmp_eq_u32 s78, 0\ns_cbranch_scc1 L_nobar\ns_mov_b32 s78, 0\ns_barrier\nL_nobar:')
    A('s_waitcnt vmcnt(0)')
    tagcheck([18, 22, 26, 30, 34][:NCB])
if opt['prepa']:
    for n in range(5): A(f'v_not_b32 v{130+4*n}, s30')
A('s_mov_b32 s78, 1\ns_barrier')
if opt['padelay']: A(f"s_sleep {opt['padelay']}")
spin2(body, local_only=True)
def sum5(d, r):
    A(f'v_pk_add_f32 v[{d}:{d+1}], v[{r}:{r+1}], v[{r+4}:{r+5}]')
    A(f'v_pk_add_f32 v[{d+2}:{d+3}], v[{r+8}:{r+9}], v[{r+12}:{r+13}]')
    A(f'v_pk_add_f32 v[{d}:{d+1}], v[{d}:{d+1}], v[{r+16}:{r+17}]')
    A(f'v_pk_add_f32 v[{d}:{d+1}], v[{d}:{d+1}], v[{d+2}:{d+3}]')
A('s_cmp_lg_u32 s46, 1\ns_cbranch_scc1 L_nopre')
issue()
A('L_nopre:')
if opt['cbred']: A('v_mov_b32 v40, v16\nv_mov_b32 v41, v17')
else: sum5(40, 16)
for r in (40, 41): A(f'v_add_f32_dpp v{r}, v{r}, v{r} row_ror:8 {DPPM}')
swapreduce(S16, 'v_add_f32', [40, 41], [42, 43])
check()
A('s_nop 0\ns_cbranch_vccz L_paok')
A('s_cmp_lg_u32 s46, 1\ns_cbranch_scc1 L_paslow')
freepoll(issue, check, opt['frp'], 'L_paok')
A('L_paslow:')
def body():
    issue(16); A('s_waitcnt vmcnt(0)'); check()
spin2(body, local_only=True)
A('L_paok:')
stamp(7)
A(f"""
v_add_f32_dpp v36, v148, v148 quad_perm:[1,0,3,2] {DPPM}
v_add_f32_dpp v37, v149, v149 quad_perm:[1,0,3,2] {DPPM}
v_pk_add_f32 v[8:9], v[128:129], v[132:133]
v_add_f32_dpp v36, v36, v36 quad_perm:[2,3,0,1] {DPPM}
v_add_f32_dpp v37, v37, v37 quad_perm:[2,3,0,1] {DPPM}
v_pk_add_f32 v[10:11], v[136:137], v[140:141]
v_add_f32_dpp v36, v36, v36 row_half_mirror {DPPM}
v_add_f32_dpp v37, v37, v37 row_half_mirror {DPPM}
v_pk_add_f32 v[8:9], v[8:9], v[144:145]
v_add_f32_dpp v22, v36, v36 row_mirror {DPPM}
v_add_f32_dpp v23, v37, v37 row_mirror {DPPM}
v_add_f32_dpp v36, v36, v36 row_mirror {DPPM}
v_add_f32_dpp v37, v37, v37 row_mirror {DPPM}
v_pk_add_f32 v[8:9], v[8:9], v[10:11]
{S16} v36, v22
{S16} v37, v23
v_pk_add_f32 v[36:37], v[36:37], v[22:23]
v_add_f32_dpp v10, v8, v8 row_ror:8 {DPPM}
v_mul_f32 v20, {f32(1.0/640)}, v36
v_mul_f32 v21, {f32(1.0/640)}, v37
v_add_f32_dpp v11, v9, v9 row_ror:8 {DPPM}
v_fma_f32 v21, -v20, v20, v21
v_add_f32_dpp v8, v8, v8 row_ror:8 {DPPM}
v_max_f32 v21, 0, v21
v_add_f32_dpp v9, v9, v9 row_ror:8 {DPPM}
v_cvt_pk_bf16_f32 v21, v57, v21
v_cvt_pk_bf16_f32 v20, v57, v20
v_add_f32 v21, {f32(1e-5)}, v21
{S16} v8, v10
v_cvt_pk_bf16_f32 v21, v57, v21
{S16} v9, v11
v_sqrt_f32 v21, v21
v_pk_add_f32 v[8:9], v[8:9], v[10:11]
v_cvt_pk_bf16_f32 v21, v57, v21
v_fma_f32 v8, -v20, v40, v8
v_rcp_f32 v21, v21
v_fma_f32 v9, -v20, v41, v9
v_mul_f32 v8, v8, v21
v_mul_f32 v9, v9, v21
v_cvt_pk_bf16_f32 v8, v57, v8
v_mul_f32 v12, {f32(-LOG2E)}, v8
v_exp_f32 v12, v12
v_cvt_pk_bf16_f32 v9, v57, v9
v_add_f32 v12, 1.0, v12
v_rcp_f32 v12, v12
v_mul_f32 v8, v8, v12
v_cvt_pk_bf16_f32 v8, v57, v8
v_mul_f32 v8, v8, v9
v_cvt_pk_bf16_f32 v8, v8, v8
ds_write_b16 v62, v8 offset:{HID}
ds_write_b32 v63, v59 offset:{HRDY}
""")
if opt['clean'] & 2:
    if opt['cldelay']: A(f"s_sleep {opt['cldelay']}")
    A(f'''
v_lshlrev_b32 v2, 7, v0
v_mov_b32 v3, s30
s_mov_b32 exec_hi, 0xff
buffer_store_dword v3, v2, s[32:35], s60 offen offset:8 sc1
s_mov_b64 exec, 0xff
buffer_store_dword v3, v2, s[32:35], s62 offen offset:8 sc1
s_mov_b64 exec, -1
''')
stamp_val(17, 94, 95)
A('s_endpgm')

A('L_f2:')
W2R = 64
srd(8, 52, 1536 * 640 * 2)
A(f"""
s_mul_i32 s72, s4, 12
s_add_u32 s72, s72, s5
v_mov_b32 v57, 0
s_sub_u32 s68, s3, 7
s_lshl_b32 s69, s68, 8
v_lshlrev_b32 v58, 2, v0
v_add_u32 v58, s69, v58
v_lshrrev_b32 v2, 4, v0
v_lshl_add_u32 v2, s68, 2, v2
v_mul_u32_u24 v3, 52, v2
v_lshrrev_b32 v3, 8, v3
v_mul_u32_u24 v4, 5, v3
v_sub_u32 v4, v2, v4
v_cmp_lt_u32 vcc, 2, v4
v_lshlrev_b32 v3, 1, v3
v_addc_co_u32 v3, vcc, 0, v3, vcc
v_lshrrev_b32 v3, v3, s47
v_and_b32 v3, 1, v3
v_lshlrev_b32 v116, 15, v2
v_lshl_add_u32 v116, v3, 13, v116
v_bfe_u32 v3, v0, 1, 3
v_lshl_add_u32 v116, v3, 4, v116
s_lshr_b32 s79, s72, 6
s_lshl_b32 s79, s79, 14
s_and_b32 s68, s72, 63
s_lshl_b32 s68, s68, 7
s_add_u32 s79, s79, s68
s_add_u32 s79, s79, {FP}
s_mov_b32 s60, 0x05040100
s_mov_b32 s61, 0x07060302
s_mul_i32 s62, s72, 20480
""")
def w2_loads():
    for k in range(16):
        A(f'buffer_load_dword v{W2R+k}, v58, s[8:11], s62 offen offset:{1280*(k%3)} nt')
        if k % 3 == 2: A('s_add_u32 s62, s62, 3840')
if opt['w2early']:
    lds_wait_ge(CNT + 28, 1, 2)
    w2_loads()
if opt['w2trig'] == 0:
    A('v_and_b32 v1, 3, v0\nv_lshlrev_b32 v1, 2, v1')
    def body():
        A(f'ds_read_b32 v4, v1 offset:{CNT+32}')
        A('s_waitcnt lgkmcnt(0)')
        A('v_cmp_eq_u32 vcc, 0, v4')
    spin(body, sleep=1)
    w2_loads()
A('s_barrier')
if opt['w2trig'] == 1: w2_loads()
A('s_barrier')
if opt['cbpa']: A('s_barrier')
if not opt['w2early'] and opt['w2trig'] == 2: w2_loads()
if opt['f2prio']: A(f"s_setprio {opt['f2prio']}")
A('s_waitcnt vmcnt(0)')
stamp(6)
for kp in range(8):
    A(f'v_perm_b32 v{80+kp}, v{W2R+2*kp+1}, v{W2R+2*kp}, s60')
    A(f'v_perm_b32 v{88+kp}, v{W2R+2*kp+1}, v{W2R+2*kp}, s61')
A(f"""
v_mov_b32 v16, 0
v_mov_b32 v17, 0
v_mov_b32 v18, 0
v_mov_b32 v19, 0
s_mov_b32 s66, 0x55555555
s_mov_b32 s67, 0x55555555
v_mov_b32 v6, s30
v_mov_b32 v7, s31
v_and_b32 v9, 15, v0
v_lshlrev_b32 v9, 2, v9
v_mov_b32 v8, 0
s_mov_b32 s64, 0xff00ff00
s_mov_b32 s65, 0xff00ff00
s_mov_b32 s70, {SPIN * 8}
s_waitcnt lgkmcnt(0)
L_f2poll:
ds_read_b32 v8, v9 offset:{HID}
s_waitcnt lgkmcnt({4 if opt['f2free'] else 0})
v_cmp_eq_u32 vcc, 0, v8
s_sub_u32 s70, s70, 1
s_cbranch_scc1 L_f2go
s_and_b64 vcc, vcc, s[64:65]
s_cbranch_scc1 L_f2poll
L_f2go:
""")
for kp in range(8):
    A(f'v_dot2c_f32_bf16_dpp v{16+2*(kp&1)}, v8, v{80+kp} row_newbcast:{kp} {DPPM}')
    A(f'v_dot2c_f32_bf16_dpp v{17+2*(kp&1)}, v8, v{88+kp} row_newbcast:{kp} {DPPM}')
A('v_pk_add_f32 v[16:17], v[16:17], v[18:19]')
A(f"""
v_cvt_pk_bf16_f32 v4, v16, v17
v_mov_b32_dpp v5, v4 quad_perm:[1,0,3,2] {DPPM}
""")
A('s_mov_b64 exec, s[66:67]')
A('buffer_store_dwordx4 v[4:7], v116, s[24:27], s79 offen sc1')
if STAMPS:
    setexec(ALL)
    stamp_now(20, True)
    stamp_val(15, 92, 93, True)
A('L_end:')
A('s_endpgm')
for blk in outline: A(blk)
A('L_codeend:')

A.raw('.section .rodata,"a"')
A.raw('.p2align 6')
A.raw(f'.amdhsa_kernel {NAME}_kernel')
A.raw('  .amdhsa_next_free_vgpr 168')
A.raw('  .amdhsa_next_free_sgpr 100')
A.raw('  .amdhsa_accum_offset 168')
A.raw('  .amdhsa_group_segment_fixed_size 0')
A.raw('  .amdhsa_kernarg_size 96')
A.raw('  .amdhsa_user_sgpr_count 2')
A.raw('  .amdhsa_user_sgpr_kernarg_segment_ptr 1')
A.raw('  .amdhsa_system_sgpr_workgroup_id_x 1')
A.raw('.end_amdhsa_kernel')
open(sys.argv[1], 'w').write(A.finalize())
```

```python
import sys, struct, os
from asmlib import Asm

NAME = "sequential_preLN__sliding_block_cached__glu_gated_swiglu__decode"
opt = dict(D1=3, D2=3, Vpre=3, stamps=0, spin=4000007, sleep=2, swave=11, stsleep=24, wtrig=2, DWF=6, opw=2,
           idtries=12, idsleep=16, forceslow=0, trap=0, fsleep=16, hsleep=0, shots=4, lead=31, samp=6,
           frp=1, frs=2, frc=8, frcb=14, w2dma=1, opp=0, osleep=0, sprio=0, outfl=0, outpre=0, lag2=0, idnt=1, xnt=0, cps=0, xs=1, qe=2, qb=10, pro=2, cpw=0, hnt=0, Dinit=3, pkw=0, opi=1, hard=0, w2t=1, frb=12, fry=6, cal=1, mst=17, tau0=460, dA=7, dB=-13, dC=7, lag=480, cfrom=30, pick2=4, pftrig=26,
           caltries=2, calsleep=20, dbg=0, trace=0)
for a in sys.argv[2:]:
    k, v = a.split('=')
    assert k in opt, k
    opt[k] = int(v)
D1 = opt['D1']; D2 = opt['D2']; STAMPS = opt['stamps']; SPIN = opt['spin']

def f32(x): return '0x%08x' % struct.unpack('<I', struct.pack('<f', x))[0]
LOG2E = 1.4426950408889634

QP = 0x0
OP = 0x80000
ST = 0xB0000
ID = 0xB8000
YP = 0xC0000
EP = 0xE0000
PF = 0xE8000
CAL = 0xEA000
FP = 0x100000
PB = 0x1A0000
SP = 0x200000
PA = 0x220000
PS = 0x2A0000
PH = 0x2A4000
CB = 0x300000
WSN = 0x400000
FAST = 0x400000
QL = 0
QF = 384
SL = 512
CNT = 640
OKF = QF + 64; PREF = CNT + 20; ORG = CNT + 40; SUMS = CNT + 56
HID = 704
HRDY = HID + 32
CL = 768
OL = 1024
RL = 7168
WL = 8704
TRL = WL + 49152
LDS = TRL + (2048 if opt['trace'] else 0)

A = Asm()
A.raw(open(os.path.join(os.path.dirname(os.path.abspath(__file__)), '..', NAME + '.s.ref')).read().split('; Override launch')[0].rstrip())
A.raw(f"; @launch grid=(256,1,1) block=(768,1,1) lds={LDS}")
A.raw('''; Generated by gen/gen19.py (hand-written generator).  One persistent launch, 256 workgroups x 12 waves, 1 per CU.
;  3 helper waves: LN(x) and an 80-row slice of the q projection; 4th helper: LDS init, XCD-locality check, stats.
;  the group is proven to sit on one XCD, a write-through copy as well, so any placement is correct.  Hand-offs
;  HBM bandwidth is shared out evenly: a streaming wave that is ahead of the chip-wide mean progress (sampled once in
;  s_sleep is used only as back-off inside / ahead of polling loops.''')
A.raw('.amdgcn_target "amdgcn-amd-amdhsa--gfx950"')
A.raw('.text')
A.raw(f'.globl {NAME}_kernel')
A.raw('.p2align 8')
A.raw(f'.type {NAME}_kernel,@function')
A.raw(f'{NAME}_kernel:')

def stamp(i):
    if STAMPS: A(f's_memrealtime s[{80+2*i}:{81+2*i}]')
def write_stamps(base_idx):
    if not STAMPS: return
    A('s_waitcnt lgkmcnt(0)')
    A('s_mov_b64 exec, 1')
    A('s_lshl3_add_u32 s68, s5, s4')
    A('s_lshl_b32 s68, s68, 8')
    A(f's_add_u32 s68, s68, {SP + base_idx*8}')
    A('v_mov_b32 v1, 0')
    for q in range(4):
        for e in range(4): A(f'v_mov_b32 v{4+e}, s{80+4*q+e}')
        A(f'buffer_store_dwordx4 v[4:7], v1, s[24:27], s68 offen offset:{16*q}')
        A('s_nop 2')
def stamp_val(idx, lo, hi, plus_wave=False):
    if not STAMPS: return
    A('s_lshl3_add_u32 s98, s5, s4')
    A('s_lshl_b32 s98, s98, 8')
    A(f's_add_u32 s98, s98, {SP + idx*8}')
    if plus_wave: A('s_lshl3_add_u32 s98, s3, s98')
    A('s_waitcnt lgkmcnt(0)')
    A(f'v_mov_b32 v164, s{lo}\nv_mov_b32 v165, s{hi}\nv_mov_b32 v163, 0')
    A('s_mov_b64 exec, 1')
    A('buffer_store_dwordx2 v[164:165], v163, s[24:27], s98 offen')
    A('s_mov_b64 exec, -1')
    A('s_nop 1')
def stamp_now(idx, plus_wave=False):
    if not STAMPS: return
    A('s_memrealtime s[96:97]')
    stamp_val(idx, 96, 97, plus_wave)

def srd(d, ptr, nbytes):
    A(f's_mov_b32 s{d}, s{ptr}')
    A(f's_mov_b32 s{d+1}, s{ptr+1}')
    A(f's_mov_b32 s{d+2}, {nbytes}')
    A(f's_mov_b32 s{d+3}, 0x20000')
def ws_srds():
    srd(24, 58, WSN)
    A(f's_add_u32 s32, s58, {FAST}')
    A('s_addc_u32 s33, s59, 0')
    A(f's_mov_b32 s34, {WSN}')
    A('s_mov_b32 s35, 0x20000')
    A('s_lshl3_add_u32 s71, s6, s7')
    A('''
s_mul_i32 s5, s79, 5
s_mul_i32 s47, s79, 3
s_add_u32 s47, s47, 15
s_cmp_lt_u32 s7, 5
s_cselect_b32 s5, s5, s47
s_add_u32 s5, s5, s7
''')

ALL = (1 << 64) - 1
def setexec(mask):
    if mask == ALL: A('s_mov_b64 exec, -1'); return
    A(f's_mov_b32 exec_lo, 0x{mask & 0xffffffff:x}')
    A(f's_mov_b32 exec_hi, 0x{mask >> 32:x}')

DPPM = 'row_mask:0xf bank_mask:0xf'
def allreduce8(op, regs):
    for pat in ('quad_perm:[1,0,3,2]', 'quad_perm:[2,3,0,1]', 'row_half_mirror'):
        for r in regs: A(f'{op}_dpp v{r}, v{r}, v{r} {pat} {DPPM}')
def allreduce16(op, regs):
    allreduce8(op, regs)
    for r in regs: A(f'{op}_dpp v{r}, v{r}, v{r} row_mirror {DPPM}')
def swapreduce(sw, op, regs, tmps):
    for r, t in zip(regs, tmps): A(f'v_mov_b32 v{t}, v{r}')
    for r, t in zip(regs, tmps): A(f'{sw} v{r}, v{t}')
    for r, t in zip(regs, tmps): A(f'{op} v{r}, v{r}, v{t}')
S16 = 'v_permlane16_swap_b32'; S32 = 'v_permlane32_swap_b32'
def allreduce_rows(op, regs, tmps):
    swapreduce(S16, op, regs, tmps); swapreduce(S32, op, regs, tmps)
def allreduce64(op, regs, tmps):
    allreduce16(op, regs); allreduce_rows(op, regs, tmps)
def bf16r(d, s):
    A(f'v_cvt_pk_bf16_f32 v{d}, v{s}, v{s}')
    A(f'v_lshlrev_b32 v{d}, 16, v{d}')
def mktag():
    A('''
s_waitcnt lgkmcnt(0)
s_mul_i32 s30, s28, 0x2c9277b5
s_add_u32 s30, s30, 0xac564b05
s_mul_i32 s31, s29, 0x0019660d
s_add_u32 s31, s31, 0x3c6ef35f
''')
lbl = [0]
def newlabel(p):
    lbl[0] += 1
    return f'L_{p}_{lbl[0]}'

def tagcheck(pairs):
    A(f'v_cmp_ne_u64 vcc, s[30:31], v[{pairs[0]}:{pairs[0]+1}]')
    tm = [(20, 21), (22, 23)]
    pend = []
    for i, p in enumerate(pairs[1:]):
        t = tm[i % 2]
        if len(pend) == 2:
            q = pend.pop(0); A(f's_or_b64 vcc, vcc, s[{q[0]}:{q[1]}]')
        A(f'v_cmp_ne_u64 s[{t[0]}:{t[1]}], s[30:31], v[{p}:{p+1}]')
        pend.append(t)
    for q in pend: A(f's_or_b64 vcc, vcc, s[{q[0]}:{q[1]}]')

def spin(body, sleep=0, retry=None, entry=None):
    top = newlabel('spin'); done = newlabel('sdone')
    A(f's_mov_b32 s70, {SPIN}')
    if entry: A(f's_branch {entry}')
    A(f'{top}:')
    body()
    A('s_nop 0')
    A(f's_cbranch_vccz {done}')
    if sleep: A(f's_sleep {sleep}')
    if retry: retry()
    A('s_sub_u32 s70, s70, 1')
    A(f's_cbranch_scc0 {top}')
    if opt['trap']:
        A(f's_lshl_b32 s99, s2, 8\ns_or_b32 s99, s99, s3\ns_lshl_b32 s99, s99, 8\ns_or_b32 s99, s99, {lbl[0] & 255}')
        A(f'v_mov_b32 v166, {4 * (lbl[0] % 64)}\nv_mov_b32 v167, s99')
        A('global_store_dword v166, v167, s[56:57]')
    A(f'{done}:')
def spin2(body, sleep=0, retry=None, local_only=False, entry=None):
    A(f's_mov_b32 s16, s32\ns_mov_b32 s17, s33\ns_mov_b32 s18, {WSN}\ns_mov_b32 s19, 0x20000')
    def rt():
        if retry: retry()
        A('s_and_b32 s99, s70, 7')
        if local_only:
            A('s_cmp_eq_u32 s46, 1')
            A('s_cselect_b32 s99, 1, s99')
            A('s_cmp_lg_u32 s99, 0')
        A('s_cselect_b32 s16, s32, s24')
        A('s_cselect_b32 s17, s33, s25')
    spin(body, sleep, rt, entry)

def freepoll(issue, check, nchk, done, bound=None):
    top = newlabel('fp')
    A(f's_mov_b32 s70, {SPIN}')
    A(f'{top}:')
    issue()
    for k in range(nchk):
        check()
        A('s_nop 0')
        A(f's_cbranch_vccz {done}')
    A(f"s_waitcnt vmcnt({bound or opt['frb']})")
    A('s_sub_u32 s70, s70, 1')
    A(f's_cbranch_scc0 {top}')
    A(f's_branch {done}')

def lds_wait_ge(off, n, sleep, dst=4, adr=1):
    A(f'v_mov_b32 v{adr}, 0')
    def body():
        A(f'ds_read_b32 v{dst}, v{adr} offset:{off}')
        A('s_waitcnt lgkmcnt(0)')
        A(f'v_cmp_gt_u32 vcc, {n}, v{dst}')
    spin(body, sleep=sleep)
def get_mode(dst=4, adr=1):
    lds_wait_ge(CNT + 8, 1, 2, dst, adr)
    A(f'v_readfirstlane_b32 s46, v{dst}')
def get_pref(sleep, dst=4, adr=1):
    lds_wait_ge(PREF, 1, sleep, dst, adr)
    A(f'v_readfirstlane_b32 s47, v{dst}')

outline = []
def publish(stores):
    def emit(srdn, fl, AA):
        cur = ALL
        for m, line in stores:
            m = ALL if m is None else m
            if m != cur:
                if m == ALL: AA('s_mov_b64 exec, -1')
                else: AA(f's_mov_b32 exec_lo, 0x{m & 0xffffffff:x}\ns_mov_b32 exec_hi, 0x{m >> 32:x}')
                cur = m
            AA(line.replace('@', f's[{srdn}:{srdn+3}]') + fl)
        if cur != ALL: AA('s_mov_b64 exec, -1')
    if not opt['forceslow']: emit(32, '', A)
    slow = newlabel('slow'); back = newlabel('back')
    A('s_cmp_lg_u32 s46, 1')
    A(f's_cbranch_scc1 {slow}')
    A(f'{back}:')
    blk = [f'{slow}:']
    emit(24, ' sc1', lambda t: blk.append(t))
    blk.append('s_nop 1')
    blk.append(f's_branch {back}')
    outline.append('\n'.join(blk))

GST = 3072 * 64
GOFF = [60, 61, 62, 63, 64, 65, 66, 67]
if opt['pro'] == 2:
    A(f"""
s_load_dwordx2 s[8:9], s[0:1], 8
v_readfirstlane_b32 s3, v0
s_lshr_b32 s79, s2, 6
s_cmp_gt_u32 s79, 3
s_cbranch_scc1 L_end
s_lshr_b32 s3, s3, 6
s_cmp_gt_u32 s3, 3
s_cbranch_scc1 L_str
{('s_cmp_ge_u32 s2, %d' % opt['cpw'] + chr(10) + 's_cbranch_scc1 L_helper0') if opt['cpw'] else ''}
s_getpc_b64 s[20:21]
L_pc0:
v_lshlrev_b32 v8, 7, v0
v_min_u32 v8, L_codeend-L_pc0-4, v8
global_load_dword v166, v8, s[20:21]
s_branch L_helper0
L_str:
s_and_b32 s4, s2, 7
s_lshl2_add_u32 s6, s4, s79
s_bfe_u32 s7, s2, 0x30003
s_lshl_b32 s60, s6, 10
s_lshl1_add_u32 s60, s7, s60
s_addk_i32 s60, 895
s_mulk_i32 s60, 12288
v_lshlrev_b32 v3, 4, v0
v_lshrrev_b32 v2, 3, v0
v_lshl_add_u32 v1, v2, 8, v3
s_lshl_b32 s10, 3, 27
s_mov_b32 s11, 0x20000
s_waitcnt lgkmcnt(0)
""")
else:
    A("""
s_load_dwordx2 s[8:9], s[0:1], 8
s_lshr_b32 s79, s2, 6
s_cmp_gt_u32 s79, 3
s_cbranch_scc1 L_end
v_readfirstlane_b32 s3, v0
s_and_b32 s4, s2, 7
s_lshl2_add_u32 s6, s4, s79
s_bfe_u32 s7, s2, 0x30003
s_lshr_b32 s73, s3, 6
s_cmp_gt_u32 s73, 7
s_cbranch_scc1 L_helper0
s_lshl_b32 s60, s6, 9
s_add_u32 s60, s60, s7
s_addk_i32 s60, 448
s_mulk_i32 s60, 24576
v_lshlrev_b32 v3, 4, v0
v_lshrrev_b32 v2, 3, v0
v_lshl_add_u32 v1, v2, 8, v3
s_lshl_b32 s10, 3, 27
s_mov_b32 s11, 0x20000
s_waitcnt lgkmcnt(0)
""")
for j in range(3): A(f'buffer_load_dwordx4 v[{16+4*j}:{19+4*j}], v1, s[8:11], s60 offen offset:{128*j} nt')
def prologue2():
    A("""
s_load_dwordx16 s[36:51], s[0:1], 0
s_load_dwordx8 s[52:59], s[0:1], 64
""")
    stamp(0)
    if opt['dbg']: A('s_memrealtime s[80:81]')
A("""
s_branch L_stream0
L_helper0:
""")
prologue2()
CPF = 's_getpc_b64 s[20:21]\nL_pc0:\nv_lshlrev_b32 v8, 7, v0\nv_add_u32 v9, 8192, v8\nv_min_u32 v9, L_codeend-L_pc0-4, v9\nglobal_load_dword v10, v8, s[20:21]\nglobal_load_dword v11, v9, s[20:21]\nv_add_u32 v9, 16384, v8\nv_min_u32 v9, L_codeend-L_pc0-4, v9\nglobal_load_dword v30, v9, s[20:21]\n'
if opt['cps']:
    n = opt['cps']; nw = -(-136 // n)
    CPF = f's_getpc_b64 s[20:21]\nL_pc0:\ns_lshr_b32 s22, s2, 3\n'
    if nw < 32: CPF += f's_mul_i32 s23, s22, {(65536 + nw - 1) // nw}\ns_lshr_b32 s23, s23, 16\ns_mul_i32 s23, s23, {nw}\ns_sub_u32 s22, s22, s23\n'
    CPF += f's_mul_i32 s22, s22, {128 * n}\ns_min_u32 s22, s22, L_codeend-L_pc0-{128 * (n - 1) + 4}\ns_add_u32 s20, s20, s22\ns_addc_u32 s21, s21, 0\n'
    for i in range(n): CPF += f's_load_dword s{80 + i}, s[20:21], {128 * i}\n'
if opt['pro'] == 2: CPF = ''
W3 = f"""
{'' if opt['cps'] else CPF}v_lshlrev_b32 v1, 3, v0
v_mov_b32 v4, 0
v_mov_b32 v5, 0
ds_write_b64 v1, v[4:5] offset:{QF}
s_waitcnt lgkmcnt(0)
s_memrealtime s[62:63]
s_barrier
s_load_dwordx2 s[28:29], s[58:59], {EP}
{CPF if opt['cps'] else ''}s_branch L_ids
"""
QE = f"""
v_lshrrev_b32 v2, 3, v0
v_mul_u32_u24 v2, 12160, v2
v_lshl_add_u32 v2, v0, 4, v2
s_mul_i32 s68, s7, {80*96}
s_mul_i32 s69, s6, 3
s_add_u32 s68, s68, s69
s_add_u32 s68, s68, s3
s_lshl_b32 s68, s68, 7
s_lshl_b32 s69, 3, 15
s_mov_b32 s10, {640*6144*2}
s_mov_b32 s11, 0x20000
s_waitcnt lgkmcnt(0)
s_mov_b64 s[8:9], s[42:43]
"""
for r in range(10):
    if r == opt['qb']: QE += 's_barrier\n'
    QE += f'buffer_load_dwordx4 v[{24+4*r}:{27+4*r}], v2, s[8:11], s68 offen nt\n'
    if r < 9: QE += 's_add_u32 s68, s68, s69\n'
QE += 's_branch L_helper\n'
if opt['pro'] == 2: A('s_and_b32 s4, s2, 7\ns_lshl2_add_u32 s6, s4, s79\ns_bfe_u32 s7, s2, 0x30003')
else: A('s_sub_u32 s3, s73, 8')
A('v_and_b32 v0, 63, v0\ns_cmp_lg_u32 s3, 3')
if opt['qe'] == 0: A('s_cbranch_scc1 L_helper' + W3)
elif opt['qe'] == 1: A('s_cbranch_scc1 L_qe' + W3 + 'L_qe:' + QE)
else: A('s_cbranch_scc0 L_w3' + QE + 'L_w3:' + W3)
A('L_stream0:')
prologue2()
if opt['trace']: A('s_memrealtime s[20:21]')
A(f"""
v_and_b32 v0, 63, v0
{'s_sub_u32 s73, s3, 4' if opt['pro'] == 2 else 's_add_u32 s3, s73, 4'}
v_and_b32 v3, 0x70, v3
""")

QR = 4; KR = 16
def stream(G, D1, D2, Vpre):
    SC = 168 - G
    VR = KR + 12 * G
    nV1 = min((SC - VR) // 12, G)
    ACC = KR + 12 * (G - 2)
    T = ACC
    half = (G + 1) // 2
    st = dict(n=0)
    def vreg(g): return VR + 12 * g if g < nV1 else KR + 12 * (g - nV1)
    CTL = bool(opt['cal'])
    def issue_load(kind, g, j, depth):
        n = st['n']
        if CTL and n >= opt['cfrom']:
            go = newlabel('go')
            A('s_waitcnt lgkmcnt(0)\ns_lshl_b32 s75, s76, 4\ns_sub_u32 s75, s75, s78\ns_and_b32 s75, s75, s72\ns_add_u32 s78, s78, s79')
            if opt['lag2']: A(f"s_waitcnt vmcnt({depth+1})\ns_cmp_gt_i32 s75, {opt['lag2']}\ns_cbranch_scc1 {go}")
            A(f"s_waitcnt vmcnt({depth})\ns_cmp_gt_i32 s75, {opt['lag']}\ns_cbranch_scc1 {go}")
            A(f's_waitcnt vmcnt({depth-1})\ns_cmp_ge_i32 s75, 0\ns_cbranch_scc1 {go}\ns_waitcnt vmcnt({depth-2})')
            if opt['hard']: A(f"s_cmp_ge_i32 s75, {-opt['hard']}\ns_cbranch_scc1 {go}\ns_waitcnt vmcnt({depth-3})")
            A(f'{go}:')
        elif n >= max(depth, opt['Dinit']): A(f's_waitcnt vmcnt({depth-1})')
        r = (KR + 12 * g + 4 * j) if kind == 'K' else vreg(g) + 4 * j
        s = 8 if kind == 'K' else 12
        if n >= 3: A(f'buffer_load_dwordx4 v[{r}:{r+3}], v1, s[{s}:{s+3}], s{GOFF[g]} offen offset:{128*j} nt')
        if opt['trace'] or (CTL and (opt['cfrom'] - 1 <= n < 47 or n == opt['mst'])): A('s_memrealtime s[76:77]')
        if opt['trace'] and n >= 3:
            A(f's_waitcnt lgkmcnt(0)\ns_sub_u32 s75, s76, s20\ns_lshl_b32 s77, s73, 8\nv_mov_b32 v6, s77\nv_mov_b32 v7, s75\nds_write_b32 v6, v7 offset:{TRL + 4*n}')
        if CTL and n == opt['mst']:
            A(f'''
s_waitcnt lgkmcnt(0)
v_mov_b32 v6, 0
v_mov_b32 v8, s76
v_mov_b32 v9, 1
s_mov_b64 exec, 1
ds_add_u32 v6, v8 offset:{SUMS}
ds_add_u32 v6, v9 offset:{SUMS+4}
s_mov_b64 exec, -1
''')
        if CTL and n in (opt['cfrom'] - 1, opt['cfrom'] - 1 + opt['pick2']):
            A(f'''
v_mov_b32 v6, 0
ds_read_b64 v[6:7], v6 offset:{ORG}
s_movk_i32 s79, {opt['tau0']}
s_waitcnt lgkmcnt(0)
v_readfirstlane_b32 s78, v6
v_readfirstlane_b32 s72, v7
s_add_u32 s78, s78, {(n - opt['mst']) * opt['tau0']}
''')
        if CTL and n == opt['pftrig']:
            A(f'v_mov_b32 v6, 0\nv_mov_b32 v7, 1\ns_mov_b64 exec, 1\nds_add_u32 v6, v7 offset:{CNT+52}\ns_mov_b64 exec, -1')
        st['n'] += 1
    for g in range(G):
        for j in range(3):
            issue_load('K', g, j, D1)
            if j == 2 and g + 1 < G:
                A(f's_add_u32 s{GOFF[g+1]}, s{GOFF[g]}, {GST}')
            if st['n'] == opt['Dinit']: A('s_waitcnt lgkmcnt(0)\ns_barrier')
            if st['n'] == opt['Dinit'] + 1:
                A(f's_load_dwordx2 s[28:29], s[58:59], {EP}')
                ws_srds(); srd(12, 40, 402653184)
    stamp(1)
    nv = 0; NV = 3 * G
    for n in range(min(Vpre, 3 * nV1)):
        issue_load('V', nv // 3, nv % 3, D2); nv += 1
    stamp(2)
    mktag()
    A('v_and_b32 v2, 3, v0\nv_min_u32 v2, 2, v2\nv_lshlrev_b32 v2, 3, v2')
    def body():
        A(f'ds_read_b32 v{QR}, v2 offset:{QF}')
        A('s_waitcnt lgkmcnt(0)')
        A(f'v_cmp_eq_u32 vcc, 0, v{QR}')
    spin(body, sleep=1)
    stamp(3)
    A(f'''
ds_read_b128 v[{QR}:{QR+3}], v3 offset:{QL}
ds_read_b128 v[{QR+4}:{QR+7}], v3 offset:{QL+128}
ds_read_b128 v[{QR+8}:{QR+11}], v3 offset:{QL+256}
''')
    for g in range(G): A(f'v_mov_b32 v{SC+g}, 0')
    A(f's_waitcnt vmcnt({nv}) lgkmcnt(0)')
    for gs in (range(half), range(half, G)):
        for i in range(12):
            for g in gs:
                A(f'v_dot2c_f32_bf16 v{SC+g}, v{KR+12*g+i}, v{QR+i}')
    allreduce8('v_add_f32', [SC + g for g in range(G)])
    A(f's_mov_b32 s68, {f32(192 ** -0.5)}')
    A('v_mov_b32 v2, 0')
    for g in range(G): A(f'v_cvt_pk_bf16_f32 v{SC+g}, v2, v{SC+g}')
    for g in range(G): A(f'v_mul_f32 v{SC+g}, s68, v{SC+g}')
    for g in range(G): A(f'v_cvt_pk_bf16_f32 v{SC+g}, v2, v{SC+g}')
    A(f'v_max_f32 v4, v{SC}, v{SC+1}')
    g = 2
    while g < G:
        if g + 1 < G: A(f'v_max3_f32 v4, v4, v{SC+g}, v{SC+g+1}'); g += 2
        else: A(f'v_max_f32 v4, v4, v{SC+g}'); g += 1
    A(f'v_max_f32_dpp v4, v4, v4 row_ror:8 {DPPM}')
    allreduce_rows('v_max_f32', [4], [T])
    A(f's_mov_b32 s68, {f32(LOG2E)}')
    for g in range(G): A(f'v_sub_f32 v{SC+g}, v{SC+g}, v4')
    for g in range(G): A(f'v_mul_f32 v{SC+g}, s68, v{SC+g}')
    for g in range(G): A(f'v_exp_f32 v{SC+g}, v{SC+g}')
    A(f'v_add_f32 v5, v{SC}, v{SC+1}')
    for g in range(2, G): A(f'v_add_f32 v5, v5, v{SC+g}')
    A(f'v_add_f32_dpp v5, v5, v5 row_ror:8 {DPPM}')
    allreduce_rows('v_add_f32', [5], [T])
    A(f'''
s_lshl_b32 s69, s73, 4
v_mov_b32 v{T}, s69
v_mov_b32 v6, 1
v_mov_b32 v7, 1
ds_write_b128 v{T}, v[4:7] offset:{SL}
''')
    stamp(4)
    for g in range(G): A(f'v_cvt_pk_bf16_f32 v{SC+g}, v{SC+g}, v2')
    for i in range(24): A(f'v_mov_b32 v{ACC+i}, 0')
    A('''
v_and_b32 v8, 7, v0
v_lshlrev_b32 v8, 5, v8
v_lshrrev_b32 v9, 4, v0
v_lshl_add_u32 v8, v9, 3, v8
s_mul_i32 s69, s73, 768
v_add_u32 v8, s69, v8
v_mov_b32 v11, 1
''')
    def pv(idx):
        g, j = divmod(idx, 3)
        r = vreg(g) + 4 * j
        if j == 0: A(f'v_lshlrev_b32 v10, 16, v{SC+g}')
        for e in range(4):
            A(f'v_dot2c_f32_bf16 v{ACC+8*j+2*e}, v{r+e}, v{SC+g}')
            A(f'v_dot2c_f32_bf16 v{ACC+8*j+2*e+1}, v{r+e}, v10')
    done_idx = -1; pv_next = 0
    while nv < NV:
        issue_load('V', nv // 3, nv % 3, D2)
        done_idx = nv - D2 - ((2 if opt['lag2'] else 1) if CTL else 0)
        nv += 1
        if nv == NV - opt['wtrig']:
            A(f's_mov_b64 exec, 1\nds_add_u32 v2, v11 offset:{CNT+4}\ns_mov_b64 exec, -1')
        cnt = 0
        while pv_next <= done_idx and cnt < 2:
            pv(pv_next); pv_next += 1; cnt += 1
    def scale_factor():
        if opt['sprio']: A('s_setprio 3')
        def body():
            A(f'ds_read_b128 v[12:15], v3 offset:{SL}')
            A('s_waitcnt lgkmcnt(0)')
            A('v_cmp_eq_u32 vcc, 0, v15')
        spin(body, sleep=1)
        allreduce8('v_max_f32', [12])
        A('v_sub_f32 v9, v4, v12\nv_mul_f32 v9, s68, v9\nv_exp_f32 v9, v9')
        get_mode(dst=13, adr=2)
        A(f'''
v_min_u32 v12, 47, v0
v_lshlrev_b32 v13, 7, v12
v_lshlrev_b32 v12, 4, v12
s_mul_i32 s74, s6, 6144
s_lshl4_add_u32 s74, s7, s74
s_add_u32 s74, s74, {OP}
s_mov_b32 s22, 0xaaaaaaaa
s_mov_b32 s23, 0xaaaaaaaa
v_mov_b32 v14, s30
v_mov_b32 v15, s31
''')
    def reduce_j(js):
        for j in js:
            for e in range(4): A(f'{S32} v{ACC+8*j+e}, v{ACC+8*j+e+4}')
        for j in js:
            for e in range(4): A(f'v_add_f32 v{ACC+8*j+e}, v{ACC+8*j+e}, v{ACC+8*j+e+4}')
        for j in js:
            for e in range(2): A(f'{S16} v{ACC+8*j+e}, v{ACC+8*j+e+2}')
        for j in js:
            for e in range(2): A(f'v_add_f32 v{ACC+8*j+e}, v{ACC+8*j+e}, v{ACC+8*j+e+2}')
        for j in js:
            for e in range(2): A(f'v_add_f32_dpp v{ACC+8*j+e}, v{ACC+8*j+e}, v{ACC+8*j+e} row_ror:8 {DPPM}')
        for j in js:
            for e in range(2): A(f'v_mul_f32 v{ACC+8*j+e}, v9, v{ACC+8*j+e}')
            A(f'ds_write_b64 v8, v[{ACC+8*j}:{ACC+8*j+1}] offset:{OL+256*j}')
    fd = False
    while pv_next < NV:
        if pv_next >= NV - 3 and not fd:
            scale_factor(); fd = True
        if pv_next > done_idx:
            A(f's_waitcnt vmcnt({NV - 1 - pv_next})')
            done_idx = pv_next
        pv(pv_next); pv_next += 1
        if pv_next > NV - 3: reduce_j([(pv_next - 1) % 3])
    stamp(5)

stream(8, D1, D2, opt['Vpre'])
A(f'''
s_mov_b64 exec, 1
ds_add_rtn_u32 v10, v2, v11 offset:{CNT}
s_mov_b64 exec, -1
''')
for w in range(8): A(f'ds_read_b128 v[{16+4*w}:{19+4*w}], v12 offset:{OL+768*w}')
A('''
s_waitcnt lgkmcnt(8)
v_readfirstlane_b32 s68, v10
s_cmp_lg_u32 s68, 7
s_cbranch_scc1 L_nopub
''')
def pkadd(d, a, b):
    for e in (0, 2): A(f'v_pk_add_f32 v[{d+e}:{d+e+1}], v[{a+e}:{a+e+1}], v[{b+e}:{b+e+1}]')
for w in range(0, 8, 2):
    A(f's_waitcnt lgkmcnt({6-w})')
    pkadd(16 + 4*w, 16 + 4*w, 20 + 4*w)
    if w == 2 or w == 6: pkadd(8 + 4*w, 8 + 4*w, 16 + 4*w)
pkadd(4, 16, 32)
A('''
v_cvt_pk_bf16_f32 v8, v4, v5
v_cvt_pk_bf16_f32 v9, v6, v7
v_cndmask_b32 v4, v8, v14, s[22:23]
v_cndmask_b32 v5, v9, v15, s[22:23]
v_cndmask_b32 v6, v14, v8, s[22:23]
v_cndmask_b32 v7, v15, v9, s[22:23]
''')
publish([((1 << 48) - 1, 'buffer_store_dwordx4 v[4:7], v13, @, s74 offen')])
A(f'ds_write_b32 v2, v11 offset:{CNT+28}')
stamp_now(16)
A('L_nopub:')
if opt['sprio']: A('s_setprio 0')
A('s_waitcnt lgkmcnt(0)')
if opt['trace']:
    A(f'''
s_lshl_b32 s68, s73, 8
v_lshl_add_u32 v16, v0, 2, s68
ds_read_b32 v17, v16 offset:{TRL}
s_lshl_b32 s68, s2, 11
s_add_u32 s68, s68, {0x380000}
s_waitcnt lgkmcnt(0)
buffer_store_dword v17, v16, s[24:27], s68 offen
s_nop 2
''')
stamp(6)
A('''
s_cmp_lt_u32 s5, 20
s_cbranch_scc1 L_notf1
s_cmp_lt_u32 s5, 30
s_cbranch_scc1 L_f1
s_branch L_stream_exit
L_notf1:
s_cmp_gt_u32 s5, 11
s_cbranch_scc1 L_stream_exit
s_cmp_gt_u32 s3, 6
s_cbranch_scc1 L_f2
s_endpgm
L_stream_exit:
''')
if STAMPS:
    A(f"s_cmp_eq_u32 s3, {opt['swave']}")
    A('s_cbranch_scc0 L_end')
    stamp(7)
    write_stamps(8)
A('s_endpgm')

A('L_helper:')
A('s_setprio 3')
A('''
v_lshlrev_b32 v1, 2, v0
v_lshrrev_b32 v2, 3, v0
s_mul_i32 s68, s7, 80
v_add_u32 v3, s68, v2
v_lshlrev_b32 v3, 1, v3
v_mul_u32_u24 v2, 12288, v2
v_and_b32 v7, 7, v0
v_lshl_add_u32 v2, v7, 4, v2
s_mul_i32 s68, s68, 12288
s_mul_i32 s69, s6, 384
s_add_u32 s68, s68, s69
s_lshl_b32 s69, s3, 7
s_add_u32 s68, s68, s69
''')
XS = 64; XU = 70; XR = 8; WQ = 24; QA = 80
A('s_waitcnt lgkmcnt(0)')
if opt['xs'] == 1:
    for i in range(10): A(f's_load_dword s{12+i}, s[36:37], {128*i}')
if not (opt['qe'] and opt['qb'] < 10): A('s_barrier')
srd(8, 42, 640 * 6144 * 2)
if opt['xs']:
    for r in range(0 if opt['qe'] else 10):
        A(f'buffer_load_dwordx4 v[{WQ+4*r}:{WQ+4*r+3}], v2, s[8:11], s68 offen nt')
        if r < 9: A('s_add_u32 s68, s68, 98304')
    if opt['xs'] == 1: A('s_waitcnt lgkmcnt(0)')
    for i in range(5): A(f'global_load_dword v{XS+i}, v1, s[36:37] offset:{256*i}' + (' nt' if opt['xnt'] else ''))
    for r in range(10): A(f'global_load_ushort v{XR+r}, v3, s[36:37] offset:{16*r}' + (' nt' if opt['xnt'] else ''))
else:
    for i in range(5): A(f'global_load_dword v{XS+i}, v1, s[36:37] offset:{256*i}' + (' nt' if opt['xnt'] else ''))
    for r in range(10): A(f'global_load_ushort v{XR+r}, v3, s[36:37] offset:{16*r}' + (' nt' if opt['xnt'] else ''))
    for r in range(10):
        A(f'buffer_load_dwordx4 v[{WQ+4*r}:{WQ+4*r+3}], v2, s[8:11], s68 offen nt')
        if r < 9: A('s_add_u32 s68, s68, 98304')
A(f's_load_dwordx2 s[28:29], s[58:59], {EP}')
A('s_mov_b32 s69, 0xffff0000')
ws_srds()
mktag()
A(f"s_waitcnt vmcnt({10 if opt['xs'] else 20})")
for i in range(5):
    A(f'v_lshlrev_b32 v{XU+2*i}, 16, v{XS+i}')
    A(f'v_and_b32 v{XU+1+2*i}, s69, v{XS+i}')
A(f'''
v_add_f32 v4, v{XU}, v{XU+1}
v_add_f32 v5, v{XU+2}, v{XU+3}
v_add_f32 v6, v{XU+4}, v{XU+5}
v_add_f32 v7, v{XU+6}, v{XU+7}
v_add_f32 v4, v4, v5
v_add_f32 v6, v6, v7
v_add_f32 v5, v{XU+8}, v{XU+9}
v_add_f32 v4, v4, v6
v_add_f32 v4, v4, v5
''')
allreduce64('v_add_f32', [4], [5])
A(f'v_mul_f32 v4, {f32(1.0/640)}, v4')
for i in range(10): A(f'v_sub_f32 v{XU+i}, v{XU+i}, v4')
A(f'v_mul_f32 v5, v{XU}, v{XU}')
for i in range(1, 10): A(f'v_fmac_f32 v5, v{XU+i}, v{XU+i}')
allreduce64('v_add_f32', [5], [6])
A(f'v_mul_f32 v5, {f32(1.0/640)}, v5')
bf16r(4, 4); bf16r(5, 5)
A(f'v_add_f32 v5, {f32(1e-5)}, v5')
bf16r(5, 5)
A('v_sqrt_f32 v5, v5')
bf16r(5, 5)
A('v_rcp_f32 v5, v5')
A('v_mov_b32 v6, 0')
A(f"s_waitcnt vmcnt({0 if opt['xs'] else 10})")
for r in range(10): A(f'v_lshlrev_b32 v{XR+r}, 16, v{XR+r}')
for r in range(10): A(f'v_sub_f32 v{XR+r}, v{XR+r}, v4')
for r in range(10): A(f'v_cvt_pk_bf16_f32 v{XR+r}, v6, v{XR+r}')
for r in range(10): A(f'v_mul_f32 v{XR+r}, v{XR+r}, v5')
for r in range(10):
    A(f'v_cvt_pk_bf16_f32 v{XU+r}, v6, v{XR+r}')
    A(f'v_cvt_pk_bf16_f32 v{XR+r}, v{XR+r}, v6')
for e in range(8): A(f'v_mov_b32 v{QA+e}, 0')
A('''
v_and_b32 v90, 7, v0
v_lshrrev_b32 v6, 4, v0
v_lshl_add_u32 v90, v90, 2, v6
v_lshlrev_b32 v90, 4, v90
s_lshl_b32 s64, s71, 11
s_lshl_b32 s69, s3, 9
s_add_u32 s64, s64, s69
''')
for r in range(10):
    A(f's_waitcnt vmcnt({9-r})')
    for e in range(4):
        A(f'v_dot2c_f32_bf16 v{QA+2*e}, v{WQ+4*r+e}, v{XR+r}')
        A(f'v_dot2c_f32_bf16 v{QA+2*e+1}, v{WQ+4*r+e}, v{XU+r}')
if STAMPS: A('s_lshr_b32 s82, s2, 3\ns_add_u32 s82, s80, s82\ns_addc_u32 s83, s81, 0')
for e in range(4): A(f'{S32} v{QA+e}, v{QA+e+4}')
for e in range(4): A(f'v_add_f32 v{QA+e}, v{QA+e}, v{QA+e+4}')
for e in range(2): A(f'{S16} v{QA+e}, v{QA+e+2}')
for e in range(2): A(f'v_add_f32 v{QA+e}, v{QA+e}, v{QA+e+2}')
for e in range(2): A(f'v_add_f32_dpp v{QA+e}, v{QA+e}, v{QA+e} row_ror:8 {DPPM}')
A(f'v_mov_b32 v{QA+2}, s30\nv_mov_b32 v{QA+3}, s31')
QM = 0x00ff00ff00ff00ff
if not opt['forceslow']:
    setexec(QM)
    A(f'buffer_store_dwordx4 v[{QA}:{QA+3}], v90, s[32:35], s64 offen offset:{QP}')
    setexec(ALL)
A('''
v_and_b32 v3, 31, v0
v_lshrrev_b32 v2, 5, v0
v_lshlrev_b32 v2, 11, v2
v_lshl_add_u32 v2, v3, 4, v2
s_lshl_b32 s68, s6, 14
s_add_u32 s60, s68, s69
s_add_u32 s61, s60, 4096
s_add_u32 s62, s60, 8192
s_add_u32 s63, s60, 12288
v_lshlrev_b32 v3, 2, v3
s_lshl_b32 s69, s3, 7
v_add_u32 v3, s69, v3
v_mov_b32 v1, 0
s_mov_b32 s65, 0
''')
def q_lazy():
    skip = newlabel('qlazy')
    A(f'''
ds_read_b32 v4, v1 offset:{CNT+8}
s_waitcnt lgkmcnt(0)
v_readfirstlane_b32 s46, v4
s_sub_u32 s68, s46, s65
s_cmp_lg_u32 s68, 2
s_cbranch_scc1 {skip}
''')
    setexec(QM)
    A(f'buffer_store_dwordx4 v[{QA}:{QA+3}], v90, s[24:27], s64 offen offset:{QP} sc1')
    setexec(ALL)
    A(f's_mov_b32 s65, 1\n{skip}:')
def body():
    for n in range(4):
        A(f'buffer_load_dwordx4 v[{8+4*n}:{11+4*n}], v2, s[16:19], s{60+n} offen offset:{QP} sc1' + ' nt')
    A('s_waitcnt vmcnt(0)')
    tagcheck([10, 14, 18, 22])
spin2(body, sleep=opt['sleep'], retry=q_lazy)
stamp(2)
A(f'''
v_add_f32 v8, v8, v12
v_add_f32 v9, v9, v13
v_add_f32 v16, v16, v20
v_add_f32 v17, v17, v21
v_add_f32 v8, v8, v16
v_add_f32 v9, v9, v17
''')
swapreduce(S32, 'v_add_f32', [8, 9], [10, 11])
A(f'''
v_cvt_pk_bf16_f32 v8, v8, v9
ds_write_b32 v3, v8 offset:{QL}
s_lshl_b32 s69, s3, 3
v_mov_b32 v4, s69
v_mov_b32 v6, 1
s_waitcnt lgkmcnt(0)
ds_write_b32 v4, v6 offset:{QF}
''')
get_mode()
q_lazy()
A('s_branch L_stats')
A('L_ids:')
A(f'''
s_setprio 3
s_getreg_b32 s64, hwreg(HW_REG_XCC_ID)
''')
ws_srds()
mktag()
A(f'''
s_and_b32 s64, s64, 15
v_mov_b32 v4, s30
v_mov_b32 v5, s31
v_mov_b32 v6, s64
v_mov_b32 v7, s64
s_lshl_b32 s68, s4, 9
s_add_u32 s68, s68, {ID}
s_lshr_b32 s65, s2, 3
s_lshl_b32 s69, s65, 4
v_mov_b32 v1, s69
s_mov_b64 exec, 1
buffer_store_dwordx4 v[4:7], v1, s[32:35], s68 offen
s_mov_b64 exec, -1
s_cmp_lg_u32 s65, {opt['lead']}
s_cbranch_scc1 L_noinit
v_lshlrev_b32 v12, 8, v0
s_lshl_b32 s69, s4, 15
s_add_u32 s69, s69, {PB}
''')
m = sum(1 << (k * 9 & 31) for k in range(opt['shots']))
setexec(m | m << 32)
A('buffer_store_dword v4, v12, s[24:27], s69 offen sc1\ns_mov_b64 exec, -1')
A(f'''
L_noinit:
v_and_b32 v1, 31, v0
v_lshlrev_b32 v1, 4, v1
s_mov_b32 s70, {opt['idtries']}
s_mov_b32 s46, 2
L_idpoll:
s_sleep {opt['idsleep']}
buffer_load_dwordx4 v[8:11], v1, s[32:35], s68 offen sc1{' nt' if opt['idnt'] else ''}
s_waitcnt vmcnt(0)
v_cmp_ne_u64 vcc, s[30:31], v[8:9]
s_nop 0
s_cbranch_vccz L_iddone
s_sub_u32 s70, s70, 1
s_cbranch_scc0 L_idpoll
s_branch L_idset
L_iddone:
v_cmp_ne_u32 vcc, s64, v10
s_nop 0
s_cbranch_vccnz L_idset
s_mov_b32 s46, {2 if opt['forceslow'] else 1}
L_idset:
v_mov_b32 v1, 0
v_mov_b32 v4, s46
ds_write_b32 v1, v4 offset:{CNT+8}
''')
A(f'''
s_cmp_lg_u32 s65, {opt['lead']}
s_cbranch_scc1 L_pf
s_lshl_b32 s69, s4, 15
s_add_u32 s69, s69, {PB}
s_add_u32 s22, s58, s69
s_addc_u32 s23, s59, 0
s_waitcnt lgkmcnt(0)
s_mov_b32 s8, -1
s_mov_b32 s9, -1
s_memtime s[12:13]
''')
for k in range(2 * opt['shots']):
    c = (k ^ (k >> 1)) & 1
    i = (k >> 1) * 9 & 31
    a, b = (12, 14) if k % 2 == 0 else (14, 12)
    A('s_waitcnt lgkmcnt(0)')
    A(f's_load_dword s10, s[22:23], {c * 8192 + i * 256}')
    A('s_waitcnt lgkmcnt(0)')
    A(f's_memtime s[{b}:{b+1}]')
    A('s_waitcnt lgkmcnt(0)')
    A(f's_sub_u32 s11, s{b}, s{a}')
    A(f's_min_u32 s{8+c}, s{8+c}, s11')
A(f'''
s_cmp_gt_u32 s8, s9
s_cselect_b32 s21, 1, 0
v_mov_b32 v4, s21
v_mov_b32 v5, s62
v_mov_b32 v6, s30
v_mov_b32 v7, s31
s_lshl_b32 s69, s4, 4
s_add_u32 s69, s69, {PF}
s_mov_b64 exec, 1
buffer_store_dwordx4 v[4:7], v1, s[24:27], s69 offen sc1
s_mov_b64 exec, -1
L_pf:
''')
if opt['cal']:
    A(f"s_cmp_lg_u32 s7, {opt['samp']}\ns_cbranch_scc1 L_nosample\nv_mov_b32 v1, 0")
    def body():
        A(f'ds_read_b64 v[4:5], v1 offset:{SUMS}')
        A('s_waitcnt lgkmcnt(0)')
        A('v_cmp_gt_u32 vcc, 8, v5')
    spin(body, sleep=2)
    A(f'''
v_mov_b32 v5, s31
v_lshlrev_b32 v6, 9, v0
s_lshl_b32 s68, s6, 3
s_add_u32 s68, s68, {CAL}
s_mov_b64 exec, {(2 << opt['caltries']) - 1}
buffer_store_dwordx2 v[4:5], v6, s[24:27], s68 offen sc1
s_mov_b64 exec, -1
L_nosample:
''')
    lds_wait_ge(CNT + 52, 8, 4, dst=12)
    A(f'''
s_add_u32 s60, s58, {CAL}
s_addc_u32 s61, s59, 0
s_mov_b32 s70, {opt['caltries']}
L_calpoll:
s_lshl_b32 s96, s62, 8
s_sub_u32 s96, 0, s96
s_mov_b32 s97, 0
''')
    for h in range(2):
        A(f's_load_dwordx16 s[8:23], s[60:61], {128*h}\ns_load_dwordx16 s[80:95], s[60:61], {128*h+64}\ns_waitcnt lgkmcnt(0)')
        for b in (8, 80):
            for i in range(8):
                A(f's_add_u32 s96, s96, s{b+2*i}\ns_cmp_lg_u32 s{b+2*i+1}, s31\ns_addc_u32 s97, s97, 0')
    A(f'''
s_cmp_eq_u32 s97, 0
s_cbranch_scc1 L_calok
s_add_u32 s60, s60, 512
s_addc_u32 s61, s61, 0
s_sub_u32 s70, s70, 1
s_cbranch_scc1 L_stats
s_sleep {opt['calsleep']}
s_branch L_calpoll
L_calok:
s_ashr_i32 s96, s96, 4
s_mov_b32 s68, {16 * opt['dC']}
s_cmp_lt_u32 s5, 30
s_cselect_b32 s68, {16 * opt['dB']}, s68
s_cmp_lt_u32 s5, 20
s_cselect_b32 s68, {16 * opt['dA']}, s68
s_lshl4_add_u32 s68, s62, s68
s_add_u32 s68, s68, s96
v_mov_b32 v12, s68
v_mov_b32 v13, -1
ds_write_b64 v1, v[12:13] offset:{ORG}
''')

A('L_stats:')
A('v_and_b32 v1, 7, v0\nv_lshlrev_b32 v1, 4, v1')
def body():
    A(f'ds_read_b128 v[4:7], v1 offset:{SL}')
    A('s_waitcnt lgkmcnt(0)')
    A('v_cmp_eq_u32 vcc, 0, v7')
spin(body, sleep=4)
A('s_cmp_lg_u32 s3, 3')
A('s_cbranch_scc1 L_nostat')
def combine_stats():
    A(f's_mov_b32 s68, {f32(LOG2E)}')
    A('v_mov_b32 v2, v4')
    allreduce8('v_max_f32', [2])
    A('v_sub_f32 v4, v4, v2\nv_mul_f32 v4, s68, v4\nv_exp_f32 v4, v4\nv_mul_f32 v3, v4, v5')
    allreduce8('v_add_f32', [3])
combine_stats()
A(f'''
s_lshl_b32 s68, s71, 4
s_add_u32 s68, s68, {ST}
v_mov_b32 v4, s30
v_mov_b32 v5, s31
''')
publish([(1, 'buffer_store_dwordx4 v[2:5], v1, @, s68 offen')])
A(f's_mov_b32 s68, {PF}')
def body():
    A('buffer_load_dwordx4 v[8:11], v1, s[24:27], s68 offen sc1')
    A('s_waitcnt vmcnt(0)')
    tagcheck([10])
spin(body, sleep=8)
A('''
v_cmp_ne_u32 vcc, 0, v8
s_nop 0
s_and_b32 s67, vcc_lo, 0xff
s_bitset1_b32 s67, 8
v_mov_b32 v4, s67
v_mov_b32 v1, 0
''')
if opt['dbg']:
    A('v_subrev_u32 v9, s62, v9')
    allreduce8('v_min_i32', [9])
    A(f'v_add_u32 v9, s62, v9\nds_write_b32 v1, v9 offset:{CNT+36}')
A(f'ds_write_b32 v1, v4 offset:{PREF}')
A('L_nostat:')
A('s_cmp_lt_u32 s5, 20\ns_cbranch_scc0 L_helper_exit')
BW = 64
CF = 56
XM = 52
def tr_addr(dst, tmp):
    A(f'''
v_lshrrev_b32 v{dst}, 4, v0
v_lshlrev_b32 v{dst}, 10, v{dst}
v_bfe_u32 v{tmp}, v0, 2, 2
v_lshl_add_u32 v{dst}, v{tmp}, 7, v{dst}
v_and_b32 v{tmp}, 3, v0
v_lshl_add_u32 v{dst}, v{tmp}, 3, v{dst}
''')
A(f'''
s_cmp_ge_u32 s5, 10
s_cselect_b32 s76, 1, 0
s_mul_i32 s77, s76, 10
s_sub_u32 s77, s5, s77
s_lshr_b32 s68, s3, 1
s_lshl1_add_u32 s78, s76, s68
v_bfe_u32 v2, v0, 4, 1
v_lshlrev_b32 v2, 4, v2
s_lshl_b32 s68, s78, 5
v_add_u32 v22, s68, v2
''')
A(f'''
v_lshlrev_b32 v60, 4, v0
s_lshl2_add_u32 s73, s4, s78
s_mul_i32 s73, s73, 6144
s_and_b32 s68, s3, 1
s_mul_i32 s68, s68, 3072
s_add_u32 s73, s73, s68
s_add_u32 s73, s73, {OP}
v_lshlrev_b32 v62, 2, v0
s_lshl_b32 s68, s3, 8
v_add_u32 v61, s68, v62
v_lshrrev_b32 v2, 5, v0
v_lshlrev_b32 v2, 11, v2
v_bfe_u32 v3, v0, 2, 3
v_lshl_add_u32 v2, v3, 4, v2
v_and_b32 v3, 1, v0
v_lshl_add_u32 v63, v3, 13, v2
s_lshr_b32 s75, s77, 1
s_lshl_b32 s75, s75, 14
s_and_b32 s68, s77, 1
s_lshl_b32 s68, s68, 12
s_add_u32 s75, s75, s68
s_lshl1_add_u32 s68, s4, s76
s_lshl_b32 s68, s68, 7
s_add_u32 s75, s75, s68
s_add_u32 s75, s75, {YP}
s_mov_b32 s66, 0xff00ff00
s_mov_b32 s67, 0xff00ff00
s_mov_b32 s8, 0x33333333
s_mov_b32 s9, 0x33333333
v_mov_b32 v6, s30
v_mov_b32 v7, s31
v_cndmask_b32 v{XM}, 0, v6, s[66:67]
v_cndmask_b32 v{XM+1}, 0, v7, s[66:67]
v_cndmask_b32 v{XM+2}, v6, 0, s[66:67]
v_cndmask_b32 v{XM+3}, v7, 0, s[66:67]
v_mov_b32 v50, s30
v_mov_b32 v51, s31
''')
tr_addr(24, 25)
A('s_mul_i32 s69, s3, 12288\nv_add_u32 v24, s69, v24')
A(f'''
s_cmp_lg_u32 s3, 0
s_cbranch_scc1 L_noc
s_lshl_b32 s72, s4, 9
s_add_u32 s72, s72, {ST}
v_and_b32 v1, 31, v0
v_lshlrev_b32 v1, 4, v1
''')
def body():
    A(f"s_sleep {opt['stsleep']}")
    A('buffer_load_dwordx4 v[4:7], v1, s[16:19], s72 offen sc1' + (' nt' if opt['idnt'] else ''))
    A('s_waitcnt vmcnt(0)')
    tagcheck([6])
spin2(body, local_only=True)
stamp(4)
combine_stats()
A(f'''
v_rcp_f32 v3, v3
v_lshrrev_b32 v1, 2, v1
v_mul_f32 v4, v4, v3
v_mov_b32 v2, 0
v_mov_b32 v3, 1
ds_write_b32 v1, v4 offset:{CL}
ds_write_b32 v2, v3 offset:{CNT+24}
L_noc:
''')
lds_wait_ge(CNT + 24, 1, 2)
A(f'ds_read_b128 v[{CF}:{CF+3}], v22 offset:{CL}')
def wo_tr(ts):
    for t in ts:
        for u in range(4):
            r = BW + 4 * (4 * t + u)
            A(f'ds_read_b64_tr_b16 v[{r}:{r+1}], v24 offset:{WL + 4096*t + 32*u}')
            A(f'ds_read_b64_tr_b16 v[{r+2}:{r+3}], v24 offset:{WL + 4096*t + 32*u + 512}')
AO = 112; AO2 = 150
def op_loads(srdn, AO=AO):
    stamp(2)
    for t in range(3):
        A(f'buffer_load_dwordx4 v[{AO+4*t}:{AO+4*t+3}], v60, s[{srdn}:{srdn+3}], s73 offen offset:{1024*t} sc1')
srd(12, 44, 6144 * 640 * 2)
A(f'''
v_lshrrev_b32 v21, 3, v0
v_mul_u32_u24 v21, 1280, v21
v_and_b32 v3, 7, v0
v_lshl_add_u32 v21, v3, 4, v21
s_lshl1_add_u32 s60, s4, s76
s_lshl2_add_u32 s60, s60, s3
s_mul_i32 s60, s60, {96*1280}
s_lshl_b32 s69, s77, 7
s_add_u32 s60, s60, s69
s_mul_i32 s61, s3, 12288
s_add_u32 s61, s61, {WL}
''')
A('v_mov_b32 v23, 1\ns_lshl_b32 s68, s3, 2\nv_mov_b32 v25, s68')
get_pref(4)
lds_wait_ge(CNT + 4, 8, 2)
stamp(3)
for n in range(12):
    if n >= opt['DWF']: A(f"s_waitcnt vmcnt({opt['DWF']-1})")
    A('s_mov_b32 m0, s61')
    A('buffer_load_dwordx4 v21, s[12:15], s60 offen nt lds')
    if n < 11: A(f's_add_u32 s60, s60, {8*1280}\ns_add_u32 s61, s61, 1024')
A('s_waitcnt vmcnt(4)')
wo_tr([0, 1])
if opt['sprio'] > 1: A('s_setprio 1')
lds_wait_ge(CNT + 28, 1, 1)
if opt['sprio'] > 1: A('s_setprio 3')
A(f"s_waitcnt vmcnt({opt['opw']})")
op_loads(32)
A('s_waitcnt vmcnt(3)')
wo_tr([2])
A('s_waitcnt lgkmcnt(0)')
stamp(6)
def op_use(AO, extra):
    for t in range(3):
        A(f's_waitcnt vmcnt({2-t+extra})')
        q = AO + 4 * t
        for e in range(4): A(f'v_xor_b32 v{q+e}, v{q+e}, v{XM+e}')
        def ors():
            if t == 0: A(f'v_or_b32 v2, v{q}, v{q+1}\nv_or_b32 v3, v{q+2}, v{q+3}')
            else: A(f'v_or3_b32 v2, v2, v{q}, v{q+1}\nv_or3_b32 v3, v3, v{q+2}, v{q+3}')
        if opt['opi']: ors()
        for u in range(4):
            r = BW + 4 * (4 * t + u)
            c = '0' if t == 0 else f'v[{32+4*u}:{35+4*u}]'
            A(f'v_mfma_f32_16x16x32_bf16 v[{32+4*u}:{35+4*u}], v[{q}:{q+3}], v[{r}:{r+3}], {c}')
            if opt['opi'] and t == 2 and u == 0: A('v_cndmask_b32 v2, v3, v2, s[66:67]')
            if opt['opi'] and t == 2 and u == 1: A('v_cmp_ne_u32 vcc, 0, v2')
        if not opt['opi']: ors()
    if not opt['opi']:
        A('v_cndmask_b32 v2, v3, v2, s[66:67]')
        A('v_cmp_ne_u32 vcc, 0, v2')
if opt['opp']:
    def body():
        op_loads(16, AO2)
        op_use(AO, 3)
        A('s_nop 0\ns_cbranch_vccz L_opok')
        op_loads(16, AO)
        op_use(AO2, 3)
    spin2(body, local_only=True)
    A('L_opok:')
else:
    def body():
        op_loads(16)
        A('L_opw:')
        op_use(AO, 0)
    spin2(body, sleep=opt['osleep'], local_only=True, entry='L_opw')
stamp(7)
if opt['w2t'] == 0: A(f'ds_write_b32 v25, v23 offset:{OKF}')
if opt['opi']: A('s_nop 0')
if opt['pkw']:
    for u in range(4):
        A(f'v_pk_mul_f32 v[{8+2*u}:{9+2*u}], v[{32+4*u}:{33+4*u}], v[{CF}:{CF+1}]')
        A(f'v_pk_fma_f32 v[{8+2*u}:{9+2*u}], v[{34+4*u}:{35+4*u}], v[{CF+2}:{CF+3}], v[{8+2*u}:{9+2*u}]')
        A(f'v_add_f32 v{4+u}, v{8+2*u}, v{9+2*u}')
else:
    for u in range(4):
        A(f'v_mul_f32 v{4+u}, v{32+4*u}, v{CF}')
        for r in range(1, 4): A(f'v_fmac_f32 v{4+u}, v{32+4*u+r}, v{CF+r}')
A(f'''
{S32} v4, v6
{S32} v5, v7
v_add_f32 v4, v4, v6
v_add_f32 v5, v5, v7
{S16} v4, v5
v_add_f32 v4, v4, v5
ds_write_b32 v61, v4 offset:{RL}
s_cmp_lg_u32 s3, 0
s_waitcnt lgkmcnt(0)
s_barrier
s_cbranch_scc1 L_post_wo
ds_read_b32 v5, v62 offset:{RL+256}
ds_read_b32 v6, v62 offset:{RL+512}
ds_read_b32 v7, v62 offset:{RL+768}
s_waitcnt lgkmcnt(0)
v_add_f32 v4, v4, v5
v_add_f32 v6, v6, v7
v_add_f32 v4, v4, v6
v_mov_b32_dpp v5, v4 quad_perm:[1,0,3,2] {DPPM}
v_cvt_pk_bf16_f32 v4, v4, v5
v_mov_b32_dpp v48, v4 quad_perm:[0,0,0,0] {DPPM}
v_mov_b32_dpp v49, v4 quad_perm:[2,2,2,2] {DPPM}
''')
A('s_mov_b64 exec, s[8:9]')
A('buffer_store_dwordx4 v[48:51], v63, s[24:27], s75 offen sc1')
stamp(5)
A('s_barrier')
write_stamps(0)
A('s_endpgm')
A('L_helper_exit:')
if STAMPS:
    A('s_cmp_lg_u32 s3, 0\ns_cbranch_scc1 L_end')
    write_stamps(0)
A('s_endpgm')

B1R = 64
DR = 16
A('L_f1:')
srd(12, 48, 640 * 1536 * 2); srd(16, 50, 640 * 1536 * 2)
A(f"""
s_sub_u32 s74, s5, 20
v_lshrrev_b32 v3, 4, v0
v_and_b32 v2, 7, v0
v_lshrrev_b32 v62, 3, v0
v_mul_u32_u24 v62, 3072, v62
v_lshl_add_u32 v62, v2, 4, v62
s_lshl3_add_u32 s61, s74, s73
s_mul_i32 s61, s61, {8*3072}
s_mul_i32 s68, s4, 384
s_add_u32 s61, s61, s68
s_add_u32 s62, s61, 128
s_add_u32 s63, s61, 256
s_lshl_b32 s79, s73, 10
s_add_u32 s79, s79, {WL}
v_mov_b32 v57, 0
v_mov_b32 v6, s30
v_mov_b32 v7, s31
""")
lds_wait_ge(CNT + 28, 1, 1)
for nbl in range(3):
    for m in range(2):
        A(f's_add_u32 m0, s79, {(m*3 + nbl)*8192}')
        A(f'buffer_load_dwordx4 v62, s[{12+4*m}:{15+4*m}], s{61+nbl} offen nt lds')
A('s_setprio 3\ns_cmp_gt_u32 s73, 1\ns_cbranch_scc1 L_f1m')
get_pref(1)
A(f"""
s_lshl1_add_u32 s74, s74, s73
v_lshl_add_u32 v61, v2, 2, v3
v_lshlrev_b32 v61, 1, v61
s_lshl_b32 s68, s74, 6
v_add_u32 v61, s68, v61
global_load_ushort v56, v61, s[36:37]
v_lshlrev_b32 v54, 5, v3
v_lshl_add_u32 v54, v2, 2, v54
v_lshlrev_b32 v55, 4, v0
s_lshl_b32 s72, s4, 9
s_lshl4_add_u32 s72, s74, s72
s_add_u32 s72, s72, {PS}
s_mul_i32 s75, s4, 20
s_add_u32 s75, s75, s74
s_lshl_b32 s75, s75, 7
s_add_u32 s75, s75, {PH}
""")
A(f"""
s_mov_b64 exec, 1
buffer_load_dword v104, v54, s[32:35], s75 offen sc1
buffer_load_dword v105, v55, s[32:35], s72 offen sc1
s_mov_b64 exec, -1
s_lshr_b32 s60, s74, 2
s_lshl_b32 s60, s60, 14
s_and_b32 s68, s74, 3
s_lshl_b32 s68, s68, 11
s_add_u32 s60, s60, s68
s_lshr_b32 s68, s47, s4
s_and_b32 s68, s68, 1
s_lshl_b32 s68, s68, 13
s_add_u32 s60, s60, s68
s_add_u32 s60, s60, {YP}
v_lshlrev_b32 v51, 4, v3
v_lshl_add_u32 v51, v2, 1, v51
v_and_b32 v4, 1, v0
v_mul_u32_u24 v4, 126, v4
v_add_u32 v51, v51, v4
s_lshl_b32 s68, s73, 6
v_add_u32 v51, s68, v51
s_mov_b32 s77, 0x3f80
s_mov_b32 s71, 0x3f800000
v_mov_b32 v14, s30
v_mov_b32 v15, s31
v_mov_b32 v8, 0
v_mov_b32 v9, 0
v_mov_b32 v10, 0
v_mov_b32 v11, 0
v_not_b32 v98, s30
v_not_b32 v102, s30
s_waitcnt vmcnt(2)
s_barrier
v_lshlrev_b32 v56, 16, v56
""")
stamp(6)
YL = ['buffer_load_dwordx4 v[96:99], v55, s[24:27], s60 offen sc1', 'buffer_load_dwordx4 v[100:103], v55, s[24:27], s60 offen offset:1024 sc1']
if opt['fry']:
    A(f"""
s_mov_b32 s70, {SPIN}
s_mov_b64 s[20:21], -1
s_mov_b64 s[22:23], -1
L_ypoll:
s_mov_b64 exec, s[20:21]
{YL[0]}
s_mov_b64 exec, s[22:23]
{YL[1]}
s_mov_b64 exec, -1
""")
    for k in range(opt['fry']):
        A('v_cmp_ne_u64 s[20:21], s[30:31], v[98:99]\nv_cmp_ne_u64 s[22:23], s[30:31], v[102:103]\ns_or_b64 vcc, s[20:21], s[22:23]\ns_cbranch_scc0 L_yok')
    A('s_waitcnt vmcnt(16)\ns_sub_u32 s70, s70, 1\ns_cbranch_scc0 L_ypoll\nL_yok:')
else:
    def body():
        A(YL[0]); A(YL[1])
        A('s_waitcnt vmcnt(0)')
        tagcheck([98, 102])
    spin(body)
stamp(1)
for r in (96, 100):
    A(f'v_dot2c_f32_bf16 v8, s77, v{r}\nv_dot2c_f32_bf16 v10, s77, v{r+1}\nv_dot2c_f32_bf16 v9, s71, v{r}\nv_dot2c_f32_bf16 v11, s71, v{r+1}')
A(f"""
{S32} v8, v10
{S32} v9, v11
v_add_f32 v8, v8, v10
v_add_f32 v9, v9, v11
{S16} v8, v9
v_add_f32 v8, v8, v9
v_add_f32_dpp v8, v8, v8 row_ror:8 {DPPM}
v_cvt_pk_bf16_f32 v8, v57, v8
v_add_f32 v12, v8, v56
v_mov_b32_dpp v13, v12 quad_perm:[1,0,3,2] {DPPM}
v_cvt_pk_bf16_f32 v12, v12, v13
ds_write_b32 v51, v12 offset:{RL}
v_lshlrev_b32 v4, 16, v12
v_mul_f32 v5, v4, v4
""")
allreduce8('v_add_f32', [4, 5])
A('s_waitcnt lgkmcnt(0)\ns_barrier')
A(f'v_mov_b32_dpp v13, v12 quad_perm:[2,3,2,3] {DPPM}')
allreduce_rows('v_add_f32', [4, 5], [8, 9])
publish([(1, 'buffer_store_dwordx4 v[4:7], v55, @, s72 offen'),
         (0x0011001100110011, 'buffer_store_dwordx4 v[12:15], v54, @, s75 offen')])
stamp_val(18, 82, 83, True)
stamp_val(23, 92, 93, True)
A('s_endpgm')
A(f"""
L_f1m:
s_sub_u32 s68, s73, 2
s_lshr_b32 s78, s68, 1
s_and_b32 s69, s73, 1
v_lshlrev_b32 v58, 7, v3
v_bfe_u32 v4, v0, 2, 2
v_lshl_add_u32 v58, v4, 9, v58
v_and_b32 v4, 3, v0
v_lshl_add_u32 v58, v4, 3, v58
s_lshl_b32 s75, s78, 13
s_lshl_b32 s68, s69, 6
s_add_u32 s75, s75, s68
v_add_u32 v58, s75, v58
v_lshlrev_b32 v52, 4, v3
v_and_b32 v59, 1, v3
v_cmp_eq_u32 s[62:63], 1, v59
v_mul_u32_u24 v59, 3072, v59
v_bfe_u32 v4, v0, 3, 1
v_lshl_add_u32 v59, v4, 9, v59
v_lshl_add_u32 v59, v2, 4, v59
s_mul_i32 s76, s4, 3
s_add_u32 s76, s76, s78
s_lshl1_add_u32 s76, s76, s69
s_mul_i32 s76, s76, 6144
s_lshr_b32 s68, s74, 2
s_lshl_b32 s68, s68, 10
s_add_u32 s76, s76, s68
s_and_b32 s68, s74, 3
s_lshl_b32 s68, s68, 7
s_add_u32 s76, s76, s68
s_add_u32 s77, s76, {CB}
s_add_u32 s76, s76, {PA}
v_mov_b32 v8, 0x3f803f80
v_mov_b32 v9, 0x3f803f80
v_mov_b32 v10, 0x3f803f80
v_mov_b32 v11, 0x3f803f80
v_mov_b32 v34, s30
v_mov_b32 v35, s31
s_waitcnt vmcnt(0)
s_barrier
""")
for kk in range(2):
    for m in range(2):
        for u in range(2):
            r = B1R + 4 * ((kk * 2 + m) * 2 + u)
            o = WL + m * 24576 + kk * 4096 + 32 * u
            A(f'ds_read_b64_tr_b16 v[{r}:{r+1}], v58 offset:{o}')
            A(f'ds_read_b64_tr_b16 v[{r+2}:{r+3}], v58 offset:{o + 2048}')
def f1_mfma(kk, a):
    for k in range(4):
        c = f'v[{DR+4*k}:{DR+3+4*k}]' if kk else '0'
        A(f'v_mfma_f32_16x16x32_bf16 v[{DR+4*k}:{DR+3+4*k}], v[{a}:{a+3}], v[{B1R+16*kk+4*k}:{B1R+16*kk+4*k+3}], {c}')
def f1_select(d):
    A(f'v_cndmask_b32 v{d}, v{DR}, v{DR+4}, s[62:63]\nv_cndmask_b32 v{d+1}, v{DR+8}, v{DR+12}, s[62:63]')
A('s_waitcnt lgkmcnt(0)')
f1_mfma(0, 8); f1_mfma(1, 8)
f1_select(32)
publish([(0xffffffff, 'buffer_store_dwordx4 v[32:35], v59, @, s77 offen')])
A(f"""
s_barrier
ds_read_b128 v[8:11], v52 offset:{RL}
ds_read_b128 v[12:15], v52 offset:{RL+64}
s_waitcnt lgkmcnt(1)
""")
f1_mfma(0, 8)
A('s_waitcnt lgkmcnt(0)')
f1_mfma(1, 12)
f1_select(4)
publish([(0xffffffff, 'buffer_store_dwordx4 v[4:7], v59, @, s76 offen')])
if STAMPS:
    A('s_cmp_eq_u32 s3, 11\ns_cbranch_scc1 L_end')
    stamp_now(11, True)
A('s_endpgm')

A('L_post_wo:')
A("""
s_cmp_gt_u32 s5, 11
s_cbranch_scc1 L_end
s_cmp_eq_u32 s3, 3
s_cbranch_scc1 L_end
v_mov_b32 v57, 0
s_cmp_eq_u32 s3, 1
s_cbranch_scc1 L_hid
s_barrier
""")
A(f"""
s_and_b32 s68, s4, 1
s_lshl_b32 s68, s68, 2
s_sub_u32 s68, 12, s68
s_cmp_ge_u32 s5, s68
s_cbranch_scc1 L_end
s_mul_i32 s72, s4, 5
s_add_u32 s72, s72, 1
s_lshr_b32 s72, s72, 1
s_lshr_b32 s68, s5, 2
s_add_u32 s72, s72, s68
s_and_b32 s73, s5, 3
v_lshrrev_b32 v2, 1, v0
v_lshlrev_b32 v2, 7, v2
v_and_b32 v3, 1, v0
v_lshl_add_u32 v96, v3, 4, v2
s_lshl_b32 s10, s72, 15
s_lshr_b32 s68, s47, s4
s_and_b32 s68, s68, 1
s_lshl_b32 s68, s68, 13
s_add_u32 s10, s10, s68
s_lshl_b32 s68, s73, 5
s_add_u32 s10, s10, s68
s_add_u32 s10, s10, {FP}
s_add_u32 s11, s10, 4096
s_add_u32 s12, s10, 16384
v_lshrrev_b32 v4, 4, v0
v_lshl_add_u32 v97, v3, 2, v4
v_lshlrev_b32 v97, 1, v97
v_lshlrev_b32 v99, 5, v4
s_and_b32 s68, s73, 1
s_lshl_b32 s68, s68, 5
v_lshl_add_u32 v98, v3, 4, s68
s_mul_i32 s13, s4, 20
s_add_u32 s13, s13, s72
s_lshl_b32 s13, s13, 7
s_lshr_b32 s68, s73, 1
s_lshl4_add_u32 s13, s68, s13
s_add_u32 s13, s13, {PH}
s_lshl2_add_u32 s14, s72, s73
s_lshl_b32 s14, s14, 4
s_mov_b32 s8, 0x30003
s_mov_b32 s9, 0x30003
s_mov_b32 s77, 0x3f80
s_mov_b32 s71, 0x3f800000
v_mov_b32 v8, 0
v_mov_b32 v9, 0
v_mov_b32 v10, 0
v_mov_b32 v11, 0
""")
FS = 16
srd(64, 54, 1280)
if opt['outpre']:
    A(f"s_mov_b64 exec, 1\nbuffer_load_dword v30, v57, s[64:67], s14 offen{['', '', ' sc1', ' nt'][opt['outpre']]}\ns_mov_b64 exec, -1")
A('s_setprio 0')
lds_wait_ge(HRDY, 1, opt['hsleep'])
if opt['fsleep']: A(f"s_sleep {opt['fsleep']}")
def body():
    A('buffer_load_dwordx4 v[4:7], v99, s[16:19], s13 offen sc1')
    for n in range(3):
        r = FS + 4 * n
        A(f'buffer_load_dwordx4 v[{r}:{r+3}], v96, s[24:27], s{10+n} offen sc1')
    A('s_waitcnt vmcnt(0)')
    tagcheck([6, FS + 2, FS + 6, FS + 10])
spin2(body, local_only=True)
stamp(5)
for n in range(3):
    r = FS + 4 * n
    A(f'v_dot2c_f32_bf16 v8, s77, v{r}\nv_dot2c_f32_bf16 v10, s77, v{r+1}\nv_dot2c_f32_bf16 v9, s71, v{r}\nv_dot2c_f32_bf16 v11, s71, v{r+1}')
A(f"""
v_lshrrev_b64 v[58:59], v98, v[4:5]
{S32} v8, v10
{S32} v9, v11
v_add_f32 v8, v8, v10
v_add_f32 v9, v9, v11
v_lshlrev_b32 v58, 16, v58
{S16} v8, v9
v_add_f32 v8, v8, v9
v_add_f32_dpp v8, v8, v8 row_ror:8 {DPPM}
v_add_f32_dpp v8, v8, v8 row_ror:4 {DPPM}
v_add_f32_dpp v8, v8, v8 quad_perm:[2,3,0,1] {DPPM}
v_cvt_pk_bf16_f32 v8, v57, v8
v_add_f32 v8, v8, v58
v_cvt_pk_bf16_f32 v8, v8, v8
""")
A('s_mov_b64 exec, s[8:9]')
A(f"""
buffer_store_short v8, v97, s[64:67], s14 offen{['', ' sc1', ' sc0 sc1', ' nt'][opt['outfl']]}
s_cmp_lg_u32 s14, 0
s_cbranch_scc1 L_fin_exit
s_mov_b64 exec, 1
v_mov_b32 v4, s30
v_mov_b32 v5, s31
s_mov_b32 s68, {EP}
buffer_store_dwordx2 v[4:5], v57, s[24:27], s68 offen
L_fin_exit:
""")
if opt['dbg']:
    A(f'''
s_cmp_lg_u32 s14, 0
s_cbranch_scc1 L_end
s_mov_b64 exec, -1
ds_read_b32 v4, v57 offset:{CNT+36}
s_memrealtime s[82:83]
s_waitcnt lgkmcnt(0)
v_readfirstlane_b32 s85, v4
s_sub_u32 s84, s82, s85
v_mov_b32 v4, s84
global_store_dword v57, v4, s[56:57]
s_mul_i32 s84, s84, {opt['dbg']}
s_min_u32 s84, s84, 40000
L_dbgspin:
s_memrealtime s[86:87]
s_waitcnt lgkmcnt(0)
s_sub_u32 s86, s86, s82
s_cmp_lt_u32 s86, s84
s_cbranch_scc1 L_dbgspin
''')
if STAMPS:
    A('s_waitcnt vmcnt(0)')
    stamp(7)
    write_stamps(8)
A('s_endpgm')

A('L_hid:')
M2 = 0x0000ffff0000ffff
A(f"""
s_mul_i32 s72, s4, 12
s_add_u32 s72, s72, s5
v_lshrrev_b32 v4, 5, v0
v_and_b32 v2, 7, v0
v_lshl_add_u32 v62, v4, 3, v2
v_lshlrev_b32 v62, 1, v62
v_lshlrev_b32 v63, 2, v2
v_lshlrev_b32 v60, 4, v0
v_and_b32 v3, 31, v0
v_lshlrev_b32 v61, 4, v3
s_lshl_b32 s65, s4, 9
s_add_u32 s65, s65, {PS}
s_mul_i32 s60, s72, 3072
s_add_u32 s62, s60, {CB}
s_add_u32 s60, s60, {PA}
s_mov_b32 s8, 0xfffff
s_mov_b32 s9, 0xfffff
s_mov_b32 s10, 0xffff
s_mov_b32 s11, 0xffff
v_mov_b32 v59, 1
""")
for r in (24, 136, 140): A(f'v_mov_b32 v{r}, 0\nv_mov_b32 v{r+1}, 0\nv_mov_b32 v{r+2}, s30\nv_mov_b32 v{r+3}, s31')
def loads3(r, srdn, so, fl=''):
    A(f'buffer_load_dwordx4 v[{r}:{r+3}], v60, s[{srdn}:{srdn+3}], s{so} offen sc1' + fl)
    A(f'buffer_load_dwordx4 v[{r+4}:{r+7}], v60, s[{srdn}:{srdn+3}], s{so} offen offset:1024 sc1' + fl)
    A(f's_mov_b64 exec, s[10:11]\nbuffer_load_dwordx4 v[{r+8}:{r+11}], v60, s[{srdn}:{srdn+3}], s{so} offen offset:2048 sc1{fl}\ns_mov_b64 exec, -1')
def issue_s(srdn=32):
    A(f's_mov_b64 exec, s[8:9]\nbuffer_load_dwordx4 v[140:143], v61, s[{srdn}:{srdn+3}], s65 offen sc1\ns_mov_b64 exec, -1')
def issue_p(srdn=32): loads3(128, srdn, 60)
def poll(issue, check, n, bound=None):
    slow = newlabel('pslow'); ok = newlabel('pok')
    check()
    A(f's_nop 0\ns_cbranch_vccz {ok}')
    A(f's_cmp_lg_u32 s46, 1\ns_cbranch_scc1 {slow}')
    freepoll(issue, check, n, ok, bound)
    A(f'{slow}:')
    def body():
        issue(16); A('s_waitcnt vmcnt(0)'); check()
    spin2(body, local_only=True)
    A(f'{ok}:')
def body():
    loads3(16, 16, 62)
    issue_p(16); issue_s(16)
    A('s_waitcnt vmcnt(0)')
    tagcheck([18, 22, 26])
if opt['frc']:
    for r in (18, 22, 130, 134): A(f'v_not_b32 v{r}, s30')
    A('s_mov_b64 exec, s[10:11]\nv_not_b32 v26, s30\nv_not_b32 v138, s30\ns_mov_b64 exec, s[8:9]\nv_not_b32 v142, s30\ns_mov_b64 exec, -1')
A('s_barrier')
if opt['frc']:
    def issue_all(srdn=32):
        loads3(16, srdn, 62, ' nt' if opt['hnt'] & 1 else ''); issue_s(srdn); loads3(128, srdn, 60, ' nt' if opt['hnt'] & 2 else '')
    poll(issue_all, lambda: tagcheck([18, 22, 26]), opt['frc'], opt['frcb'])
else: spin2(body, local_only=True)
A('v_pk_add_f32 v[40:41], v[16:17], v[20:21]\nv_pk_add_f32 v[40:41], v[40:41], v[24:25]')
for r in (40, 41): A(f'v_add_f32_dpp v{r}, v{r}, v{r} row_ror:8 {DPPM}')
swapreduce(S16, 'v_add_f32', [40, 41], [42, 43])
poll(issue_s, lambda: tagcheck([142]), opt['frs'])
A('s_cmp_lg_u32 s46, 1\ns_cbranch_scc1 L_nopre')
issue_p()
A('L_nopre:')
A(f"""
v_add_f32_dpp v36, v140, v140 quad_perm:[1,0,3,2] {DPPM}
v_add_f32_dpp v37, v141, v141 quad_perm:[1,0,3,2] {DPPM}
v_add_f32_dpp v36, v36, v36 quad_perm:[2,3,0,1] {DPPM}
v_add_f32_dpp v37, v37, v37 quad_perm:[2,3,0,1] {DPPM}
v_add_f32_dpp v36, v36, v36 row_half_mirror {DPPM}
v_add_f32_dpp v37, v37, v37 row_half_mirror {DPPM}
v_add_f32_dpp v46, v36, v36 row_mirror {DPPM}
v_add_f32_dpp v47, v37, v37 row_mirror {DPPM}
v_add_f32_dpp v36, v36, v36 row_mirror {DPPM}
v_add_f32_dpp v37, v37, v37 row_mirror {DPPM}
{S16} v36, v46
{S16} v37, v47
v_pk_add_f32 v[36:37], v[36:37], v[46:47]
s_cbranch_scc1 L_nopre2
""")
issue_p()
A(f"""
L_nopre2:
v_mul_f32 v44, {f32(1.0/640)}, v36
v_mul_f32 v45, {f32(1.0/640)}, v37
v_fma_f32 v45, -v44, v44, v45
v_max_f32 v45, 0, v45
v_cvt_pk_bf16_f32 v45, v57, v45
v_cvt_pk_bf16_f32 v44, v57, v44
v_add_f32 v45, {f32(1e-5)}, v45
v_cvt_pk_bf16_f32 v45, v57, v45
v_sqrt_f32 v45, v45
v_mul_f32 v40, v44, v40
v_cvt_pk_bf16_f32 v45, v57, v45
v_rcp_f32 v45, v45
v_mul_f32 v41, v44, v41
""")
poll(issue_p, lambda: tagcheck([130, 134, 138]), opt['frp'])
stamp(7)
A(f"""
v_pk_add_f32 v[8:9], v[128:129], v[132:133]
v_pk_add_f32 v[8:9], v[8:9], v[136:137]
v_add_f32_dpp v10, v8, v8 row_ror:8 {DPPM}
v_add_f32_dpp v11, v9, v9 row_ror:8 {DPPM}
v_add_f32_dpp v8, v8, v8 row_ror:8 {DPPM}
v_add_f32_dpp v9, v9, v9 row_ror:8 {DPPM}
{S16} v8, v10
{S16} v9, v11
v_add_f32 v8, v8, v10
v_sub_f32 v8, v8, v40
v_mul_f32 v8, v8, v45
v_cvt_pk_bf16_f32 v8, v57, v8
v_mul_f32 v12, {f32(-LOG2E)}, v8
v_exp_f32 v12, v12
v_add_f32 v9, v9, v11
v_add_f32 v12, 1.0, v12
v_rcp_f32 v12, v12
v_sub_f32 v9, v9, v41
v_mul_f32 v9, v9, v45
v_mul_f32 v8, v8, v12
v_cvt_pk_bf16_f32 v9, v57, v9
v_cvt_pk_bf16_f32 v8, v57, v8
v_mul_f32 v8, v8, v9
v_cvt_pk_bf16_f32 v8, v8, v8
ds_write_b16 v62, v8 offset:{HID}
ds_write_b32 v63, v59 offset:{HRDY}
""")
stamp_val(17, 94, 95)
A('s_endpgm')

A('L_f2:')
W2R = 64
srd(8, 52, 1536 * 640 * 2)
get_pref(1, dst=16, adr=17)
A(f"""
s_mul_i32 s72, s4, 12
s_add_u32 s72, s72, s5
v_mov_b32 v57, 0
s_sub_u32 s68, s3, 7
s_lshl_b32 s69, s68, 8
v_lshlrev_b32 v58, 2, v0
v_add_u32 v58, s69, v58
v_lshrrev_b32 v2, 4, v0
v_lshl_add_u32 v2, s68, 2, v2
v_mul_u32_u24 v3, 52, v2
v_lshrrev_b32 v3, 8, v3
v_mul_u32_u24 v4, 5, v3
v_sub_u32 v4, v2, v4
v_cmp_lt_u32 vcc, 2, v4
v_lshlrev_b32 v3, 1, v3
v_addc_co_u32 v3, vcc, 0, v3, vcc
v_lshrrev_b32 v3, v3, s47
v_and_b32 v3, 1, v3
v_lshlrev_b32 v116, 15, v2
v_lshl_add_u32 v116, v3, 13, v116
v_bfe_u32 v3, v0, 1, 3
v_lshl_add_u32 v116, v3, 4, v116
s_lshr_b32 s79, s72, 6
s_lshl_b32 s79, s79, 14
s_and_b32 s68, s72, 63
s_lshl_b32 s68, s68, 7
s_add_u32 s79, s79, s68
s_add_u32 s79, s79, {FP}
s_mov_b32 s60, 0x05040100
s_mov_b32 s61, 0x07060302
s_mul_i32 s62, s72, 20480
""")
def w2_loads():
    for k in range(16):
        A(f'buffer_load_dword v{W2R+k}, v58, s[8:11], s62 offen offset:{1280*(k%3)} nt')
        if k % 3 == 2: A('s_add_u32 s62, s62, 3840')
if opt['w2dma']:
    A(f'''
v_lshrrev_b32 v2, 4, v0
v_mul_u32_u24 v2, 1280, v2
v_and_b32 v3, 15, v0
v_lshl_add_u32 v2, v3, 4, v2
s_add_u32 s62, s62, s69
s_lshl_b32 s63, s69, 4
v_lshlrev_b32 v3, 2, v0
v_add_u32 v3, s63, v3
s_add_u32 s63, s63, {WL}
''')
    if opt['w2t'] == 0:
        A('v_and_b32 v1, 3, v0\nv_lshlrev_b32 v1, 2, v1')
        def body():
            A(f'ds_read_b32 v4, v1 offset:{OKF}')
            A('s_waitcnt lgkmcnt(0)')
            A('v_cmp_eq_u32 vcc, 0, v4')
        spin(body)
    else: A('s_barrier')
    if opt['w2t'] == 2: A('s_barrier')
    for k in range(4):
        A(f's_add_u32 m0, s63, {1024*k}\nbuffer_load_dwordx4 v2, s[8:11], s62 offen nt lds\ns_add_u32 s62, s62, 5120')
    if opt['w2t'] == 0: A('s_barrier')
    if opt['w2t'] < 2: A('s_barrier')
    A('s_waitcnt vmcnt(0)')
    for k in range(16): A(f'ds_read_b32 v{W2R+k}, v3 offset:{WL + 256*k}')
    A('s_waitcnt lgkmcnt(0)')
else:
    A('s_barrier')
    w2_loads()
    A('s_barrier')
    A('s_waitcnt vmcnt(0)')
stamp(6)
for kp in range(8):
    A(f'v_perm_b32 v{80+kp}, v{W2R+2*kp+1}, v{W2R+2*kp}, s60')
    A(f'v_perm_b32 v{88+kp}, v{W2R+2*kp+1}, v{W2R+2*kp}, s61')
A(f"""
v_mov_b32 v16, 0
v_mov_b32 v17, 0
v_mov_b32 v18, 0
v_mov_b32 v19, 0
s_mov_b32 s66, 0x55555555
s_mov_b32 s67, 0x55555555
v_mov_b32 v6, s30
v_mov_b32 v7, s31
v_and_b32 v9, 15, v0
v_lshlrev_b32 v9, 2, v9
v_mov_b32 v8, 0
s_mov_b32 s64, 0xff00ff00
s_mov_b32 s65, 0xff00ff00
s_mov_b32 s70, {SPIN * 8}
s_waitcnt lgkmcnt(0)
L_f2poll:
ds_read_b32 v8, v9 offset:{HID}
s_waitcnt lgkmcnt(4)
v_cmp_eq_u32 vcc, 0, v8
s_sub_u32 s70, s70, 1
s_cbranch_scc1 L_f2go
s_and_b64 vcc, vcc, s[64:65]
s_cbranch_scc1 L_f2poll
L_f2go:
""")
for kp in range(8):
    A(f'v_dot2c_f32_bf16_dpp v{16+2*(kp&1)}, v8, v{80+kp} row_newbcast:{kp} {DPPM}')
    A(f'v_dot2c_f32_bf16_dpp v{17+2*(kp&1)}, v8, v{88+kp} row_newbcast:{kp} {DPPM}')
A('v_pk_add_f32 v[16:17], v[16:17], v[18:19]')
A(f"""
v_cvt_pk_bf16_f32 v4, v16, v17
v_mov_b32_dpp v5, v4 quad_perm:[1,0,3,2] {DPPM}
""")
A('s_mov_b64 exec, s[66:67]')
A('buffer_store_dwordx4 v[4:7], v116, s[24:27], s79 offen sc1')
if STAMPS:
    setexec(ALL)
    stamp_now(20, True)
    stamp_val(15, 92, 93, True)
A('L_end:')
A('s_endpgm')
for blk in outline: A(blk)
A('L_codeend:')

A.raw('.section .rodata,"a"')
A.raw('.p2align 6')
A.raw(f'.amdhsa_kernel {NAME}_kernel')
A.raw('  .amdhsa_next_free_vgpr 168')
A.raw('  .amdhsa_next_free_sgpr 100')
A.raw('  .amdhsa_accum_offset 168')
A.raw('  .amdhsa_group_segment_fixed_size 0')
A.raw('  .amdhsa_kernarg_size 96')
A.raw('  .amdhsa_user_sgpr_count 2')
A.raw('  .amdhsa_user_sgpr_kernarg_segment_ptr 1')
A.raw('  .amdhsa_system_sgpr_workgroup_id_x 1')
A.raw('.end_amdhsa_kernel')
open(sys.argv[1], 'w').write(A.finalize())
```

```python
import sys, struct, os
from asmlib import Asm

NAME = "sequential_preLN__sliding_block_cached__glu_gated_swiglu__decode"
opt = dict(D1=3, D2=3, Vpre=3, stamps=0, spin=4000007, sleep=2, swave=11, stsleep=24, wtrig=2, DWF=6, opw=2,
           idtries=12, idsleep=16, forceslow=0, trap=0, fsleep=16, hsleep=0, shots=4, lead=31, samp=6,
           frp=1, frs=2, frc=8, frcb=14, w2dma=1, opp=0, osleep=0, sprio=0, outfl=0, outpre=0, lag2=0, idnt=1, xnt=0, cps=0, xs=1, qe=2, qb=10, pro=2, cpw=0, hnt=0, trl=1, al=0, ool=1, dry=0, q2=1, q2d=40, q2s=8, hack=0, endst=0, wb=0, wbs=0, stst=0, opm=0, op2=0, p1=0, p2=0, p3=0, p4=0, p5=0, p6=0, Dinit=3, pkw=0, opi=1, hard=0, w2t=1, frb=12, fry=6, cal=1, mst=17, tau0=463, dA=7, dB=-13, dC=7, lag=480, cfrom=30, pick2=4, pftrig=26,
           caltries=2, calsleep=20, dbg=0, trace=0)
for a in sys.argv[2:]:
    k, v = a.split('=')
    assert k in opt, k
    opt[k] = int(v)
D1 = opt['D1']; D2 = opt['D2']; STAMPS = opt['stamps']; SPIN = opt['spin']

def f32(x): return '0x%08x' % struct.unpack('<I', struct.pack('<f', x))[0]
LOG2E = 1.4426950408889634

QP = 0x0
OP = 0x80000
ST = 0xB0000
ID = 0xB8000
YP = 0xC0000
EP = 0xE0000
PF = 0xE8000
CAL = 0xEA000
FP = 0x100000
PB = 0x1A0000
SP = 0x200000
PA = 0x220000
PS = 0x2A0000
PH = 0x2A4000
CB = 0x300000
WSN = 0x400000
FAST = 0x400000
QL = 0
QF = 384
SL = 512
CNT = 640
OKF = QF + 64; PREF = CNT + 20; ORG = CNT + 40; SUMS = CNT + 56
HID = 704
HRDY = HID + 32
CL = 768
OL = 1024
RL = 7168
WL = 8704
TRL = WL + 49152
LDS = TRL + (2048 if opt['trace'] else 0)

A = Asm()
A.raw(open(os.path.join(os.path.dirname(os.path.abspath(__file__)), '..', NAME + '.s.ref')).read().split('; Override launch')[0].rstrip())
A.raw(f"; @launch grid=(256,1,1) block=(768,1,1) lds={LDS}")
A.raw('''; Generated by gen/gen19.py (hand-written generator).  One persistent launch, 256 workgroups x 12 waves, 1 per CU.
;  3 helper waves: LN(x) and an 80-row slice of the q projection; 4th helper: LDS init, XCD-locality check, stats.
;  the group is proven to sit on one XCD, a write-through copy as well, so any placement is correct.  Hand-offs
;  HBM bandwidth is shared out evenly: a streaming wave that is ahead of the chip-wide mean progress (sampled once in
;  s_sleep is used only as back-off inside / ahead of polling loops.''')
A.raw('.amdgcn_target "amdgcn-amd-amdhsa--gfx950"')
A.raw('.text')
A.raw(f'.globl {NAME}_kernel')
A.raw('.p2align 8')
A.raw(f'.type {NAME}_kernel,@function')
A.raw(f'{NAME}_kernel:')

def stamp(i):
    if STAMPS: A(f's_memrealtime s[{80+2*i}:{81+2*i}]')
def write_stamps(base_idx):
    if not STAMPS: return
    A('s_waitcnt lgkmcnt(0)')
    A('s_mov_b64 exec, 1')
    A('s_lshl3_add_u32 s68, s5, s4')
    A('s_lshl_b32 s68, s68, 8')
    A(f's_add_u32 s68, s68, {SP + base_idx*8}')
    A('v_mov_b32 v1, 0')
    for q in range(4):
        for e in range(4): A(f'v_mov_b32 v{4+e}, s{80+4*q+e}')
        A(f'buffer_store_dwordx4 v[4:7], v1, s[24:27], s68 offen offset:{16*q}')
        A('s_nop 2')
def stamp_val(idx, lo, hi, plus_wave=False):
    if not STAMPS: return
    A('s_lshl3_add_u32 s98, s5, s4')
    A('s_lshl_b32 s98, s98, 8')
    A(f's_add_u32 s98, s98, {SP + idx*8}')
    if plus_wave: A('s_lshl3_add_u32 s98, s3, s98')
    A('s_waitcnt lgkmcnt(0)')
    A(f'v_mov_b32 v164, s{lo}\nv_mov_b32 v165, s{hi}\nv_mov_b32 v163, 0')
    A('s_mov_b64 exec, 1')
    A('buffer_store_dwordx2 v[164:165], v163, s[24:27], s98 offen')
    A('s_mov_b64 exec, -1')
    A('s_nop 1')
def stamp_now(idx, plus_wave=False):
    if not STAMPS: return
    A('s_memrealtime s[96:97]')
    stamp_val(idx, 96, 97, plus_wave)

def srd(d, ptr, nbytes):
    A(f's_mov_b32 s{d}, s{ptr}')
    A(f's_mov_b32 s{d+1}, s{ptr+1}')
    A(f's_mov_b32 s{d+2}, {nbytes}')
    A(f's_mov_b32 s{d+3}, 0x20000')
def ws_srds():
    srd(24, 58, WSN)
    A(f's_add_u32 s32, s58, {FAST}')
    A('s_addc_u32 s33, s59, 0')
    A(f's_mov_b32 s34, {WSN}')
    A('s_mov_b32 s35, 0x20000')
    A('s_lshl3_add_u32 s71, s6, s7')
    A('''
s_mul_i32 s5, s79, 5
s_mul_i32 s47, s79, 3
s_add_u32 s47, s47, 15
s_cmp_lt_u32 s7, 5
s_cselect_b32 s5, s5, s47
s_add_u32 s5, s5, s7
''')

ALL = (1 << 64) - 1
def setexec(mask):
    if mask == ALL: A('s_mov_b64 exec, -1'); return
    A(f's_mov_b32 exec_lo, 0x{mask & 0xffffffff:x}')
    A(f's_mov_b32 exec_hi, 0x{mask >> 32:x}')

DPPM = 'row_mask:0xf bank_mask:0xf'
def allreduce8(op, regs):
    for pat in ('quad_perm:[1,0,3,2]', 'quad_perm:[2,3,0,1]', 'row_half_mirror'):
        for r in regs: A(f'{op}_dpp v{r}, v{r}, v{r} {pat} {DPPM}')
def allreduce16(op, regs):
    allreduce8(op, regs)
    for r in regs: A(f'{op}_dpp v{r}, v{r}, v{r} row_mirror {DPPM}')
def swapreduce(sw, op, regs, tmps):
    for r, t in zip(regs, tmps): A(f'v_mov_b32 v{t}, v{r}')
    for r, t in zip(regs, tmps): A(f'{sw} v{r}, v{t}')
    for r, t in zip(regs, tmps): A(f'{op} v{r}, v{r}, v{t}')
S16 = 'v_permlane16_swap_b32'; S32 = 'v_permlane32_swap_b32'
def allreduce_rows(op, regs, tmps):
    swapreduce(S16, op, regs, tmps); swapreduce(S32, op, regs, tmps)
def allreduce64(op, regs, tmps):
    allreduce16(op, regs); allreduce_rows(op, regs, tmps)
def bf16r(d, s):
    A(f'v_cvt_pk_bf16_f32 v{d}, v{s}, v{s}')
    A(f'v_lshlrev_b32 v{d}, 16, v{d}')
def mktag():
    A('''
s_waitcnt lgkmcnt(0)
s_mul_i32 s30, s28, 0x2c9277b5
s_add_u32 s30, s30, 0xac564b05
s_mul_i32 s31, s29, 0x0019660d
s_add_u32 s31, s31, 0x3c6ef35f
''')
lbl = [0]
def newlabel(p):
    lbl[0] += 1
    return f'L_{p}_{lbl[0]}'

def tagcheck(pairs):
    A(f'v_cmp_ne_u64 vcc, s[30:31], v[{pairs[0]}:{pairs[0]+1}]')
    tm = [(20, 21), (22, 23)]
    pend = []
    for i, p in enumerate(pairs[1:]):
        t = tm[i % 2]
        if len(pend) == 2:
            q = pend.pop(0); A(f's_or_b64 vcc, vcc, s[{q[0]}:{q[1]}]')
        A(f'v_cmp_ne_u64 s[{t[0]}:{t[1]}], s[30:31], v[{p}:{p+1}]')
        pend.append(t)
    for q in pend: A(f's_or_b64 vcc, vcc, s[{q[0]}:{q[1]}]')

def spin(body, sleep=0, retry=None, entry=None):
    top = newlabel('spin'); done = newlabel('sdone')
    A(f's_mov_b32 s70, {SPIN}')
    if entry: A(f's_branch {entry}')
    A(f'{top}:')
    body()
    A('s_nop 0')
    A(f's_cbranch_vccz {done}')
    if sleep: A(f's_sleep {sleep}')
    if retry: retry()
    A('s_sub_u32 s70, s70, 1')
    A(f's_cbranch_scc0 {top}')
    if opt['trap']:
        A(f's_lshl_b32 s99, s2, 8\ns_or_b32 s99, s99, s3\ns_lshl_b32 s99, s99, 8\ns_or_b32 s99, s99, {lbl[0] & 255}')
        A(f'v_mov_b32 v166, {4 * (lbl[0] % 64)}\nv_mov_b32 v167, s99')
        A('global_store_dword v166, v167, s[56:57]')
    A(f'{done}:')
def spin2(body, sleep=0, retry=None, local_only=False, entry=None):
    A(f's_mov_b32 s16, s32\ns_mov_b32 s17, s33\ns_mov_b32 s18, {WSN}\ns_mov_b32 s19, 0x20000')
    def rt():
        if retry: retry()
        A('s_and_b32 s99, s70, 7')
        if local_only:
            A('s_cmp_eq_u32 s46, 1')
            A('s_cselect_b32 s99, 1, s99')
            A('s_cmp_lg_u32 s99, 0')
        A('s_cselect_b32 s16, s32, s24')
        A('s_cselect_b32 s17, s33, s25')
    spin(body, sleep, rt, entry)

def freepoll(issue, check, nchk, done, bound=None):
    top = newlabel('fp')
    A(f's_mov_b32 s70, {SPIN}')
    A(f'{top}:')
    issue()
    for k in range(nchk):
        check()
        A('s_nop 0')
        A(f's_cbranch_vccz {done}')
    A(f"s_waitcnt vmcnt({bound or opt['frb']})")
    A('s_sub_u32 s70, s70, 1')
    A(f's_cbranch_scc0 {top}')
    if not opt['ool']: A(f's_branch {done}')

def lds_wait_ge(off, n, sleep, dst=4, adr=1):
    A(f'v_mov_b32 v{adr}, 0')
    def body():
        A(f'ds_read_b32 v{dst}, v{adr} offset:{off}')
        A('s_waitcnt lgkmcnt(0)')
        A(f'v_cmp_gt_u32 vcc, {n}, v{dst}')
    spin(body, sleep=sleep)
def get_mode(dst=4, adr=1):
    lds_wait_ge(CNT + 8, 1, 2, dst, adr)
    A(f'v_readfirstlane_b32 s46, v{dst}')
def pad(k):
    if not opt['al']: return
    A('.p2align 7')
    for i in range(opt[f'p{k}']): A('s_endpgm')
def get_pref(sleep, dst=4, adr=1):
    lds_wait_ge(PREF, 1, sleep, dst, adr)
    A(f'v_readfirstlane_b32 s47, v{dst}')

outline = []
def publish(stores):
    def emit(srdn, fl, AA):
        cur = ALL
        for m, line in stores:
            m = ALL if m is None else m
            if m != cur:
                if m == ALL: AA('s_mov_b64 exec, -1')
                else: AA(f's_mov_b32 exec_lo, 0x{m & 0xffffffff:x}\ns_mov_b32 exec_hi, 0x{m >> 32:x}')
                cur = m
            AA(line.replace('@', f's[{srdn}:{srdn+3}]') + fl)
        if cur != ALL: AA('s_mov_b64 exec, -1')
    if not opt['forceslow']: emit(32, '', A)
    slow = newlabel('slow'); back = newlabel('back')
    A('s_cmp_lg_u32 s46, 1')
    A(f's_cbranch_scc1 {slow}')
    A(f'{back}:')
    blk = [f'{slow}:']
    emit(24, ' sc1', lambda t: blk.append(t))
    blk.append('s_nop 1')
    blk.append(f's_branch {back}')
    outline.append('\n'.join(blk))

GST = 3072 * 64
GOFF = [60, 61, 62, 63, 64, 65, 66, 67]
HK = 's_lshl_b32 s60, s6, 10\ns_lshl1_add_u32 s60, s7, s60'
if opt['hack'] == 9: HK = 's_lshr_b32 s60, s6, 1\ns_lshl_b32 s60, s60, 10\ns_bfe_u32 s61, s2, 0x40003\ns_lshl1_add_u32 s60, s61, s60'
if opt['hack'] == 8: HK = 's_lshl_b32 s60, s4, 10\ns_lshr_b32 s61, s2, 3\ns_lshl1_add_u32 s60, s61, s60'
def gstep(g):
    if opt['hack'] == 9: return 2 * GST if g != 3 else 16 * 12582912 - 6 * GST
    if opt['hack'] == 8: return 4 * GST if g % 2 == 0 else 8 * 12582912 - 4 * GST
    return GST
if opt['pro'] == 2:
    A(f"""
{'s_memrealtime s[84:85]' if opt['stst'] else ''}
s_load_dwordx2 s[8:9], s[0:1], 8
v_readfirstlane_b32 s3, v0
s_lshr_b32 s79, s2, 6
s_cmp_gt_u32 s79, 3
s_cbranch_scc1 L_end
s_lshr_b32 s3, s3, 6
s_cmp_gt_u32 s3, 3
s_cbranch_scc1 L_str
{('s_cmp_ge_u32 s2, %d' % opt['cpw'] + chr(10) + 's_cbranch_scc1 L_helper0') if opt['cpw'] else ''}
s_getpc_b64 s[20:21]
L_pc0:
v_lshlrev_b32 v8, 7, v0
v_min_u32 v8, L_codeend-L_pc0-4, v8
global_load_dword v166, v8, s[20:21]
s_branch L_helper0
L_str:
s_and_b32 s4, s2, 7
s_lshl2_add_u32 s6, s4, s79
s_bfe_u32 s7, s2, 0x30003
{HK}
s_addk_i32 s60, 895
s_mulk_i32 s60, 12288
v_lshlrev_b32 v3, 4, v0
v_lshrrev_b32 v2, 3, v0
v_lshl_add_u32 v1, v2, 8, v3
s_lshl_b32 s10, 3, 27
s_mov_b32 s11, 0x20000
s_waitcnt lgkmcnt(0)
""")
else:
    A("""
s_load_dwordx2 s[8:9], s[0:1], 8
s_lshr_b32 s79, s2, 6
s_cmp_gt_u32 s79, 3
s_cbranch_scc1 L_end
v_readfirstlane_b32 s3, v0
s_and_b32 s4, s2, 7
s_lshl2_add_u32 s6, s4, s79
s_bfe_u32 s7, s2, 0x30003
s_lshr_b32 s73, s3, 6
s_cmp_gt_u32 s73, 7
s_cbranch_scc1 L_helper0
s_lshl_b32 s60, s6, 9
s_add_u32 s60, s60, s7
s_addk_i32 s60, 448
s_mulk_i32 s60, 24576
v_lshlrev_b32 v3, 4, v0
v_lshrrev_b32 v2, 3, v0
v_lshl_add_u32 v1, v2, 8, v3
s_lshl_b32 s10, 3, 27
s_mov_b32 s11, 0x20000
s_waitcnt lgkmcnt(0)
""")
if opt['stst']: A('s_memrealtime s[86:87]')
for j in range(3): A(f'buffer_load_dwordx4 v[{16+4*j}:{19+4*j}], v1, s[8:11], s60 offen offset:{128*j} nt')
def prologue2():
    A("""
s_load_dwordx16 s[36:51], s[0:1], 0
s_load_dwordx8 s[52:59], s[0:1], 64
""")
    stamp(0)
    if opt['dbg']: A('s_memrealtime s[80:81]')
A("""
s_branch L_stream0
L_helper0:
""")
prologue2()
CPF = 's_getpc_b64 s[20:21]\nL_pc0:\nv_lshlrev_b32 v8, 7, v0\nv_add_u32 v9, 8192, v8\nv_min_u32 v9, L_codeend-L_pc0-4, v9\nglobal_load_dword v10, v8, s[20:21]\nglobal_load_dword v11, v9, s[20:21]\nv_add_u32 v9, 16384, v8\nv_min_u32 v9, L_codeend-L_pc0-4, v9\nglobal_load_dword v30, v9, s[20:21]\n'
if opt['cps']:
    n = opt['cps']; nw = -(-136 // n)
    CPF = f's_getpc_b64 s[20:21]\nL_pc0:\ns_lshr_b32 s22, s2, 3\n'
    if nw < 32: CPF += f's_mul_i32 s23, s22, {(65536 + nw - 1) // nw}\ns_lshr_b32 s23, s23, 16\ns_mul_i32 s23, s23, {nw}\ns_sub_u32 s22, s22, s23\n'
    CPF += f's_mul_i32 s22, s22, {128 * n}\ns_min_u32 s22, s22, L_codeend-L_pc0-{128 * (n - 1) + 4}\ns_add_u32 s20, s20, s22\ns_addc_u32 s21, s21, 0\n'
    for i in range(n): CPF += f's_load_dword s{80 + i}, s[20:21], {128 * i}\n'
if opt['pro'] == 2: CPF = ''
W3 = f"""
{'' if opt['cps'] else CPF}v_lshlrev_b32 v1, 3, v0
v_mov_b32 v4, 0
v_mov_b32 v5, 0
ds_write_b64 v1, v[4:5] offset:{QF}
s_waitcnt lgkmcnt(0)
s_memrealtime s[62:63]
s_barrier
s_load_dwordx2 s[28:29], s[58:59], {EP}
{CPF if opt['cps'] else ''}s_branch L_ids
"""
QE = f"""
v_lshrrev_b32 v2, 3, v0
v_mul_u32_u24 v2, 12160, v2
v_lshl_add_u32 v2, v0, 4, v2
s_mul_i32 s68, s7, {80*96}
s_mul_i32 s69, s6, 3
s_add_u32 s68, s68, s69
s_add_u32 s68, s68, s3
s_lshl_b32 s68, s68, 7
s_lshl_b32 s69, 3, 15
s_mov_b32 s10, {640*6144*2}
s_mov_b32 s11, 0x20000
s_waitcnt lgkmcnt(0)
s_mov_b64 s[8:9], s[42:43]
"""
for r in range(10):
    if r == opt['qb']: QE += 's_barrier\n'
    QE += f'buffer_load_dwordx4 v[{24+4*r}:{27+4*r}], v2, s[8:11], s68 offen nt\n'
    if r < 9: QE += 's_add_u32 s68, s68, s69\n'
QE += 's_branch L_helper\n'
if opt['pro'] == 2: A('s_and_b32 s4, s2, 7\ns_lshl2_add_u32 s6, s4, s79\ns_bfe_u32 s7, s2, 0x30003')
else: A('s_sub_u32 s3, s73, 8')
A('v_and_b32 v0, 63, v0\ns_cmp_lg_u32 s3, 3')
if opt['qe'] == 0: A('s_cbranch_scc1 L_helper' + W3)
elif opt['qe'] == 1: A('s_cbranch_scc1 L_qe' + W3 + 'L_qe:' + QE)
else: A('s_cbranch_scc0 L_w3' + QE + 'L_w3:' + W3)
A('L_stream0:')
prologue2()
if opt['trace']: A('s_memrealtime s[20:21]')
A(f"""
v_and_b32 v0, 63, v0
{'s_sub_u32 s73, s3, 4' if opt['pro'] == 2 else 's_add_u32 s3, s73, 4'}
v_and_b32 v3, 0x70, v3
""")

QR = 4; KR = 16
OPA = 'v_lshlrev_b32 v13, 7, v12'
if opt['op2']: OPA = 'v_and_b32 v14, 1, v12\nv_mul_u32_u24 v14, 112, v14\nv_lshlrev_b32 v13, 7, v12\nv_sub_u32 v13, v13, v14'
def stream(G, D1, D2, Vpre):
    SC = 168 - G
    VR = KR + 12 * G
    nV1 = min((SC - VR) // 12, G)
    ACC = KR + 12 * (G - 2)
    T = ACC
    half = (G + 1) // 2
    st = dict(n=0)
    def vreg(g): return VR + 12 * g if g < nV1 else KR + 12 * (g - nV1)
    CTL = bool(opt['cal'])
    def issue_load(kind, g, j, depth):
        n = st['n']
        if CTL and n >= opt['cfrom']:
            go = newlabel('go')
            A('s_waitcnt lgkmcnt(0)\ns_lshl_b32 s75, s76, 4\ns_sub_u32 s75, s75, s78\ns_and_b32 s75, s75, s72\ns_add_u32 s78, s78, s79')
            if opt['lag2']: A(f"s_waitcnt vmcnt({depth+1})\ns_cmp_gt_i32 s75, {opt['lag2']}\ns_cbranch_scc1 {go}")
            A(f"s_waitcnt vmcnt({depth})\ns_cmp_gt_i32 s75, {opt['lag']}\ns_cbranch_scc1 {go}")
            A(f's_waitcnt vmcnt({depth-1})\ns_cmp_ge_i32 s75, 0\ns_cbranch_scc1 {go}\ns_waitcnt vmcnt({depth-2})')
            if opt['hard']: A(f"s_cmp_ge_i32 s75, {-opt['hard']}\ns_cbranch_scc1 {go}\ns_waitcnt vmcnt({depth-3})")
            A(f'{go}:')
        elif n >= max(depth, opt['Dinit']): A(f's_waitcnt vmcnt({depth-1})')
        r = (KR + 12 * g + 4 * j) if kind == 'K' else vreg(g) + 4 * j
        s = 8 if kind == 'K' else 12
        if opt['stst'] and n in (3, 6): A(f's_memrealtime s[{88 if n == 3 else 90}:{89 if n == 3 else 91}]')
        if n >= 3: A(f'buffer_load_dwordx4 v[{r}:{r+3}], v1, s[{s}:{s+3}], s{GOFF[g]} offen offset:{128*j} nt')
        if opt['trace'] or (CTL and (opt['cfrom'] - 1 <= n < 47 or n == opt['mst'])): A('s_memrealtime s[76:77]')
        if opt['trace'] and n >= 3:
            A(f's_waitcnt lgkmcnt(0)\ns_sub_u32 s75, s76, s20\ns_lshl_b32 s77, s73, 8\nv_mov_b32 v6, s77\nv_mov_b32 v7, s75\nds_write_b32 v6, v7 offset:{TRL + 4*n}')
        if CTL and n == opt['mst']:
            A(f'''
s_waitcnt lgkmcnt(0)
v_mov_b32 v6, 0
v_mov_b32 v8, s76
v_mov_b32 v9, 1
s_mov_b64 exec, 1
ds_add_u32 v6, v8 offset:{SUMS}
ds_add_u32 v6, v9 offset:{SUMS+4}
s_mov_b64 exec, -1
''')
        if CTL and n in (opt['cfrom'] - 1, opt['cfrom'] - 1 + opt['pick2']):
            A(f'''
v_mov_b32 v6, 0
ds_read_b64 v[6:7], v6 offset:{ORG}
s_movk_i32 s79, {opt['tau0']}
s_waitcnt lgkmcnt(0)
v_readfirstlane_b32 s78, v6
v_readfirstlane_b32 s72, v7
s_add_u32 s78, s78, {(n - opt['mst']) * opt['tau0']}
''')
        if CTL and n == opt['pftrig']:
            A(f'v_mov_b32 v6, 0\nv_mov_b32 v7, 1\ns_mov_b64 exec, 1\nds_add_u32 v6, v7 offset:{CNT+52}\ns_mov_b64 exec, -1')
        st['n'] += 1
    for g in range(G):
        for j in range(3):
            issue_load('K', g, j, D1)
            if j == 2 and g + 1 < G:
                A(f's_add_u32 s{GOFF[g+1]}, s{GOFF[g]}, {gstep(g)}')
            if st['n'] == opt['Dinit']: A('s_waitcnt lgkmcnt(0)\ns_barrier')
            if st['n'] == opt['Dinit'] + 1:
                A(f's_load_dwordx2 s[28:29], s[58:59], {EP}')
                ws_srds(); srd(12, 40, 402653184)
    stamp(1)
    nv = 0; NV = 3 * G
    for n in range(min(Vpre, 3 * nV1)):
        issue_load('V', nv // 3, nv % 3, D2); nv += 1
    stamp(2)
    mktag()
    A('v_and_b32 v2, 3, v0\nv_min_u32 v2, 2, v2\nv_lshlrev_b32 v2, 3, v2')
    def body():
        A(f'ds_read_b32 v{QR}, v2 offset:{QF}')
        A('s_waitcnt lgkmcnt(0)')
        A(f'v_cmp_eq_u32 vcc, 0, v{QR}')
    spin(body, sleep=1)
    stamp(3)
    A(f'''
ds_read_b128 v[{QR}:{QR+3}], v3 offset:{QL}
ds_read_b128 v[{QR+4}:{QR+7}], v3 offset:{QL+128}
ds_read_b128 v[{QR+8}:{QR+11}], v3 offset:{QL+256}
''')
    for g in range(G): A(f'v_mov_b32 v{SC+g}, 0')
    A(f's_waitcnt vmcnt({nv}) lgkmcnt(0)')
    for gs in (range(half), range(half, G)):
        for i in range(12):
            for g in gs:
                A(f'v_dot2c_f32_bf16 v{SC+g}, v{KR+12*g+i}, v{QR+i}')
    allreduce8('v_add_f32', [SC + g for g in range(G)])
    A(f's_mov_b32 s68, {f32(192 ** -0.5)}')
    A('v_mov_b32 v2, 0')
    for g in range(G): A(f'v_cvt_pk_bf16_f32 v{SC+g}, v2, v{SC+g}')
    for g in range(G): A(f'v_mul_f32 v{SC+g}, s68, v{SC+g}')
    for g in range(G): A(f'v_cvt_pk_bf16_f32 v{SC+g}, v2, v{SC+g}')
    A(f'v_max_f32 v4, v{SC}, v{SC+1}')
    g = 2
    while g < G:
        if g + 1 < G: A(f'v_max3_f32 v4, v4, v{SC+g}, v{SC+g+1}'); g += 2
        else: A(f'v_max_f32 v4, v4, v{SC+g}'); g += 1
    A(f'v_max_f32_dpp v4, v4, v4 row_ror:8 {DPPM}')
    allreduce_rows('v_max_f32', [4], [T])
    A(f's_mov_b32 s68, {f32(LOG2E)}')
    for g in range(G): A(f'v_sub_f32 v{SC+g}, v{SC+g}, v4')
    for g in range(G): A(f'v_mul_f32 v{SC+g}, s68, v{SC+g}')
    for g in range(G): A(f'v_exp_f32 v{SC+g}, v{SC+g}')
    A(f'v_add_f32 v5, v{SC}, v{SC+1}')
    for g in range(2, G): A(f'v_add_f32 v5, v5, v{SC+g}')
    A(f'v_add_f32_dpp v5, v5, v5 row_ror:8 {DPPM}')
    allreduce_rows('v_add_f32', [5], [T])
    A(f'''
s_lshl_b32 s69, s73, 4
v_mov_b32 v{T}, s69
v_mov_b32 v6, 1
v_mov_b32 v7, 1
ds_write_b128 v{T}, v[4:7] offset:{SL}
''')
    stamp(4)
    for g in range(G): A(f'v_cvt_pk_bf16_f32 v{SC+g}, v{SC+g}, v2')
    for i in range(24): A(f'v_mov_b32 v{ACC+i}, 0')
    A('''
v_and_b32 v8, 7, v0
v_lshlrev_b32 v8, 5, v8
v_lshrrev_b32 v9, 4, v0
v_lshl_add_u32 v8, v9, 3, v8
s_mul_i32 s69, s73, 768
v_add_u32 v8, s69, v8
v_mov_b32 v11, 1
''')
    def pv(idx):
        g, j = divmod(idx, 3)
        r = vreg(g) + 4 * j
        if j == 0: A(f'v_lshlrev_b32 v10, 16, v{SC+g}')
        for e in range(4):
            A(f'v_dot2c_f32_bf16 v{ACC+8*j+2*e}, v{r+e}, v{SC+g}')
            A(f'v_dot2c_f32_bf16 v{ACC+8*j+2*e+1}, v{r+e}, v10')
    done_idx = -1; pv_next = 0
    while nv < NV:
        issue_load('V', nv // 3, nv % 3, D2)
        done_idx = nv - D2 - ((2 if opt['lag2'] else 1) if CTL else 0)
        nv += 1
        if nv == NV - opt['wtrig']:
            A(f's_mov_b64 exec, 1\nds_add_u32 v2, v11 offset:{CNT+4}\ns_mov_b64 exec, -1')
        cnt = 0
        while pv_next <= done_idx and cnt < 2:
            pv(pv_next); pv_next += 1; cnt += 1
    def scale_factor():
        if opt['sprio']: A('s_setprio 3')
        def body():
            A(f'ds_read_b128 v[12:15], v3 offset:{SL}')
            A('s_waitcnt lgkmcnt(0)')
            A('v_cmp_eq_u32 vcc, 0, v15')
        spin(body, sleep=1)
        allreduce8('v_max_f32', [12])
        A('v_sub_f32 v9, v4, v12\nv_mul_f32 v9, s68, v9\nv_exp_f32 v9, v9')
        get_mode(dst=13, adr=2)
        A(f'''
v_min_u32 v12, 47, v0
{OPA}
v_lshlrev_b32 v12, 4, v12
s_mul_i32 s74, s6, 6144
s_lshl4_add_u32 s74, s7, s74
{'s_lshl4_add_u32 s74, s7, s74' if opt['op2'] else ''}
s_add_u32 s74, s74, {OP}
s_mov_b32 s22, 0xaaaaaaaa
s_mov_b32 s23, 0xaaaaaaaa
v_mov_b32 v14, s30
v_mov_b32 v15, s31
''')
    def reduce_j(js):
        for j in js:
            for e in range(4): A(f'{S32} v{ACC+8*j+e}, v{ACC+8*j+e+4}')
        for j in js:
            for e in range(4): A(f'v_add_f32 v{ACC+8*j+e}, v{ACC+8*j+e}, v{ACC+8*j+e+4}')
        for j in js:
            for e in range(2): A(f'{S16} v{ACC+8*j+e}, v{ACC+8*j+e+2}')
        for j in js:
            for e in range(2): A(f'v_add_f32 v{ACC+8*j+e}, v{ACC+8*j+e}, v{ACC+8*j+e+2}')
        for j in js:
            for e in range(2): A(f'v_add_f32_dpp v{ACC+8*j+e}, v{ACC+8*j+e}, v{ACC+8*j+e} row_ror:8 {DPPM}')
        for j in js:
            for e in range(2): A(f'v_mul_f32 v{ACC+8*j+e}, v9, v{ACC+8*j+e}')
            A(f'ds_write_b64 v8, v[{ACC+8*j}:{ACC+8*j+1}] offset:{OL+256*j}')
    fd = False
    while pv_next < NV:
        if pv_next >= NV - 3 and not fd:
            scale_factor(); fd = True
        if pv_next > done_idx:
            A(f's_waitcnt vmcnt({NV - 1 - pv_next})')
            done_idx = pv_next
        pv(pv_next); pv_next += 1
        if pv_next > NV - 3: reduce_j([(pv_next - 1) % 3])
    stamp(5)

stream(8, D1, D2, opt['Vpre'])
A(f'''
s_mov_b64 exec, 1
ds_add_rtn_u32 v10, v2, v11 offset:{CNT}
s_mov_b64 exec, -1
''')
for w in range(8): A(f'ds_read_b128 v[{16+4*w}:{19+4*w}], v12 offset:{OL+768*w}')
A('''
s_waitcnt lgkmcnt(8)
v_readfirstlane_b32 s68, v10
s_cmp_lg_u32 s68, 7
s_cbranch_scc1 L_nopub
''')
def pkadd(d, a, b):
    for e in (0, 2): A(f'v_pk_add_f32 v[{d+e}:{d+e+1}], v[{a+e}:{a+e+1}], v[{b+e}:{b+e+1}]')
for w in range(0, 8, 2):
    A(f's_waitcnt lgkmcnt({6-w})')
    pkadd(16 + 4*w, 16 + 4*w, 20 + 4*w)
    if w == 2 or w == 6: pkadd(8 + 4*w, 8 + 4*w, 16 + 4*w)
pkadd(4, 16, 32)
A('''
v_cvt_pk_bf16_f32 v8, v4, v5
v_cvt_pk_bf16_f32 v9, v6, v7
v_cndmask_b32 v4, v8, v14, s[22:23]
v_cndmask_b32 v5, v9, v15, s[22:23]
v_cndmask_b32 v6, v14, v8, s[22:23]
v_cndmask_b32 v7, v15, v9, s[22:23]
''')
publish([((1 << 48) - 1, 'buffer_store_dwordx4 v[4:7], v13, @, s74 offen')])
A(f'ds_write_b32 v2, v11 offset:{CNT+28}')
stamp_now(16)
A('L_nopub:')
if opt['stst']:
    A(f'''
s_waitcnt lgkmcnt(0)
v_mov_b32 v16, s84
v_mov_b32 v17, s86
v_mov_b32 v18, s88
v_mov_b32 v19, s90
s_lshl3_add_u32 s68, s2, s73
s_lshl_b32 s68, s68, 4
s_add_u32 s68, s68, {0x380000}
s_mov_b64 exec, 1
buffer_store_dwordx4 v[16:19], v2, s[24:27], s68 offen
s_mov_b64 exec, -1
s_nop 2
''')
if opt['sprio']: A('s_setprio 0')
A('s_waitcnt lgkmcnt(0)')
if opt['trace']:
    A(f'''
s_lshl_b32 s68, s73, 8
v_lshl_add_u32 v16, v0, 2, s68
ds_read_b32 v17, v16 offset:{TRL}
s_lshl_b32 s68, s2, 11
s_add_u32 s68, s68, {0x380000}
s_waitcnt lgkmcnt(0)
buffer_store_dword v17, v16, s[24:27], s68 offen
s_nop 2
''')
stamp(6)
A('''
s_cmp_lt_u32 s5, 20
s_cbranch_scc1 L_notf1
s_cmp_lt_u32 s5, 30
s_cbranch_scc1 L_f1
s_branch L_stream_exit
L_notf1:
s_cmp_gt_u32 s5, 11
s_cbranch_scc1 L_stream_exit
s_cmp_gt_u32 s3, 6
s_cbranch_scc1 L_f2
s_branch L_dry
L_stream_exit:
''')
if STAMPS:
    A(f"s_cmp_eq_u32 s3, {opt['swave']}")
    A('s_cbranch_scc0 L_end')
    stamp(7)
    write_stamps(8)
A('s_endpgm')

A('L_helper:')
A('s_setprio 3')
A('''
v_lshlrev_b32 v1, 2, v0
v_lshrrev_b32 v2, 3, v0
s_mul_i32 s68, s7, 80
v_add_u32 v3, s68, v2
v_lshlrev_b32 v3, 1, v3
v_mul_u32_u24 v2, 12288, v2
v_and_b32 v7, 7, v0
v_lshl_add_u32 v2, v7, 4, v2
s_mul_i32 s68, s68, 12288
s_mul_i32 s69, s6, 384
s_add_u32 s68, s68, s69
s_lshl_b32 s69, s3, 7
s_add_u32 s68, s68, s69
''')
XS = 64; XU = 70; XR = 8; WQ = 24; QA = 80
A('s_waitcnt lgkmcnt(0)')
if opt['xs'] == 1:
    for i in range(10): A(f's_load_dword s{12+i}, s[36:37], {128*i}')
if not (opt['qe'] and opt['qb'] < 10): A('s_barrier')
srd(8, 42, 640 * 6144 * 2)
if opt['xs']:
    for r in range(0 if opt['qe'] else 10):
        A(f'buffer_load_dwordx4 v[{WQ+4*r}:{WQ+4*r+3}], v2, s[8:11], s68 offen nt')
        if r < 9: A('s_add_u32 s68, s68, 98304')
    if opt['xs'] == 1: A('s_waitcnt lgkmcnt(0)')
    for i in range(5): A(f'global_load_dword v{XS+i}, v1, s[36:37] offset:{256*i}' + (' nt' if opt['xnt'] else ''))
    for r in range(10): A(f'global_load_ushort v{XR+r}, v3, s[36:37] offset:{16*r}' + (' nt' if opt['xnt'] else ''))
else:
    for i in range(5): A(f'global_load_dword v{XS+i}, v1, s[36:37] offset:{256*i}' + (' nt' if opt['xnt'] else ''))
    for r in range(10): A(f'global_load_ushort v{XR+r}, v3, s[36:37] offset:{16*r}' + (' nt' if opt['xnt'] else ''))
    for r in range(10):
        A(f'buffer_load_dwordx4 v[{WQ+4*r}:{WQ+4*r+3}], v2, s[8:11], s68 offen nt')
        if r < 9: A('s_add_u32 s68, s68, 98304')
A(f's_load_dwordx2 s[28:29], s[58:59], {EP}')
A('s_mov_b32 s69, 0xffff0000')
ws_srds()
mktag()
A(f"s_waitcnt vmcnt({10 if opt['xs'] else 20})")
for i in range(5):
    A(f'v_lshlrev_b32 v{XU+2*i}, 16, v{XS+i}')
    A(f'v_and_b32 v{XU+1+2*i}, s69, v{XS+i}')
A(f'''
v_add_f32 v4, v{XU}, v{XU+1}
v_add_f32 v5, v{XU+2}, v{XU+3}
v_add_f32 v6, v{XU+4}, v{XU+5}
v_add_f32 v7, v{XU+6}, v{XU+7}
v_add_f32 v4, v4, v5
v_add_f32 v6, v6, v7
v_add_f32 v5, v{XU+8}, v{XU+9}
v_add_f32 v4, v4, v6
v_add_f32 v4, v4, v5
''')
allreduce64('v_add_f32', [4], [5])
A(f'v_mul_f32 v4, {f32(1.0/640)}, v4')
for i in range(10): A(f'v_sub_f32 v{XU+i}, v{XU+i}, v4')
A(f'v_mul_f32 v5, v{XU}, v{XU}')
for i in range(1, 10): A(f'v_fmac_f32 v5, v{XU+i}, v{XU+i}')
allreduce64('v_add_f32', [5], [6])
A(f'v_mul_f32 v5, {f32(1.0/640)}, v5')
bf16r(4, 4); bf16r(5, 5)
A(f'v_add_f32 v5, {f32(1e-5)}, v5')
bf16r(5, 5)
A('v_sqrt_f32 v5, v5')
bf16r(5, 5)
A('v_rcp_f32 v5, v5')
A('v_mov_b32 v6, 0')
A(f"s_waitcnt vmcnt({0 if opt['xs'] else 10})")
for r in range(10): A(f'v_lshlrev_b32 v{XR+r}, 16, v{XR+r}')
for r in range(10): A(f'v_sub_f32 v{XR+r}, v{XR+r}, v4')
for r in range(10): A(f'v_cvt_pk_bf16_f32 v{XR+r}, v6, v{XR+r}')
for r in range(10): A(f'v_mul_f32 v{XR+r}, v{XR+r}, v5')
for r in range(10):
    A(f'v_cvt_pk_bf16_f32 v{XU+r}, v6, v{XR+r}')
    A(f'v_cvt_pk_bf16_f32 v{XR+r}, v{XR+r}, v6')
for e in range(8): A(f'v_mov_b32 v{QA+e}, 0')
A('''
v_and_b32 v90, 7, v0
v_lshrrev_b32 v6, 4, v0
v_lshl_add_u32 v90, v90, 2, v6
v_lshlrev_b32 v90, 4, v90
s_lshl_b32 s64, s71, 11
s_lshl_b32 s69, s3, 9
s_add_u32 s64, s64, s69
''')
for r in range(10):
    A(f's_waitcnt vmcnt({9-r})')
    for e in range(4):
        A(f'v_dot2c_f32_bf16 v{QA+2*e}, v{WQ+4*r+e}, v{XR+r}')
        A(f'v_dot2c_f32_bf16 v{QA+2*e+1}, v{WQ+4*r+e}, v{XU+r}')
if STAMPS: A('s_lshr_b32 s82, s2, 3\ns_add_u32 s82, s80, s82\ns_addc_u32 s83, s81, 0')
for e in range(4): A(f'{S32} v{QA+e}, v{QA+e+4}')
for e in range(4): A(f'v_add_f32 v{QA+e}, v{QA+e}, v{QA+e+4}')
for e in range(2): A(f'{S16} v{QA+e}, v{QA+e+2}')
for e in range(2): A(f'v_add_f32 v{QA+e}, v{QA+e}, v{QA+e+2}')
for e in range(2): A(f'v_add_f32_dpp v{QA+e}, v{QA+e}, v{QA+e} row_ror:8 {DPPM}')
A(f'v_mov_b32 v{QA+2}, s30\nv_mov_b32 v{QA+3}, s31')
QM = 0x00ff00ff00ff00ff
if not opt['forceslow']:
    setexec(QM)
    A(f'buffer_store_dwordx4 v[{QA}:{QA+3}], v90, s[32:35], s64 offen offset:{QP}')
    setexec(ALL)
A('''
v_and_b32 v3, 31, v0
v_lshrrev_b32 v2, 5, v0
v_lshlrev_b32 v2, 11, v2
v_lshl_add_u32 v2, v3, 4, v2
s_lshl_b32 s68, s6, 14
s_add_u32 s60, s68, s69
s_add_u32 s61, s60, 4096
s_add_u32 s62, s60, 8192
s_add_u32 s63, s60, 12288
v_lshlrev_b32 v3, 2, v3
s_lshl_b32 s69, s3, 7
v_add_u32 v3, s69, v3
v_mov_b32 v1, 0
s_mov_b32 s65, 0
''')
def q_lazy():
    skip = newlabel('qlazy')
    A(f'''
ds_read_b32 v4, v1 offset:{CNT+8}
s_waitcnt lgkmcnt(0)
v_readfirstlane_b32 s46, v4
s_sub_u32 s68, s46, s65
s_cmp_lg_u32 s68, 2
s_cbranch_scc1 {skip}
''')
    setexec(QM)
    A(f'buffer_store_dwordx4 v[{QA}:{QA+3}], v90, s[24:27], s64 offen offset:{QP} sc1')
    setexec(ALL)
    A(f's_mov_b32 s65, 1\n{skip}:')
def body():
    for n in range(4):
        A(f'buffer_load_dwordx4 v[{8+4*n}:{11+4*n}], v2, s[16:19], s{60+n} offen offset:{QP} sc1' + ' nt')
    A('s_waitcnt vmcnt(0)')
    tagcheck([10, 14, 18, 22])
if opt['q2']:
    A('''
s_lshl_b32 s66, s6, 14
s_lshl_b32 s68, s3, 11
s_add_u32 s66, s66, s68
s_add_u32 s68, s3, 5
s_cmp_eq_u32 s68, s7
s_cbranch_scc1 L_qred
v_and_b32 v2, 15, v0
v_lshlrev_b32 v3, 3, v2
v_add_u32 v3, s69, v3
v_lshlrev_b32 v2, 4, v2
''')
    if opt['q2d']: A(f"s_sleep {opt['q2d']}")
    def body2():
        A(f'buffer_load_dwordx4 v[8:11], v2, s[16:19], s66 offen offset:{QP + 1536} sc1 nt')
        A('s_waitcnt vmcnt(0)')
        tagcheck([10])
    spin2(body2, sleep=opt['q2s'], retry=q_lazy)
    A(f'ds_write_b64 v3, v[8:9] offset:{QL}\ns_branch L_qdone\nL_qred:')
spin2(body, sleep=opt['sleep'], retry=q_lazy)
stamp(2)
A(f'''
v_add_f32 v8, v8, v12
v_add_f32 v9, v9, v13
v_add_f32 v16, v16, v20
v_add_f32 v17, v17, v21
v_add_f32 v8, v8, v16
v_add_f32 v9, v9, v17
''')
swapreduce(S32, 'v_add_f32', [8, 9], [10, 11])
A(f'''
v_cvt_pk_bf16_f32 v8, v8, v9
ds_write_b32 v3, v8 offset:{QL}
''')
if opt['q2']:
    A(f'v_mov_b32_dpp v9, v8 quad_perm:[1,0,3,2] {DPPM}\nv_mov_b32 v10, s30\nv_mov_b32 v11, s31\nv_lshlrev_b32 v2, 3, v0')
    get_mode()
    publish([(0x55555555, f'buffer_store_dwordx4 v[8:11], v2, @, s66 offen offset:{QP + 1536}')])
    A('L_qdone:')
A(f'''
s_lshl_b32 s69, s3, 3
v_mov_b32 v4, s69
v_mov_b32 v6, 1
s_waitcnt lgkmcnt(0)
ds_write_b32 v4, v6 offset:{QF}
''')
get_mode()
q_lazy()
A('s_branch L_stats')
pad(1)
A('L_ids:')
A(f'''
s_setprio 3
s_getreg_b32 s64, hwreg(HW_REG_XCC_ID)
''')
ws_srds()
mktag()
A(f'''
s_and_b32 s64, s64, 15
v_mov_b32 v4, s30
v_mov_b32 v5, s31
v_mov_b32 v6, s64
v_mov_b32 v7, s64
s_lshl_b32 s68, s4, 9
s_add_u32 s68, s68, {ID}
s_lshr_b32 s65, s2, 3
s_lshl_b32 s69, s65, 4
v_mov_b32 v1, s69
s_mov_b64 exec, 1
buffer_store_dwordx4 v[4:7], v1, s[32:35], s68 offen
s_mov_b64 exec, -1
s_cmp_lg_u32 s65, {opt['lead']}
s_cbranch_scc1 L_noinit
v_lshlrev_b32 v12, 8, v0
s_lshl_b32 s69, s4, 15
s_add_u32 s69, s69, {PB}
''')
m = sum(1 << (k * 9 & 31) for k in range(opt['shots']))
setexec(m | m << 32)
A('buffer_store_dword v4, v12, s[24:27], s69 offen sc1\ns_mov_b64 exec, -1')
A(f'''
L_noinit:
v_and_b32 v1, 31, v0
v_lshlrev_b32 v1, 4, v1
s_mov_b32 s70, {opt['idtries']}
s_mov_b32 s46, 2
L_idpoll:
s_sleep {opt['idsleep']}
buffer_load_dwordx4 v[8:11], v1, s[32:35], s68 offen sc1{' nt' if opt['idnt'] else ''}
s_waitcnt vmcnt(0)
v_cmp_ne_u64 vcc, s[30:31], v[8:9]
s_nop 0
s_cbranch_vccz L_iddone
s_sub_u32 s70, s70, 1
s_cbranch_scc0 L_idpoll
s_branch L_idset
L_iddone:
v_cmp_ne_u32 vcc, s64, v10
s_nop 0
s_cbranch_vccnz L_idset
s_mov_b32 s46, {2 if opt['forceslow'] else 1}
L_idset:
v_mov_b32 v1, 0
v_mov_b32 v4, s46
ds_write_b32 v1, v4 offset:{CNT+8}
''')
A(f'''
s_cmp_lg_u32 s65, {opt['lead']}
s_cbranch_scc1 L_pf
s_lshl_b32 s69, s4, 15
s_add_u32 s69, s69, {PB}
s_add_u32 s22, s58, s69
s_addc_u32 s23, s59, 0
s_waitcnt lgkmcnt(0)
s_mov_b32 s8, -1
s_mov_b32 s9, -1
s_memtime s[12:13]
''')
for k in range(2 * opt['shots']):
    c = (k ^ (k >> 1)) & 1
    i = (k >> 1) * 9 & 31
    a, b = (12, 14) if k % 2 == 0 else (14, 12)
    A('s_waitcnt lgkmcnt(0)')
    A(f's_load_dword s10, s[22:23], {c * 8192 + i * 256}')
    A('s_waitcnt lgkmcnt(0)')
    A(f's_memtime s[{b}:{b+1}]')
    A('s_waitcnt lgkmcnt(0)')
    A(f's_sub_u32 s11, s{b}, s{a}')
    A(f's_min_u32 s{8+c}, s{8+c}, s11')
A(f'''
s_cmp_gt_u32 s8, s9
s_cselect_b32 s21, 1, 0
v_mov_b32 v4, s21
v_mov_b32 v5, s62
v_mov_b32 v6, s30
v_mov_b32 v7, s31
s_lshl_b32 s69, s4, 4
s_add_u32 s69, s69, {PF}
s_mov_b64 exec, 1
buffer_store_dwordx4 v[4:7], v1, s[24:27], s69 offen sc1
s_mov_b64 exec, -1
L_pf:
''')
if opt['cal']:
    A(f"s_cmp_lg_u32 s7, {opt['samp']}\ns_cbranch_scc1 L_nosample\nv_mov_b32 v1, 0")
    def body():
        A(f'ds_read_b64 v[4:5], v1 offset:{SUMS}')
        A('s_waitcnt lgkmcnt(0)')
        A('v_cmp_gt_u32 vcc, 8, v5')
    spin(body, sleep=2)
    A(f'''
v_mov_b32 v5, s31
v_lshlrev_b32 v6, 9, v0
s_lshl_b32 s68, s6, 3
s_add_u32 s68, s68, {CAL}
s_mov_b64 exec, {(2 << opt['caltries']) - 1}
buffer_store_dwordx2 v[4:5], v6, s[24:27], s68 offen sc1
s_mov_b64 exec, -1
L_nosample:
''')
    lds_wait_ge(CNT + 52, 8, 4, dst=12)
    A(f'''
s_add_u32 s60, s58, {CAL}
s_addc_u32 s61, s59, 0
s_mov_b32 s70, {opt['caltries']}
L_calpoll:
s_lshl_b32 s96, s62, 8
s_sub_u32 s96, 0, s96
s_mov_b32 s97, 0
''')
    for h in range(2):
        A(f's_load_dwordx16 s[8:23], s[60:61], {128*h}\ns_load_dwordx16 s[80:95], s[60:61], {128*h+64}\ns_waitcnt lgkmcnt(0)')
        for b in (8, 80):
            for i in range(8):
                A(f's_add_u32 s96, s96, s{b+2*i}\ns_cmp_lg_u32 s{b+2*i+1}, s31\ns_addc_u32 s97, s97, 0')
    A(f'''
s_cmp_eq_u32 s97, 0
s_cbranch_scc1 L_calok
s_add_u32 s60, s60, 512
s_addc_u32 s61, s61, 0
s_sub_u32 s70, s70, 1
s_cbranch_scc1 L_stats
s_sleep {opt['calsleep']}
s_branch L_calpoll
L_calok:
s_ashr_i32 s96, s96, 4
s_mov_b32 s68, {16 * opt['dC']}
s_cmp_lt_u32 s5, 30
s_cselect_b32 s68, {16 * opt['dB']}, s68
s_cmp_lt_u32 s5, 20
s_cselect_b32 s68, {16 * opt['dA']}, s68
s_lshl4_add_u32 s68, s62, s68
s_add_u32 s68, s68, s96
v_mov_b32 v12, s68
v_mov_b32 v13, -1
ds_write_b64 v1, v[12:13] offset:{ORG}
''')

A('L_stats:')
A('v_and_b32 v1, 7, v0\nv_lshlrev_b32 v1, 4, v1')
def body():
    A(f'ds_read_b128 v[4:7], v1 offset:{SL}')
    A('s_waitcnt lgkmcnt(0)')
    A('v_cmp_eq_u32 vcc, 0, v7')
spin(body, sleep=4)
A('s_cmp_lg_u32 s3, 3')
A('s_cbranch_scc1 L_nostat')
def combine_stats():
    A(f's_mov_b32 s68, {f32(LOG2E)}')
    A('v_mov_b32 v2, v4')
    allreduce8('v_max_f32', [2])
    A('v_sub_f32 v4, v4, v2\nv_mul_f32 v4, s68, v4\nv_exp_f32 v4, v4\nv_mul_f32 v3, v4, v5')
    allreduce8('v_add_f32', [3])
combine_stats()
A(f'''
s_lshl_b32 s68, s71, 4
s_add_u32 s68, s68, {ST}
v_mov_b32 v4, s30
v_mov_b32 v5, s31
''')
publish([(1, 'buffer_store_dwordx4 v[2:5], v1, @, s68 offen')])
A(f's_mov_b32 s68, {PF}')
def body():
    A('buffer_load_dwordx4 v[8:11], v1, s[24:27], s68 offen sc1')
    A('s_waitcnt vmcnt(0)')
    tagcheck([10])
spin(body, sleep=8)
A('''
v_cmp_ne_u32 vcc, 0, v8
s_nop 0
s_and_b32 s67, vcc_lo, 0xff
s_bitset1_b32 s67, 8
v_mov_b32 v4, s67
v_mov_b32 v1, 0
''')
if opt['dbg']:
    A('v_subrev_u32 v9, s62, v9')
    allreduce8('v_min_i32', [9])
    A(f'v_add_u32 v9, s62, v9\nds_write_b32 v1, v9 offset:{CNT+36}')
A(f'ds_write_b32 v1, v4 offset:{PREF}')
A('L_nostat:')
A('s_cmp_lt_u32 s5, 20\ns_cbranch_scc0 L_helper_exit')
BW = 64
CF = 56
XM = 52
def tr_addr(dst, tmp):
    A(f'''
v_lshrrev_b32 v{dst}, 4, v0
v_lshlrev_b32 v{dst}, 10, v{dst}
v_bfe_u32 v{tmp}, v0, 2, 2
v_lshl_add_u32 v{dst}, v{tmp}, 7, v{dst}
v_and_b32 v{tmp}, 3, v0
v_lshl_add_u32 v{dst}, v{tmp}, 3, v{dst}
''')
A(f'''
s_cmp_ge_u32 s5, 10
s_cselect_b32 s76, 1, 0
s_mul_i32 s77, s76, 10
s_sub_u32 s77, s5, s77
s_lshr_b32 s68, s3, 1
s_lshl1_add_u32 s78, s76, s68
{'v_lshrrev_b32 v2, 4, v0' if opt['op2'] else 'v_bfe_u32 v2, v0, 4, 1'}
v_lshlrev_b32 v2, {3 if opt['op2'] else 4}, v2
s_lshl_b32 s68, s78, 5
v_add_u32 v22, s68, v2
''')
A(f'''
v_lshlrev_b32 v60, 4, v0
s_lshl2_add_u32 s73, s4, s78
s_mul_i32 s73, s73, 6144
s_and_b32 s68, s3, 1
s_mul_i32 s68, s68, 3072
s_add_u32 s73, s73, s68
s_add_u32 s73, s73, {OP}
v_lshlrev_b32 v62, 2, v0
s_lshl_b32 s68, s3, 8
v_add_u32 v61, s68, v62
v_lshrrev_b32 v2, 5, v0
v_lshlrev_b32 v2, 11, v2
v_bfe_u32 v3, v0, 2, 3
v_lshl_add_u32 v2, v3, 4, v2
v_and_b32 v3, 1, v0
v_lshl_add_u32 v63, v3, 13, v2
s_lshr_b32 s75, s77, 1
s_lshl_b32 s75, s75, 14
s_and_b32 s68, s77, 1
s_lshl_b32 s68, s68, 12
s_add_u32 s75, s75, s68
s_lshl1_add_u32 s68, s4, s76
s_lshl_b32 s68, s68, 7
s_add_u32 s75, s75, s68
s_add_u32 s75, s75, {YP}
s_mov_b32 s66, {'0xaaaaaaaa' if opt['op2'] else '0xff00ff00'}
s_mov_b32 s67, s66
s_mov_b32 s8, 0x33333333
s_mov_b32 s9, 0x33333333
v_mov_b32 v6, s30
v_mov_b32 v7, s31
v_cndmask_b32 v{XM}, 0, v6, s[66:67]
v_cndmask_b32 v{XM+1}, 0, v7, s[66:67]
v_cndmask_b32 v{XM+2}, v6, 0, s[66:67]
v_cndmask_b32 v{XM+3}, v7, 0, s[66:67]
v_mov_b32 v50, s30
v_mov_b32 v51, s31
''')
tr_addr(24, 25)
A('s_mul_i32 s69, s3, 12288\nv_add_u32 v24, s69, v24')
A(f'''
s_cmp_lg_u32 s3, 0
s_cbranch_scc1 L_noc
s_lshl_b32 s72, s4, 9
s_add_u32 s72, s72, {ST}
v_and_b32 v1, 31, v0
v_lshlrev_b32 v1, 4, v1
''')
def body():
    A(f"s_sleep {opt['stsleep']}")
    A('buffer_load_dwordx4 v[4:7], v1, s[16:19], s72 offen sc1' + (' nt' if opt['idnt'] else ''))
    A('s_waitcnt vmcnt(0)')
    tagcheck([6])
spin2(body, local_only=True)
stamp(4)
combine_stats()
A(f'''
v_rcp_f32 v3, v3
v_lshrrev_b32 v1, 2, v1
v_mul_f32 v4, v4, v3
v_mov_b32 v2, 0
v_mov_b32 v3, 1
ds_write_b32 v1, v4 offset:{CL}
ds_write_b32 v2, v3 offset:{CNT+24}
L_noc:
''')
lds_wait_ge(CNT + 24, 1, 2)
A(f'ds_read_b64 v[{CF}:{CF+1}], v22 offset:{CL}' if opt['op2'] else f'ds_read_b128 v[{CF}:{CF+3}], v22 offset:{CL}')
def wo_tr(ts):
    for t in ts:
        for u in range(4):
            r = BW + 4 * (4 * t + u)
            A(f'ds_read_b64_tr_b16 v[{r}:{r+1}], v24 offset:{WL + 4096*t + 32*u}')
            A(f'ds_read_b64_tr_b16 v[{r+2}:{r+3}], v24 offset:{WL + 4096*t + 32*u + 512}')
AO = 112; AO2 = 150
def op_loads(srdn, AO=AO):
    stamp(2)
    for t in range(3):
        A(f'buffer_load_dwordx4 v[{AO+4*t}:{AO+4*t+3}], v60, s[{srdn}:{srdn+3}], s73 offen offset:{1024*t} sc1')
srd(12, 44, 6144 * 640 * 2)
A(f'''
v_lshrrev_b32 v21, 3, v0
v_mul_u32_u24 v21, 1280, v21
v_and_b32 v3, 7, v0
v_lshl_add_u32 v21, v3, 4, v21
s_lshl1_add_u32 s60, s4, s76
s_lshl2_add_u32 s60, s60, s3
s_mul_i32 s60, s60, {96*1280}
s_lshl_b32 s69, s77, 7
s_add_u32 s60, s60, s69
s_mul_i32 s61, s3, 12288
s_add_u32 s61, s61, {WL}
''')
A('v_mov_b32 v23, 1\ns_lshl_b32 s68, s3, 2\nv_mov_b32 v25, s68')
get_pref(4)
lds_wait_ge(CNT + 4, 8, 2)
stamp(3)
for n in range(12):
    if n >= opt['DWF']: A(f"s_waitcnt vmcnt({opt['DWF']-1})")
    A('s_mov_b32 m0, s61')
    A('buffer_load_dwordx4 v21, s[12:15], s60 offen nt lds')
    if n < 11: A(f's_add_u32 s60, s60, {8*1280}\ns_add_u32 s61, s61, 1024')
A('s_waitcnt vmcnt(4)')
wo_tr([0, 1])
if opt['sprio'] > 1: A('s_setprio 1')
lds_wait_ge(CNT + 28, 1, 1)
if opt['sprio'] > 1: A('s_setprio 3')
A(f"s_waitcnt vmcnt({opt['opw']})")
op_loads(32)
A('s_waitcnt vmcnt(3)')
wo_tr([2])
if not opt['trl']: A('s_waitcnt lgkmcnt(0)')
stamp(6)
def op_use(AO, extra):
    for t in range(3):
        A(f's_waitcnt vmcnt({2-t+extra})' + (' lgkmcnt(0)' if t == 2 and opt['trl'] else ''))
        q = AO + 4 * t
        if opt['opm']: A('s_mov_b64 exec, vcc')
        for e in range(4): A(f'v_xor_b32 v{q+e}, v{q+e}, v{XM+e}')
        if opt['opm']: A('s_mov_b64 exec, -1')
        def ors():
            if t == 0: A(f'v_or_b32 v2, v{q}, v{q+1}\nv_or_b32 v3, v{q+2}, v{q+3}')
            else: A(f'v_or3_b32 v2, v2, v{q}, v{q+1}\nv_or3_b32 v3, v3, v{q+2}, v{q+3}')
        if opt['opi']: ors()
        for u in range(4):
            r = BW + 4 * (4 * t + u)
            c = '0' if t == 0 else f'v[{32+4*u}:{35+4*u}]'
            A(f'v_mfma_f32_16x16x32_bf16 v[{32+4*u}:{35+4*u}], v[{q}:{q+3}], v[{r}:{r+3}], {c}')
            if opt['opi'] and t == 2 and u == 0: A('v_cndmask_b32 v2, v3, v2, s[66:67]')
            if opt['opi'] and t == 2 and u == 1: A('v_cmp_ne_u32 vcc, 0, v2')
        if not opt['opi']: ors()
    if not opt['opi']:
        A('v_cndmask_b32 v2, v3, v2, s[66:67]')
        A('v_cmp_ne_u32 vcc, 0, v2')
if opt['opp']:
    def body():
        op_loads(16, AO2)
        op_use(AO, 3)
        A('s_nop 0\ns_cbranch_vccz L_opok')
        op_loads(16, AO)
        op_use(AO2, 3)
    spin2(body, local_only=True)
    A('L_opok:')
else:
    if opt['opm']: A('s_mov_b64 vcc, -1')
    def body():
        if opt['opm']: A('s_mov_b64 exec, vcc')
        op_loads(16)
        A('L_opw:')
        op_use(AO, 0)
    spin2(body, sleep=opt['osleep'], local_only=True, entry='L_opw')
stamp(7)
if opt['w2t'] == 0: A(f'ds_write_b32 v25, v23 offset:{OKF}')
if opt['opi']: A('s_nop 0')
if opt['pkw']:
    for u in range(4):
        A(f'v_pk_mul_f32 v[{8+2*u}:{9+2*u}], v[{32+4*u}:{33+4*u}], v[{CF}:{CF+1}]')
        A(f'v_pk_fma_f32 v[{8+2*u}:{9+2*u}], v[{34+4*u}:{35+4*u}], v[{CF+2}:{CF+3}], v[{8+2*u}:{9+2*u}]')
        A(f'v_add_f32 v{4+u}, v{8+2*u}, v{9+2*u}')
else:
    for u in range(4):
        A(f'v_mul_f32 v{4+u}, v{32+4*u}, v{CF}')
        for r in range(1, 4): A(f"v_fmac_f32 v{4+u}, v{32+4*u+r}, v{CF + (r >> 1 if opt['op2'] else r)}")
A(f'''
{S32} v4, v6
{S32} v5, v7
v_add_f32 v4, v4, v6
v_add_f32 v5, v5, v7
{S16} v4, v5
v_add_f32 v4, v4, v5
ds_write_b32 v61, v4 offset:{RL}
s_cmp_lg_u32 s3, 0
s_waitcnt lgkmcnt(0)
s_barrier
s_cbranch_scc1 L_post_wo
ds_read_b32 v5, v62 offset:{RL+256}
ds_read_b32 v6, v62 offset:{RL+512}
ds_read_b32 v7, v62 offset:{RL+768}
s_waitcnt lgkmcnt(0)
v_add_f32 v4, v4, v5
v_add_f32 v6, v6, v7
v_add_f32 v4, v4, v6
v_mov_b32_dpp v5, v4 quad_perm:[1,0,3,2] {DPPM}
v_cvt_pk_bf16_f32 v4, v4, v5
v_mov_b32_dpp v48, v4 quad_perm:[0,0,0,0] {DPPM}
v_mov_b32_dpp v49, v4 quad_perm:[2,2,2,2] {DPPM}
''')
A('s_mov_b64 exec, s[8:9]')
A('buffer_store_dwordx4 v[48:51], v63, s[24:27], s75 offen sc1')
stamp(5)
A('s_barrier')
if opt['wb'] & 2: A('s_cmp_lg_u32 s5, 19\ns_cbranch_scc1 L_end\nbuffer_wbl2 sc1')
write_stamps(0)
A('s_endpgm')
A('L_helper_exit:')
if STAMPS:
    A('s_cmp_lg_u32 s3, 0\ns_cbranch_scc1 L_end')
    write_stamps(0)
A('s_endpgm')

B1R = 64
DR = 16
pad(2)
A('L_f1:')
srd(12, 48, 640 * 1536 * 2); srd(16, 50, 640 * 1536 * 2)
A(f"""
s_sub_u32 s74, s5, 20
v_lshrrev_b32 v3, 4, v0
v_and_b32 v2, 7, v0
v_lshrrev_b32 v62, 3, v0
v_mul_u32_u24 v62, 3072, v62
v_lshl_add_u32 v62, v2, 4, v62
s_lshl3_add_u32 s61, s74, s73
s_mul_i32 s61, s61, {8*3072}
s_mul_i32 s68, s4, 384
s_add_u32 s61, s61, s68
s_add_u32 s62, s61, 128
s_add_u32 s63, s61, 256
s_lshl_b32 s79, s73, 10
s_add_u32 s79, s79, {WL}
v_mov_b32 v57, 0
v_mov_b32 v6, s30
v_mov_b32 v7, s31
""")
lds_wait_ge(CNT + 28, 1, 1)
for nbl in range(3):
    for m in range(2):
        A(f's_add_u32 m0, s79, {(m*3 + nbl)*8192}')
        A(f'buffer_load_dwordx4 v62, s[{12+4*m}:{15+4*m}], s{61+nbl} offen nt lds')
A('s_setprio 3\ns_cmp_gt_u32 s73, 1\ns_cbranch_scc1 L_f1m')
get_pref(1)
A(f"""
s_lshl1_add_u32 s74, s74, s73
v_lshl_add_u32 v61, v2, 2, v3
v_lshlrev_b32 v61, 1, v61
s_lshl_b32 s68, s74, 6
v_add_u32 v61, s68, v61
global_load_ushort v56, v61, s[36:37]
v_lshlrev_b32 v54, 5, v3
v_lshl_add_u32 v54, v2, 2, v54
v_lshlrev_b32 v55, 4, v0
s_lshl_b32 s72, s4, 9
s_lshl4_add_u32 s72, s74, s72
s_add_u32 s72, s72, {PS}
s_mul_i32 s75, s4, 20
s_add_u32 s75, s75, s74
s_lshl_b32 s75, s75, 7
s_add_u32 s75, s75, {PH}
""")
A(f"""
s_mov_b64 exec, 1
buffer_load_dword v104, v54, s[32:35], s75 offen sc1
buffer_load_dword v105, v55, s[32:35], s72 offen sc1
s_mov_b64 exec, -1
s_lshr_b32 s60, s74, 2
s_lshl_b32 s60, s60, 14
s_and_b32 s68, s74, 3
s_lshl_b32 s68, s68, 11
s_add_u32 s60, s60, s68
s_lshr_b32 s68, s47, s4
s_and_b32 s68, s68, 1
s_lshl_b32 s68, s68, 13
s_add_u32 s60, s60, s68
s_add_u32 s60, s60, {YP}
v_lshlrev_b32 v51, 4, v3
v_lshl_add_u32 v51, v2, 1, v51
v_and_b32 v4, 1, v0
v_mul_u32_u24 v4, 126, v4
v_add_u32 v51, v51, v4
s_lshl_b32 s68, s73, 6
v_add_u32 v51, s68, v51
s_mov_b32 s77, 0x3f80
s_mov_b32 s71, 0x3f800000
v_mov_b32 v14, s30
v_mov_b32 v15, s31
v_mov_b32 v8, 0
v_mov_b32 v9, 0
v_mov_b32 v10, 0
v_mov_b32 v11, 0
v_not_b32 v98, s30
v_not_b32 v102, s30
s_waitcnt vmcnt(2)
s_barrier
v_lshlrev_b32 v56, 16, v56
""")
stamp(6)
YL = ['buffer_load_dwordx4 v[96:99], v55, s[24:27], s60 offen sc1', 'buffer_load_dwordx4 v[100:103], v55, s[24:27], s60 offen offset:1024 sc1']
if opt['fry']:
    A(f"""
s_mov_b32 s70, {SPIN}
s_mov_b64 s[20:21], -1
s_mov_b64 s[22:23], -1
L_ypoll:
s_mov_b64 exec, s[20:21]
{YL[0]}
s_mov_b64 exec, s[22:23]
{YL[1]}
s_mov_b64 exec, -1
""")
    for k in range(opt['fry']):
        A('v_cmp_ne_u64 s[20:21], s[30:31], v[98:99]\nv_cmp_ne_u64 s[22:23], s[30:31], v[102:103]\ns_or_b64 vcc, s[20:21], s[22:23]\ns_cbranch_scc0 L_yok')
    A('s_waitcnt vmcnt(16)\ns_sub_u32 s70, s70, 1\ns_cbranch_scc0 L_ypoll\nL_yok:')
else:
    def body():
        A(YL[0]); A(YL[1])
        A('s_waitcnt vmcnt(0)')
        tagcheck([98, 102])
    spin(body)
stamp(1)
for r in (96, 100):
    A(f'v_dot2c_f32_bf16 v8, s77, v{r}\nv_dot2c_f32_bf16 v10, s77, v{r+1}\nv_dot2c_f32_bf16 v9, s71, v{r}\nv_dot2c_f32_bf16 v11, s71, v{r+1}')
A(f"""
{S32} v8, v10
{S32} v9, v11
v_add_f32 v8, v8, v10
v_add_f32 v9, v9, v11
{S16} v8, v9
v_add_f32 v8, v8, v9
v_add_f32_dpp v8, v8, v8 row_ror:8 {DPPM}
v_cvt_pk_bf16_f32 v8, v57, v8
v_add_f32 v12, v8, v56
v_mov_b32_dpp v13, v12 quad_perm:[1,0,3,2] {DPPM}
v_cvt_pk_bf16_f32 v12, v12, v13
ds_write_b32 v51, v12 offset:{RL}
v_lshlrev_b32 v4, 16, v12
v_mul_f32 v5, v4, v4
""")
allreduce8('v_add_f32', [4, 5])
A('s_waitcnt lgkmcnt(0)\ns_barrier')
A(f'v_mov_b32_dpp v13, v12 quad_perm:[2,3,2,3] {DPPM}')
allreduce_rows('v_add_f32', [4, 5], [8, 9])
publish([(1, 'buffer_store_dwordx4 v[4:7], v55, @, s72 offen'),
         (0x0011001100110011, 'buffer_store_dwordx4 v[12:15], v54, @, s75 offen')])
if opt['wb'] & 4: A('s_cmp_lg_u32 s74, 0\ns_cbranch_scc1 L_end\nbuffer_wbl2 sc1')
stamp_val(18, 82, 83, True)
stamp_val(23, 92, 93, True)
A('s_endpgm')
pad(3)
A(f"""
L_f1m:
s_sub_u32 s68, s73, 2
s_lshr_b32 s78, s68, 1
s_and_b32 s69, s73, 1
v_lshlrev_b32 v58, 7, v3
v_bfe_u32 v4, v0, 2, 2
v_lshl_add_u32 v58, v4, 9, v58
v_and_b32 v4, 3, v0
v_lshl_add_u32 v58, v4, 3, v58
s_lshl_b32 s75, s78, 13
s_lshl_b32 s68, s69, 6
s_add_u32 s75, s75, s68
v_add_u32 v58, s75, v58
v_lshlrev_b32 v52, 4, v3
v_and_b32 v59, 1, v3
v_cmp_eq_u32 s[62:63], 1, v59
v_mul_u32_u24 v59, 3072, v59
v_bfe_u32 v4, v0, 3, 1
v_lshl_add_u32 v59, v4, 9, v59
v_lshl_add_u32 v59, v2, 4, v59
s_mul_i32 s76, s4, 3
s_add_u32 s76, s76, s78
s_lshl1_add_u32 s76, s76, s69
s_mul_i32 s76, s76, 6144
s_lshr_b32 s68, s74, 2
s_lshl_b32 s68, s68, 10
s_add_u32 s76, s76, s68
s_and_b32 s68, s74, 3
s_lshl_b32 s68, s68, 7
s_add_u32 s76, s76, s68
s_add_u32 s77, s76, {CB}
s_add_u32 s76, s76, {PA}
v_mov_b32 v8, 0x3f803f80
v_mov_b32 v9, 0x3f803f80
v_mov_b32 v10, 0x3f803f80
v_mov_b32 v11, 0x3f803f80
v_mov_b32 v34, s30
v_mov_b32 v35, s31
s_waitcnt vmcnt(0)
s_barrier
""")
for kk in range(2):
    for m in range(2):
        for u in range(2):
            r = B1R + 4 * ((kk * 2 + m) * 2 + u)
            o = WL + m * 24576 + kk * 4096 + 32 * u
            A(f'ds_read_b64_tr_b16 v[{r}:{r+1}], v58 offset:{o}')
            A(f'ds_read_b64_tr_b16 v[{r+2}:{r+3}], v58 offset:{o + 2048}')
def f1_mfma(kk, a):
    for k in range(4):
        c = f'v[{DR+4*k}:{DR+3+4*k}]' if kk else '0'
        A(f'v_mfma_f32_16x16x32_bf16 v[{DR+4*k}:{DR+3+4*k}], v[{a}:{a+3}], v[{B1R+16*kk+4*k}:{B1R+16*kk+4*k+3}], {c}')
def f1_select(d):
    A(f'v_cndmask_b32 v{d}, v{DR}, v{DR+4}, s[62:63]\nv_cndmask_b32 v{d+1}, v{DR+8}, v{DR+12}, s[62:63]')
A('s_waitcnt lgkmcnt(0)')
f1_mfma(0, 8); f1_mfma(1, 8)
f1_select(32)
publish([(0xffffffff, 'buffer_store_dwordx4 v[32:35], v59, @, s77 offen')])
A(f"""
s_barrier
ds_read_b128 v[8:11], v52 offset:{RL}
ds_read_b128 v[12:15], v52 offset:{RL+64}
s_waitcnt lgkmcnt(1)
""")
f1_mfma(0, 8)
A('s_waitcnt lgkmcnt(0)')
f1_mfma(1, 12)
f1_select(4)
publish([(0xffffffff, 'buffer_store_dwordx4 v[4:7], v59, @, s76 offen')])
if STAMPS:
    A('s_cmp_eq_u32 s3, 11\ns_cbranch_scc1 L_end')
    stamp_now(11, True)
A('s_endpgm')

pad(4)
A('L_post_wo:')
A("""
s_cmp_gt_u32 s5, 11
s_cbranch_scc1 L_end
s_cmp_eq_u32 s3, 3
s_cbranch_scc1 L_end
v_mov_b32 v57, 0
s_cmp_eq_u32 s3, 1
s_cbranch_scc1 L_hid
s_barrier
""")
A(f"""
s_and_b32 s68, s4, 1
s_lshl_b32 s68, s68, 2
s_sub_u32 s68, 12, s68
s_cmp_ge_u32 s5, s68
s_cbranch_scc1 L_end
s_mul_i32 s72, s4, 5
s_add_u32 s72, s72, 1
s_lshr_b32 s72, s72, 1
s_lshr_b32 s68, s5, 2
s_add_u32 s72, s72, s68
s_and_b32 s73, s5, 3
v_lshrrev_b32 v2, 1, v0
v_lshlrev_b32 v2, 7, v2
v_and_b32 v3, 1, v0
v_lshl_add_u32 v96, v3, 4, v2
s_lshl_b32 s10, s72, 15
s_lshr_b32 s68, s47, s4
s_and_b32 s68, s68, 1
s_lshl_b32 s68, s68, 13
s_add_u32 s10, s10, s68
s_lshl_b32 s68, s73, 5
s_add_u32 s10, s10, s68
s_add_u32 s10, s10, {FP}
s_add_u32 s11, s10, 4096
s_add_u32 s12, s10, 16384
v_lshrrev_b32 v4, 4, v0
v_lshl_add_u32 v97, v3, 2, v4
v_lshlrev_b32 v97, 1, v97
v_lshlrev_b32 v99, 5, v4
s_and_b32 s68, s73, 1
s_lshl_b32 s68, s68, 5
v_lshl_add_u32 v98, v3, 4, s68
s_mul_i32 s13, s4, 20
s_add_u32 s13, s13, s72
s_lshl_b32 s13, s13, 7
s_lshr_b32 s68, s73, 1
s_lshl4_add_u32 s13, s68, s13
s_add_u32 s13, s13, {PH}
s_lshl2_add_u32 s14, s72, s73
s_lshl_b32 s14, s14, 4
s_mov_b32 s8, 0x30003
s_mov_b32 s9, 0x30003
s_mov_b32 s77, 0x3f80
s_mov_b32 s71, 0x3f800000
v_mov_b32 v8, 0
v_mov_b32 v9, 0
v_mov_b32 v10, 0
v_mov_b32 v11, 0
""")
FS = 16
srd(64, 54, 1280)
if opt['outpre']:
    A(f"s_mov_b64 exec, 1\nbuffer_load_dword v30, v57, s[64:67], s14 offen{['', '', ' sc1', ' nt'][opt['outpre']]}\ns_mov_b64 exec, -1")
A('s_setprio 0')
lds_wait_ge(HRDY, 1, opt['hsleep'])
if opt['fsleep']: A(f"s_sleep {opt['fsleep']}")
def body():
    A('buffer_load_dwordx4 v[4:7], v99, s[16:19], s13 offen sc1')
    for n in range(3):
        r = FS + 4 * n
        A(f'buffer_load_dwordx4 v[{r}:{r+3}], v96, s[24:27], s{10+n} offen sc1')
    A('s_waitcnt vmcnt(0)')
    tagcheck([6, FS + 2, FS + 6, FS + 10])
spin2(body, local_only=True)
A('L_finc:')
stamp(5)
for n in range(3):
    r = FS + 4 * n
    A(f'v_dot2c_f32_bf16 v8, s77, v{r}\nv_dot2c_f32_bf16 v10, s77, v{r+1}\nv_dot2c_f32_bf16 v9, s71, v{r}\nv_dot2c_f32_bf16 v11, s71, v{r+1}')
A(f"""
v_lshrrev_b64 v[58:59], v98, v[4:5]
{S32} v8, v10
{S32} v9, v11
v_add_f32 v8, v8, v10
v_add_f32 v9, v9, v11
v_lshlrev_b32 v58, 16, v58
{S16} v8, v9
v_add_f32 v8, v8, v9
v_add_f32_dpp v8, v8, v8 row_ror:8 {DPPM}
v_add_f32_dpp v8, v8, v8 row_ror:4 {DPPM}
v_add_f32_dpp v8, v8, v8 quad_perm:[2,3,0,1] {DPPM}
v_cvt_pk_bf16_f32 v8, v57, v8
v_add_f32 v8, v8, v58
v_cvt_pk_bf16_f32 v8, v8, v8
""")
A('s_mov_b64 exec, s[8:9]')
if opt['dry'] & 2: A('s_cbranch_execz L_end')
A(f"""
buffer_store_short v8, v97, s[64:67], s14 offen{['', ' sc1', ' sc0 sc1', ' nt'][opt['outfl']]}
s_cmp_lg_u32 s14, 0
s_cbranch_scc1 L_fin_exit
s_mov_b64 exec, 1
v_mov_b32 v4, s30
v_mov_b32 v5, s31
s_mov_b32 s68, {EP}
buffer_store_dwordx2 v[4:5], v57, s[24:27], s68 offen
L_fin_exit:
""")
if opt['endst']:
    A(f's_memrealtime s[82:83]\ns_mov_b64 exec, 1\ns_add_u32 s68, s14, {0x390000}\ns_waitcnt lgkmcnt(0)\nv_mov_b32 v4, s82\nv_mov_b32 v5, s83\nbuffer_store_dwordx2 v[4:5], v57, s[24:27], s68 offen')
if opt['dbg']:
    A(f'''
s_cmp_lg_u32 s14, 0
s_cbranch_scc1 L_end
s_mov_b64 exec, -1
ds_read_b32 v4, v57 offset:{CNT+36}
s_memrealtime s[82:83]
s_waitcnt lgkmcnt(0)
v_readfirstlane_b32 s85, v4
s_sub_u32 s84, s82, s85
v_mov_b32 v4, s84
global_store_dword v57, v4, s[56:57]
s_mul_i32 s84, s84, {opt['dbg']}
s_min_u32 s84, s84, 40000
L_dbgspin:
s_memrealtime s[86:87]
s_waitcnt lgkmcnt(0)
s_sub_u32 s86, s86, s82
s_cmp_lt_u32 s86, s84
s_cbranch_scc1 L_dbgspin
''')
if STAMPS:
    A('s_waitcnt vmcnt(0)')
    stamp(7)
    write_stamps(8)
A('s_endpgm')

pad(5)
A('L_hid:')
M2 = 0x0000ffff0000ffff
A(f"""
s_mul_i32 s72, s4, 12
s_add_u32 s72, s72, s5
v_lshrrev_b32 v4, 5, v0
v_and_b32 v2, 7, v0
v_lshl_add_u32 v62, v4, 3, v2
v_lshlrev_b32 v62, 1, v62
v_lshlrev_b32 v63, 2, v2
v_lshlrev_b32 v60, 4, v0
v_and_b32 v3, 31, v0
v_lshlrev_b32 v61, 4, v3
s_lshl_b32 s65, s4, 9
s_add_u32 s65, s65, {PS}
s_mul_i32 s60, s72, 3072
s_add_u32 s62, s60, {CB}
s_add_u32 s60, s60, {PA}
s_mov_b32 s8, 0xfffff
s_mov_b32 s9, 0xfffff
s_mov_b32 s10, 0xffff
s_mov_b32 s11, 0xffff
v_mov_b32 v59, 1
""")
for r in (24, 136, 140): A(f'v_mov_b32 v{r}, 0\nv_mov_b32 v{r+1}, 0\nv_mov_b32 v{r+2}, s30\nv_mov_b32 v{r+3}, s31')
def loads3(r, srdn, so, fl=''):
    A(f'buffer_load_dwordx4 v[{r}:{r+3}], v60, s[{srdn}:{srdn+3}], s{so} offen sc1' + fl)
    A(f'buffer_load_dwordx4 v[{r+4}:{r+7}], v60, s[{srdn}:{srdn+3}], s{so} offen offset:1024 sc1' + fl)
    A(f's_mov_b64 exec, s[10:11]\nbuffer_load_dwordx4 v[{r+8}:{r+11}], v60, s[{srdn}:{srdn+3}], s{so} offen offset:2048 sc1{fl}\ns_mov_b64 exec, -1')
def issue_s(srdn=32):
    A(f's_mov_b64 exec, s[8:9]\nbuffer_load_dwordx4 v[140:143], v61, s[{srdn}:{srdn+3}], s65 offen sc1\ns_mov_b64 exec, -1')
def issue_p(srdn=32): loads3(128, srdn, 60)
def poll(issue, check, n, bound=None):
    slow = newlabel('pslow'); ok = newlabel('pok')
    check()
    A(f's_nop 0\ns_cbranch_vccz {ok}')
    A(f's_cmp_lg_u32 s46, 1\ns_cbranch_scc1 {slow}')
    freepoll(issue, check, n, ok, bound)
    mark = len(A.lines)
    A(f'{slow}:')
    def body():
        issue(16); A('s_waitcnt vmcnt(0)'); check()
    spin2(body, local_only=True)
    if opt['ool']:
        A(f's_branch {ok}')
        outline.append('\n'.join(A.lines[mark:])); del A.lines[mark:]
    A(f'{ok}:')
    return ok
def body():
    loads3(16, 16, 62)
    issue_p(16); issue_s(16)
    A('s_waitcnt vmcnt(0)')
    tagcheck([18, 22, 26])
if opt['frc']:
    for r in (18, 22, 130, 134): A(f'v_not_b32 v{r}, s30')
    A('s_mov_b64 exec, s[10:11]\nv_not_b32 v26, s30\nv_not_b32 v138, s30\ns_mov_b64 exec, s[8:9]\nv_not_b32 v142, s30\ns_mov_b64 exec, -1')
A('s_barrier')
if opt['frc']:
    def issue_all(srdn=32):
        loads3(16, srdn, 62, ' nt' if opt['hnt'] & 1 else ''); issue_s(srdn); loads3(128, srdn, 60, ' nt' if opt['hnt'] & 2 else '')
    poll(issue_all, lambda: tagcheck([18, 22, 26]), opt['frc'], opt['frcb'])
else: spin2(body, local_only=True)
A('v_pk_add_f32 v[40:41], v[16:17], v[20:21]\nv_pk_add_f32 v[40:41], v[40:41], v[24:25]')
for r in (40, 41): A(f'v_add_f32_dpp v{r}, v{r}, v{r} row_ror:8 {DPPM}')
swapreduce(S16, 'v_add_f32', [40, 41], [42, 43])
poll(issue_s, lambda: tagcheck([142]), opt['frs'])
A('s_cmp_lg_u32 s46, 1\ns_cbranch_scc1 L_nopre')
issue_p()
A('L_nopre:')
A(f"""
v_add_f32_dpp v36, v140, v140 quad_perm:[1,0,3,2] {DPPM}
v_add_f32_dpp v37, v141, v141 quad_perm:[1,0,3,2] {DPPM}
v_add_f32_dpp v36, v36, v36 quad_perm:[2,3,0,1] {DPPM}
v_add_f32_dpp v37, v37, v37 quad_perm:[2,3,0,1] {DPPM}
v_add_f32_dpp v36, v36, v36 row_half_mirror {DPPM}
v_add_f32_dpp v37, v37, v37 row_half_mirror {DPPM}
v_add_f32_dpp v46, v36, v36 row_mirror {DPPM}
v_add_f32_dpp v47, v37, v37 row_mirror {DPPM}
v_add_f32_dpp v36, v36, v36 row_mirror {DPPM}
v_add_f32_dpp v37, v37, v37 row_mirror {DPPM}
{S16} v36, v46
{S16} v37, v47
v_pk_add_f32 v[36:37], v[36:37], v[46:47]
s_cbranch_scc1 L_nopre2
""")
issue_p()
A(f"""
L_nopre2:
v_mul_f32 v44, {f32(1.0/640)}, v36
v_mul_f32 v45, {f32(1.0/640)}, v37
v_fma_f32 v45, -v44, v44, v45
v_max_f32 v45, 0, v45
v_cvt_pk_bf16_f32 v45, v57, v45
v_cvt_pk_bf16_f32 v44, v57, v44
v_add_f32 v45, {f32(1e-5)}, v45
v_cvt_pk_bf16_f32 v45, v57, v45
v_sqrt_f32 v45, v45
v_mul_f32 v40, v44, v40
v_cvt_pk_bf16_f32 v45, v57, v45
v_rcp_f32 v45, v45
v_mul_f32 v41, v44, v41
""")
poll(issue_p, lambda: tagcheck([130, 134, 138]), opt['frp'])
A('L_hidc:')
stamp(7)
A(f"""
v_pk_add_f32 v[8:9], v[128:129], v[132:133]
v_pk_add_f32 v[8:9], v[8:9], v[136:137]
v_add_f32_dpp v10, v8, v8 row_ror:8 {DPPM}
v_add_f32_dpp v11, v9, v9 row_ror:8 {DPPM}
v_add_f32_dpp v8, v8, v8 row_ror:8 {DPPM}
v_add_f32_dpp v9, v9, v9 row_ror:8 {DPPM}
{S16} v8, v10
{S16} v9, v11
v_add_f32 v8, v8, v10
v_sub_f32 v8, v8, v40
v_mul_f32 v8, v8, v45
v_cvt_pk_bf16_f32 v8, v57, v8
v_mul_f32 v12, {f32(-LOG2E)}, v8
v_exp_f32 v12, v12
v_add_f32 v9, v9, v11
v_add_f32 v12, 1.0, v12
v_rcp_f32 v12, v12
v_sub_f32 v9, v9, v41
v_mul_f32 v9, v9, v45
v_mul_f32 v8, v8, v12
v_cvt_pk_bf16_f32 v9, v57, v9
v_cvt_pk_bf16_f32 v8, v57, v8
v_mul_f32 v8, v8, v9
v_cvt_pk_bf16_f32 v8, v8, v8
ds_write_b16 v62, v8 offset:{HID}
ds_write_b32 v63, v59 offset:{HRDY}
""")
if opt['wb'] & 1: A('s_cmp_lg_u32 s5, 0\ns_cbranch_scc1 L_end\nbuffer_wbl2 sc1')
stamp_val(17, 94, 95)
A('s_endpgm')

pad(6)
A('L_f2:')
W2R = 64
srd(8, 52, 1536 * 640 * 2)
get_pref(1, dst=16, adr=17)
A(f"""
s_mul_i32 s72, s4, 12
s_add_u32 s72, s72, s5
v_mov_b32 v57, 0
s_sub_u32 s68, s3, 7
s_lshl_b32 s69, s68, 8
v_lshlrev_b32 v58, 2, v0
v_add_u32 v58, s69, v58
v_lshrrev_b32 v2, 4, v0
v_lshl_add_u32 v2, s68, 2, v2
v_mul_u32_u24 v3, 52, v2
v_lshrrev_b32 v3, 8, v3
v_mul_u32_u24 v4, 5, v3
v_sub_u32 v4, v2, v4
v_cmp_lt_u32 vcc, 2, v4
v_lshlrev_b32 v3, 1, v3
v_addc_co_u32 v3, vcc, 0, v3, vcc
v_lshrrev_b32 v3, v3, s47
v_and_b32 v3, 1, v3
v_lshlrev_b32 v116, 15, v2
v_lshl_add_u32 v116, v3, 13, v116
v_bfe_u32 v3, v0, 1, 3
v_lshl_add_u32 v116, v3, 4, v116
s_lshr_b32 s79, s72, 6
s_lshl_b32 s79, s79, 14
s_and_b32 s68, s72, 63
s_lshl_b32 s68, s68, 7
s_add_u32 s79, s79, s68
s_add_u32 s79, s79, {FP}
s_mov_b32 s60, 0x05040100
s_mov_b32 s61, 0x07060302
s_mul_i32 s62, s72, 20480
""")
def w2_loads():
    for k in range(16):
        A(f'buffer_load_dword v{W2R+k}, v58, s[8:11], s62 offen offset:{1280*(k%3)} nt')
        if k % 3 == 2: A('s_add_u32 s62, s62, 3840')
if opt['w2dma']:
    A(f'''
v_lshrrev_b32 v2, 4, v0
v_mul_u32_u24 v2, 1280, v2
v_and_b32 v3, 15, v0
v_lshl_add_u32 v2, v3, 4, v2
s_add_u32 s62, s62, s69
s_lshl_b32 s63, s69, 4
v_lshlrev_b32 v3, 2, v0
v_add_u32 v3, s63, v3
s_add_u32 s63, s63, {WL}
''')
    if opt['w2t'] == 0:
        A('v_and_b32 v1, 3, v0\nv_lshlrev_b32 v1, 2, v1')
        def body():
            A(f'ds_read_b32 v4, v1 offset:{OKF}')
            A('s_waitcnt lgkmcnt(0)')
            A('v_cmp_eq_u32 vcc, 0, v4')
        spin(body)
    else: A('s_barrier')
    if opt['w2t'] == 2: A('s_barrier')
    for k in range(4):
        A(f's_add_u32 m0, s63, {1024*k}\nbuffer_load_dwordx4 v2, s[8:11], s62 offen nt lds\ns_add_u32 s62, s62, 5120')
    if opt['w2t'] == 0: A('s_barrier')
    if opt['w2t'] < 2: A('s_barrier')
    A('s_waitcnt vmcnt(0)')
    for k in range(16): A(f'ds_read_b32 v{W2R+k}, v3 offset:{WL + 256*k}')
    A('s_waitcnt lgkmcnt(0)')
else:
    A('s_barrier')
    w2_loads()
    A('s_barrier')
    A('s_waitcnt vmcnt(0)')
stamp(6)
for kp in range(8):
    A(f'v_perm_b32 v{80+kp}, v{W2R+2*kp+1}, v{W2R+2*kp}, s60')
    A(f'v_perm_b32 v{88+kp}, v{W2R+2*kp+1}, v{W2R+2*kp}, s61')
A(f"""
v_mov_b32 v16, 0
v_mov_b32 v17, 0
v_mov_b32 v18, 0
v_mov_b32 v19, 0
s_mov_b32 s66, 0x55555555
s_mov_b32 s67, 0x55555555
v_mov_b32 v6, s30
v_mov_b32 v7, s31
v_and_b32 v9, 15, v0
v_lshlrev_b32 v9, 2, v9
v_mov_b32 v8, 0
s_mov_b32 s64, 0xff00ff00
s_mov_b32 s65, 0xff00ff00
s_mov_b32 s70, {SPIN * 8}
s_waitcnt lgkmcnt(0)
L_f2poll:
ds_read_b32 v8, v9 offset:{HID}
s_waitcnt lgkmcnt(4)
v_cmp_eq_u32 vcc, 0, v8
s_sub_u32 s70, s70, 1
s_cbranch_scc1 L_f2go
s_and_b64 vcc, vcc, s[64:65]
s_cbranch_scc1 L_f2poll
L_f2go:
""")
for kp in range(8):
    A(f'v_dot2c_f32_bf16_dpp v{16+2*(kp&1)}, v8, v{80+kp} row_newbcast:{kp} {DPPM}')
    A(f'v_dot2c_f32_bf16_dpp v{17+2*(kp&1)}, v8, v{88+kp} row_newbcast:{kp} {DPPM}')
A('v_pk_add_f32 v[16:17], v[16:17], v[18:19]')
A(f"""
v_cvt_pk_bf16_f32 v4, v16, v17
v_mov_b32_dpp v5, v4 quad_perm:[1,0,3,2] {DPPM}
""")
A('s_mov_b64 exec, s[66:67]')
if opt['dry'] & 4: A('s_cbranch_execz L_end')
A('buffer_store_dwordx4 v[4:7], v116, s[24:27], s79 offen sc1')
if opt['wb'] & 8:
    A('s_lshl4_add_u32 s68, s5, s3\ns_cmp_lg_u32 s68, 11\ns_cbranch_scc1 L_end')
    if opt['wbs']: A(f"s_sleep {opt['wbs']}")
    A('buffer_wbl2 sc1')
if STAMPS:
    setexec(ALL)
    stamp_now(20, True)
    stamp_val(15, 92, 93, True)
A('L_end:')
A('s_endpgm')
A('L_dry:')
if opt['dry']:
    srd(64, 54, 1280)
    A('''
v_mov_b32 v97, 0
v_mov_b32 v116, 0
v_mov_b32 v62, 0
v_mov_b32 v63, 0
s_mov_b32 s14, 16
s_mov_b32 s79, 0
s_mov_b64 s[8:9], 0
s_mov_b32 s46, 2
s_mov_b64 exec, 0
''')
    if opt['dry'] & 1: A('s_cmp_eq_u32 s3, 4\ns_cbranch_scc1 L_nopre')
    if opt['dry'] & 2: A('s_cmp_eq_u32 s3, 5\ns_cbranch_scc1 L_finc')
    if opt['dry'] & 4: A('s_mov_b64 s[66:67], 0\ns_cmp_eq_u32 s3, 6\ns_cbranch_scc1 L_f2go')
A('s_endpgm')
for blk in outline: A(blk)
A('L_codeend:')

A.raw('.section .rodata,"a"')
A.raw('.p2align 6')
A.raw(f'.amdhsa_kernel {NAME}_kernel')
A.raw('  .amdhsa_next_free_vgpr 168')
A.raw('  .amdhsa_next_free_sgpr 100')
A.raw('  .amdhsa_accum_offset 168')
A.raw('  .amdhsa_group_segment_fixed_size 0')
A.raw('  .amdhsa_kernarg_size 96')
A.raw('  .amdhsa_user_sgpr_count 2')
A.raw('  .amdhsa_user_sgpr_kernarg_segment_ptr 1')
A.raw('  .amdhsa_system_sgpr_workgroup_id_x 1')
A.raw('.end_amdhsa_kernel')
open(sys.argv[1], 'w').write(A.finalize())
```

```python
import sys, struct, os
from asmlib import Asm

NAME = "sequential_preLN__sliding_block_cached__glu_gated_swiglu__decode"
opt = dict(D1=3, D2=3, Vpre=3, stamps=0, spin=4000007, sleep=2, swave=11, stsleep=24, wtrig=2, DWF=6, opw=2,
           idtries=12, idsleep=16, forceslow=0, trap=0, fsleep=16, hsleep=0, shots=4, lead=31, samp=6,
           frp=1, frs=2, frc=8, frcb=14, w2dma=1, opp=0, osleep=0, sprio=0, outfl=0, outpre=0, lag2=0, idnt=1, xnt=0, cps=0, xs=1, qe=2, qb=10, pro=2, cpw=0, hnt=0, trl=1, al=0, ool=1, dry=0, q2=1, q2d=40, q2s=8, hack=0, endst=0, wb=0, wbs=0, stst=0, opm=0, op2=0, ant=1, abl=0, atrig=14, apub=1, qh=0, kord=1, vord=0, p1=0, p2=0, p3=0, p4=0, p5=0, p6=0, Dinit=3, pkw=0, opi=1, hard=0, w2t=1, frb=12, fry=6, cal=1, mst=17, tau0=457, dA=7, dB=-13, dC=7, lag=480, cfrom=30, pick2=4, pftrig=26,
           caltries=2, calsleep=20, dbg=0, trace=0)
for a in sys.argv[2:]:
    k, v = a.split('=')
    assert k in opt, k
    opt[k] = int(v)
D1 = opt['D1']; D2 = opt['D2']; STAMPS = opt['stamps']; SPIN = opt['spin']

def f32(x): return '0x%08x' % struct.unpack('<I', struct.pack('<f', x))[0]
LOG2E = 1.4426950408889634

QP = 0x0
OP = 0x80000
ST = 0x1F8000
ID = 0x1FC000
YP = 0x1E0000
EP = 0xE0000
PF = 0xE8000
CAL = 0xEA000
FP = 0x100000
PB = 0x1A0000
SP = 0x200000
PA = 0x220000
PS = 0x2A0000
PH = 0x2A4000
CB = 0x300000
WSN = 0x400000
FAST = 0x400000
QL = 0
QF = 384
SL = 512
CNT = 640
OKF = QF + 64; PREF = CNT + 20; ORG = CNT + 40; SUMS = CNT + 56
HID = 704
HRDY = HID + 32
CL = 768
OL = 1024
RL = 7168
QL2 = 8192
WL = 8704
OLA = WL + 49152
TRL = OLA + 6144
LDS = TRL + (2048 if opt['trace'] else 0)

A = Asm()
A.raw(open(os.path.join(os.path.dirname(os.path.abspath(__file__)), '..', NAME + '.s.ref')).read().split('; Override launch')[0].rstrip())
A.raw(f"; @launch grid=(256,1,1) block=(768,1,1) lds={LDS}")
A.raw('''; Generated by gen/gen20.py (hand-written generator).  One persistent launch, 256 workgroups x 12 waves, 1 per CU.
;  3 helper waves: LN(x) and an 80-row slice of the q projection; 4th helper: LDS init, XCD-locality check, stats.
;  the group is proven to sit on one XCD, a write-through copy as well, so any placement is correct.  Hand-offs
;  HBM bandwidth is shared out evenly: a streaming wave that is ahead of the chip-wide mean progress (sampled once in
;  s_sleep is used only as back-off inside / ahead of polling loops.''')
A.raw('.amdgcn_target "amdgcn-amd-amdhsa--gfx950"')
A.raw('.text')
A.raw(f'.globl {NAME}_kernel')
A.raw('.p2align 8')
A.raw(f'.type {NAME}_kernel,@function')
A.raw(f'{NAME}_kernel:')

def stamp(i):
    if STAMPS: A(f's_memrealtime s[{80+2*i}:{81+2*i}]')
def write_stamps(base_idx):
    if not STAMPS: return
    A('s_waitcnt lgkmcnt(0)')
    A('s_mov_b64 exec, 1')
    A('s_lshl3_add_u32 s68, s5, s4')
    A('s_lshl_b32 s68, s68, 8')
    A(f's_add_u32 s68, s68, {SP + base_idx*8}')
    A('v_mov_b32 v1, 0')
    for q in range(4):
        for e in range(4): A(f'v_mov_b32 v{4+e}, s{80+4*q+e}')
        A(f'buffer_store_dwordx4 v[4:7], v1, s[24:27], s68 offen offset:{16*q}')
        A('s_nop 2')
def stamp_val(idx, lo, hi, plus_wave=False):
    if not STAMPS: return
    A('s_lshl3_add_u32 s98, s5, s4')
    A('s_lshl_b32 s98, s98, 8')
    A(f's_add_u32 s98, s98, {SP + idx*8}')
    if plus_wave: A('s_lshl3_add_u32 s98, s3, s98')
    A('s_waitcnt lgkmcnt(0)')
    A(f'v_mov_b32 v164, s{lo}\nv_mov_b32 v165, s{hi}\nv_mov_b32 v163, 0')
    A('s_mov_b64 exec, 1')
    A('buffer_store_dwordx2 v[164:165], v163, s[24:27], s98 offen')
    A('s_mov_b64 exec, -1')
    A('s_nop 1')
def stamp_now(idx, plus_wave=False):
    if not STAMPS: return
    A('s_memrealtime s[96:97]')
    stamp_val(idx, 96, 97, plus_wave)

def srd(d, ptr, nbytes):
    A(f's_mov_b32 s{d}, s{ptr}')
    A(f's_mov_b32 s{d+1}, s{ptr+1}')
    A(f's_mov_b32 s{d+2}, {nbytes}')
    A(f's_mov_b32 s{d+3}, 0x20000')
def ws_srds():
    srd(24, 58, WSN)
    A(f's_add_u32 s32, s58, {FAST}')
    A('s_addc_u32 s33, s59, 0')
    A(f's_mov_b32 s34, {WSN}')
    A('s_mov_b32 s35, 0x20000')
    A('s_lshl3_add_u32 s71, s6, s7')
    A('''
s_mul_i32 s5, s79, 5
s_mul_i32 s47, s79, 3
s_add_u32 s47, s47, 15
s_cmp_lt_u32 s7, 5
s_cselect_b32 s5, s5, s47
s_add_u32 s5, s5, s7
''')

ALL = (1 << 64) - 1
def setexec(mask):
    if mask == ALL: A('s_mov_b64 exec, -1'); return
    A(f's_mov_b32 exec_lo, 0x{mask & 0xffffffff:x}')
    A(f's_mov_b32 exec_hi, 0x{mask >> 32:x}')

DPPM = 'row_mask:0xf bank_mask:0xf'
def allreduce8(op, regs):
    for pat in ('quad_perm:[1,0,3,2]', 'quad_perm:[2,3,0,1]', 'row_half_mirror'):
        for r in regs: A(f'{op}_dpp v{r}, v{r}, v{r} {pat} {DPPM}')
def allreduce16(op, regs):
    allreduce8(op, regs)
    for r in regs: A(f'{op}_dpp v{r}, v{r}, v{r} row_mirror {DPPM}')
def swapreduce(sw, op, regs, tmps):
    for r, t in zip(regs, tmps): A(f'v_mov_b32 v{t}, v{r}')
    for r, t in zip(regs, tmps): A(f'{sw} v{r}, v{t}')
    for r, t in zip(regs, tmps): A(f'{op} v{r}, v{r}, v{t}')
S16 = 'v_permlane16_swap_b32'; S32 = 'v_permlane32_swap_b32'
def allreduce_rows(op, regs, tmps):
    swapreduce(S16, op, regs, tmps); swapreduce(S32, op, regs, tmps)
def allreduce64(op, regs, tmps):
    allreduce16(op, regs); allreduce_rows(op, regs, tmps)
def bf16r(d, s):
    A(f'v_cvt_pk_bf16_f32 v{d}, v{s}, v{s}')
    A(f'v_lshlrev_b32 v{d}, 16, v{d}')
def mktag():
    A('''
s_waitcnt lgkmcnt(0)
s_mul_i32 s30, s28, 0x2c9277b5
s_add_u32 s30, s30, 0xac564b05
s_mul_i32 s31, s29, 0x0019660d
s_add_u32 s31, s31, 0x3c6ef35f
''')
lbl = [0]
def newlabel(p):
    lbl[0] += 1
    return f'L_{p}_{lbl[0]}'

def tagcheck(pairs):
    A(f'v_cmp_ne_u64 vcc, s[30:31], v[{pairs[0]}:{pairs[0]+1}]')
    tm = [(20, 21), (22, 23)]
    pend = []
    for i, p in enumerate(pairs[1:]):
        t = tm[i % 2]
        if len(pend) == 2:
            q = pend.pop(0); A(f's_or_b64 vcc, vcc, s[{q[0]}:{q[1]}]')
        A(f'v_cmp_ne_u64 s[{t[0]}:{t[1]}], s[30:31], v[{p}:{p+1}]')
        pend.append(t)
    for q in pend: A(f's_or_b64 vcc, vcc, s[{q[0]}:{q[1]}]')

def spin(body, sleep=0, retry=None, entry=None):
    top = newlabel('spin'); done = newlabel('sdone')
    A(f's_mov_b32 s70, {SPIN}')
    if entry: A(f's_branch {entry}')
    A(f'{top}:')
    body()
    A('s_nop 0')
    A(f's_cbranch_vccz {done}')
    if sleep: A(f's_sleep {sleep}')
    if retry: retry()
    A('s_sub_u32 s70, s70, 1')
    A(f's_cbranch_scc0 {top}')
    if opt['trap']:
        A(f's_lshl_b32 s99, s2, 8\ns_or_b32 s99, s99, s3\ns_lshl_b32 s99, s99, 8\ns_or_b32 s99, s99, {lbl[0] & 255}')
        A(f'v_mov_b32 v166, {4 * (lbl[0] % 64)}\nv_mov_b32 v167, s99')
        A('global_store_dword v166, v167, s[56:57]')
    A(f'{done}:')
def spin2(body, sleep=0, retry=None, local_only=False, entry=None):
    A(f's_mov_b32 s16, s32\ns_mov_b32 s17, s33\ns_mov_b32 s18, {WSN}\ns_mov_b32 s19, 0x20000')
    def rt():
        if retry: retry()
        A('s_and_b32 s99, s70, 7')
        if local_only:
            A('s_cmp_eq_u32 s46, 1')
            A('s_cselect_b32 s99, 1, s99')
            A('s_cmp_lg_u32 s99, 0')
        A('s_cselect_b32 s16, s32, s24')
        A('s_cselect_b32 s17, s33, s25')
    spin(body, sleep, rt, entry)

def freepoll(issue, check, nchk, done, bound=None):
    top = newlabel('fp')
    A(f's_mov_b32 s70, {SPIN}')
    A(f'{top}:')
    issue()
    for k in range(nchk):
        check()
        A('s_nop 0')
        A(f's_cbranch_vccz {done}')
    A(f"s_waitcnt vmcnt({bound or opt['frb']})")
    A('s_sub_u32 s70, s70, 1')
    A(f's_cbranch_scc0 {top}')
    if not opt['ool']: A(f's_branch {done}')

def lds_wait_ge(off, n, sleep, dst=4, adr=1):
    A(f'v_mov_b32 v{adr}, 0')
    def body():
        A(f'ds_read_b32 v{dst}, v{adr} offset:{off}')
        A('s_waitcnt lgkmcnt(0)')
        A(f'v_cmp_gt_u32 vcc, {n}, v{dst}')
    spin(body, sleep=sleep)
def get_mode(dst=4, adr=1):
    lds_wait_ge(CNT + 8, 1, 2, dst, adr)
    A(f'v_readfirstlane_b32 s46, v{dst}')
def pad(k):
    if not opt['al']: return
    A('.p2align 7')
    for i in range(opt[f'p{k}']): A('s_endpgm')
def get_pref(sleep, dst=4, adr=1):
    lds_wait_ge(PREF, 1, sleep, dst, adr)
    A(f'v_readfirstlane_b32 s47, v{dst}')

outline = []
def publish(stores):
    def emit(srdn, fl, AA):
        cur = ALL
        for m, line in stores:
            m = ALL if m is None else m
            if m != cur:
                if m == ALL: AA('s_mov_b64 exec, -1')
                else: AA(f's_mov_b32 exec_lo, 0x{m & 0xffffffff:x}\ns_mov_b32 exec_hi, 0x{m >> 32:x}')
                cur = m
            AA(line.replace('@', f's[{srdn}:{srdn+3}]') + fl)
        if cur != ALL: AA('s_mov_b64 exec, -1')
    if not opt['forceslow']: emit(32, '', A)
    slow = newlabel('slow'); back = newlabel('back')
    A('s_cmp_lg_u32 s46, 1')
    A(f's_cbranch_scc1 {slow}')
    A(f'{back}:')
    blk = [f'{slow}:']
    emit(24, ' sc1', lambda t: blk.append(t))
    blk.append('s_nop 1')
    blk.append(f's_branch {back}')
    outline.append('\n'.join(blk))

GST = 3072 * 64
GOFF = [60, 61, 62, 63, 64, 65, 66, 67]
KO = [4, 5, 6, 7, 0, 1, 2, 3] if opt['kord'] else list(range(8))
HA, HB = (16, 0) if opt['vord'] else (0, 16)
assert opt['pro'] == 2
if opt['pro'] == 2:
    A(f"""
{'s_memrealtime s[84:85]' if opt['stst'] else ''}
s_load_dwordx2 s[8:9], s[0:1], 8
v_readfirstlane_b32 s3, v0
s_lshr_b32 s79, s2, 6
s_cmp_gt_u32 s79, 3
s_cbranch_scc1 L_end
s_lshr_b32 s3, s3, 6
s_cmp_gt_u32 s3, 3
s_cbranch_scc1 L_str
{('s_cmp_ge_u32 s2, %d' % opt['cpw'] + chr(10) + 's_cbranch_scc1 L_helper0') if opt['cpw'] else ''}
s_getpc_b64 s[20:21]
L_pc0:
v_lshlrev_b32 v8, 7, v0
v_min_u32 v8, L_codeend-L_pc0-4, v8
global_load_dword v166, v8, s[20:21]
s_branch L_helper0
L_str:
s_and_b32 s4, s2, 7
s_lshr_b32 s6, s2, 7
s_bfe_u32 s7, s2, 0x40003
s_lshl1_add_u32 s6, s4, s6
s_lshl_b32 s6, s6, 10
s_lshl1_add_u32 s{GOFF[KO[0]]}, s7, s6
s_addk_i32 s{GOFF[KO[0]]}, {895 + 1024 * (HB if KO[0] else HA)}
s_mulk_i32 s{GOFF[KO[0]]}, 12288
v_lshlrev_b32 v3, 4, v0
v_lshrrev_b32 v2, 3, v0
v_lshl_add_u32 v1, v2, 8, v3
s_lshl_b32 s10, 3, 27
s_mov_b32 s11, 0x20000
s_waitcnt lgkmcnt(0)
""")
else:
    A("""
s_load_dwordx2 s[8:9], s[0:1], 8
s_lshr_b32 s79, s2, 6
s_cmp_gt_u32 s79, 3
s_cbranch_scc1 L_end
v_readfirstlane_b32 s3, v0
s_and_b32 s4, s2, 7
s_lshl2_add_u32 s6, s4, s79
s_bfe_u32 s7, s2, 0x30003
s_lshr_b32 s73, s3, 6
s_cmp_gt_u32 s73, 7
s_cbranch_scc1 L_helper0
s_lshl_b32 s60, s6, 9
s_add_u32 s60, s60, s7
s_addk_i32 s60, 448
s_mulk_i32 s60, 24576
v_lshlrev_b32 v3, 4, v0
v_lshrrev_b32 v2, 3, v0
v_lshl_add_u32 v1, v2, 8, v3
s_lshl_b32 s10, 3, 27
s_mov_b32 s11, 0x20000
s_waitcnt lgkmcnt(0)
""")
if opt['stst']: A('s_memrealtime s[86:87]')
for j in range(3): A(f'buffer_load_dwordx4 v[{16+12*KO[0]+4*j}:{19+12*KO[0]+4*j}], v1, s[8:11], s{GOFF[KO[0]]} offen offset:{128*j} nt')
def prologue2():
    A("""
s_load_dwordx16 s[36:51], s[0:1], 0
s_load_dwordx8 s[52:59], s[0:1], 64
""")
    stamp(0)
    if opt['dbg']: A('s_memrealtime s[80:81]')
A("""
s_branch L_stream0
L_helper0:
""")
prologue2()
CPF = 's_getpc_b64 s[20:21]\nL_pc0:\nv_lshlrev_b32 v8, 7, v0\nv_add_u32 v9, 8192, v8\nv_min_u32 v9, L_codeend-L_pc0-4, v9\nglobal_load_dword v10, v8, s[20:21]\nglobal_load_dword v11, v9, s[20:21]\nv_add_u32 v9, 16384, v8\nv_min_u32 v9, L_codeend-L_pc0-4, v9\nglobal_load_dword v30, v9, s[20:21]\n'
if opt['cps']:
    n = opt['cps']; nw = -(-136 // n)
    CPF = f's_getpc_b64 s[20:21]\nL_pc0:\ns_lshr_b32 s22, s2, 3\n'
    if nw < 32: CPF += f's_mul_i32 s23, s22, {(65536 + nw - 1) // nw}\ns_lshr_b32 s23, s23, 16\ns_mul_i32 s23, s23, {nw}\ns_sub_u32 s22, s22, s23\n'
    CPF += f's_mul_i32 s22, s22, {128 * n}\ns_min_u32 s22, s22, L_codeend-L_pc0-{128 * (n - 1) + 4}\ns_add_u32 s20, s20, s22\ns_addc_u32 s21, s21, 0\n'
    for i in range(n): CPF += f's_load_dword s{80 + i}, s[20:21], {128 * i}\n'
if opt['pro'] == 2: CPF = ''
W3 = f"""
{'' if opt['cps'] else CPF}v_lshlrev_b32 v1, 3, v0
v_mov_b32 v4, 0
v_mov_b32 v5, 0
ds_write_b64 v1, v[4:5] offset:{QF}
s_waitcnt lgkmcnt(0)
s_memrealtime s[62:63]
s_barrier
s_load_dwordx2 s[28:29], s[58:59], {EP}
{CPF if opt['cps'] else ''}s_branch L_ids
"""
QE = f"""
v_lshrrev_b32 v2, 3, v0
v_mul_u32_u24 v2, 12160, v2
v_lshl_add_u32 v2, v0, 4, v2
s_mul_i32 s68, s7, {80*96}
s_lshr_b32 s69, s79, 1
s_mul_i32 s69, s69, {HB - HA - 2}
s_add_u32 s69, s69, s79
s_lshl1_add_u32 s69, s4, s69
s_add_u32 s69, s69, {HA}
s_mul_i32 s69, s69, 3
s_add_u32 s68, s68, s69
s_add_u32 s68, s68, s3
s_lshl_b32 s68, s68, 7
s_lshl_b32 s69, 3, 15
s_mov_b32 s10, {640*6144*2}
s_mov_b32 s11, 0x20000
s_waitcnt lgkmcnt(0)
s_mov_b64 s[8:9], s[42:43]
"""
for r in range(10):
    if r == opt['qb']: QE += 's_barrier\n'
    QE += f'buffer_load_dwordx4 v[{24+4*r}:{27+4*r}], v2, s[8:11], s68 offen nt\n'
    if r < 9: QE += 's_add_u32 s68, s68, s69\n'
QE += 's_branch L_helper\n'
if opt['pro'] == 2: A('s_and_b32 s4, s2, 7\ns_lshl2_add_u32 s6, s4, s79\ns_bfe_u32 s7, s2, 0x30003')
else: A('s_sub_u32 s3, s73, 8')
A('v_and_b32 v0, 63, v0\ns_cmp_lg_u32 s3, 3')
if opt['qe'] == 0: A('s_cbranch_scc1 L_helper' + W3)
elif opt['qe'] == 1: A('s_cbranch_scc1 L_qe' + W3 + 'L_qe:' + QE)
else: A('s_cbranch_scc0 L_w3' + QE + 'L_w3:' + W3)
A('L_stream0:')
prologue2()
if opt['trace']: A('s_memrealtime s[20:21]')
A(f"""
v_and_b32 v0, 63, v0
{'s_sub_u32 s73, s3, 4' if opt['pro'] == 2 else 's_add_u32 s3, s73, 4'}
v_and_b32 v3, 0x70, v3
s_lshl2_add_u32 s6, s4, s79
s_and_b32 s7, s7, 7
""")

QR = 4; KR = 16
def op_addr(late):
    A(f'''
v_min_u32 v12, 47, v0
v_lshrrev_b32 v13, 3, v12
v_lshlrev_b32 v13, 11, v13
v_and_b32 v14, 1, v12
v_lshl_add_u32 v13, v14, 10, v13
v_bfe_u32 v14, v12, 1, 2
v_lshl_add_u32 v13, v14, 8, v13
v_lshlrev_b32 v12, 4, v12
s_lshr_b32 s74, s2, 7
s_lshl2_add_u32 s74, s4, s74
s_mul_i32 s74, s74, 12288
s_bfe_u32 s69, s2, 0x40003
s_lshl4_add_u32 s74, s69, s74
s_add_u32 s74, s74, {OP + late * 12288}
s_mov_b32 s22, 0x55555555
s_mov_b32 s23, 0x55555555
v_mov_b32 v14, s30
v_mov_b32 v15, s31
''')
def pkadd(d, a, b):
    for e in (0, 2): A(f'v_pk_add_f32 v[{d+e}:{d+e+1}], v[{a+e}:{a+e+1}], v[{b+e}:{b+e+1}]')
def op_publish():
    for w in range(0, 8, 2):
        A(f's_waitcnt lgkmcnt({6-w})')
        pkadd(16 + 4*w, 16 + 4*w, 20 + 4*w)
        if w == 2 or w == 6: pkadd(8 + 4*w, 8 + 4*w, 16 + 4*w)
    pkadd(4, 16, 32)
    A('''
v_cvt_pk_bf16_f32 v8, v4, v5
v_cvt_pk_bf16_f32 v9, v6, v7
v_cndmask_b32 v4, v8, v14, s[22:23]
v_cndmask_b32 v5, v9, v15, s[22:23]
v_cndmask_b32 v6, v14, v8, s[22:23]
v_cndmask_b32 v7, v15, v9, s[22:23]
''')
    publish([((1 << 48) - 1, 'buffer_store_dwordx4 v[4:7], v13, @, s74 offen')])
def stream(G, D1, D2, Vpre):
    SC = 168 - G
    VR = KR + 12 * G
    nV1 = min((SC - VR) // 12, G)
    ACC = KR + 12 * (G - 2)
    T = ACC
    ACA = ACC - 24
    QR2 = VR + 36; assert Vpre <= 9
    half = (G + 1) // 2
    st = dict(n=0)
    def vreg(g): return VR + 12 * g if g < nV1 else KR + 12 * (g - nV1)
    CTL = bool(opt['cal'])
    def issue_load(kind, g, j, depth):
        n = st['n']
        if CTL and n >= opt['cfrom']:
            go = newlabel('go')
            A('s_waitcnt lgkmcnt(0)\ns_lshl_b32 s75, s76, 4\ns_sub_u32 s75, s75, s78\ns_and_b32 s75, s75, s72\ns_add_u32 s78, s78, s79')
            if opt['lag2']: A(f"s_waitcnt vmcnt({depth+1})\ns_cmp_gt_i32 s75, {opt['lag2']}\ns_cbranch_scc1 {go}")
            A(f"s_waitcnt vmcnt({depth})\ns_cmp_gt_i32 s75, {opt['lag']}\ns_cbranch_scc1 {go}")
            A(f's_waitcnt vmcnt({depth-1})\ns_cmp_ge_i32 s75, 0\ns_cbranch_scc1 {go}\ns_waitcnt vmcnt({depth-2})')
            if opt['hard']: A(f"s_cmp_ge_i32 s75, {-opt['hard']}\ns_cbranch_scc1 {go}\ns_waitcnt vmcnt({depth-3})")
            A(f'{go}:')
        elif n >= max(depth, opt['Dinit']): A(f's_waitcnt vmcnt({depth-1})')
        r = (KR + 12 * g + 4 * j) if kind == 'K' else vreg(g) + 4 * j
        s = 8 if kind == 'K' else 12
        if opt['stst'] and n in (3, 6): A(f's_memrealtime s[{88 if n == 3 else 90}:{89 if n == 3 else 91}]')
        if n >= 3: A(f'buffer_load_dwordx4 v[{r}:{r+3}], v1, s[{s}:{s+3}], s{GOFF[g]} offen offset:{128*j} nt')
        if opt['trace'] or (CTL and (opt['cfrom'] - 1 <= n < 47 or n == opt['mst'])): A('s_memrealtime s[76:77]')
        if opt['trace'] and n >= 3:
            A(f's_waitcnt lgkmcnt(0)\ns_sub_u32 s75, s76, s20\ns_lshl_b32 s77, s73, 8\nv_mov_b32 v6, s77\nv_mov_b32 v7, s75\nds_write_b32 v6, v7 offset:{TRL + 4*n}')
        if CTL and n == opt['mst']:
            A(f'''
s_waitcnt lgkmcnt(0)
v_mov_b32 v6, 0
v_mov_b32 v8, s76
v_mov_b32 v9, 1
s_mov_b64 exec, 1
ds_add_u32 v6, v8 offset:{SUMS}
ds_add_u32 v6, v9 offset:{SUMS+4}
s_mov_b64 exec, -1
''')
        if CTL and n in (opt['cfrom'] - 1, opt['cfrom'] - 1 + opt['pick2']):
            A(f'''
v_mov_b32 v6, 0
ds_read_b64 v[6:7], v6 offset:{ORG}
s_movk_i32 s79, {opt['tau0']}
s_waitcnt lgkmcnt(0)
v_readfirstlane_b32 s78, v6
v_readfirstlane_b32 s72, v7
s_add_u32 s78, s78, {(n - opt['mst']) * opt['tau0']}
''')
        if CTL and n == opt['pftrig']:
            A(f'v_mov_b32 v6, 0\nv_mov_b32 v7, 1\ns_mov_b64 exec, 1\nds_add_u32 v6, v7 offset:{CNT+52}\ns_mov_b64 exec, -1')
        st['n'] += 1
    goff = lambda g: (HB if g >= 4 else HA) * 12582912 + (g & 3) * 2 * GST
    for gi, g in enumerate(KO):
        for j in range(3):
            issue_load('K', g, j, D1)
            if j == 2 and gi + 1 < G:
                A(f's_add_u32 s{GOFF[KO[gi+1]]}, s{GOFF[g]}, {(goff(KO[gi+1]) - goff(g)) & 0xffffffff}')
            if st['n'] == opt['Dinit']: A('s_waitcnt lgkmcnt(0)\ns_barrier')
            if st['n'] == opt['Dinit'] + 1:
                A(f's_load_dwordx2 s[28:29], s[58:59], {EP}')
                ws_srds(); srd(12, 40, 402653184)
    stamp(1)
    nv = 0; NV = 3 * G
    for n in range(min(Vpre, 3 * nV1)):
        issue_load('V', nv // 3, nv % 3, D2); nv += 1
    stamp(2)
    mktag()
    A('v_and_b32 v2, 3, v0\nv_min_u32 v2, 2, v2\nv_lshlrev_b32 v2, 3, v2')
    def body():
        A(f'ds_read_b32 v{QR}, v2 offset:{QF}')
        A('s_waitcnt lgkmcnt(0)')
        A(f'v_cmp_eq_u32 vcc, 0, v{QR}')
    spin(body, sleep=1)
    stamp(3)
    A(f'''
ds_read_b128 v[{QR}:{QR+3}], v3 offset:{QL}
ds_read_b128 v[{QR+4}:{QR+7}], v3 offset:{QL+128}
ds_read_b128 v[{QR+8}:{QR+11}], v3 offset:{QL+256}
ds_read_b128 v[{QR2}:{QR2+3}], v3 offset:{QL2}
ds_read_b128 v[{QR2+4}:{QR2+7}], v3 offset:{QL2+128}
ds_read_b128 v[{QR2+8}:{QR2+11}], v3 offset:{QL2+256}
''')
    for g in range(G): A(f'v_mov_b32 v{SC+g}, 0')
    A(f's_waitcnt vmcnt({nv}) lgkmcnt(0)')
    for gs in (range(half), range(half, G)):
        for i in range(12):
            for g in gs:
                A(f'v_dot2c_f32_bf16 v{SC+g}, v{KR+12*g+i}, v{(QR if g < 4 else QR2)+i}')
    allreduce8('v_add_f32', [SC + g for g in range(G)])
    A(f's_mov_b32 s68, {f32(192 ** -0.5)}')
    A('v_mov_b32 v2, 0')
    for g in range(G): A(f'v_cvt_pk_bf16_f32 v{SC+g}, v2, v{SC+g}')
    for g in range(G): A(f'v_mul_f32 v{SC+g}, s68, v{SC+g}')
    for g in range(G): A(f'v_cvt_pk_bf16_f32 v{SC+g}, v2, v{SC+g}')
    for h in range(2):
        A(f'v_max_f32 v{4+2*h}, v{SC+4*h}, v{SC+4*h+1}')
    for h in range(2):
        A(f'v_max3_f32 v{4+2*h}, v{4+2*h}, v{SC+4*h+2}, v{SC+4*h+3}')
    for h in range(2): A(f'v_max_f32_dpp v{4+2*h}, v{4+2*h}, v{4+2*h} row_ror:8 {DPPM}')
    allreduce_rows('v_max_f32', [4, 6], [T, T + 1])
    A(f's_mov_b32 s68, {f32(LOG2E)}')
    for g in range(G): A(f'v_sub_f32 v{SC+g}, v{SC+g}, v{4 if g < 4 else 6}')
    for g in range(G): A(f'v_mul_f32 v{SC+g}, s68, v{SC+g}')
    for g in range(G): A(f'v_exp_f32 v{SC+g}, v{SC+g}')
    for h in range(2): A(f'v_add_f32 v{5+2*h}, v{SC+4*h}, v{SC+4*h+1}')
    for k in (2, 3):
        for h in range(2): A(f'v_add_f32 v{5+2*h}, v{5+2*h}, v{SC+4*h+k}')
    for h in range(2): A(f'v_add_f32_dpp v{5+2*h}, v{5+2*h}, v{5+2*h} row_ror:8 {DPPM}')
    allreduce_rows('v_add_f32', [5, 7], [T, T + 1])
    A(f'''
s_lshl_b32 s69, s73, 4
v_mov_b32 v{T}, s69
ds_write_b128 v{T}, v[4:7] offset:{SL}
''')
    stamp(4)
    for g in range(G): A(f'v_cvt_pk_bf16_f32 v{SC+g}, v{SC+g}, v2')
    for i in range(48): A(f'v_mov_b32 v{ACA+i}, 0')
    A('v_mov_b32 v5, v6')
    A('''
v_and_b32 v8, 7, v0
v_lshlrev_b32 v8, 5, v8
v_lshrrev_b32 v9, 4, v0
v_lshl_add_u32 v8, v9, 3, v8
s_mul_i32 s69, s73, 768
v_add_u32 v8, s69, v8
v_mov_b32 v11, 1
''')
    def scale_factor():
        def body():
            A(f'ds_read_b128 v[12:15], v3 offset:{SL}')
            A('s_waitcnt lgkmcnt(0)')
            A('v_cmp_eq_u32 vcc, 0, v15')
        spin(body, sleep=1)
        allreduce8('v_max_f32', [12, 14])
        A('v_sub_f32 v4, v4, v12\nv_sub_f32 v5, v5, v14\nv_mul_f32 v4, s68, v4\nv_mul_f32 v5, s68, v5\nv_exp_f32 v4, v4\nv_exp_f32 v5, v5')
        get_mode(dst=13, adr=2)
        op_addr(2)
    def reduce_j(j, ac, f, ol):
        a = ac + 8 * j
        for e in range(4): A(f'{S32} v{a+e}, v{a+e+4}')
        for e in range(4): A(f'v_add_f32 v{a+e}, v{a+e}, v{a+e+4}')
        for e in range(2): A(f'{S16} v{a+e}, v{a+e+2}')
        for e in range(2): A(f'v_add_f32 v{a+e}, v{a+e}, v{a+e+2}')
        for e in range(2): A(f'v_add_f32_dpp v{a+e}, v{a+e}, v{a+e} row_ror:8 {DPPM}')
        for e in range(2): A(f'v_mul_f32 v{a+e}, v{f}, v{a+e}')
        A(f'ds_write_b64 v8, v[{a}:{a+1}] offset:{ol+256*j}')
    def pv(idx):
        g, j = divmod(idx, 3)
        r = vreg(g) + 4 * j
        if j == 0: A(f'v_lshlrev_b32 v10, 16, v{SC+g}')
        ac = ACA if g < 4 else ACC
        if idx == 9: scale_factor()
        for e in range(4):
            A(f'v_dot2c_f32_bf16 v{ac+8*j+2*e}, v{r+e}, v{SC+g}')
            A(f'v_dot2c_f32_bf16 v{ac+8*j+2*e+1}, v{r+e}, v10')
        if g & 3 == 3: reduce_j(j, ac, 4 if g < 4 else 5, OLA if g < 4 else OL)
        if idx == 11: A(f's_mov_b64 exec, 1\nds_add_u32 v2, v11 offset:{CNT+12}\ns_mov_b64 exec, -1')
    done_idx = -1; pv_next = 0
    while nv < NV:
        issue_load('V', nv // 3, nv % 3, D2)
        done_idx = nv - D2 - ((2 if opt['lag2'] else 1) if CTL else 0)
        nv += 1
        if nv == NV - opt['wtrig']:
            A(f's_mov_b64 exec, 1\nds_add_u32 v2, v11 offset:{CNT+4}\ns_mov_b64 exec, -1')
        cnt = 0
        while pv_next <= done_idx and cnt < 2:
            pv(pv_next); pv_next += 1; cnt += 1
    while pv_next < NV:
        if pv_next > done_idx:
            A(f's_waitcnt vmcnt({NV - 1 - pv_next})')
            done_idx = pv_next
        pv(pv_next); pv_next += 1
    stamp(5)

stream(8, D1, D2, opt['Vpre'])
A(f'''
s_mov_b64 exec, 1
ds_add_rtn_u32 v10, v2, v11 offset:{CNT}
s_mov_b64 exec, -1
''')
for w in range(8): A(f'ds_read_b128 v[{16+4*w}:{19+4*w}], v12 offset:{OL+768*w}')
A('''
s_waitcnt lgkmcnt(8)
v_readfirstlane_b32 s68, v10
s_cmp_lg_u32 s68, 7
s_cbranch_scc1 L_nopub
''')
op_publish()
A(f'ds_write_b32 v2, v11 offset:{CNT+28}')
stamp_now(16)
A('L_nopub:')
if opt['stst']:
    A(f'''
s_waitcnt lgkmcnt(0)
v_mov_b32 v16, s84
v_mov_b32 v17, s86
v_mov_b32 v18, s88
v_mov_b32 v19, s90
s_lshl3_add_u32 s68, s2, s73
s_lshl_b32 s68, s68, 4
s_add_u32 s68, s68, {0x380000}
s_mov_b64 exec, 1
buffer_store_dwordx4 v[16:19], v2, s[24:27], s68 offen
s_mov_b64 exec, -1
s_nop 2
''')
if opt['sprio']: A('s_setprio 0')
A('s_waitcnt lgkmcnt(0)')
if opt['trace']:
    A(f'''
s_lshl_b32 s68, s73, 8
v_lshl_add_u32 v16, v0, 2, s68
ds_read_b32 v17, v16 offset:{TRL}
s_lshl_b32 s68, s2, 11
s_add_u32 s68, s68, {0x380000}
s_waitcnt lgkmcnt(0)
buffer_store_dword v17, v16, s[24:27], s68 offen
s_nop 2
''')
stamp(6)
A('''
s_cmp_lt_u32 s5, 20
s_cbranch_scc1 L_notf1
s_cmp_lt_u32 s5, 30
s_cbranch_scc1 L_f1
s_branch L_stream_exit
L_notf1:
s_cmp_gt_u32 s5, 11
s_cbranch_scc1 L_stream_exit
s_cmp_gt_u32 s3, 6
s_cbranch_scc1 L_f2
s_branch L_dry
L_stream_exit:
''')
if STAMPS:
    A(f"s_cmp_eq_u32 s3, {opt['swave']}")
    A('s_cbranch_scc0 L_end')
    stamp(7)
    write_stamps(8)
A('s_endpgm')

A('L_helper:')
A('s_setprio 3')
A('''
v_lshlrev_b32 v1, 2, v0
v_lshrrev_b32 v2, 3, v0
s_mul_i32 s68, s7, 80
v_add_u32 v3, s68, v2
v_lshlrev_b32 v3, 1, v3
v_mul_u32_u24 v2, 12288, v2
v_and_b32 v7, 7, v0
v_lshl_add_u32 v2, v7, 4, v2
s_mul_i32 s68, s68, 12288
s_mul_i32 s69, s6, 384
s_add_u32 s68, s68, s69
s_lshl_b32 s69, s3, 7
s_add_u32 s68, s68, s69
''')
XS = 64; XU = 70; XR = 8; WQ = 24; QA = 80
A('s_waitcnt lgkmcnt(0)')
if opt['xs'] == 1:
    for i in range(10): A(f's_load_dword s{12+i}, s[36:37], {128*i}')
if not (opt['qe'] and opt['qb'] < 10): A('s_barrier')
srd(8, 42, 640 * 6144 * 2)
if opt['xs']:
    for r in range(0 if opt['qe'] else 10):
        A(f'buffer_load_dwordx4 v[{WQ+4*r}:{WQ+4*r+3}], v2, s[8:11], s68 offen nt')
        if r < 9: A('s_add_u32 s68, s68, 98304')
    if opt['xs'] == 1: A('s_waitcnt lgkmcnt(0)')
    for i in range(5): A(f'global_load_dword v{XS+i}, v1, s[36:37] offset:{256*i}' + (' nt' if opt['xnt'] else ''))
    for r in range(10): A(f'global_load_ushort v{XR+r}, v3, s[36:37] offset:{16*r}' + (' nt' if opt['xnt'] else ''))
else:
    for i in range(5): A(f'global_load_dword v{XS+i}, v1, s[36:37] offset:{256*i}' + (' nt' if opt['xnt'] else ''))
    for r in range(10): A(f'global_load_ushort v{XR+r}, v3, s[36:37] offset:{16*r}' + (' nt' if opt['xnt'] else ''))
    for r in range(10):
        A(f'buffer_load_dwordx4 v[{WQ+4*r}:{WQ+4*r+3}], v2, s[8:11], s68 offen nt')
        if r < 9: A('s_add_u32 s68, s68, 98304')
A(f's_load_dwordx2 s[28:29], s[58:59], {EP}')
A('s_mov_b32 s69, 0xffff0000')
ws_srds()
mktag()
A(f"s_waitcnt vmcnt({10 if opt['xs'] else 20})")
for i in range(5):
    A(f'v_lshlrev_b32 v{XU+2*i}, 16, v{XS+i}')
    A(f'v_and_b32 v{XU+1+2*i}, s69, v{XS+i}')
A(f'''
v_add_f32 v4, v{XU}, v{XU+1}
v_add_f32 v5, v{XU+2}, v{XU+3}
v_add_f32 v6, v{XU+4}, v{XU+5}
v_add_f32 v7, v{XU+6}, v{XU+7}
v_add_f32 v4, v4, v5
v_add_f32 v6, v6, v7
v_add_f32 v5, v{XU+8}, v{XU+9}
v_add_f32 v4, v4, v6
v_add_f32 v4, v4, v5
''')
allreduce64('v_add_f32', [4], [5])
A(f'v_mul_f32 v4, {f32(1.0/640)}, v4')
for i in range(10): A(f'v_sub_f32 v{XU+i}, v{XU+i}, v4')
A(f'v_mul_f32 v5, v{XU}, v{XU}')
for i in range(1, 10): A(f'v_fmac_f32 v5, v{XU+i}, v{XU+i}')
allreduce64('v_add_f32', [5], [6])
A(f'v_mul_f32 v5, {f32(1.0/640)}, v5')
bf16r(4, 4); bf16r(5, 5)
A(f'v_add_f32 v5, {f32(1e-5)}, v5')
bf16r(5, 5)
A('v_sqrt_f32 v5, v5')
bf16r(5, 5)
A('v_rcp_f32 v5, v5')
A('v_mov_b32 v6, 0')
A(f"s_waitcnt vmcnt({0 if opt['xs'] else 10})")
for r in range(10): A(f'v_lshlrev_b32 v{XR+r}, 16, v{XR+r}')
for r in range(10): A(f'v_sub_f32 v{XR+r}, v{XR+r}, v4')
for r in range(10): A(f'v_cvt_pk_bf16_f32 v{XR+r}, v6, v{XR+r}')
for r in range(10): A(f'v_mul_f32 v{XR+r}, v{XR+r}, v5')
for r in range(10):
    A(f'v_cvt_pk_bf16_f32 v{XU+r}, v6, v{XR+r}')
    A(f'v_cvt_pk_bf16_f32 v{XR+r}, v{XR+r}, v6')
for e in range(8): A(f'v_mov_b32 v{QA+e}, 0')
A('''
v_and_b32 v90, 7, v0
v_lshrrev_b32 v6, 4, v0
v_lshl_add_u32 v90, v90, 2, v6
v_lshlrev_b32 v90, 4, v90
s_lshl_b32 s64, s71, 11
s_lshl_b32 s69, s3, 9
s_add_u32 s64, s64, s69
''')
for r in range(10):
    A(f's_waitcnt vmcnt({9-r})')
    for e in range(4):
        A(f'v_dot2c_f32_bf16 v{QA+2*e}, v{WQ+4*r+e}, v{XR+r}')
        A(f'v_dot2c_f32_bf16 v{QA+2*e+1}, v{WQ+4*r+e}, v{XU+r}')
if STAMPS: A('s_lshr_b32 s82, s2, 3\ns_add_u32 s82, s80, s82\ns_addc_u32 s83, s81, 0')
for e in range(4): A(f'{S32} v{QA+e}, v{QA+e+4}')
for e in range(4): A(f'v_add_f32 v{QA+e}, v{QA+e}, v{QA+e+4}')
for e in range(2): A(f'{S16} v{QA+e}, v{QA+e+2}')
for e in range(2): A(f'v_add_f32 v{QA+e}, v{QA+e}, v{QA+e+2}')
for e in range(2): A(f'v_add_f32_dpp v{QA+e}, v{QA+e}, v{QA+e} row_ror:8 {DPPM}')
A(f'v_mov_b32 v{QA+2}, s30\nv_mov_b32 v{QA+3}, s31')
QM = [0x00ff00ff00ff00ff, 0x000f000f000f000f, 0x0003000300030003][opt['qh']]
if not opt['forceslow']:
    setexec(QM)
    A(f'buffer_store_dwordx4 v[{QA}:{QA+3}], v90, s[32:35], s64 offen offset:{QP}')
    setexec(ALL)
A(f'''
v_and_b32 v3, {[31, 15, 7][opt['qh']]}, v0
v_lshrrev_b32 v2, 5, v0
v_lshlrev_b32 v2, 11, v2
v_lshl_add_u32 v2, v3, 4, v2
s_lshl_b32 s68, s6, 14
s_add_u32 s60, s68, s69
s_add_u32 s61, s60, 4096
s_add_u32 s62, s60, 8192
s_add_u32 s63, s60, 12288
v_lshlrev_b32 v3, 2, v3
s_lshl_b32 s69, s3, 7
v_add_u32 v3, s69, v3
v_mov_b32 v1, 0
s_mov_b32 s65, 0
''')
def q_lazy():
    skip = newlabel('qlazy')
    A(f'''
ds_read_b32 v4, v1 offset:{CNT+8}
s_waitcnt lgkmcnt(0)
v_readfirstlane_b32 s46, v4
s_sub_u32 s68, s46, s65
s_cmp_lg_u32 s68, 2
s_cbranch_scc1 {skip}
''')
    setexec(QM)
    A(f'buffer_store_dwordx4 v[{QA}:{QA+3}], v90, s[24:27], s64 offen offset:{QP} sc1')
    setexec(ALL)
    A(f's_mov_b32 s65, 1\n{skip}:')
def body():
    for n in range(4):
        A(f'buffer_load_dwordx4 v[{8+4*n}:{11+4*n}], v2, s[16:19], s{60+n} offen offset:{QP} sc1' + ' nt')
    A('s_waitcnt vmcnt(0)')
    tagcheck([10, 14, 18, 22])
A('''
s_add_u32 s68, s3, 5
s_cmp_lg_u32 s68, s7
s_cbranch_scc1 L_qwait
''')
spin2(body, sleep=opt['sleep'], retry=q_lazy)
stamp(2)
A(f'''
v_add_f32 v8, v8, v12
v_add_f32 v9, v9, v13
v_add_f32 v16, v16, v20
v_add_f32 v17, v17, v21
v_add_f32 v8, v8, v16
v_add_f32 v9, v9, v17
''')
swapreduce(S32, 'v_add_f32', [8, 9], [10, 11])
A(f'''
v_cvt_pk_bf16_f32 v8, v8, v9
s_lshl_b32 s66, s6, 14
s_lshl_b32 s68, s3, 11
s_add_u32 s66, s66, s68
v_mov_b32_dpp v9, v8 quad_perm:[1,0,3,2] {DPPM}
v_mov_b32 v10, s30
v_mov_b32 v11, s31
v_lshlrev_b32 v2, 3, v0
''')
get_mode()
publish([(0x55555555, f'buffer_store_dwordx4 v[8:11], v2, @, s66 offen offset:{QP + 1536}')])
A(f'''
s_branch L_qget
L_qwait:
s_sleep {opt['q2d']}
L_qget:
s_lshr_b32 s66, s2, 7
s_lshl2_add_u32 s66, s4, s66
s_lshl_b32 s66, s66, 14
s_lshl_b32 s68, s3, 11
s_add_u32 s66, s66, s68
v_and_b32 v2, 15, v0
v_bfe_u32 v5, v0, 4, 1
v_lshlrev_b32 v3, 3, v2
v_add_u32 v3, s69, v3
v_lshl_add_u32 v3, v5, 13, v3
v_lshlrev_b32 v2, 4, v2
v_lshl_add_u32 v2, v5, 15, v2
''')
assert QL2 - QL == 1 << 13
def body2():
    A(f'buffer_load_dwordx4 v[12:15], v2, s[16:19], s66 offen offset:{QP + 1536} sc1 nt')
    A('s_waitcnt vmcnt(0)')
    tagcheck([14])
spin2(body2, sleep=opt['q2s'], retry=q_lazy)
A(f'ds_write_b64 v3, v[12:13] offset:{QL}')
A(f'''
s_lshl_b32 s69, s3, 3
v_mov_b32 v4, s69
v_mov_b32 v6, 1
s_waitcnt lgkmcnt(0)
ds_write_b32 v4, v6 offset:{QF}
''')
get_mode()
q_lazy()
A('s_branch L_stats')
pad(1)
A('L_ids:')
A(f'''
s_setprio 3
s_getreg_b32 s64, hwreg(HW_REG_XCC_ID)
''')
ws_srds()
mktag()
A(f'''
s_and_b32 s64, s64, 15
v_mov_b32 v4, s30
v_mov_b32 v5, s31
v_mov_b32 v6, s64
v_mov_b32 v7, s64
s_lshl_b32 s68, s4, 9
s_add_u32 s68, s68, {ID}
s_lshr_b32 s65, s2, 3
s_lshl_b32 s69, s65, 4
v_mov_b32 v1, s69
s_mov_b64 exec, 1
buffer_store_dwordx4 v[4:7], v1, s[32:35], s68 offen
s_mov_b64 exec, -1
s_cmp_lg_u32 s65, {opt['lead']}
s_cbranch_scc1 L_noinit
v_lshlrev_b32 v12, 8, v0
s_lshl_b32 s69, s4, 15
s_add_u32 s69, s69, {PB}
''')
m = sum(1 << (k * 9 & 31) for k in range(opt['shots']))
setexec(m | m << 32)
A('buffer_store_dword v4, v12, s[24:27], s69 offen sc1\ns_mov_b64 exec, -1')
A(f'''
L_noinit:
v_and_b32 v1, 31, v0
v_lshlrev_b32 v1, 4, v1
s_mov_b32 s70, {opt['idtries']}
s_mov_b32 s46, 2
L_idpoll:
s_sleep {opt['idsleep']}
buffer_load_dwordx4 v[8:11], v1, s[32:35], s68 offen sc1{' nt' if opt['idnt'] else ''}
s_waitcnt vmcnt(0)
v_cmp_ne_u64 vcc, s[30:31], v[8:9]
s_nop 0
s_cbranch_vccz L_iddone
s_sub_u32 s70, s70, 1
s_cbranch_scc0 L_idpoll
s_branch L_idset
L_iddone:
v_cmp_ne_u32 vcc, s64, v10
s_nop 0
s_cbranch_vccnz L_idset
s_mov_b32 s46, {2 if opt['forceslow'] else 1}
L_idset:
v_mov_b32 v1, 0
v_mov_b32 v4, s46
ds_write_b32 v1, v4 offset:{CNT+8}
''')
A(f'''
s_cmp_lg_u32 s65, {opt['lead']}
s_cbranch_scc1 L_pf
s_lshl_b32 s69, s4, 15
s_add_u32 s69, s69, {PB}
s_add_u32 s22, s58, s69
s_addc_u32 s23, s59, 0
s_waitcnt lgkmcnt(0)
s_mov_b32 s8, -1
s_mov_b32 s9, -1
s_memtime s[12:13]
''')
for k in range(2 * opt['shots']):
    c = (k ^ (k >> 1)) & 1
    i = (k >> 1) * 9 & 31
    a, b = (12, 14) if k % 2 == 0 else (14, 12)
    A('s_waitcnt lgkmcnt(0)')
    A(f's_load_dword s10, s[22:23], {c * 8192 + i * 256}')
    A('s_waitcnt lgkmcnt(0)')
    A(f's_memtime s[{b}:{b+1}]')
    A('s_waitcnt lgkmcnt(0)')
    A(f's_sub_u32 s11, s{b}, s{a}')
    A(f's_min_u32 s{8+c}, s{8+c}, s11')
A(f'''
s_cmp_gt_u32 s8, s9
s_cselect_b32 s21, 1, 0
v_mov_b32 v4, s21
v_mov_b32 v5, s62
v_mov_b32 v6, s30
v_mov_b32 v7, s31
s_lshl_b32 s69, s4, 4
s_add_u32 s69, s69, {PF}
s_mov_b64 exec, 1
buffer_store_dwordx4 v[4:7], v1, s[24:27], s69 offen sc1
s_mov_b64 exec, -1
L_pf:
''')
if opt['cal']:
    A(f"s_cmp_lg_u32 s7, {opt['samp']}\ns_cbranch_scc1 L_nosample\nv_mov_b32 v1, 0")
    def body():
        A(f'ds_read_b64 v[4:5], v1 offset:{SUMS}')
        A('s_waitcnt lgkmcnt(0)')
        A('v_cmp_gt_u32 vcc, 8, v5')
    spin(body, sleep=2)
    A(f'''
v_mov_b32 v5, s31
v_lshlrev_b32 v6, 9, v0
s_lshl_b32 s68, s6, 3
s_add_u32 s68, s68, {CAL}
s_mov_b64 exec, {(2 << opt['caltries']) - 1}
buffer_store_dwordx2 v[4:5], v6, s[24:27], s68 offen sc1
s_mov_b64 exec, -1
L_nosample:
''')
    lds_wait_ge(CNT + 52, 8, 4, dst=12)
    A(f'''
s_add_u32 s60, s58, {CAL}
s_addc_u32 s61, s59, 0
s_mov_b32 s70, {opt['caltries']}
L_calpoll:
s_lshl_b32 s96, s62, 8
s_sub_u32 s96, 0, s96
s_mov_b32 s97, 0
''')
    for h in range(2):
        A(f's_load_dwordx16 s[8:23], s[60:61], {128*h}\ns_load_dwordx16 s[80:95], s[60:61], {128*h+64}\ns_waitcnt lgkmcnt(0)')
        for b in (8, 80):
            for i in range(8):
                A(f's_add_u32 s96, s96, s{b+2*i}\ns_cmp_lg_u32 s{b+2*i+1}, s31\ns_addc_u32 s97, s97, 0')
    A(f'''
s_cmp_eq_u32 s97, 0
s_cbranch_scc1 L_calok
s_add_u32 s60, s60, 512
s_addc_u32 s61, s61, 0
s_sub_u32 s70, s70, 1
s_cbranch_scc1 L_stats
s_sleep {opt['calsleep']}
s_branch L_calpoll
L_calok:
s_ashr_i32 s96, s96, 4
s_mov_b32 s68, {16 * opt['dC']}
s_cmp_lt_u32 s5, 30
s_cselect_b32 s68, {16 * opt['dB']}, s68
s_cmp_lt_u32 s5, 20
s_cselect_b32 s68, {16 * opt['dA']}, s68
s_lshl4_add_u32 s68, s62, s68
s_add_u32 s68, s68, s96
v_mov_b32 v12, s68
v_mov_b32 v13, -1
ds_write_b64 v1, v[12:13] offset:{ORG}
''')

A('L_stats:')
A('v_and_b32 v1, 7, v0\nv_lshlrev_b32 v1, 4, v1')
def body():
    A(f'ds_read_b128 v[4:7], v1 offset:{SL}')
    A('s_waitcnt lgkmcnt(0)')
    A('v_cmp_eq_u32 vcc, 0, v7')
spin(body, sleep=4)
A('s_cmp_lg_u32 s3, 3')
A('s_cbranch_scc1 L_nostat')
def combine_stats(red):
    A(f's_mov_b32 s68, {f32(LOG2E)}')
    A('v_mov_b32 v2, v4')
    red('v_max_f32', [2])
    A('v_sub_f32 v4, v4, v2\nv_mul_f32 v4, s68, v4\nv_exp_f32 v4, v4\nv_mul_f32 v3, v4, v5')
    red('v_add_f32', [3])
A('''
v_and_b32 v12, 8, v0
v_cmp_ne_u32 vcc, 0, v12
v_lshlrev_b32 v12, 6, v12
v_cndmask_b32 v4, v4, v6, vcc
v_cndmask_b32 v5, v5, v7, vcc
''')
combine_stats(allreduce8)
A(f'''
s_lshr_b32 s68, s2, 7
s_lshl2_add_u32 s68, s4, s68
s_bfe_u32 s69, s2, 0x40003
s_lshl4_add_u32 s68, s68, s69
s_lshl_b32 s68, s68, 4
s_add_u32 s68, s68, {ST}
v_mov_b32 v4, s30
v_mov_b32 v5, s31
''')
publish([(0x101, 'buffer_store_dwordx4 v[2:5], v12, @, s68 offen')])
A(f's_mov_b32 s68, {PF}')
def body():
    A('buffer_load_dwordx4 v[8:11], v1, s[24:27], s68 offen sc1')
    A('s_waitcnt vmcnt(0)')
    tagcheck([10])
spin(body, sleep=8)
A('''
v_cmp_ne_u32 vcc, 0, v8
s_nop 0
s_and_b32 s67, vcc_lo, 0xff
s_bitset1_b32 s67, 8
v_mov_b32 v4, s67
v_mov_b32 v1, 0
''')
if opt['dbg']:
    A('v_subrev_u32 v9, s62, v9')
    allreduce8('v_min_i32', [9])
    A(f'v_add_u32 v9, s62, v9\nds_write_b32 v1, v9 offset:{CNT+36}')
A(f'ds_write_b32 v1, v4 offset:{PREF}')
A('L_nostat:')
A(f"s_cmp_lg_u32 s3, {5 if opt['abl'] & 2 else 2}\ns_cbranch_scc1 L_noa")
op_addr(0)
lds_wait_ge(CNT + 12, 8, 4)
if opt['apub']: lds_wait_ge(CNT + 4, opt['apub'], 2)
for w in range(8): A(f'ds_read_b128 v[{16+4*w}:{19+4*w}], v12 offset:{OLA+768*w}')
op_publish()
A('L_noa:')
A('s_cmp_lt_u32 s5, 20\ns_cbranch_scc0 L_helper_exit')
BW = 64
CF = 56
def tr_addr(dst, tmp):
    A(f'''
v_lshrrev_b32 v{dst}, 4, v0
v_lshlrev_b32 v{dst}, 10, v{dst}
v_bfe_u32 v{tmp}, v0, 2, 2
v_lshl_add_u32 v{dst}, v{tmp}, 7, v{dst}
v_and_b32 v{tmp}, 3, v0
v_lshl_add_u32 v{dst}, v{tmp}, 3, v{dst}
''')
A(f'''
s_cmp_ge_u32 s5, 10
s_cselect_b32 s76, 1, 0
s_mul_i32 s77, s76, 10
s_sub_u32 s77, s5, s77
s_lshr_b32 s78, s3, 1
v_and_b32 v2, 48, v0
s_lshl_b32 s68, s78, 6
v_add_u32 v22, s68, v2
v_lshlrev_b32 v60, 4, v0
s_lshl1_add_u32 s73, s4, s78
s_lshl1_add_u32 s73, s73, s76
s_lshl1_add_u32 s73, s73, s3
s_lshl_b32 s68, s78, 1
s_sub_u32 s73, s73, s68
s_mul_i32 s73, s73, 6144
s_add_u32 s73, s73, {OP}
s_add_u32 s74, s73, 4096
v_lshlrev_b32 v62, 2, v0
s_lshl_b32 s68, s3, 8
v_add_u32 v61, s68, v62
v_lshrrev_b32 v2, 5, v0
v_lshlrev_b32 v2, 11, v2
v_bfe_u32 v3, v0, 2, 3
v_lshl_add_u32 v2, v3, 4, v2
v_and_b32 v3, 1, v0
v_lshl_add_u32 v63, v3, 13, v2
s_lshr_b32 s75, s77, 1
s_lshl_b32 s75, s75, 14
s_and_b32 s68, s77, 1
s_lshl_b32 s68, s68, 12
s_add_u32 s75, s75, s68
s_lshl1_add_u32 s68, s4, s76
s_lshl_b32 s68, s68, 7
s_add_u32 s75, s75, s68
s_add_u32 s75, s75, {YP}
s_mov_b32 s8, 0x33333333
s_mov_b32 s9, 0x33333333
v_mov_b32 v50, s30
v_mov_b32 v51, s31
''')
tr_addr(24, 25)
A('s_mul_i32 s69, s3, 12288\nv_add_u32 v24, s69, v24')
A(f'''
s_cmp_lg_u32 s3, 0
s_cbranch_scc1 L_noc
s_lshl2_add_u32 s72, s4, s76
s_lshl_b32 s72, s72, 8
s_add_u32 s72, s72, {ST}
v_and_b32 v1, 15, v0
v_lshlrev_b32 v1, 4, v1
v_and_b32 v2, 16, v0
v_lshl_add_u32 v1, v2, 5, v1
''')
def body():
    A(f"s_sleep {opt['stsleep']}")
    A('buffer_load_dwordx4 v[4:7], v1, s[16:19], s72 offen sc1' + (' nt' if opt['idnt'] else ''))
    A('s_waitcnt vmcnt(0)')
    tagcheck([6])
spin2(body, local_only=True)
stamp(4)
combine_stats(allreduce16)
A(f'''
v_rcp_f32 v3, v3
v_and_b32 v1, 0x7c, v62
v_mul_f32 v4, v4, v3
v_mov_b32 v2, 0
v_mov_b32 v3, 1
ds_write_b32 v1, v4 offset:{CL}
ds_write_b32 v2, v3 offset:{CNT+24}
L_noc:
''')
lds_wait_ge(CNT + 24, 1, 2)
A(f'ds_read_b128 v[{CF}:{CF+3}], v22 offset:{CL}')
def wo_tr(ts):
    for t in ts:
        for u in range(4):
            r = BW + 4 * (4 * t + u)
            A(f'ds_read_b64_tr_b16 v[{r}:{r+1}], v24 offset:{WL + 4096*t + 32*u}')
            A(f'ds_read_b64_tr_b16 v[{r+2}:{r+3}], v24 offset:{WL + 4096*t + 32*u + 512}')
AO = 144
def op_loads(srdn, fl=''):
    stamp(2)
    for n in range(6):
        A(f'buffer_load_dwordx4 v[{AO+4*n}:{AO+4*n+3}], v60, s[{srdn}:{srdn+3}], s{73 + n // 4} offen offset:{1024*(n%4)} sc1' + fl)
srd(12, 44, 6144 * 640 * 2)
A(f'''
v_lshrrev_b32 v21, 3, v0
v_mul_u32_u24 v21, 1280, v21
v_and_b32 v3, 7, v0
v_lshl_add_u32 v21, v3, 4, v21
s_lshl1_add_u32 s60, s4, s76
s_mul_i32 s68, s78, {HB - HA}
s_add_u32 s60, s60, s68
s_add_u32 s60, s60, {HA}
s_and_b32 s68, s3, 1
s_lshl1_add_u32 s60, s60, s68
s_mul_i32 s60, s60, {96*1280}
s_lshl_b32 s69, s77, 7
s_add_u32 s60, s60, s69
s_mul_i32 s61, s3, 12288
s_add_u32 s61, s61, {WL}
''')
A('v_mov_b32 v23, 1\ns_lshl_b32 s68, s3, 2\nv_mov_b32 v25, s68')
get_pref(4)
lds_wait_ge(CNT + 4, 8, 2)
stamp(3)
A('s_cmp_lg_u32 s78, 0\ns_cbranch_scc1 L_nofirst')
if opt['abl'] & 1:
    for t in range(3):
        for r in (0, 6): A(f'v_mov_b32 v{AO+8*t+r}, s30\nv_mov_b32 v{AO+8*t+r+1}, s31')
elif not opt['atrig']: op_loads(32, ' nt' if opt['ant'] else '')
A('L_nofirst:')
for n in range(12):
    if n >= opt['DWF']: A(f"s_waitcnt vmcnt({opt['DWF']-1})")
    A('s_mov_b32 m0, s61')
    A('buffer_load_dwordx4 v21, s[12:15], s60 offen nt lds')
    if n < 11: A(f's_add_u32 s60, s60, {8*1280}\ns_add_u32 s61, s61, 1024')
    if opt['atrig'] and n == opt['atrig'] - 1:
        A('s_cmp_lg_u32 s78, 0\ns_cbranch_scc1 L_nofirst2')
        op_loads(32, ' nt' if opt['ant'] else '')
        A('L_nofirst2:')
if opt['atrig'] == 15:
    A('s_cmp_lg_u32 s78, 0\ns_cbranch_scc1 L_s2')
    op_loads(32, ' nt' if opt['ant'] else '')
    A('s_waitcnt vmcnt(10)\ns_branch L_s3\nL_s2:\ns_waitcnt vmcnt(4)\nL_s3:')
else: A('s_waitcnt vmcnt(4)')
if opt['atrig'] == 14:
    A('s_cmp_lg_u32 s78, 0\ns_cbranch_scc1 L_s2')
    op_loads(32, ' nt' if opt['ant'] else '')
    A('L_s2:')
wo_tr([0, 1])
if opt['atrig'] >= 14: A('s_cmp_lg_u32 s78, 0\ns_cbranch_scc1 L_second\ns_waitcnt vmcnt(6) lgkmcnt(0)\ns_branch L_both\nL_second:')
elif opt['atrig'] != 13: A('s_cmp_lg_u32 s78, 0\ns_cbranch_scc1 L_second\ns_waitcnt vmcnt(0) lgkmcnt(0)\ns_branch L_both\nL_second:')
lds_wait_ge(CNT + 28, 1, 1)
A(f"s_waitcnt vmcnt({opt['opw']})")
op_loads(32)
A('s_waitcnt vmcnt(6)\nL_both:')
wo_tr([2])
stamp(6)
def body():
    op_loads(16)
    A('L_opw:')
    for t in range(3):
        A(f's_waitcnt vmcnt({4-2*t})' + (' lgkmcnt(0)' if t == 2 else ''))
        q = AO + 8 * t
        fill = [[f"v_cmp_ne_u64 {'vcc' if t == 0 else 's[20:21]'}, s[30:31], v[{q}:{q+1}]", f'v_cmp_ne_u64 s[22:23], s[30:31], v[{q+6}:{q+7}]'],
                ([] if t == 0 else ['s_or_b64 vcc, vcc, s[20:21]']) + ['s_or_b64 vcc, vcc, s[22:23]'], [], []]
        for u in range(4):
            r = BW + 4 * (4 * t + u)
            c = '0' if t == 0 else f'v[{32+4*u}:{35+4*u}]'
            A(f'v_mfma_f32_16x16x32_bf16 v[{32+4*u}:{35+4*u}], v[{q+2}:{q+5}], v[{r}:{r+3}], {c}')
            for l in fill[u]: A(l)
spin2(body, local_only=True, entry='L_opw')
stamp(7)
if opt['w2t'] == 0: A(f'ds_write_b32 v25, v23 offset:{OKF}')
for u in range(4):
    A(f'v_mul_f32 v{4+u}, v{32+4*u}, v{CF}')
    for r in range(1, 4): A(f'v_fmac_f32 v{4+u}, v{32+4*u+r}, v{CF+r}')
A(f'''
{S32} v4, v6
{S32} v5, v7
v_add_f32 v4, v4, v6
v_add_f32 v5, v5, v7
{S16} v4, v5
v_add_f32 v4, v4, v5
ds_write_b32 v61, v4 offset:{RL}
s_cmp_lg_u32 s3, 0
s_waitcnt lgkmcnt(0)
s_barrier
s_cbranch_scc1 L_post_wo
ds_read_b32 v5, v62 offset:{RL+256}
ds_read_b32 v6, v62 offset:{RL+512}
ds_read_b32 v7, v62 offset:{RL+768}
s_waitcnt lgkmcnt(0)
v_add_f32 v4, v4, v5
v_add_f32 v6, v6, v7
v_add_f32 v4, v4, v6
v_mov_b32_dpp v5, v4 quad_perm:[1,0,3,2] {DPPM}
v_cvt_pk_bf16_f32 v4, v4, v5
v_mov_b32_dpp v48, v4 quad_perm:[0,0,0,0] {DPPM}
v_mov_b32_dpp v49, v4 quad_perm:[2,2,2,2] {DPPM}
''')
A('s_mov_b64 exec, s[8:9]')
A('buffer_store_dwordx4 v[48:51], v63, s[24:27], s75 offen sc1')
stamp(5)
A('s_barrier')
if opt['wb'] & 2: A('s_cmp_lg_u32 s5, 19\ns_cbranch_scc1 L_end\nbuffer_wbl2 sc1')
write_stamps(0)
A('s_endpgm')
A('L_helper_exit:')
if STAMPS:
    A('s_cmp_lg_u32 s3, 0\ns_cbranch_scc1 L_end')
    write_stamps(0)
A('s_endpgm')

B1R = 64
DR = 16
pad(2)
A('L_f1:')
srd(12, 48, 640 * 1536 * 2); srd(16, 50, 640 * 1536 * 2)
A(f"""
s_sub_u32 s74, s5, 20
v_lshrrev_b32 v3, 4, v0
v_and_b32 v2, 7, v0
v_lshrrev_b32 v62, 3, v0
v_mul_u32_u24 v62, 3072, v62
v_lshl_add_u32 v62, v2, 4, v62
s_lshl3_add_u32 s61, s74, s73
s_mul_i32 s61, s61, {8*3072}
s_mul_i32 s68, s4, 384
s_add_u32 s61, s61, s68
s_add_u32 s62, s61, 128
s_add_u32 s63, s61, 256
s_lshl_b32 s79, s73, 10
s_add_u32 s79, s79, {WL}
v_mov_b32 v57, 0
v_mov_b32 v6, s30
v_mov_b32 v7, s31
""")
lds_wait_ge(CNT + 28, 1, 1)
for nbl in range(3):
    for m in range(2):
        A(f's_add_u32 m0, s79, {(m*3 + nbl)*8192}')
        A(f'buffer_load_dwordx4 v62, s[{12+4*m}:{15+4*m}], s{61+nbl} offen nt lds')
A('s_setprio 3\ns_cmp_gt_u32 s73, 1\ns_cbranch_scc1 L_f1m')
get_pref(1)
A(f"""
s_lshl1_add_u32 s74, s74, s73
v_lshl_add_u32 v61, v2, 2, v3
v_lshlrev_b32 v61, 1, v61
s_lshl_b32 s68, s74, 6
v_add_u32 v61, s68, v61
global_load_ushort v56, v61, s[36:37]
v_lshlrev_b32 v54, 5, v3
v_lshl_add_u32 v54, v2, 2, v54
v_lshlrev_b32 v55, 4, v0
s_lshl_b32 s72, s4, 9
s_lshl4_add_u32 s72, s74, s72
s_add_u32 s72, s72, {PS}
s_mul_i32 s75, s4, 20
s_add_u32 s75, s75, s74
s_lshl_b32 s75, s75, 7
s_add_u32 s75, s75, {PH}
""")
A(f"""
s_mov_b64 exec, 1
buffer_load_dword v104, v54, s[32:35], s75 offen sc1
buffer_load_dword v105, v55, s[32:35], s72 offen sc1
s_mov_b64 exec, -1
s_lshr_b32 s60, s74, 2
s_lshl_b32 s60, s60, 14
s_and_b32 s68, s74, 3
s_lshl_b32 s68, s68, 11
s_add_u32 s60, s60, s68
s_lshr_b32 s68, s47, s4
s_and_b32 s68, s68, 1
s_lshl_b32 s68, s68, 13
s_add_u32 s60, s60, s68
s_add_u32 s60, s60, {YP}
v_lshlrev_b32 v51, 4, v3
v_lshl_add_u32 v51, v2, 1, v51
v_and_b32 v4, 1, v0
v_mul_u32_u24 v4, 126, v4
v_add_u32 v51, v51, v4
s_lshl_b32 s68, s73, 6
v_add_u32 v51, s68, v51
s_mov_b32 s77, 0x3f80
s_mov_b32 s71, 0x3f800000
v_mov_b32 v14, s30
v_mov_b32 v15, s31
v_mov_b32 v8, 0
v_mov_b32 v9, 0
v_mov_b32 v10, 0
v_mov_b32 v11, 0
v_not_b32 v98, s30
v_not_b32 v102, s30
s_waitcnt vmcnt(2)
s_barrier
v_lshlrev_b32 v56, 16, v56
""")
stamp(6)
YL = ['buffer_load_dwordx4 v[96:99], v55, s[24:27], s60 offen sc1', 'buffer_load_dwordx4 v[100:103], v55, s[24:27], s60 offen offset:1024 sc1']
if opt['fry']:
    A(f"""
s_mov_b32 s70, {SPIN}
s_mov_b64 s[20:21], -1
s_mov_b64 s[22:23], -1
L_ypoll:
s_mov_b64 exec, s[20:21]
{YL[0]}
s_mov_b64 exec, s[22:23]
{YL[1]}
s_mov_b64 exec, -1
""")
    for k in range(opt['fry']):
        A('v_cmp_ne_u64 s[20:21], s[30:31], v[98:99]\nv_cmp_ne_u64 s[22:23], s[30:31], v[102:103]\ns_or_b64 vcc, s[20:21], s[22:23]\ns_cbranch_scc0 L_yok')
    A('s_waitcnt vmcnt(16)\ns_sub_u32 s70, s70, 1\ns_cbranch_scc0 L_ypoll\nL_yok:')
else:
    def body():
        A(YL[0]); A(YL[1])
        A('s_waitcnt vmcnt(0)')
        tagcheck([98, 102])
    spin(body)
stamp(1)
for r in (96, 100):
    A(f'v_dot2c_f32_bf16 v8, s77, v{r}\nv_dot2c_f32_bf16 v10, s77, v{r+1}\nv_dot2c_f32_bf16 v9, s71, v{r}\nv_dot2c_f32_bf16 v11, s71, v{r+1}')
A(f"""
{S32} v8, v10
{S32} v9, v11
v_add_f32 v8, v8, v10
v_add_f32 v9, v9, v11
{S16} v8, v9
v_add_f32 v8, v8, v9
v_add_f32_dpp v8, v8, v8 row_ror:8 {DPPM}
v_cvt_pk_bf16_f32 v8, v57, v8
v_add_f32 v12, v8, v56
v_mov_b32_dpp v13, v12 quad_perm:[1,0,3,2] {DPPM}
v_cvt_pk_bf16_f32 v12, v12, v13
ds_write_b32 v51, v12 offset:{RL}
v_lshlrev_b32 v4, 16, v12
v_mul_f32 v5, v4, v4
""")
allreduce8('v_add_f32', [4, 5])
A('s_waitcnt lgkmcnt(0)\ns_barrier')
A(f'v_mov_b32_dpp v13, v12 quad_perm:[2,3,2,3] {DPPM}')
allreduce_rows('v_add_f32', [4, 5], [8, 9])
publish([(1, 'buffer_store_dwordx4 v[4:7], v55, @, s72 offen'),
         (0x0011001100110011, 'buffer_store_dwordx4 v[12:15], v54, @, s75 offen')])
if opt['wb'] & 4: A('s_cmp_lg_u32 s74, 0\ns_cbranch_scc1 L_end\nbuffer_wbl2 sc1')
stamp_val(18, 82, 83, True)
stamp_val(23, 92, 93, True)
A('s_endpgm')
pad(3)
A(f"""
L_f1m:
s_sub_u32 s68, s73, 2
s_lshr_b32 s78, s68, 1
s_and_b32 s69, s73, 1
v_lshlrev_b32 v58, 7, v3
v_bfe_u32 v4, v0, 2, 2
v_lshl_add_u32 v58, v4, 9, v58
v_and_b32 v4, 3, v0
v_lshl_add_u32 v58, v4, 3, v58
s_lshl_b32 s75, s78, 13
s_lshl_b32 s68, s69, 6
s_add_u32 s75, s75, s68
v_add_u32 v58, s75, v58
v_lshlrev_b32 v52, 4, v3
v_and_b32 v59, 1, v3
v_cmp_eq_u32 s[62:63], 1, v59
v_mul_u32_u24 v59, 3072, v59
v_bfe_u32 v4, v0, 3, 1
v_lshl_add_u32 v59, v4, 9, v59
v_lshl_add_u32 v59, v2, 4, v59
s_mul_i32 s76, s4, 3
s_add_u32 s76, s76, s78
s_lshl1_add_u32 s76, s76, s69
s_mul_i32 s76, s76, 6144
s_lshr_b32 s68, s74, 2
s_lshl_b32 s68, s68, 10
s_add_u32 s76, s76, s68
s_and_b32 s68, s74, 3
s_lshl_b32 s68, s68, 7
s_add_u32 s76, s76, s68
s_add_u32 s77, s76, {CB}
s_add_u32 s76, s76, {PA}
v_mov_b32 v8, 0x3f803f80
v_mov_b32 v9, 0x3f803f80
v_mov_b32 v10, 0x3f803f80
v_mov_b32 v11, 0x3f803f80
v_mov_b32 v34, s30
v_mov_b32 v35, s31
s_waitcnt vmcnt(0)
s_barrier
""")
for kk in range(2):
    for m in range(2):
        for u in range(2):
            r = B1R + 4 * ((kk * 2 + m) * 2 + u)
            o = WL + m * 24576 + kk * 4096 + 32 * u
            A(f'ds_read_b64_tr_b16 v[{r}:{r+1}], v58 offset:{o}')
            A(f'ds_read_b64_tr_b16 v[{r+2}:{r+3}], v58 offset:{o + 2048}')
def f1_mfma(kk, a):
    for k in range(4):
        c = f'v[{DR+4*k}:{DR+3+4*k}]' if kk else '0'
        A(f'v_mfma_f32_16x16x32_bf16 v[{DR+4*k}:{DR+3+4*k}], v[{a}:{a+3}], v[{B1R+16*kk+4*k}:{B1R+16*kk+4*k+3}], {c}')
def f1_select(d):
    A(f'v_cndmask_b32 v{d}, v{DR}, v{DR+4}, s[62:63]\nv_cndmask_b32 v{d+1}, v{DR+8}, v{DR+12}, s[62:63]')
A('s_waitcnt lgkmcnt(0)')
f1_mfma(0, 8); f1_mfma(1, 8)
f1_select(32)
publish([(0xffffffff, 'buffer_store_dwordx4 v[32:35], v59, @, s77 offen')])
A(f"""
s_barrier
ds_read_b128 v[8:11], v52 offset:{RL}
ds_read_b128 v[12:15], v52 offset:{RL+64}
s_waitcnt lgkmcnt(1)
""")
f1_mfma(0, 8)
A('s_waitcnt lgkmcnt(0)')
f1_mfma(1, 12)
f1_select(4)
publish([(0xffffffff, 'buffer_store_dwordx4 v[4:7], v59, @, s76 offen')])
if STAMPS:
    A('s_cmp_eq_u32 s3, 11\ns_cbranch_scc1 L_end')
    stamp_now(11, True)
A('s_endpgm')

pad(4)
A('L_post_wo:')
A("""
s_cmp_gt_u32 s5, 11
s_cbranch_scc1 L_end
s_cmp_eq_u32 s3, 3
s_cbranch_scc1 L_end
v_mov_b32 v57, 0
s_cmp_eq_u32 s3, 1
s_cbranch_scc1 L_hid
s_barrier
""")
A(f"""
s_and_b32 s68, s4, 1
s_lshl_b32 s68, s68, 2
s_sub_u32 s68, 12, s68
s_cmp_ge_u32 s5, s68
s_cbranch_scc1 L_end
s_mul_i32 s72, s4, 5
s_add_u32 s72, s72, 1
s_lshr_b32 s72, s72, 1
s_lshr_b32 s68, s5, 2
s_add_u32 s72, s72, s68
s_and_b32 s73, s5, 3
v_lshrrev_b32 v2, 1, v0
v_lshlrev_b32 v2, 7, v2
v_and_b32 v3, 1, v0
v_lshl_add_u32 v96, v3, 4, v2
s_lshl_b32 s10, s72, 15
s_lshr_b32 s68, s47, s4
s_and_b32 s68, s68, 1
s_lshl_b32 s68, s68, 13
s_add_u32 s10, s10, s68
s_lshl_b32 s68, s73, 5
s_add_u32 s10, s10, s68
s_add_u32 s10, s10, {FP}
s_add_u32 s11, s10, 4096
s_add_u32 s12, s10, 16384
v_lshrrev_b32 v4, 4, v0
v_lshl_add_u32 v97, v3, 2, v4
v_lshlrev_b32 v97, 1, v97
v_lshlrev_b32 v99, 5, v4
s_and_b32 s68, s73, 1
s_lshl_b32 s68, s68, 5
v_lshl_add_u32 v98, v3, 4, s68
s_mul_i32 s13, s4, 20
s_add_u32 s13, s13, s72
s_lshl_b32 s13, s13, 7
s_lshr_b32 s68, s73, 1
s_lshl4_add_u32 s13, s68, s13
s_add_u32 s13, s13, {PH}
s_lshl2_add_u32 s14, s72, s73
s_lshl_b32 s14, s14, 4
s_mov_b32 s8, 0x30003
s_mov_b32 s9, 0x30003
s_mov_b32 s77, 0x3f80
s_mov_b32 s71, 0x3f800000
v_mov_b32 v8, 0
v_mov_b32 v9, 0
v_mov_b32 v10, 0
v_mov_b32 v11, 0
""")
FS = 16
srd(64, 54, 1280)
if opt['outpre']:
    A(f"s_mov_b64 exec, 1\nbuffer_load_dword v30, v57, s[64:67], s14 offen{['', '', ' sc1', ' nt'][opt['outpre']]}\ns_mov_b64 exec, -1")
A('s_setprio 0')
lds_wait_ge(HRDY, 1, opt['hsleep'])
if opt['fsleep']: A(f"s_sleep {opt['fsleep']}")
def body():
    A('buffer_load_dwordx4 v[4:7], v99, s[16:19], s13 offen sc1')
    for n in range(3):
        r = FS + 4 * n
        A(f'buffer_load_dwordx4 v[{r}:{r+3}], v96, s[24:27], s{10+n} offen sc1')
    A('s_waitcnt vmcnt(0)')
    tagcheck([6, FS + 2, FS + 6, FS + 10])
spin2(body, local_only=True)
A('L_finc:')
stamp(5)
for n in range(3):
    r = FS + 4 * n
    A(f'v_dot2c_f32_bf16 v8, s77, v{r}\nv_dot2c_f32_bf16 v10, s77, v{r+1}\nv_dot2c_f32_bf16 v9, s71, v{r}\nv_dot2c_f32_bf16 v11, s71, v{r+1}')
A(f"""
v_lshrrev_b64 v[58:59], v98, v[4:5]
{S32} v8, v10
{S32} v9, v11
v_add_f32 v8, v8, v10
v_add_f32 v9, v9, v11
v_lshlrev_b32 v58, 16, v58
{S16} v8, v9
v_add_f32 v8, v8, v9
v_add_f32_dpp v8, v8, v8 row_ror:8 {DPPM}
v_add_f32_dpp v8, v8, v8 row_ror:4 {DPPM}
v_add_f32_dpp v8, v8, v8 quad_perm:[2,3,0,1] {DPPM}
v_cvt_pk_bf16_f32 v8, v57, v8
v_add_f32 v8, v8, v58
v_cvt_pk_bf16_f32 v8, v8, v8
""")
A('s_mov_b64 exec, s[8:9]')
if opt['dry'] & 2: A('s_cbranch_execz L_end')
A(f"""
buffer_store_short v8, v97, s[64:67], s14 offen{['', ' sc1', ' sc0 sc1', ' nt'][opt['outfl']]}
s_cmp_lg_u32 s14, 0
s_cbranch_scc1 L_fin_exit
s_mov_b64 exec, 1
v_mov_b32 v4, s30
v_mov_b32 v5, s31
s_mov_b32 s68, {EP}
buffer_store_dwordx2 v[4:5], v57, s[24:27], s68 offen
L_fin_exit:
""")
if opt['endst']:
    A(f's_memrealtime s[82:83]\ns_mov_b64 exec, 1\ns_add_u32 s68, s14, {0x390000}\ns_waitcnt lgkmcnt(0)\nv_mov_b32 v4, s82\nv_mov_b32 v5, s83\nbuffer_store_dwordx2 v[4:5], v57, s[24:27], s68 offen')
if opt['dbg']:
    A(f'''
s_cmp_lg_u32 s14, 0
s_cbranch_scc1 L_end
s_mov_b64 exec, -1
ds_read_b32 v4, v57 offset:{CNT+36}
s_memrealtime s[82:83]
s_waitcnt lgkmcnt(0)
v_readfirstlane_b32 s85, v4
s_sub_u32 s84, s82, s85
v_mov_b32 v4, s84
global_store_dword v57, v4, s[56:57]
s_mul_i32 s84, s84, {opt['dbg']}
s_min_u32 s84, s84, 40000
L_dbgspin:
s_memrealtime s[86:87]
s_waitcnt lgkmcnt(0)
s_sub_u32 s86, s86, s82
s_cmp_lt_u32 s86, s84
s_cbranch_scc1 L_dbgspin
''')
if STAMPS:
    A('s_waitcnt vmcnt(0)')
    stamp(7)
    write_stamps(8)
A('s_endpgm')

pad(5)
A('L_hid:')
M2 = 0x0000ffff0000ffff
A(f"""
s_mul_i32 s72, s4, 12
s_add_u32 s72, s72, s5
v_lshrrev_b32 v4, 5, v0
v_and_b32 v2, 7, v0
v_lshl_add_u32 v62, v4, 3, v2
v_lshlrev_b32 v62, 1, v62
v_lshlrev_b32 v63, 2, v2
v_lshlrev_b32 v60, 4, v0
v_and_b32 v3, 31, v0
v_lshlrev_b32 v61, 4, v3
s_lshl_b32 s65, s4, 9
s_add_u32 s65, s65, {PS}
s_mul_i32 s60, s72, 3072
s_add_u32 s62, s60, {CB}
s_add_u32 s60, s60, {PA}
s_mov_b32 s8, 0xfffff
s_mov_b32 s9, 0xfffff
s_mov_b32 s10, 0xffff
s_mov_b32 s11, 0xffff
v_mov_b32 v59, 1
""")
for r in (24, 136, 140): A(f'v_mov_b32 v{r}, 0\nv_mov_b32 v{r+1}, 0\nv_mov_b32 v{r+2}, s30\nv_mov_b32 v{r+3}, s31')
def loads3(r, srdn, so, fl=''):
    A(f'buffer_load_dwordx4 v[{r}:{r+3}], v60, s[{srdn}:{srdn+3}], s{so} offen sc1' + fl)
    A(f'buffer_load_dwordx4 v[{r+4}:{r+7}], v60, s[{srdn}:{srdn+3}], s{so} offen offset:1024 sc1' + fl)
    A(f's_mov_b64 exec, s[10:11]\nbuffer_load_dwordx4 v[{r+8}:{r+11}], v60, s[{srdn}:{srdn+3}], s{so} offen offset:2048 sc1{fl}\ns_mov_b64 exec, -1')
def issue_s(srdn=32):
    A(f's_mov_b64 exec, s[8:9]\nbuffer_load_dwordx4 v[140:143], v61, s[{srdn}:{srdn+3}], s65 offen sc1\ns_mov_b64 exec, -1')
def issue_p(srdn=32): loads3(128, srdn, 60)
def poll(issue, check, n, bound=None):
    slow = newlabel('pslow'); ok = newlabel('pok')
    check()
    A(f's_nop 0\ns_cbranch_vccz {ok}')
    A(f's_cmp_lg_u32 s46, 1\ns_cbranch_scc1 {slow}')
    freepoll(issue, check, n, ok, bound)
    mark = len(A.lines)
    A(f'{slow}:')
    def body():
        issue(16); A('s_waitcnt vmcnt(0)'); check()
    spin2(body, local_only=True)
    if opt['ool']:
        A(f's_branch {ok}')
        outline.append('\n'.join(A.lines[mark:])); del A.lines[mark:]
    A(f'{ok}:')
    return ok
def body():
    loads3(16, 16, 62)
    issue_p(16); issue_s(16)
    A('s_waitcnt vmcnt(0)')
    tagcheck([18, 22, 26])
if opt['frc']:
    for r in (18, 22, 130, 134): A(f'v_not_b32 v{r}, s30')
    A('s_mov_b64 exec, s[10:11]\nv_not_b32 v26, s30\nv_not_b32 v138, s30\ns_mov_b64 exec, s[8:9]\nv_not_b32 v142, s30\ns_mov_b64 exec, -1')
A('s_barrier')
if opt['frc']:
    def issue_all(srdn=32):
        loads3(16, srdn, 62, ' nt' if opt['hnt'] & 1 else ''); issue_s(srdn); loads3(128, srdn, 60, ' nt' if opt['hnt'] & 2 else '')
    poll(issue_all, lambda: tagcheck([18, 22, 26]), opt['frc'], opt['frcb'])
else: spin2(body, local_only=True)
A('v_pk_add_f32 v[40:41], v[16:17], v[20:21]\nv_pk_add_f32 v[40:41], v[40:41], v[24:25]')
for r in (40, 41): A(f'v_add_f32_dpp v{r}, v{r}, v{r} row_ror:8 {DPPM}')
swapreduce(S16, 'v_add_f32', [40, 41], [42, 43])
poll(issue_s, lambda: tagcheck([142]), opt['frs'])
A('s_cmp_lg_u32 s46, 1\ns_cbranch_scc1 L_nopre')
issue_p()
A('L_nopre:')
A(f"""
v_add_f32_dpp v36, v140, v140 quad_perm:[1,0,3,2] {DPPM}
v_add_f32_dpp v37, v141, v141 quad_perm:[1,0,3,2] {DPPM}
v_add_f32_dpp v36, v36, v36 quad_perm:[2,3,0,1] {DPPM}
v_add_f32_dpp v37, v37, v37 quad_perm:[2,3,0,1] {DPPM}
v_add_f32_dpp v36, v36, v36 row_half_mirror {DPPM}
v_add_f32_dpp v37, v37, v37 row_half_mirror {DPPM}
v_add_f32_dpp v46, v36, v36 row_mirror {DPPM}
v_add_f32_dpp v47, v37, v37 row_mirror {DPPM}
v_add_f32_dpp v36, v36, v36 row_mirror {DPPM}
v_add_f32_dpp v37, v37, v37 row_mirror {DPPM}
{S16} v36, v46
{S16} v37, v47
v_pk_add_f32 v[36:37], v[36:37], v[46:47]
s_cbranch_scc1 L_nopre2
""")
issue_p()
A(f"""
L_nopre2:
v_mul_f32 v44, {f32(1.0/640)}, v36
v_mul_f32 v45, {f32(1.0/640)}, v37
v_fma_f32 v45, -v44, v44, v45
v_max_f32 v45, 0, v45
v_cvt_pk_bf16_f32 v45, v57, v45
v_cvt_pk_bf16_f32 v44, v57, v44
v_add_f32 v45, {f32(1e-5)}, v45
v_cvt_pk_bf16_f32 v45, v57, v45
v_sqrt_f32 v45, v45
v_mul_f32 v40, v44, v40
v_cvt_pk_bf16_f32 v45, v57, v45
v_rcp_f32 v45, v45
v_mul_f32 v41, v44, v41
""")
poll(issue_p, lambda: tagcheck([130, 134, 138]), opt['frp'])
A('L_hidc:')
stamp(7)
A(f"""
v_pk_add_f32 v[8:9], v[128:129], v[132:133]
v_pk_add_f32 v[8:9], v[8:9], v[136:137]
v_add_f32_dpp v10, v8, v8 row_ror:8 {DPPM}
v_add_f32_dpp v11, v9, v9 row_ror:8 {DPPM}
v_add_f32_dpp v8, v8, v8 row_ror:8 {DPPM}
v_add_f32_dpp v9, v9, v9 row_ror:8 {DPPM}
{S16} v8, v10
{S16} v9, v11
v_add_f32 v8, v8, v10
v_sub_f32 v8, v8, v40
v_mul_f32 v8, v8, v45
v_cvt_pk_bf16_f32 v8, v57, v8
v_mul_f32 v12, {f32(-LOG2E)}, v8
v_exp_f32 v12, v12
v_add_f32 v9, v9, v11
v_add_f32 v12, 1.0, v12
v_rcp_f32 v12, v12
v_sub_f32 v9, v9, v41
v_mul_f32 v9, v9, v45
v_mul_f32 v8, v8, v12
v_cvt_pk_bf16_f32 v9, v57, v9
v_cvt_pk_bf16_f32 v8, v57, v8
v_mul_f32 v8, v8, v9
v_cvt_pk_bf16_f32 v8, v8, v8
ds_write_b16 v62, v8 offset:{HID}
ds_write_b32 v63, v59 offset:{HRDY}
""")
if opt['wb'] & 1: A('s_cmp_lg_u32 s5, 0\ns_cbranch_scc1 L_end\nbuffer_wbl2 sc1')
stamp_val(17, 94, 95)
A('s_endpgm')

pad(6)
A('L_f2:')
W2R = 64
srd(8, 52, 1536 * 640 * 2)
get_pref(1, dst=16, adr=17)
A(f"""
s_mul_i32 s72, s4, 12
s_add_u32 s72, s72, s5
v_mov_b32 v57, 0
s_sub_u32 s68, s3, 7
s_lshl_b32 s69, s68, 8
v_lshlrev_b32 v58, 2, v0
v_add_u32 v58, s69, v58
v_lshrrev_b32 v2, 4, v0
v_lshl_add_u32 v2, s68, 2, v2
v_mul_u32_u24 v3, 52, v2
v_lshrrev_b32 v3, 8, v3
v_mul_u32_u24 v4, 5, v3
v_sub_u32 v4, v2, v4
v_cmp_lt_u32 vcc, 2, v4
v_lshlrev_b32 v3, 1, v3
v_addc_co_u32 v3, vcc, 0, v3, vcc
v_lshrrev_b32 v3, v3, s47
v_and_b32 v3, 1, v3
v_lshlrev_b32 v116, 15, v2
v_lshl_add_u32 v116, v3, 13, v116
v_bfe_u32 v3, v0, 1, 3
v_lshl_add_u32 v116, v3, 4, v116
s_lshr_b32 s79, s72, 6
s_lshl_b32 s79, s79, 14
s_and_b32 s68, s72, 63
s_lshl_b32 s68, s68, 7
s_add_u32 s79, s79, s68
s_add_u32 s79, s79, {FP}
s_mov_b32 s60, 0x05040100
s_mov_b32 s61, 0x07060302
s_mul_i32 s62, s72, 20480
""")
def w2_loads():
    for k in range(16):
        A(f'buffer_load_dword v{W2R+k}, v58, s[8:11], s62 offen offset:{1280*(k%3)} nt')
        if k % 3 == 2: A('s_add_u32 s62, s62, 3840')
if opt['w2dma']:
    A(f'''
v_lshrrev_b32 v2, 4, v0
v_mul_u32_u24 v2, 1280, v2
v_and_b32 v3, 15, v0
v_lshl_add_u32 v2, v3, 4, v2
s_add_u32 s62, s62, s69
s_lshl_b32 s63, s69, 4
v_lshlrev_b32 v3, 2, v0
v_add_u32 v3, s63, v3
s_add_u32 s63, s63, {WL}
''')
    if opt['w2t'] == 0:
        A('v_and_b32 v1, 3, v0\nv_lshlrev_b32 v1, 2, v1')
        def body():
            A(f'ds_read_b32 v4, v1 offset:{OKF}')
            A('s_waitcnt lgkmcnt(0)')
            A('v_cmp_eq_u32 vcc, 0, v4')
        spin(body)
    else: A('s_barrier')
    if opt['w2t'] == 2: A('s_barrier')
    for k in range(4):
        A(f's_add_u32 m0, s63, {1024*k}\nbuffer_load_dwordx4 v2, s[8:11], s62 offen nt lds\ns_add_u32 s62, s62, 5120')
    if opt['w2t'] == 0: A('s_barrier')
    if opt['w2t'] < 2: A('s_barrier')
    A('s_waitcnt vmcnt(0)')
    for k in range(16): A(f'ds_read_b32 v{W2R+k}, v3 offset:{WL + 256*k}')
    A('s_waitcnt lgkmcnt(0)')
else:
    A('s_barrier')
    w2_loads()
    A('s_barrier')
    A('s_waitcnt vmcnt(0)')
stamp(6)
for kp in range(8):
    A(f'v_perm_b32 v{80+kp}, v{W2R+2*kp+1}, v{W2R+2*kp}, s60')
    A(f'v_perm_b32 v{88+kp}, v{W2R+2*kp+1}, v{W2R+2*kp}, s61')
A(f"""
v_mov_b32 v16, 0
v_mov_b32 v17, 0
v_mov_b32 v18, 0
v_mov_b32 v19, 0
s_mov_b32 s66, 0x55555555
s_mov_b32 s67, 0x55555555
v_mov_b32 v6, s30
v_mov_b32 v7, s31
v_and_b32 v9, 15, v0
v_lshlrev_b32 v9, 2, v9
v_mov_b32 v8, 0
s_mov_b32 s64, 0xff00ff00
s_mov_b32 s65, 0xff00ff00
s_mov_b32 s70, {SPIN * 8}
s_waitcnt lgkmcnt(0)
L_f2poll:
ds_read_b32 v8, v9 offset:{HID}
s_waitcnt lgkmcnt(4)
v_cmp_eq_u32 vcc, 0, v8
s_sub_u32 s70, s70, 1
s_cbranch_scc1 L_f2go
s_and_b64 vcc, vcc, s[64:65]
s_cbranch_scc1 L_f2poll
L_f2go:
""")
for kp in range(8):
    A(f'v_dot2c_f32_bf16_dpp v{16+2*(kp&1)}, v8, v{80+kp} row_newbcast:{kp} {DPPM}')
    A(f'v_dot2c_f32_bf16_dpp v{17+2*(kp&1)}, v8, v{88+kp} row_newbcast:{kp} {DPPM}')
A('v_pk_add_f32 v[16:17], v[16:17], v[18:19]')
A(f"""
v_cvt_pk_bf16_f32 v4, v16, v17
v_mov_b32_dpp v5, v4 quad_perm:[1,0,3,2] {DPPM}
""")
A('s_mov_b64 exec, s[66:67]')
if opt['dry'] & 4: A('s_cbranch_execz L_end')
A('buffer_store_dwordx4 v[4:7], v116, s[24:27], s79 offen sc1')
if opt['wb'] & 8:
    A('s_lshl4_add_u32 s68, s5, s3\ns_cmp_lg_u32 s68, 11\ns_cbranch_scc1 L_end')
    if opt['wbs']: A(f"s_sleep {opt['wbs']}")
    A('buffer_wbl2 sc1')
if STAMPS:
    setexec(ALL)
    stamp_now(20, True)
    stamp_val(15, 92, 93, True)
A('L_end:')
A('s_endpgm')
A('L_dry:')
if opt['dry']:
    srd(64, 54, 1280)
    A('''
v_mov_b32 v97, 0
v_mov_b32 v116, 0
v_mov_b32 v62, 0
v_mov_b32 v63, 0
s_mov_b32 s14, 16
s_mov_b32 s79, 0
s_mov_b64 s[8:9], 0
s_mov_b32 s46, 2
s_mov_b64 exec, 0
''')
    if opt['dry'] & 1: A('s_cmp_eq_u32 s3, 4\ns_cbranch_scc1 L_nopre')
    if opt['dry'] & 2: A('s_cmp_eq_u32 s3, 5\ns_cbranch_scc1 L_finc')
    if opt['dry'] & 4: A('s_mov_b64 s[66:67], 0\ns_cmp_eq_u32 s3, 6\ns_cbranch_scc1 L_f2go')
A('s_endpgm')
for blk in outline: A(blk)
A('L_codeend:')

A.raw('.section .rodata,"a"')
A.raw('.p2align 6')
A.raw(f'.amdhsa_kernel {NAME}_kernel')
A.raw('  .amdhsa_next_free_vgpr 168')
A.raw('  .amdhsa_next_free_sgpr 100')
A.raw('  .amdhsa_accum_offset 168')
A.raw('  .amdhsa_group_segment_fixed_size 0')
A.raw('  .amdhsa_kernarg_size 96')
A.raw('  .amdhsa_user_sgpr_count 2')
A.raw('  .amdhsa_user_sgpr_kernarg_segment_ptr 1')
A.raw('  .amdhsa_system_sgpr_workgroup_id_x 1')
A.raw('.end_amdhsa_kernel')
open(sys.argv[1], 'w').write(A.finalize())
```

```python
import sys, struct, os
from asmlib import Asm

NAME = "sequential_preLN__sliding_block_cached__glu_gated_swiglu__decode"
opt = dict(D1=3, D2=3, Vpre=3, stamps=0, spin=4000007, sleep=2, swave=11, stsleep=24, wtrig=2, DWF=6, opw=0,
           idtries=12, idsleep=16, forceslow=0, trap=0, fsleep=16, hsleep=0, shots=4, lead=31, samp=6,
           frp=1, frs=2, frc=8, frcb=14, w2dma=1, opp=0, osleep=0, sprio=0, outfl=0, outpre=0, lag2=0, idnt=1, xnt=0, cps=0, xs=1, qe=2, qb=10, pro=2, cpw=0, hnt=0, trl=1, al=0, ool=1, dry=0, q2=1, q2d=40, q2s=8, hack=0, endst=0, wb=0, wbs=0, stst=0, opm=0, op2=0, ant=1, abl=0, atrig=13, apub=1, qh=0, kb=0, qpre=0, sp=3, spd=0, spd2=0, mst2=0, p2t=38, c2=41, e2=0, tries2=1, meas=0, kord=1, vord=0, p1=0, p2=0, p3=0, p4=0, p5=0, p6=0, Dinit=3, pkw=0, opi=1, hard=0, w2t=1, frb=12, fry=6, cal=1, mst=17, tau0=457, dA=7, dB=-13, dC=22, lag=480, cfrom=30, pick2=4, pftrig=26,
           caltries=2, calsleep=20, dbg=0, trace=0)
for a in sys.argv[2:]:
    k, v = a.split('=')
    assert k in opt, k
    opt[k] = int(v)
D1 = opt['D1']; D2 = opt['D2']; STAMPS = opt['stamps']; SPIN = opt['spin']

def f32(x): return '0x%08x' % struct.unpack('<I', struct.pack('<f', x))[0]
LOG2E = 1.4426950408889634

QP = 0x0
OP = 0x80000
ST = 0x1F8000
ID = 0x1FC000
YP = 0x1E0000
EP = 0xE0000
PF = 0xE8000
CAL = 0xEA000
FP = 0x100000
PB = 0x1A0000
SP = 0x200000
PA = 0x220000
PS = 0x2A0000
PH = 0x2A4000
CB = 0x300000
WSN = 0x400000
FAST = 0x400000
QL = 0
QF = 384
SL = 512
CNT = 640
OKF = QF + 64; PREF = CNT + 20; ORG = CNT + 40; SUMS = CNT + 56; SUMS2 = QF + 96; TRG2 = QF + 104
HID = 704
HRDY = HID + 32
CL = 768
OL = 1024
RL = 7168
QL2 = 8192
WL = 8704
OLA = WL + 49152
TRL = OLA + 6144
LDS = TRL + (2048 if opt['trace'] else 0)

A = Asm()
A.raw(open(os.path.join(os.path.dirname(os.path.abspath(__file__)), '..', NAME + '.s.ref')).read().split('; Override launch')[0].rstrip())
A.raw(f"; @launch grid=(256,1,1) block=(768,1,1) lds={LDS}")
A.raw('''; Generated by gen/gen20.py (hand-written generator).  One persistent launch, 256 workgroups x 12 waves, 1 per CU.
;  3 helper waves: LN(x) and an 80-row slice of the q projection; 4th helper: LDS init, XCD-locality check, stats.
;  the group is proven to sit on one XCD, a write-through copy as well, so any placement is correct.  Hand-offs
;  HBM bandwidth is shared out evenly: a streaming wave that is ahead of the chip-wide mean progress (sampled once in
;  s_sleep is used only as back-off inside / ahead of polling loops.''')
A.raw('.amdgcn_target "amdgcn-amd-amdhsa--gfx950"')
A.raw('.text')
A.raw(f'.globl {NAME}_kernel')
A.raw('.p2align 8')
A.raw(f'.type {NAME}_kernel,@function')
A.raw(f'{NAME}_kernel:')

def stamp(i):
    if STAMPS: A(f's_memrealtime s[{80+2*i}:{81+2*i}]')
def write_stamps(base_idx):
    if not STAMPS: return
    A('s_waitcnt lgkmcnt(0)')
    A('s_mov_b64 exec, 1')
    A('s_lshl3_add_u32 s68, s5, s4')
    A('s_lshl_b32 s68, s68, 8')
    A(f's_add_u32 s68, s68, {SP + base_idx*8}')
    A('v_mov_b32 v1, 0')
    for q in range(4):
        for e in range(4): A(f'v_mov_b32 v{4+e}, s{80+4*q+e}')
        A(f'buffer_store_dwordx4 v[4:7], v1, s[24:27], s68 offen offset:{16*q}')
        A('s_nop 2')
def stamp_val(idx, lo, hi, plus_wave=False):
    if not STAMPS: return
    A('s_lshl3_add_u32 s98, s5, s4')
    A('s_lshl_b32 s98, s98, 8')
    A(f's_add_u32 s98, s98, {SP + idx*8}')
    if plus_wave: A('s_lshl3_add_u32 s98, s3, s98')
    A('s_waitcnt lgkmcnt(0)')
    A(f'v_mov_b32 v164, s{lo}\nv_mov_b32 v165, s{hi}\nv_mov_b32 v163, 0')
    A('s_mov_b64 exec, 1')
    A('buffer_store_dwordx2 v[164:165], v163, s[24:27], s98 offen')
    A('s_mov_b64 exec, -1')
    A('s_nop 1')
def stamp_now(idx, plus_wave=False):
    if not STAMPS: return
    A('s_memrealtime s[96:97]')
    stamp_val(idx, 96, 97, plus_wave)

def srd(d, ptr, nbytes):
    A(f's_mov_b32 s{d}, s{ptr}')
    A(f's_mov_b32 s{d+1}, s{ptr+1}')
    A(f's_mov_b32 s{d+2}, {nbytes}')
    A(f's_mov_b32 s{d+3}, 0x20000')
def ws_srds():
    srd(24, 58, WSN)
    A(f's_add_u32 s32, s58, {FAST}')
    A('s_addc_u32 s33, s59, 0')
    A(f's_mov_b32 s34, {WSN}')
    A('s_mov_b32 s35, 0x20000')
    A('s_lshl3_add_u32 s71, s6, s7')
    A('''
s_mul_i32 s5, s79, 5
s_mul_i32 s47, s79, 3
s_add_u32 s47, s47, 15
s_cmp_lt_u32 s7, 5
s_cselect_b32 s5, s5, s47
s_add_u32 s5, s5, s7
''')

ALL = (1 << 64) - 1
def setexec(mask):
    if mask == ALL: A('s_mov_b64 exec, -1'); return
    A(f's_mov_b32 exec_lo, 0x{mask & 0xffffffff:x}')
    A(f's_mov_b32 exec_hi, 0x{mask >> 32:x}')

DPPM = 'row_mask:0xf bank_mask:0xf'
def allreduce8(op, regs):
    for pat in ('quad_perm:[1,0,3,2]', 'quad_perm:[2,3,0,1]', 'row_half_mirror'):
        for r in regs: A(f'{op}_dpp v{r}, v{r}, v{r} {pat} {DPPM}')
def allreduce16(op, regs):
    allreduce8(op, regs)
    for r in regs: A(f'{op}_dpp v{r}, v{r}, v{r} row_mirror {DPPM}')
def swapreduce(sw, op, regs, tmps):
    for r, t in zip(regs, tmps): A(f'v_mov_b32 v{t}, v{r}')
    for r, t in zip(regs, tmps): A(f'{sw} v{r}, v{t}')
    for r, t in zip(regs, tmps): A(f'{op} v{r}, v{r}, v{t}')
S16 = 'v_permlane16_swap_b32'; S32 = 'v_permlane32_swap_b32'
def allreduce_rows(op, regs, tmps):
    swapreduce(S16, op, regs, tmps); swapreduce(S32, op, regs, tmps)
def allreduce64(op, regs, tmps):
    allreduce16(op, regs); allreduce_rows(op, regs, tmps)
def bf16r(d, s):
    A(f'v_cvt_pk_bf16_f32 v{d}, v{s}, v{s}')
    A(f'v_lshlrev_b32 v{d}, 16, v{d}')
def mktag():
    A('''
s_waitcnt lgkmcnt(0)
s_mul_i32 s30, s28, 0x2c9277b5
s_add_u32 s30, s30, 0xac564b05
s_mul_i32 s31, s29, 0x0019660d
s_add_u32 s31, s31, 0x3c6ef35f
''')
lbl = [0]
def newlabel(p):
    lbl[0] += 1
    return f'L_{p}_{lbl[0]}'

def tagcheck(pairs):
    A(f'v_cmp_ne_u64 vcc, s[30:31], v[{pairs[0]}:{pairs[0]+1}]')
    tm = [(20, 21), (22, 23)]
    pend = []
    for i, p in enumerate(pairs[1:]):
        t = tm[i % 2]
        if len(pend) == 2:
            q = pend.pop(0); A(f's_or_b64 vcc, vcc, s[{q[0]}:{q[1]}]')
        A(f'v_cmp_ne_u64 s[{t[0]}:{t[1]}], s[30:31], v[{p}:{p+1}]')
        pend.append(t)
    for q in pend: A(f's_or_b64 vcc, vcc, s[{q[0]}:{q[1]}]')

def spin(body, sleep=0, retry=None, entry=None):
    top = newlabel('spin'); done = newlabel('sdone')
    A(f's_mov_b32 s70, {SPIN}')
    if entry: A(f's_branch {entry}')
    A(f'{top}:')
    body()
    A('s_nop 0')
    A(f's_cbranch_vccz {done}')
    if sleep: A(f's_sleep {sleep}')
    if retry: retry()
    A('s_sub_u32 s70, s70, 1')
    A(f's_cbranch_scc0 {top}')
    if opt['trap']:
        A(f's_lshl_b32 s99, s2, 8\ns_or_b32 s99, s99, s3\ns_lshl_b32 s99, s99, 8\ns_or_b32 s99, s99, {lbl[0] & 255}')
        A(f'v_mov_b32 v166, {4 * (lbl[0] % 64)}\nv_mov_b32 v167, s99')
        A('global_store_dword v166, v167, s[56:57]')
    A(f'{done}:')
def spin2(body, sleep=0, retry=None, local_only=False, entry=None):
    A(f's_mov_b32 s16, s32\ns_mov_b32 s17, s33\ns_mov_b32 s18, {WSN}\ns_mov_b32 s19, 0x20000')
    def rt():
        if retry: retry()
        A('s_and_b32 s99, s70, 7')
        if local_only:
            A('s_cmp_eq_u32 s46, 1')
            A('s_cselect_b32 s99, 1, s99')
            A('s_cmp_lg_u32 s99, 0')
        A('s_cselect_b32 s16, s32, s24')
        A('s_cselect_b32 s17, s33, s25')
    spin(body, sleep, rt, entry)

def freepoll(issue, check, nchk, done, bound=None):
    top = newlabel('fp')
    A(f's_mov_b32 s70, {SPIN}')
    A(f'{top}:')
    issue()
    for k in range(nchk):
        check()
        A('s_nop 0')
        A(f's_cbranch_vccz {done}')
    A(f"s_waitcnt vmcnt({bound or opt['frb']})")
    A('s_sub_u32 s70, s70, 1')
    A(f's_cbranch_scc0 {top}')
    if not opt['ool']: A(f's_branch {done}')

def lds_wait_ge(off, n, sleep, dst=4, adr=1):
    A(f'v_mov_b32 v{adr}, 0')
    def body():
        A(f'ds_read_b32 v{dst}, v{adr} offset:{off}')
        A('s_waitcnt lgkmcnt(0)')
        A(f'v_cmp_gt_u32 vcc, {n}, v{dst}')
    spin(body, sleep=sleep)
def get_mode(dst=4, adr=1):
    lds_wait_ge(CNT + 8, 1, 2, dst, adr)
    A(f'v_readfirstlane_b32 s46, v{dst}')
def pad(k):
    if not opt['al']: return
    A('.p2align 7')
    for i in range(opt[f'p{k}']): A('s_endpgm')
def get_pref(sleep, dst=4, adr=1):
    lds_wait_ge(PREF, 1, sleep, dst, adr)
    A(f'v_readfirstlane_b32 s47, v{dst}')

outline = []
def publish(stores):
    def emit(srdn, fl, AA):
        cur = ALL
        for m, line in stores:
            m = ALL if m is None else m
            if m != cur:
                if m == ALL: AA('s_mov_b64 exec, -1')
                else: AA(f's_mov_b32 exec_lo, 0x{m & 0xffffffff:x}\ns_mov_b32 exec_hi, 0x{m >> 32:x}')
                cur = m
            AA(line.replace('@', f's[{srdn}:{srdn+3}]') + fl)
        if cur != ALL: AA('s_mov_b64 exec, -1')
    if not opt['forceslow']: emit(32, '', A)
    slow = newlabel('slow'); back = newlabel('back')
    A('s_cmp_lg_u32 s46, 1')
    A(f's_cbranch_scc1 {slow}')
    A(f'{back}:')
    blk = [f'{slow}:']
    emit(24, ' sc1', lambda t: blk.append(t))
    blk.append('s_nop 1')
    blk.append(f's_branch {back}')
    outline.append('\n'.join(blk))

GST = 3072 * 64
GOFF = [60, 61, 62, 63, 64, 65, 66, 67]
KO = [4, 5, 6, 7, 0, 1, 2, 3] if opt['kord'] else list(range(8))
HA, HB = (16, 0) if opt['vord'] else (0, 16)
assert opt['pro'] == 2
if opt['pro'] == 2:
    A(f"""
{'s_memrealtime s[84:85]' if opt['stst'] else ''}
s_load_dwordx2 s[8:9], s[0:1], 8
v_readfirstlane_b32 s3, v0
s_lshr_b32 s79, s2, 6
s_cmp_gt_u32 s79, 3
s_cbranch_scc1 L_end
s_lshr_b32 s3, s3, 6
s_cmp_gt_u32 s3, 3
s_cbranch_scc1 L_str
{('s_cmp_ge_u32 s2, %d' % opt['cpw'] + chr(10) + 's_cbranch_scc1 L_helper0') if opt['cpw'] else ''}
s_getpc_b64 s[20:21]
L_pc0:
v_lshlrev_b32 v8, 7, v0
v_min_u32 v8, L_codeend-L_pc0-4, v8
global_load_dword v166, v8, s[20:21]
s_branch L_helper0
L_str:
s_and_b32 s4, s2, 7
s_lshr_b32 s6, s2, 7
s_bfe_u32 s7, s2, 0x40003
s_lshl1_add_u32 s6, s4, s6
s_lshl_b32 s6, s6, 10
s_lshl1_add_u32 s{GOFF[KO[0]]}, s7, s6
s_addk_i32 s{GOFF[KO[0]]}, {895 + 1024 * (HB if KO[0] else HA)}
s_mulk_i32 s{GOFF[KO[0]]}, 12288
v_lshlrev_b32 v3, 4, v0
v_lshrrev_b32 v2, 3, v0
v_lshl_add_u32 v1, v2, 8, v3
s_lshl_b32 s10, 3, 27
s_mov_b32 s11, 0x20000
s_waitcnt lgkmcnt(0)
""")
else:
    A("""
s_load_dwordx2 s[8:9], s[0:1], 8
s_lshr_b32 s79, s2, 6
s_cmp_gt_u32 s79, 3
s_cbranch_scc1 L_end
v_readfirstlane_b32 s3, v0
s_and_b32 s4, s2, 7
s_lshl2_add_u32 s6, s4, s79
s_bfe_u32 s7, s2, 0x30003
s_lshr_b32 s73, s3, 6
s_cmp_gt_u32 s73, 7
s_cbranch_scc1 L_helper0
s_lshl_b32 s60, s6, 9
s_add_u32 s60, s60, s7
s_addk_i32 s60, 448
s_mulk_i32 s60, 24576
v_lshlrev_b32 v3, 4, v0
v_lshrrev_b32 v2, 3, v0
v_lshl_add_u32 v1, v2, 8, v3
s_lshl_b32 s10, 3, 27
s_mov_b32 s11, 0x20000
s_waitcnt lgkmcnt(0)
""")
if opt['stst']: A('s_memrealtime s[86:87]')
if opt['kb']: A('s_barrier')
for j in range(3): A(f'buffer_load_dwordx4 v[{16+12*KO[0]+4*j}:{19+12*KO[0]+4*j}], v1, s[8:11], s{GOFF[KO[0]]} offen offset:{128*j} nt')
def prologue2():
    A("""
s_load_dwordx16 s[36:51], s[0:1], 0
s_load_dwordx8 s[52:59], s[0:1], 64
""")
    stamp(0)
    if opt['dbg']: A('s_memrealtime s[80:81]')
A("""
s_branch L_stream0
L_helper0:
""")
prologue2()
CPF = 's_getpc_b64 s[20:21]\nL_pc0:\nv_lshlrev_b32 v8, 7, v0\nv_add_u32 v9, 8192, v8\nv_min_u32 v9, L_codeend-L_pc0-4, v9\nglobal_load_dword v10, v8, s[20:21]\nglobal_load_dword v11, v9, s[20:21]\nv_add_u32 v9, 16384, v8\nv_min_u32 v9, L_codeend-L_pc0-4, v9\nglobal_load_dword v30, v9, s[20:21]\n'
if opt['cps']:
    n = opt['cps']; nw = -(-136 // n)
    CPF = f's_getpc_b64 s[20:21]\nL_pc0:\ns_lshr_b32 s22, s2, 3\n'
    if nw < 32: CPF += f's_mul_i32 s23, s22, {(65536 + nw - 1) // nw}\ns_lshr_b32 s23, s23, 16\ns_mul_i32 s23, s23, {nw}\ns_sub_u32 s22, s22, s23\n'
    CPF += f's_mul_i32 s22, s22, {128 * n}\ns_min_u32 s22, s22, L_codeend-L_pc0-{128 * (n - 1) + 4}\ns_add_u32 s20, s20, s22\ns_addc_u32 s21, s21, 0\n'
    for i in range(n): CPF += f's_load_dword s{80 + i}, s[20:21], {128 * i}\n'
if opt['pro'] == 2: CPF = ''
W3 = f"""
{'' if opt['cps'] else CPF}v_lshlrev_b32 v1, 3, v0
v_mov_b32 v4, 0
v_mov_b32 v5, 0
ds_write_b64 v1, v[4:5] offset:{QF}
s_waitcnt lgkmcnt(0)
s_memrealtime s[62:63]
s_barrier
s_load_dwordx2 s[28:29], s[58:59], {EP}
{CPF if opt['cps'] else ''}s_branch L_ids
"""
QE = f"""
v_lshrrev_b32 v2, 3, v0
v_mul_u32_u24 v2, 12160, v2
v_lshl_add_u32 v2, v0, 4, v2
s_mul_i32 s68, s7, {80*96}
s_lshr_b32 s69, s79, 1
s_mul_i32 s69, s69, {HB - HA - 2}
s_add_u32 s69, s69, s79
s_lshl1_add_u32 s69, s4, s69
s_add_u32 s69, s69, {HA}
s_mul_i32 s69, s69, 3
s_add_u32 s68, s68, s69
s_add_u32 s68, s68, s3
s_lshl_b32 s68, s68, 7
s_lshl_b32 s69, 3, 15
s_mov_b32 s10, {640*6144*2}
s_mov_b32 s11, 0x20000
s_waitcnt lgkmcnt(0)
s_mov_b64 s[8:9], s[42:43]
"""
for r in range(10):
    if r == opt['qb']: QE += 's_barrier\n'
    QE += f'buffer_load_dwordx4 v[{24+4*r}:{27+4*r}], v2, s[8:11], s68 offen nt\n'
    if r < 9: QE += 's_add_u32 s68, s68, s69\n'
QE += 's_branch L_helper\n'
if opt['pro'] == 2: A('s_and_b32 s4, s2, 7\ns_lshl2_add_u32 s6, s4, s79\ns_bfe_u32 s7, s2, 0x30003')
else: A('s_sub_u32 s3, s73, 8')
A('v_and_b32 v0, 63, v0\ns_cmp_lg_u32 s3, 3')
if opt['qe'] == 0: A('s_cbranch_scc1 L_helper' + W3)
elif opt['qe'] == 1: A('s_cbranch_scc1 L_qe' + W3 + 'L_qe:' + QE)
else: A('s_cbranch_scc0 L_w3' + QE + 'L_w3:' + W3)
A('L_stream0:')
prologue2()
if opt['trace']: A('s_memrealtime s[20:21]')
A(f"""
v_and_b32 v0, 63, v0
{'s_sub_u32 s73, s3, 4' if opt['pro'] == 2 else 's_add_u32 s3, s73, 4'}
v_and_b32 v3, 0x70, v3
s_lshl2_add_u32 s6, s4, s79
s_and_b32 s7, s7, 7
""")

QR = 4; KR = 16
def op_addr(late):
    A(f'''
v_min_u32 v12, 47, v0
v_lshrrev_b32 v13, 3, v12
v_lshlrev_b32 v13, 11, v13
v_and_b32 v14, 1, v12
v_lshl_add_u32 v13, v14, 10, v13
v_bfe_u32 v14, v12, 1, 2
v_lshl_add_u32 v13, v14, 8, v13
v_lshlrev_b32 v12, 4, v12
s_lshr_b32 s74, s2, 7
s_lshl2_add_u32 s74, s4, s74
s_mul_i32 s74, s74, 12288
s_bfe_u32 s69, s2, 0x40003
s_lshl4_add_u32 s74, s69, s74
s_add_u32 s74, s74, {OP + late * 12288}
s_mov_b32 s22, 0x55555555
s_mov_b32 s23, 0x55555555
v_mov_b32 v14, s30
v_mov_b32 v15, s31
''')
def pkadd(d, a, b):
    for e in (0, 2): A(f'v_pk_add_f32 v[{d+e}:{d+e+1}], v[{a+e}:{a+e+1}], v[{b+e}:{b+e+1}]')
def op_publish():
    for w in range(0, 8, 2):
        A(f's_waitcnt lgkmcnt({6-w})')
        pkadd(16 + 4*w, 16 + 4*w, 20 + 4*w)
        if w == 2 or w == 6: pkadd(8 + 4*w, 8 + 4*w, 16 + 4*w)
    pkadd(4, 16, 32)
    A('''
v_cvt_pk_bf16_f32 v8, v4, v5
v_cvt_pk_bf16_f32 v9, v6, v7
v_cndmask_b32 v4, v8, v14, s[22:23]
v_cndmask_b32 v5, v9, v15, s[22:23]
v_cndmask_b32 v6, v14, v8, s[22:23]
v_cndmask_b32 v7, v15, v9, s[22:23]
''')
    publish([((1 << 48) - 1, 'buffer_store_dwordx4 v[4:7], v13, @, s74 offen')])
def stream(G, D1, D2, Vpre):
    SC = 168 - G
    VR = KR + 12 * G
    nV1 = min((SC - VR) // 12, G)
    ACC = KR + 12 * (G - 2)
    T = ACC
    ACA = ACC - 24
    QR2 = VR + 36; assert Vpre <= 9
    half = (G + 1) // 2
    st = dict(n=0)
    def vreg(g): return VR + 12 * g if g < nV1 else KR + 12 * (g - nV1)
    CTL = bool(opt['cal'])
    def issue_load(kind, g, j, depth):
        n = st['n']
        if CTL and n >= opt['cfrom']:
            go = newlabel('go')
            A('s_waitcnt lgkmcnt(0)\ns_lshl_b32 s75, s76, 4\ns_sub_u32 s75, s75, s78\ns_and_b32 s75, s75, s72\ns_add_u32 s78, s78, s79')
            if opt['lag2']: A(f"s_waitcnt vmcnt({depth+1})\ns_cmp_gt_i32 s75, {opt['lag2']}\ns_cbranch_scc1 {go}")
            A(f"s_waitcnt vmcnt({depth})\ns_cmp_gt_i32 s75, {opt['lag']}\ns_cbranch_scc1 {go}")
            A(f's_waitcnt vmcnt({depth-1})\ns_cmp_ge_i32 s75, 0\ns_cbranch_scc1 {go}\ns_waitcnt vmcnt({depth-2})')
            if opt['hard']: A(f"s_cmp_ge_i32 s75, {-opt['hard']}\ns_cbranch_scc1 {go}\ns_waitcnt vmcnt({depth-3})")
            A(f'{go}:')
        elif n >= max(depth, opt['Dinit']): A(f's_waitcnt vmcnt({depth-1})')
        r = (KR + 12 * g + 4 * j) if kind == 'K' else vreg(g) + 4 * j
        s = 8 if kind == 'K' else 12
        if opt['meas'] and n in (11, 23, 35, 47): A(f's_memrealtime s[{84 + 2 * (n // 12)}:{85 + 2 * (n // 12)}]')
        if opt['stst'] and n in (3, 6): A(f's_memrealtime s[{88 if n == 3 else 90}:{89 if n == 3 else 91}]')
        if n >= 3: A(f'buffer_load_dwordx4 v[{r}:{r+3}], v1, s[{s}:{s+3}], s{GOFF[g]} offen offset:{128*j} nt')
        if opt['trace'] or (CTL and (opt['cfrom'] - 1 <= n < 47 or n == opt['mst'])): A('s_memrealtime s[76:77]')
        if opt['trace'] and n >= 3:
            A(f's_waitcnt lgkmcnt(0)\ns_sub_u32 s75, s76, s20\ns_lshl_b32 s77, s73, 8\nv_mov_b32 v6, s77\nv_mov_b32 v7, s75\nds_write_b32 v6, v7 offset:{TRL + 4*n}')
        if CTL and n == opt['mst']:
            A(f'''
s_waitcnt lgkmcnt(0)
v_mov_b32 v6, 0
v_mov_b32 v8, s76
v_mov_b32 v9, 1
s_mov_b64 exec, 1
ds_add_u32 v6, v8 offset:{SUMS}
ds_add_u32 v6, v9 offset:{SUMS+4}
s_mov_b64 exec, -1
''')
        if CTL and opt['mst2'] and n == opt['mst2']:
            A(f's_waitcnt lgkmcnt(0)\nv_mov_b32 v6, s76\ns_mov_b64 exec, 1\nds_add_u32 v2, v6 offset:{SUMS2}\nds_add_u32 v2, v11 offset:{SUMS2+4}\ns_mov_b64 exec, -1')
        if CTL and opt['mst2'] and n == opt['p2t']:
            A(f's_mov_b64 exec, 1\nds_add_u32 v2, v11 offset:{TRG2}\ns_mov_b64 exec, -1')
        if CTL and n in (opt['cfrom'] - 1, opt['cfrom'] - 1 + opt['pick2']) + ((opt['c2'] - 1, opt['c2'] + 1) if opt['mst2'] else ()):
            A(f'''
v_mov_b32 v6, 0
ds_read_b64 v[6:7], v6 offset:{ORG}
s_movk_i32 s79, {opt['tau0']}
s_waitcnt lgkmcnt(0)
v_readfirstlane_b32 s78, v6
v_readfirstlane_b32 s72, v7
s_add_u32 s78, s78, {(n - opt['mst']) * opt['tau0']}
''')
        if CTL and n == opt['pftrig']:
            A(f'v_mov_b32 v6, 0\nv_mov_b32 v7, 1\ns_mov_b64 exec, 1\nds_add_u32 v6, v7 offset:{CNT+52}\ns_mov_b64 exec, -1')
        st['n'] += 1
    goff = lambda g: (HB if g >= 4 else HA) * 12582912 + (g & 3) * 2 * GST
    for gi, g in enumerate(KO):
        for j in range(3):
            issue_load('K', g, j, D1)
            if j == 2 and gi + 1 < G:
                A(f's_add_u32 s{GOFF[KO[gi+1]]}, s{GOFF[g]}, {(goff(KO[gi+1]) - goff(g)) & 0xffffffff}')
            if st['n'] == opt['Dinit']: A('s_waitcnt lgkmcnt(0)' + ('' if opt['kb'] else '\ns_barrier'))
            if st['n'] == opt['Dinit'] + 1:
                A(f's_load_dwordx2 s[28:29], s[58:59], {EP}')
                ws_srds(); srd(12, 40, 402653184)
    stamp(1)
    nv = 0; NV = 3 * G
    for n in range(min(Vpre, 3 * nV1)):
        issue_load('V', nv // 3, nv % 3, D2); nv += 1
    stamp(2)
    mktag()
    A('v_and_b32 v2, 3, v0\nv_min_u32 v2, 2, v2\nv_lshlrev_b32 v2, 3, v2')
    def body():
        A(f'ds_read_b32 v{QR}, v2 offset:{QF}')
        A('s_waitcnt lgkmcnt(0)')
        A(f'v_cmp_eq_u32 vcc, 0, v{QR}')
    spin(body, sleep=1)
    stamp(3)
    A(f'''
ds_read_b128 v[{QR}:{QR+3}], v3 offset:{QL}
ds_read_b128 v[{QR+4}:{QR+7}], v3 offset:{QL+128}
ds_read_b128 v[{QR+8}:{QR+11}], v3 offset:{QL+256}
ds_read_b128 v[{QR2}:{QR2+3}], v3 offset:{QL2}
ds_read_b128 v[{QR2+4}:{QR2+7}], v3 offset:{QL2+128}
ds_read_b128 v[{QR2+8}:{QR2+11}], v3 offset:{QL2+256}
''')
    for g in range(G): A(f'v_mov_b32 v{SC+g}, 0')
    A(f's_waitcnt vmcnt({nv}) lgkmcnt(0)')
    for gs in (range(half), range(half, G)):
        for i in range(12):
            for g in gs:
                A(f'v_dot2c_f32_bf16 v{SC+g}, v{KR+12*g+i}, v{(QR if g < 4 else QR2)+i}')
    allreduce8('v_add_f32', [SC + g for g in range(G)])
    A(f's_mov_b32 s68, {f32(192 ** -0.5)}')
    A('v_mov_b32 v2, 0')
    for g in range(G): A(f'v_cvt_pk_bf16_f32 v{SC+g}, v2, v{SC+g}')
    for g in range(G): A(f'v_mul_f32 v{SC+g}, s68, v{SC+g}')
    for g in range(G): A(f'v_cvt_pk_bf16_f32 v{SC+g}, v2, v{SC+g}')
    for h in range(2):
        A(f'v_max_f32 v{4+2*h}, v{SC+4*h}, v{SC+4*h+1}')
    for h in range(2):
        A(f'v_max3_f32 v{4+2*h}, v{4+2*h}, v{SC+4*h+2}, v{SC+4*h+3}')
    for h in range(2): A(f'v_max_f32_dpp v{4+2*h}, v{4+2*h}, v{4+2*h} row_ror:8 {DPPM}')
    allreduce_rows('v_max_f32', [4, 6], [T, T + 1])
    A(f's_mov_b32 s68, {f32(LOG2E)}')
    for g in range(G): A(f'v_sub_f32 v{SC+g}, v{SC+g}, v{4 if g < 4 else 6}')
    for g in range(G): A(f'v_mul_f32 v{SC+g}, s68, v{SC+g}')
    for g in range(G): A(f'v_exp_f32 v{SC+g}, v{SC+g}')
    for h in range(2): A(f'v_add_f32 v{5+2*h}, v{SC+4*h}, v{SC+4*h+1}')
    for k in (2, 3):
        for h in range(2): A(f'v_add_f32 v{5+2*h}, v{5+2*h}, v{SC+4*h+k}')
    for h in range(2): A(f'v_add_f32_dpp v{5+2*h}, v{5+2*h}, v{5+2*h} row_ror:8 {DPPM}')
    allreduce_rows('v_add_f32', [5, 7], [T, T + 1])
    A(f'''
s_lshl_b32 s69, s73, 4
v_mov_b32 v{T}, s69
ds_write_b128 v{T}, v[4:7] offset:{SL}
''')
    stamp(4)
    for g in range(G): A(f'v_cvt_pk_bf16_f32 v{SC+g}, v{SC+g}, v2')
    for i in range(48): A(f'v_mov_b32 v{ACA+i}, 0')
    A('v_mov_b32 v5, v6')
    A('''
v_and_b32 v8, 7, v0
v_lshlrev_b32 v8, 5, v8
v_lshrrev_b32 v9, 4, v0
v_lshl_add_u32 v8, v9, 3, v8
s_mul_i32 s69, s73, 768
v_add_u32 v8, s69, v8
v_mov_b32 v11, 1
''')
    def scale_factor():
        def body():
            A(f'ds_read_b128 v[12:15], v3 offset:{SL}')
            A('s_waitcnt lgkmcnt(0)')
            A('v_cmp_eq_u32 vcc, 0, v15')
        spin(body, sleep=1)
        allreduce8('v_max_f32', [12, 14])
        A('v_sub_f32 v4, v4, v12\nv_sub_f32 v5, v5, v14\nv_mul_f32 v4, s68, v4\nv_mul_f32 v5, s68, v5\nv_exp_f32 v4, v4\nv_exp_f32 v5, v5')
        get_mode(dst=13, adr=2)
        op_addr(2)
    def reduce_j(j, ac, f, ol):
        a = ac + 8 * j
        for e in range(4): A(f'{S32} v{a+e}, v{a+e+4}')
        for e in range(4): A(f'v_add_f32 v{a+e}, v{a+e}, v{a+e+4}')
        for e in range(2): A(f'{S16} v{a+e}, v{a+e+2}')
        for e in range(2): A(f'v_add_f32 v{a+e}, v{a+e}, v{a+e+2}')
        for e in range(2): A(f'v_add_f32_dpp v{a+e}, v{a+e}, v{a+e} row_ror:8 {DPPM}')
        for e in range(2): A(f'v_mul_f32 v{a+e}, v{f}, v{a+e}')
        A(f'ds_write_b64 v8, v[{a}:{a+1}] offset:{ol+256*j}')
    def pv(idx):
        g, j = divmod(idx, 3)
        r = vreg(g) + 4 * j
        if j == 0: A(f'v_lshlrev_b32 v10, 16, v{SC+g}')
        ac = ACA if g < 4 else ACC
        if idx == 9: scale_factor()
        for e in range(4):
            A(f'v_dot2c_f32_bf16 v{ac+8*j+2*e}, v{r+e}, v{SC+g}')
            A(f'v_dot2c_f32_bf16 v{ac+8*j+2*e+1}, v{r+e}, v10')
        if g & 3 == 3: reduce_j(j, ac, 4 if g < 4 else 5, OLA if g < 4 else OL)
        if idx == 11: A(f's_mov_b64 exec, 1\nds_add_u32 v2, v11 offset:{CNT+12}\ns_mov_b64 exec, -1')
    done_idx = -1; pv_next = 0
    while nv < NV:
        issue_load('V', nv // 3, nv % 3, D2)
        done_idx = nv - D2 - ((2 if opt['lag2'] else 1) if CTL else 0)
        nv += 1
        if nv == NV - opt['wtrig']:
            A(f's_mov_b64 exec, 1\nds_add_u32 v2, v11 offset:{CNT+4}\ns_mov_b64 exec, -1')
        cnt = 0
        while pv_next <= done_idx and cnt < 2:
            pv(pv_next); pv_next += 1; cnt += 1
    while pv_next < NV:
        if pv_next > done_idx:
            A(f's_waitcnt vmcnt({NV - 1 - pv_next})')
            done_idx = pv_next
        pv(pv_next); pv_next += 1
    stamp(5)

stream(8, D1, D2, opt['Vpre'])
A(f'''
s_mov_b64 exec, 1
ds_add_rtn_u32 v10, v2, v11 offset:{CNT}
s_mov_b64 exec, -1
''')
for w in range(8): A(f'ds_read_b128 v[{16+4*w}:{19+4*w}], v12 offset:{OL+768*w}')
A('''
s_waitcnt lgkmcnt(8)
v_readfirstlane_b32 s68, v10
s_cmp_lg_u32 s68, 7
s_cbranch_scc1 L_nopub
''')
op_publish()
A(f'ds_write_b32 v2, v11 offset:{CNT+28}')
stamp_now(16)
A('L_nopub:')
if opt['stst'] or opt['meas']:
    A(f'''
s_waitcnt lgkmcnt(0)
v_mov_b32 v16, s84
v_mov_b32 v17, s86
v_mov_b32 v18, s88
v_mov_b32 v19, s90
s_lshl3_add_u32 s68, s2, s73
s_lshl_b32 s68, s68, 4
s_add_u32 s68, s68, {0x380000}
s_mov_b64 exec, 1
buffer_store_dwordx4 v[16:19], v2, s[24:27], s68 offen
s_mov_b64 exec, -1
s_nop 2
''')
if opt['sprio']: A('s_setprio 0')
A('s_waitcnt lgkmcnt(0)')
if opt['trace']:
    A(f'''
s_lshl_b32 s68, s73, 8
v_lshl_add_u32 v16, v0, 2, s68
ds_read_b32 v17, v16 offset:{TRL}
s_lshl_b32 s68, s2, 11
s_add_u32 s68, s68, {0x380000}
s_waitcnt lgkmcnt(0)
buffer_store_dword v17, v16, s[24:27], s68 offen
s_nop 2
''')
stamp(6)
A('''
s_cmp_lt_u32 s5, 20
s_cbranch_scc1 L_notf1
s_cmp_lt_u32 s5, 30
s_cbranch_scc1 L_f1
s_branch L_spare
L_notf1:
s_cmp_gt_u32 s5, 11
s_cbranch_scc1 L_stream_exit
s_cmp_gt_u32 s3, 6
s_cbranch_scc1 L_f2
s_branch L_dry
L_stream_exit:
''')
if STAMPS:
    A(f"s_cmp_eq_u32 s3, {opt['swave']}")
    A('s_cbranch_scc0 L_end')
    stamp(7)
    write_stamps(8)
A('s_endpgm')

A('L_helper:')
A('s_setprio 3')
A('''
v_lshlrev_b32 v1, 2, v0
v_lshrrev_b32 v2, 3, v0
s_mul_i32 s68, s7, 80
v_add_u32 v3, s68, v2
v_lshlrev_b32 v3, 1, v3
v_mul_u32_u24 v2, 12288, v2
v_and_b32 v7, 7, v0
v_lshl_add_u32 v2, v7, 4, v2
s_mul_i32 s68, s68, 12288
s_mul_i32 s69, s6, 384
s_add_u32 s68, s68, s69
s_lshl_b32 s69, s3, 7
s_add_u32 s68, s68, s69
''')
XS = 64; XU = 70; XR = 8; WQ = 24; QA = 80
A('s_waitcnt lgkmcnt(0)')
if opt['xs'] == 1:
    for i in range(10): A(f's_load_dword s{12+i}, s[36:37], {128*i}')
if not (opt['qe'] and opt['qb'] < 10): A('s_barrier')
srd(8, 42, 640 * 6144 * 2)
if opt['xs']:
    for r in range(0 if opt['qe'] else 10):
        A(f'buffer_load_dwordx4 v[{WQ+4*r}:{WQ+4*r+3}], v2, s[8:11], s68 offen nt')
        if r < 9: A('s_add_u32 s68, s68, 98304')
    if opt['xs'] == 1: A('s_waitcnt lgkmcnt(0)')
    for i in range(5): A(f'global_load_dword v{XS+i}, v1, s[36:37] offset:{256*i}' + (' nt' if opt['xnt'] else ''))
    for r in range(10): A(f'global_load_ushort v{XR+r}, v3, s[36:37] offset:{16*r}' + (' nt' if opt['xnt'] else ''))
else:
    for i in range(5): A(f'global_load_dword v{XS+i}, v1, s[36:37] offset:{256*i}' + (' nt' if opt['xnt'] else ''))
    for r in range(10): A(f'global_load_ushort v{XR+r}, v3, s[36:37] offset:{16*r}' + (' nt' if opt['xnt'] else ''))
    for r in range(10):
        A(f'buffer_load_dwordx4 v[{WQ+4*r}:{WQ+4*r+3}], v2, s[8:11], s68 offen nt')
        if r < 9: A('s_add_u32 s68, s68, 98304')
A(f's_load_dwordx2 s[28:29], s[58:59], {EP}')
A('s_mov_b32 s69, 0xffff0000')
ws_srds()
if opt['qpre']:
    A(f'''
v_lshlrev_b32 v91, 7, v0
s_lshl_b32 s64, s71, 11
s_lshl_b32 s65, s3, 9
s_add_u32 s64, s64, s65
s_mov_b64 exec, 15
buffer_load_dword v92, v91, s[32:35], s64 offen offset:{QP} nt
s_mov_b64 exec, -1
''')
mktag()
A(f"s_waitcnt vmcnt({(10 if opt['xs'] else 20) + (1 if opt['qpre'] else 0)})")
for i in range(5):
    A(f'v_lshlrev_b32 v{XU+2*i}, 16, v{XS+i}')
    A(f'v_and_b32 v{XU+1+2*i}, s69, v{XS+i}')
A(f'''
v_add_f32 v4, v{XU}, v{XU+1}
v_add_f32 v5, v{XU+2}, v{XU+3}
v_add_f32 v6, v{XU+4}, v{XU+5}
v_add_f32 v7, v{XU+6}, v{XU+7}
v_add_f32 v4, v4, v5
v_add_f32 v6, v6, v7
v_add_f32 v5, v{XU+8}, v{XU+9}
v_add_f32 v4, v4, v6
v_add_f32 v4, v4, v5
''')
allreduce64('v_add_f32', [4], [5])
A(f'v_mul_f32 v4, {f32(1.0/640)}, v4')
for i in range(10): A(f'v_sub_f32 v{XU+i}, v{XU+i}, v4')
A(f'v_mul_f32 v5, v{XU}, v{XU}')
for i in range(1, 10): A(f'v_fmac_f32 v5, v{XU+i}, v{XU+i}')
allreduce64('v_add_f32', [5], [6])
A(f'v_mul_f32 v5, {f32(1.0/640)}, v5')
bf16r(4, 4); bf16r(5, 5)
A(f'v_add_f32 v5, {f32(1e-5)}, v5')
bf16r(5, 5)
A('v_sqrt_f32 v5, v5')
bf16r(5, 5)
A('v_rcp_f32 v5, v5')
A('v_mov_b32 v6, 0')
A(f"s_waitcnt vmcnt({0 if opt['xs'] else 10})")
if opt['qpre'] & 2: A(f's_mov_b64 exec, 15\nbuffer_load_dword v92, v91, s[32:35], s64 offen offset:{QP} sc1\ns_mov_b64 exec, -1')
for r in range(10): A(f'v_lshlrev_b32 v{XR+r}, 16, v{XR+r}')
for r in range(10): A(f'v_sub_f32 v{XR+r}, v{XR+r}, v4')
for r in range(10): A(f'v_cvt_pk_bf16_f32 v{XR+r}, v6, v{XR+r}')
for r in range(10): A(f'v_mul_f32 v{XR+r}, v{XR+r}, v5')
for r in range(10):
    A(f'v_cvt_pk_bf16_f32 v{XU+r}, v6, v{XR+r}')
    A(f'v_cvt_pk_bf16_f32 v{XR+r}, v{XR+r}, v6')
for e in range(8): A(f'v_mov_b32 v{QA+e}, 0')
A('''
v_and_b32 v90, 7, v0
v_lshrrev_b32 v6, 4, v0
v_lshl_add_u32 v90, v90, 2, v6
v_lshlrev_b32 v90, 4, v90
s_lshl_b32 s64, s71, 11
s_lshl_b32 s69, s3, 9
s_add_u32 s64, s64, s69
''')
for r in range(10):
    if not opt['xs']: A(f's_waitcnt vmcnt({9-r})')
    for e in range(4):
        A(f'v_dot2c_f32_bf16 v{QA+2*e}, v{WQ+4*r+e}, v{XR+r}')
        A(f'v_dot2c_f32_bf16 v{QA+2*e+1}, v{WQ+4*r+e}, v{XU+r}')
if STAMPS: A('s_lshr_b32 s82, s2, 3\ns_add_u32 s82, s80, s82\ns_addc_u32 s83, s81, 0')
for e in range(4): A(f'{S32} v{QA+e}, v{QA+e+4}')
for e in range(4): A(f'v_add_f32 v{QA+e}, v{QA+e}, v{QA+e+4}')
for e in range(2): A(f'{S16} v{QA+e}, v{QA+e+2}')
for e in range(2): A(f'v_add_f32 v{QA+e}, v{QA+e}, v{QA+e+2}')
for e in range(2): A(f'v_add_f32_dpp v{QA+e}, v{QA+e}, v{QA+e} row_ror:8 {DPPM}')
A(f'v_mov_b32 v{QA+2}, s30\nv_mov_b32 v{QA+3}, s31')
QM = [0x00ff00ff00ff00ff, 0x000f000f000f000f, 0x0003000300030003][opt['qh']]
if not opt['forceslow']:
    setexec(QM)
    A(f'buffer_store_dwordx4 v[{QA}:{QA+3}], v90, s[32:35], s64 offen offset:{QP}')
    setexec(ALL)
A(f'''
v_and_b32 v3, {[31, 15, 7][opt['qh']]}, v0
v_lshrrev_b32 v2, 5, v0
v_lshlrev_b32 v2, 11, v2
v_lshl_add_u32 v2, v3, 4, v2
s_lshl_b32 s68, s6, 14
s_add_u32 s60, s68, s69
s_add_u32 s61, s60, 4096
s_add_u32 s62, s60, 8192
s_add_u32 s63, s60, 12288
v_lshlrev_b32 v3, 2, v3
s_lshl_b32 s69, s3, 7
v_add_u32 v3, s69, v3
v_mov_b32 v1, 0
s_mov_b32 s65, 0
''')
def q_lazy():
    skip = newlabel('qlazy')
    A(f'''
ds_read_b32 v4, v1 offset:{CNT+8}
s_waitcnt lgkmcnt(0)
v_readfirstlane_b32 s46, v4
s_sub_u32 s68, s46, s65
s_cmp_lg_u32 s68, 2
s_cbranch_scc1 {skip}
''')
    setexec(QM)
    A(f'buffer_store_dwordx4 v[{QA}:{QA+3}], v90, s[24:27], s64 offen offset:{QP} sc1')
    setexec(ALL)
    A(f's_mov_b32 s65, 1\n{skip}:')
def body():
    for n in range(4):
        A(f'buffer_load_dwordx4 v[{8+4*n}:{11+4*n}], v2, s[16:19], s{60+n} offen offset:{QP} sc1' + ('' if opt['qpre'] & 4 else ' nt'))
    A('s_waitcnt vmcnt(0)')
    tagcheck([10, 14, 18, 22])
A('''
s_add_u32 s68, s3, 5
s_cmp_lg_u32 s68, s7
s_cbranch_scc1 L_qwait
''')
spin2(body, sleep=opt['sleep'], retry=q_lazy)
stamp(2)
A(f'''
v_add_f32 v8, v8, v12
v_add_f32 v9, v9, v13
v_add_f32 v16, v16, v20
v_add_f32 v17, v17, v21
v_add_f32 v8, v8, v16
v_add_f32 v9, v9, v17
''')
swapreduce(S32, 'v_add_f32', [8, 9], [10, 11])
A(f'''
v_cvt_pk_bf16_f32 v8, v8, v9
s_lshl_b32 s66, s6, 14
s_lshl_b32 s68, s3, 11
s_add_u32 s66, s66, s68
v_mov_b32_dpp v9, v8 quad_perm:[1,0,3,2] {DPPM}
v_mov_b32 v10, s30
v_mov_b32 v11, s31
v_lshlrev_b32 v2, 3, v0
''')
get_mode()
publish([(0x55555555, f'buffer_store_dwordx4 v[8:11], v2, @, s66 offen offset:{QP + 1536}')])
A(f'''
s_branch L_qget
L_qwait:
s_sleep {opt['q2d']}
L_qget:
s_lshr_b32 s66, s2, 7
s_lshl2_add_u32 s66, s4, s66
s_lshl_b32 s66, s66, 14
s_lshl_b32 s68, s3, 11
s_add_u32 s66, s66, s68
v_and_b32 v2, 15, v0
v_bfe_u32 v5, v0, 4, 1
v_lshlrev_b32 v3, 3, v2
v_add_u32 v3, s69, v3
v_lshl_add_u32 v3, v5, 13, v3
v_lshlrev_b32 v2, 4, v2
v_lshl_add_u32 v2, v5, 15, v2
''')
assert QL2 - QL == 1 << 13
def body2():
    A(f'buffer_load_dwordx4 v[12:15], v2, s[16:19], s66 offen offset:{QP + 1536} sc1 nt')
    A('s_waitcnt vmcnt(0)')
    tagcheck([14])
spin2(body2, sleep=opt['q2s'], retry=q_lazy)
A(f'ds_write_b64 v3, v[12:13] offset:{QL}')
A(f'''
s_lshl_b32 s69, s3, 3
v_mov_b32 v4, s69
v_mov_b32 v6, 1
s_waitcnt lgkmcnt(0)
ds_write_b32 v4, v6 offset:{QF}
''')
get_mode()
q_lazy()
A('s_branch L_stats')
pad(1)
A('L_ids:')
A(f'''
s_setprio 3
s_getreg_b32 s64, hwreg(HW_REG_XCC_ID)
''')
ws_srds()
mktag()
A(f'''
s_and_b32 s64, s64, 15
v_mov_b32 v4, s30
v_mov_b32 v5, s31
v_mov_b32 v6, s64
v_mov_b32 v7, s64
s_lshl_b32 s68, s4, 9
s_add_u32 s68, s68, {ID}
s_lshr_b32 s65, s2, 3
s_lshl_b32 s69, s65, 4
v_mov_b32 v1, s69
s_mov_b64 exec, 1
buffer_store_dwordx4 v[4:7], v1, s[32:35], s68 offen
s_mov_b64 exec, -1
s_cmp_lg_u32 s65, {opt['lead']}
s_cbranch_scc1 L_noinit
v_lshlrev_b32 v12, 8, v0
s_lshl_b32 s69, s4, 15
s_add_u32 s69, s69, {PB}
''')
m = sum(1 << (k * 9 & 31) for k in range(opt['shots']))
setexec(m | m << 32)
A('buffer_store_dword v4, v12, s[24:27], s69 offen sc1\ns_mov_b64 exec, -1')
A(f'''
L_noinit:
v_and_b32 v1, 31, v0
v_lshlrev_b32 v1, 4, v1
s_mov_b32 s70, {opt['idtries']}
s_mov_b32 s46, 2
L_idpoll:
s_sleep {opt['idsleep']}
buffer_load_dwordx4 v[8:11], v1, s[32:35], s68 offen sc1{' nt' if opt['idnt'] else ''}
s_waitcnt vmcnt(0)
v_cmp_ne_u64 vcc, s[30:31], v[8:9]
s_nop 0
s_cbranch_vccz L_iddone
s_sub_u32 s70, s70, 1
s_cbranch_scc0 L_idpoll
s_branch L_idset
L_iddone:
v_cmp_ne_u32 vcc, s64, v10
s_nop 0
s_cbranch_vccnz L_idset
s_mov_b32 s46, {2 if opt['forceslow'] else 1}
L_idset:
v_mov_b32 v1, 0
v_mov_b32 v4, s46
ds_write_b32 v1, v4 offset:{CNT+8}
''')
A(f'''
s_cmp_lg_u32 s65, {opt['lead']}
s_cbranch_scc1 L_pf
s_lshl_b32 s69, s4, 15
s_add_u32 s69, s69, {PB}
s_add_u32 s22, s58, s69
s_addc_u32 s23, s59, 0
s_waitcnt lgkmcnt(0)
s_mov_b32 s8, -1
s_mov_b32 s9, -1
s_memtime s[12:13]
''')
for k in range(2 * opt['shots']):
    c = (k ^ (k >> 1)) & 1
    i = (k >> 1) * 9 & 31
    a, b = (12, 14) if k % 2 == 0 else (14, 12)
    A('s_waitcnt lgkmcnt(0)')
    A(f's_load_dword s10, s[22:23], {c * 8192 + i * 256}')
    A('s_waitcnt lgkmcnt(0)')
    A(f's_memtime s[{b}:{b+1}]')
    A('s_waitcnt lgkmcnt(0)')
    A(f's_sub_u32 s11, s{b}, s{a}')
    A(f's_min_u32 s{8+c}, s{8+c}, s11')
A(f'''
s_cmp_gt_u32 s8, s9
s_cselect_b32 s21, 1, 0
v_mov_b32 v4, s21
v_mov_b32 v5, s62
v_mov_b32 v6, s30
v_mov_b32 v7, s31
s_lshl_b32 s69, s4, 4
s_add_u32 s69, s69, {PF}
s_mov_b64 exec, 1
buffer_store_dwordx4 v[4:7], v1, s[24:27], s69 offen sc1
s_mov_b64 exec, -1
L_pf:
''')
RE = ['s_mov_b32 s66, s68\ns_mov_b32 s65, -1',
      f"s_add_u32 s68, s68, {16 * opt['e2'] - (opt['mst2'] - opt['mst']) * opt['tau0']}\ns_sub_u32 s69, s68, s66\ns_and_b32 s69, s69, s65\ns_cmp_lt_i32 s69, 0\ns_cbranch_scc1 L_nostat"]
def calibrate(k, SUMS, TRG, CAL, tries, out):
    A(f"s_cmp_lg_u32 s7, {opt['samp']}\ns_cbranch_scc1 L_nosample{k}\nv_mov_b32 v1, 0")
    def body():
        A(f'ds_read_b64 v[4:5], v1 offset:{SUMS}')
        A('s_waitcnt lgkmcnt(0)')
        A('v_cmp_gt_u32 vcc, 8, v5')
    spin(body, sleep=2)
    A(f'''
v_mov_b32 v5, s31
v_lshlrev_b32 v6, 9, v0
s_lshl_b32 s68, s6, 3
s_add_u32 s68, s68, {CAL}
s_mov_b64 exec, {(2 << tries) - 1}
buffer_store_dwordx2 v[4:5], v6, s[24:27], s68 offen sc1
s_mov_b64 exec, -1
L_nosample{k}:
''')
    lds_wait_ge(TRG, 8, 4, dst=12)
    A(f'''
s_add_u32 s60, s58, {CAL}
s_addc_u32 s61, s59, 0
s_mov_b32 s70, {tries}
L_calpoll{k}:
s_lshl_b32 s96, s62, 8
s_sub_u32 s96, 0, s96
s_mov_b32 s97, 0
''')
    for h in range(2):
        A(f's_load_dwordx16 s[8:23], s[60:61], {128*h}\ns_load_dwordx16 s[80:95], s[60:61], {128*h+64}\ns_waitcnt lgkmcnt(0)')
        for b in (8, 80):
            for i in range(8):
                A(f's_add_u32 s96, s96, s{b+2*i}\ns_cmp_lg_u32 s{b+2*i+1}, s31\ns_addc_u32 s97, s97, 0')
    A(f'''
s_cmp_eq_u32 s97, 0
s_cbranch_scc1 L_calok{k}
s_add_u32 s60, s60, 512
s_addc_u32 s61, s61, 0
s_sub_u32 s70, s70, 1
s_cbranch_scc1 {out}
s_sleep {opt['calsleep']}
s_branch L_calpoll{k}
L_calok{k}:
s_ashr_i32 s96, s96, 4
s_mov_b32 s68, {16 * opt['dC']}
s_cmp_lt_u32 s5, 30
s_cselect_b32 s68, {16 * opt['dB']}, s68
s_cmp_lt_u32 s5, 20
s_cselect_b32 s68, {16 * opt['dA']}, s68
s_lshl4_add_u32 s68, s62, s68
s_add_u32 s68, s68, s96
{RE[k]}
v_mov_b32 v12, s68
v_mov_b32 v13, -1
ds_write_b64 v1, v[12:13] offset:{ORG}
''')

A('s_mov_b32 s65, 0')
if opt['cal']: calibrate(0, SUMS, CNT + 52, CAL, opt['caltries'], 'L_stats')

A('L_stats:')
A('v_and_b32 v1, 7, v0\nv_lshlrev_b32 v1, 4, v1')
def body():
    A(f'ds_read_b128 v[4:7], v1 offset:{SL}')
    A('s_waitcnt lgkmcnt(0)')
    A('v_cmp_eq_u32 vcc, 0, v7')
spin(body, sleep=4)
A('s_cmp_lg_u32 s3, 3')
A('s_cbranch_scc1 L_nostat')
def combine_stats(red):
    A(f's_mov_b32 s68, {f32(LOG2E)}')
    A('v_mov_b32 v2, v4')
    red('v_max_f32', [2])
    A('v_sub_f32 v4, v4, v2\nv_mul_f32 v4, s68, v4\nv_exp_f32 v4, v4\nv_mul_f32 v3, v4, v5')
    red('v_add_f32', [3])
A('''
v_and_b32 v12, 8, v0
v_cmp_ne_u32 vcc, 0, v12
v_lshlrev_b32 v12, 6, v12
v_cndmask_b32 v4, v4, v6, vcc
v_cndmask_b32 v5, v5, v7, vcc
''')
combine_stats(allreduce8)
A(f'''
s_lshr_b32 s68, s2, 7
s_lshl2_add_u32 s68, s4, s68
s_bfe_u32 s69, s2, 0x40003
s_lshl4_add_u32 s68, s68, s69
s_lshl_b32 s68, s68, 4
s_add_u32 s68, s68, {ST}
v_mov_b32 v4, s30
v_mov_b32 v5, s31
''')
publish([(0x101, 'buffer_store_dwordx4 v[2:5], v12, @, s68 offen')])
A(f's_mov_b32 s68, {PF}')
def body():
    A('buffer_load_dwordx4 v[8:11], v1, s[24:27], s68 offen sc1')
    A('s_waitcnt vmcnt(0)')
    tagcheck([10])
spin(body, sleep=8)
A('''
v_cmp_ne_u32 vcc, 0, v8
s_nop 0
s_and_b32 s67, vcc_lo, 0xff
s_bitset1_b32 s67, 8
v_mov_b32 v4, s67
v_mov_b32 v1, 0
''')
if opt['dbg']:
    A('v_subrev_u32 v9, s62, v9')
    allreduce8('v_min_i32', [9])
    A(f'v_add_u32 v9, s62, v9\nds_write_b32 v1, v9 offset:{CNT+36}')
A(f'ds_write_b32 v1, v4 offset:{PREF}')
if opt['cal'] and opt['mst2']: calibrate(1, SUMS2, TRG2, CAL + 2048, opt['tries2'], 'L_nostat')
A('L_nostat:')
A(f"s_cmp_lg_u32 s3, {5 if opt['abl'] & 2 else 2}\ns_cbranch_scc1 L_noa")
op_addr(0)
lds_wait_ge(CNT + 12, 8, 4)
if opt['apub']: lds_wait_ge(CNT + 4, opt['apub'], 2)
for w in range(8): A(f'ds_read_b128 v[{16+4*w}:{19+4*w}], v12 offset:{OLA+768*w}')
op_publish()
A('L_noa:')
A('s_cmp_lt_u32 s5, 20\ns_cbranch_scc0 L_helper_exit')
BW = 64
CF = 56
def tr_addr(dst, tmp):
    A(f'''
v_lshrrev_b32 v{dst}, 4, v0
v_lshlrev_b32 v{dst}, 10, v{dst}
v_bfe_u32 v{tmp}, v0, 2, 2
v_lshl_add_u32 v{dst}, v{tmp}, 7, v{dst}
v_and_b32 v{tmp}, 3, v0
v_lshl_add_u32 v{dst}, v{tmp}, 3, v{dst}
''')
A(f'''
s_cmp_ge_u32 s5, 10
s_cselect_b32 s76, 1, 0
s_mul_i32 s77, s76, 10
s_sub_u32 s77, s5, s77
s_lshr_b32 s78, s3, 1
v_and_b32 v2, 48, v0
s_lshl_b32 s68, s78, 6
v_add_u32 v22, s68, v2
v_lshlrev_b32 v60, 4, v0
s_lshl1_add_u32 s73, s4, s78
s_lshl1_add_u32 s73, s73, s76
s_lshl1_add_u32 s73, s73, s3
s_lshl_b32 s68, s78, 1
s_sub_u32 s73, s73, s68
s_mul_i32 s73, s73, 6144
s_add_u32 s73, s73, {OP}
s_add_u32 s74, s73, 4096
v_lshlrev_b32 v62, 2, v0
s_lshl_b32 s68, s3, 8
v_add_u32 v61, s68, v62
v_lshrrev_b32 v2, 5, v0
v_lshlrev_b32 v2, 11, v2
v_bfe_u32 v3, v0, 2, 3
v_lshl_add_u32 v2, v3, 4, v2
v_and_b32 v3, 1, v0
v_lshl_add_u32 v63, v3, 13, v2
s_lshr_b32 s75, s77, 1
s_lshl_b32 s75, s75, 14
s_and_b32 s68, s77, 1
s_lshl_b32 s68, s68, 12
s_add_u32 s75, s75, s68
s_lshl1_add_u32 s68, s4, s76
s_lshl_b32 s68, s68, 7
s_add_u32 s75, s75, s68
s_add_u32 s75, s75, {YP}
s_mov_b32 s8, 0x33333333
s_mov_b32 s9, 0x33333333
v_mov_b32 v50, s30
v_mov_b32 v51, s31
''')
tr_addr(24, 25)
A('s_mul_i32 s69, s3, 12288\nv_add_u32 v24, s69, v24')
A(f'''
s_cmp_lg_u32 s3, 0
s_cbranch_scc1 L_noc
s_lshl2_add_u32 s72, s4, s76
s_lshl_b32 s72, s72, 8
s_add_u32 s72, s72, {ST}
v_and_b32 v1, 15, v0
v_lshlrev_b32 v1, 4, v1
v_and_b32 v2, 16, v0
v_lshl_add_u32 v1, v2, 5, v1
''')
def body():
    A(f"s_sleep {opt['stsleep']}")
    A('buffer_load_dwordx4 v[4:7], v1, s[16:19], s72 offen sc1' + (' nt' if opt['idnt'] else ''))
    A('s_waitcnt vmcnt(0)')
    tagcheck([6])
spin2(body, local_only=True)
stamp(4)
combine_stats(allreduce16)
A(f'''
v_rcp_f32 v3, v3
v_and_b32 v1, 0x7c, v62
v_mul_f32 v4, v4, v3
v_mov_b32 v2, 0
v_mov_b32 v3, 1
ds_write_b32 v1, v4 offset:{CL}
ds_write_b32 v2, v3 offset:{CNT+24}
L_noc:
''')
lds_wait_ge(CNT + 24, 1, 2)
A(f'ds_read_b128 v[{CF}:{CF+3}], v22 offset:{CL}')
def wo_tr(ts):
    for t in ts:
        for u in range(4):
            r = BW + 4 * (4 * t + u)
            A(f'ds_read_b64_tr_b16 v[{r}:{r+1}], v24 offset:{WL + 4096*t + 32*u}')
            A(f'ds_read_b64_tr_b16 v[{r+2}:{r+3}], v24 offset:{WL + 4096*t + 32*u + 512}')
AO = 144
def op_loads(srdn, fl=''):
    stamp(2)
    for n in range(6):
        A(f'buffer_load_dwordx4 v[{AO+4*n}:{AO+4*n+3}], v60, s[{srdn}:{srdn+3}], s{73 + n // 4} offen offset:{1024*(n%4)} sc1' + fl)
srd(12, 44, 6144 * 640 * 2)
A(f'''
v_lshrrev_b32 v21, 3, v0
v_mul_u32_u24 v21, 1280, v21
v_and_b32 v3, 7, v0
v_lshl_add_u32 v21, v3, 4, v21
s_lshl1_add_u32 s60, s4, s76
s_mul_i32 s68, s78, {HB - HA}
s_add_u32 s60, s60, s68
s_add_u32 s60, s60, {HA}
s_and_b32 s68, s3, 1
s_lshl1_add_u32 s60, s60, s68
s_mul_i32 s60, s60, {96*1280}
s_lshl_b32 s69, s77, 7
s_add_u32 s60, s60, s69
s_mul_i32 s61, s3, 12288
s_add_u32 s61, s61, {WL}
''')
A('v_mov_b32 v23, 1\ns_lshl_b32 s68, s3, 2\nv_mov_b32 v25, s68')
get_pref(4)
lds_wait_ge(CNT + 4, 8, 2)
stamp(3)
A('s_cmp_lg_u32 s78, 0\ns_cbranch_scc1 L_nofirst')
if opt['abl'] & 1:
    for t in range(3):
        for r in (0, 6): A(f'v_mov_b32 v{AO+8*t+r}, s30\nv_mov_b32 v{AO+8*t+r+1}, s31')
elif not opt['atrig']: op_loads(32, ' nt' if opt['ant'] else '')
A('L_nofirst:')
for n in range(12):
    if n >= opt['DWF']: A(f"s_waitcnt vmcnt({opt['DWF']-1})")
    A('s_mov_b32 m0, s61')
    A('buffer_load_dwordx4 v21, s[12:15], s60 offen nt lds')
    if n < 11: A(f's_add_u32 s60, s60, {8*1280}\ns_add_u32 s61, s61, 1024')
    if opt['atrig'] and n == opt['atrig'] - 1:
        A('s_cmp_lg_u32 s78, 0\ns_cbranch_scc1 L_nofirst2')
        op_loads(32, ' nt' if opt['ant'] else '')
        A('L_nofirst2:')
if opt['atrig'] == 15:
    A('s_cmp_lg_u32 s78, 0\ns_cbranch_scc1 L_s2')
    op_loads(32, ' nt' if opt['ant'] else '')
    A('s_waitcnt vmcnt(10)\ns_branch L_s3\nL_s2:\ns_waitcnt vmcnt(4)\nL_s3:')
else: A('s_waitcnt vmcnt(4)')
if opt['atrig'] == 14:
    A('s_cmp_lg_u32 s78, 0\ns_cbranch_scc1 L_s2')
    op_loads(32, ' nt' if opt['ant'] else '')
    A('L_s2:')
wo_tr([0, 1])
if opt['atrig'] >= 14: A('s_cmp_lg_u32 s78, 0\ns_cbranch_scc1 L_second\ns_waitcnt vmcnt(6) lgkmcnt(0)\ns_branch L_both\nL_second:')
elif opt['atrig'] != 13: A('s_cmp_lg_u32 s78, 0\ns_cbranch_scc1 L_second\ns_waitcnt vmcnt(0) lgkmcnt(0)\ns_branch L_both\nL_second:')
lds_wait_ge(CNT + 28, 1, 1)
A(f"s_waitcnt vmcnt({opt['opw']})")
op_loads(32)
A('s_waitcnt vmcnt(6)\nL_both:')
wo_tr([2])
stamp(6)
def body():
    op_loads(16)
    A('L_opw:')
    for t in range(3):
        A(f's_waitcnt vmcnt({4-2*t})' + (' lgkmcnt(0)' if t == 2 else ''))
        q = AO + 8 * t
        fill = [[f"v_cmp_ne_u64 {'vcc' if t == 0 else 's[20:21]'}, s[30:31], v[{q}:{q+1}]", f'v_cmp_ne_u64 s[22:23], s[30:31], v[{q+6}:{q+7}]'],
                ([] if t == 0 else ['s_or_b64 vcc, vcc, s[20:21]']) + ['s_or_b64 vcc, vcc, s[22:23]'], [], []]
        for u in range(4):
            r = BW + 4 * (4 * t + u)
            c = '0' if t == 0 else f'v[{32+4*u}:{35+4*u}]'
            A(f'v_mfma_f32_16x16x32_bf16 v[{32+4*u}:{35+4*u}], v[{q+2}:{q+5}], v[{r}:{r+3}], {c}')
            for l in fill[u]: A(l)
spin2(body, local_only=True, entry='L_opw')
stamp(7)
if opt['w2t'] == 0: A(f'ds_write_b32 v25, v23 offset:{OKF}')
for u in range(4):
    A(f'v_mul_f32 v{4+u}, v{32+4*u}, v{CF}')
    for r in range(1, 4): A(f'v_fmac_f32 v{4+u}, v{32+4*u+r}, v{CF+r}')
A(f'''
{S32} v4, v6
{S32} v5, v7
v_add_f32 v4, v4, v6
v_add_f32 v5, v5, v7
{S16} v4, v5
v_add_f32 v4, v4, v5
ds_write_b32 v61, v4 offset:{RL}
s_cmp_lg_u32 s3, 0
s_waitcnt lgkmcnt(0)
s_barrier
s_cbranch_scc1 L_post_wo
ds_read_b32 v5, v62 offset:{RL+256}
ds_read_b32 v6, v62 offset:{RL+512}
ds_read_b32 v7, v62 offset:{RL+768}
s_waitcnt lgkmcnt(0)
v_add_f32 v4, v4, v5
v_add_f32 v6, v6, v7
v_add_f32 v4, v4, v6
v_mov_b32_dpp v5, v4 quad_perm:[1,0,3,2] {DPPM}
v_cvt_pk_bf16_f32 v4, v4, v5
v_mov_b32_dpp v48, v4 quad_perm:[0,0,0,0] {DPPM}
v_mov_b32_dpp v49, v4 quad_perm:[2,2,2,2] {DPPM}
''')
A('s_mov_b64 exec, s[8:9]')
A('buffer_store_dwordx4 v[48:51], v63, s[24:27], s75 offen sc1')
stamp(5)
A('s_barrier')
if opt['wb'] & 2: A('s_cmp_lg_u32 s5, 19\ns_cbranch_scc1 L_end\nbuffer_wbl2 sc1')
write_stamps(0)
A('s_endpgm')
A('L_helper_exit:')
if STAMPS:
    A('s_cmp_lg_u32 s3, 0\ns_cbranch_scc1 L_end')
    write_stamps(0)
A('s_endpgm')

B1R = 64
DR = 16
pad(2)
A('L_f1:')
srd(12, 48, 640 * 1536 * 2); srd(16, 50, 640 * 1536 * 2)
A(f"""
s_sub_u32 s74, s5, 20
v_lshrrev_b32 v3, 4, v0
v_and_b32 v2, 7, v0
v_lshrrev_b32 v62, 3, v0
v_mul_u32_u24 v62, 3072, v62
v_lshl_add_u32 v62, v2, 4, v62
s_lshl3_add_u32 s61, s74, s73
s_mul_i32 s61, s61, {8*3072}
s_mul_i32 s68, s4, 384
s_add_u32 s61, s61, s68
s_add_u32 s62, s61, 128
s_add_u32 s63, s61, 256
s_lshl_b32 s79, s73, 10
s_add_u32 s79, s79, {WL}
v_mov_b32 v57, 0
v_mov_b32 v6, s30
v_mov_b32 v7, s31
""")
lds_wait_ge(CNT + 28, 1, 1)
for nbl in range(3):
    for m in range(2):
        A(f's_add_u32 m0, s79, {(m*3 + nbl)*8192}')
        A(f'buffer_load_dwordx4 v62, s[{12+4*m}:{15+4*m}], s{61+nbl} offen nt lds')
A('s_setprio 3\ns_cmp_gt_u32 s73, 1\ns_cbranch_scc1 L_f1m')
get_pref(1)
A(f"""
s_lshl1_add_u32 s74, s74, s73
v_lshl_add_u32 v61, v2, 2, v3
v_lshlrev_b32 v61, 1, v61
s_lshl_b32 s68, s74, 6
v_add_u32 v61, s68, v61
global_load_ushort v56, v61, s[36:37]
v_lshlrev_b32 v54, 5, v3
v_lshl_add_u32 v54, v2, 2, v54
v_lshlrev_b32 v55, 4, v0
s_lshl_b32 s72, s4, 9
s_lshl4_add_u32 s72, s74, s72
s_add_u32 s72, s72, {PS}
s_mul_i32 s75, s4, 20
s_add_u32 s75, s75, s74
s_lshl_b32 s75, s75, 7
s_add_u32 s75, s75, {PH}
""")
A(f"""
s_mov_b64 exec, 1
buffer_load_dword v104, v54, s[32:35], s75 offen sc1
buffer_load_dword v105, v55, s[32:35], s72 offen sc1
s_mov_b64 exec, -1
s_lshr_b32 s60, s74, 2
s_lshl_b32 s60, s60, 14
s_and_b32 s68, s74, 3
s_lshl_b32 s68, s68, 11
s_add_u32 s60, s60, s68
s_lshr_b32 s68, s47, s4
s_and_b32 s68, s68, 1
s_lshl_b32 s68, s68, 13
s_add_u32 s60, s60, s68
s_add_u32 s60, s60, {YP}
v_lshlrev_b32 v51, 4, v3
v_lshl_add_u32 v51, v2, 1, v51
v_and_b32 v4, 1, v0
v_mul_u32_u24 v4, 126, v4
v_add_u32 v51, v51, v4
s_lshl_b32 s68, s73, 6
v_add_u32 v51, s68, v51
s_mov_b32 s77, 0x3f80
s_mov_b32 s71, 0x3f800000
v_mov_b32 v14, s30
v_mov_b32 v15, s31
v_mov_b32 v8, 0
v_mov_b32 v9, 0
v_mov_b32 v10, 0
v_mov_b32 v11, 0
v_not_b32 v98, s30
v_not_b32 v102, s30
s_waitcnt vmcnt(2)
s_barrier
v_lshlrev_b32 v56, 16, v56
""")
stamp(6)
YL = ['buffer_load_dwordx4 v[96:99], v55, s[24:27], s60 offen sc1', 'buffer_load_dwordx4 v[100:103], v55, s[24:27], s60 offen offset:1024 sc1']
if opt['fry']:
    A(f"""
s_mov_b32 s70, {SPIN}
s_mov_b64 s[20:21], -1
s_mov_b64 s[22:23], -1
L_ypoll:
s_mov_b64 exec, s[20:21]
{YL[0]}
s_mov_b64 exec, s[22:23]
{YL[1]}
s_mov_b64 exec, -1
""")
    for k in range(opt['fry']):
        A('v_cmp_ne_u64 s[20:21], s[30:31], v[98:99]\nv_cmp_ne_u64 s[22:23], s[30:31], v[102:103]\ns_or_b64 vcc, s[20:21], s[22:23]\ns_cbranch_scc0 L_yok')
    A('s_waitcnt vmcnt(16)\ns_sub_u32 s70, s70, 1\ns_cbranch_scc0 L_ypoll\nL_yok:')
else:
    def body():
        A(YL[0]); A(YL[1])
        A('s_waitcnt vmcnt(0)')
        tagcheck([98, 102])
    spin(body)
stamp(1)
for r in (96, 100):
    A(f'v_dot2c_f32_bf16 v8, s77, v{r}\nv_dot2c_f32_bf16 v10, s77, v{r+1}\nv_dot2c_f32_bf16 v9, s71, v{r}\nv_dot2c_f32_bf16 v11, s71, v{r+1}')
A(f"""
{S32} v8, v10
{S32} v9, v11
v_add_f32 v8, v8, v10
v_add_f32 v9, v9, v11
{S16} v8, v9
v_add_f32 v8, v8, v9
v_add_f32_dpp v8, v8, v8 row_ror:8 {DPPM}
v_cvt_pk_bf16_f32 v8, v57, v8
v_add_f32 v12, v8, v56
v_mov_b32_dpp v13, v12 quad_perm:[1,0,3,2] {DPPM}
v_cvt_pk_bf16_f32 v12, v12, v13
ds_write_b32 v51, v12 offset:{RL}
v_lshlrev_b32 v4, 16, v12
v_mul_f32 v5, v4, v4
""")
allreduce8('v_add_f32', [4, 5])
A('s_waitcnt lgkmcnt(0)\ns_barrier')
A(f'v_mov_b32_dpp v13, v12 quad_perm:[2,3,2,3] {DPPM}')
allreduce_rows('v_add_f32', [4, 5], [8, 9])
publish([(1, 'buffer_store_dwordx4 v[4:7], v55, @, s72 offen'),
         (0x0011001100110011, 'buffer_store_dwordx4 v[12:15], v54, @, s75 offen')])
if opt['wb'] & 4: A('s_cmp_lg_u32 s74, 0\ns_cbranch_scc1 L_end\nbuffer_wbl2 sc1')
stamp_val(18, 82, 83, True)
stamp_val(23, 92, 93, True)
A('s_endpgm')
pad(3)
A(f"""
L_f1m:
s_sub_u32 s68, s73, 2
s_lshr_b32 s78, s68, 1
s_and_b32 s69, s73, 1
v_lshlrev_b32 v58, 7, v3
v_bfe_u32 v4, v0, 2, 2
v_lshl_add_u32 v58, v4, 9, v58
v_and_b32 v4, 3, v0
v_lshl_add_u32 v58, v4, 3, v58
s_lshl_b32 s75, s78, 13
s_lshl_b32 s68, s69, 6
s_add_u32 s75, s75, s68
v_add_u32 v58, s75, v58
v_lshlrev_b32 v52, 4, v3
v_and_b32 v59, 1, v3
v_cmp_eq_u32 s[62:63], 1, v59
v_mul_u32_u24 v59, 3072, v59
v_bfe_u32 v4, v0, 3, 1
v_lshl_add_u32 v59, v4, 9, v59
v_lshl_add_u32 v59, v2, 4, v59
s_mul_i32 s76, s4, 3
s_add_u32 s76, s76, s78
s_lshl1_add_u32 s76, s76, s69
s_mul_i32 s76, s76, 6144
s_lshr_b32 s68, s74, 2
s_lshl_b32 s68, s68, 10
s_add_u32 s76, s76, s68
s_and_b32 s68, s74, 3
s_lshl_b32 s68, s68, 7
s_add_u32 s76, s76, s68
s_add_u32 s77, s76, {CB}
s_add_u32 s76, s76, {PA}
v_mov_b32 v8, 0x3f803f80
v_mov_b32 v9, 0x3f803f80
v_mov_b32 v10, 0x3f803f80
v_mov_b32 v11, 0x3f803f80
v_mov_b32 v34, s30
v_mov_b32 v35, s31
s_waitcnt vmcnt(0)
s_barrier
""")
for kk in range(2):
    for m in range(2):
        for u in range(2):
            r = B1R + 4 * ((kk * 2 + m) * 2 + u)
            o = WL + m * 24576 + kk * 4096 + 32 * u
            A(f'ds_read_b64_tr_b16 v[{r}:{r+1}], v58 offset:{o}')
            A(f'ds_read_b64_tr_b16 v[{r+2}:{r+3}], v58 offset:{o + 2048}')
def f1_mfma(kk, a):
    for k in range(4):
        c = f'v[{DR+4*k}:{DR+3+4*k}]' if kk else '0'
        A(f'v_mfma_f32_16x16x32_bf16 v[{DR+4*k}:{DR+3+4*k}], v[{a}:{a+3}], v[{B1R+16*kk+4*k}:{B1R+16*kk+4*k+3}], {c}')
def f1_select(d):
    A(f'v_cndmask_b32 v{d}, v{DR}, v{DR+4}, s[62:63]\nv_cndmask_b32 v{d+1}, v{DR+8}, v{DR+12}, s[62:63]')
A('s_waitcnt lgkmcnt(0)')
f1_mfma(0, 8); f1_mfma(1, 8)
f1_select(32)
publish([(0xffffffff, 'buffer_store_dwordx4 v[32:35], v59, @, s77 offen')])
A(f"""
s_barrier
ds_read_b128 v[8:11], v52 offset:{RL}
ds_read_b128 v[12:15], v52 offset:{RL+64}
s_waitcnt lgkmcnt(1)
""")
f1_mfma(0, 8)
A('s_waitcnt lgkmcnt(0)')
f1_mfma(1, 12)
f1_select(4)
publish([(0xffffffff, 'buffer_store_dwordx4 v[4:7], v59, @, s76 offen')])
if STAMPS:
    A('s_cmp_eq_u32 s3, 11\ns_cbranch_scc1 L_end')
    stamp_now(11, True)
A('s_endpgm')

pad(4)
A('L_post_wo:')
A("""
s_cmp_gt_u32 s5, 11
s_cbranch_scc1 L_end
s_cmp_eq_u32 s3, 3
s_cbranch_scc1 L_end
v_mov_b32 v57, 0
s_cmp_eq_u32 s3, 1
s_cbranch_scc1 L_hid
s_barrier
""")
A(f"""
s_and_b32 s68, s4, 1
s_lshl_b32 s68, s68, 2
s_sub_u32 s68, 12, s68
s_cmp_ge_u32 s5, s68
s_cbranch_scc1 L_end
s_mul_i32 s72, s4, 5
s_add_u32 s72, s72, 1
s_lshr_b32 s72, s72, 1
s_lshr_b32 s68, s5, 2
s_add_u32 s72, s72, s68
s_and_b32 s73, s5, 3
v_lshrrev_b32 v2, 1, v0
v_lshlrev_b32 v2, 7, v2
v_and_b32 v3, 1, v0
v_lshl_add_u32 v96, v3, 4, v2
s_lshl_b32 s10, s72, 15
s_lshr_b32 s68, s47, s4
s_and_b32 s68, s68, 1
s_lshl_b32 s68, s68, 13
s_add_u32 s10, s10, s68
s_lshl_b32 s68, s73, 5
s_add_u32 s10, s10, s68
s_add_u32 s10, s10, {FP}
s_add_u32 s11, s10, 4096
s_add_u32 s12, s10, 16384
v_lshrrev_b32 v4, 4, v0
v_lshl_add_u32 v97, v3, 2, v4
v_lshlrev_b32 v97, 1, v97
v_lshlrev_b32 v99, 5, v4
s_and_b32 s68, s73, 1
s_lshl_b32 s68, s68, 5
v_lshl_add_u32 v98, v3, 4, s68
s_mul_i32 s13, s4, 20
s_add_u32 s13, s13, s72
s_lshl_b32 s13, s13, 7
s_lshr_b32 s68, s73, 1
s_lshl4_add_u32 s13, s68, s13
s_add_u32 s13, s13, {PH}
s_lshl2_add_u32 s14, s72, s73
s_lshl_b32 s14, s14, 4
s_mov_b32 s8, 0x30003
s_mov_b32 s9, 0x30003
s_mov_b32 s77, 0x3f80
s_mov_b32 s71, 0x3f800000
v_mov_b32 v8, 0
v_mov_b32 v9, 0
v_mov_b32 v10, 0
v_mov_b32 v11, 0
""")
FS = 16
srd(64, 54, 1280)
if opt['outpre']:
    A(f"s_mov_b64 exec, 1\nbuffer_load_dword v30, v57, s[64:67], s14 offen{['', '', ' sc1', ' nt'][opt['outpre']]}\ns_mov_b64 exec, -1")
A('s_setprio 0')
lds_wait_ge(HRDY, 1, opt['hsleep'])
if opt['fsleep']: A(f"s_sleep {opt['fsleep']}")
def body():
    A('buffer_load_dwordx4 v[4:7], v99, s[16:19], s13 offen sc1')
    for n in range(3):
        r = FS + 4 * n
        A(f'buffer_load_dwordx4 v[{r}:{r+3}], v96, s[24:27], s{10+n} offen sc1')
    A('s_waitcnt vmcnt(0)')
    tagcheck([6, FS + 2, FS + 6, FS + 10])
spin2(body, local_only=True)
A('L_finc:')
stamp(5)
for n in range(3):
    r = FS + 4 * n
    A(f'v_dot2c_f32_bf16 v8, s77, v{r}\nv_dot2c_f32_bf16 v10, s77, v{r+1}\nv_dot2c_f32_bf16 v9, s71, v{r}\nv_dot2c_f32_bf16 v11, s71, v{r+1}')
A(f"""
v_lshrrev_b64 v[58:59], v98, v[4:5]
{S32} v8, v10
{S32} v9, v11
v_add_f32 v8, v8, v10
v_add_f32 v9, v9, v11
v_lshlrev_b32 v58, 16, v58
{S16} v8, v9
v_add_f32 v8, v8, v9
v_add_f32_dpp v8, v8, v8 row_ror:8 {DPPM}
v_add_f32_dpp v8, v8, v8 row_ror:4 {DPPM}
v_add_f32_dpp v8, v8, v8 quad_perm:[2,3,0,1] {DPPM}
v_cvt_pk_bf16_f32 v8, v57, v8
v_add_f32 v8, v8, v58
v_cvt_pk_bf16_f32 v8, v8, v8
""")
A('s_mov_b64 exec, s[8:9]')
if opt['dry'] & 2: A('s_cbranch_execz L_end')
A(f"""
buffer_store_short v8, v97, s[64:67], s14 offen{['', ' sc1', ' sc0 sc1', ' nt'][opt['outfl']]}
s_cmp_lg_u32 s14, 0
s_cbranch_scc1 L_fin_exit
s_mov_b64 exec, 1
v_mov_b32 v4, s30
v_mov_b32 v5, s31
s_mov_b32 s68, {EP}
buffer_store_dwordx2 v[4:5], v57, s[24:27], s68 offen
L_fin_exit:
""")
if opt['endst']:
    A(f's_memrealtime s[82:83]\ns_mov_b64 exec, 1\ns_add_u32 s68, s14, {0x390000}\ns_waitcnt lgkmcnt(0)\nv_mov_b32 v4, s82\nv_mov_b32 v5, s83\nbuffer_store_dwordx2 v[4:5], v57, s[24:27], s68 offen')
if opt['dbg']:
    A(f'''
s_cmp_lg_u32 s14, 0
s_cbranch_scc1 L_end
s_mov_b64 exec, -1
ds_read_b32 v4, v57 offset:{CNT+36}
s_memrealtime s[82:83]
s_waitcnt lgkmcnt(0)
v_readfirstlane_b32 s85, v4
s_sub_u32 s84, s82, s85
v_mov_b32 v4, s84
global_store_dword v57, v4, s[56:57]
s_mul_i32 s84, s84, {opt['dbg']}
s_min_u32 s84, s84, 40000
L_dbgspin:
s_memrealtime s[86:87]
s_waitcnt lgkmcnt(0)
s_sub_u32 s86, s86, s82
s_cmp_lt_u32 s86, s84
s_cbranch_scc1 L_dbgspin
''')
if STAMPS:
    A('s_waitcnt vmcnt(0)')
    stamp(7)
    write_stamps(8)
A('s_endpgm')

pad(5)
A('L_hid:')
M2 = 0x0000ffff0000ffff
A(f"""
s_mul_i32 s72, s4, 12
s_add_u32 s72, s72, s5
v_lshrrev_b32 v4, 5, v0
v_and_b32 v2, 7, v0
v_lshl_add_u32 v62, v4, 3, v2
v_lshlrev_b32 v62, 1, v62
v_lshlrev_b32 v63, 2, v2
v_lshlrev_b32 v60, 4, v0
v_and_b32 v3, 31, v0
v_lshlrev_b32 v61, 4, v3
s_lshl_b32 s65, s4, 9
s_add_u32 s65, s65, {PS}
s_mul_i32 s60, s72, 3072
s_add_u32 s62, s60, {CB}
s_add_u32 s60, s60, {PA}
s_mov_b32 s8, 0xfffff
s_mov_b32 s9, 0xfffff
s_mov_b32 s10, 0xffff
s_mov_b32 s11, 0xffff
v_mov_b32 v59, 1
""")
for r in (24, 136, 140): A(f'v_mov_b32 v{r}, 0\nv_mov_b32 v{r+1}, 0\nv_mov_b32 v{r+2}, s30\nv_mov_b32 v{r+3}, s31')
def loads3(r, srdn, so, fl=''):
    A(f'buffer_load_dwordx4 v[{r}:{r+3}], v60, s[{srdn}:{srdn+3}], s{so} offen sc1' + fl)
    A(f'buffer_load_dwordx4 v[{r+4}:{r+7}], v60, s[{srdn}:{srdn+3}], s{so} offen offset:1024 sc1' + fl)
    A(f's_mov_b64 exec, s[10:11]\nbuffer_load_dwordx4 v[{r+8}:{r+11}], v60, s[{srdn}:{srdn+3}], s{so} offen offset:2048 sc1{fl}\ns_mov_b64 exec, -1')
def issue_s(srdn=32):
    A(f's_mov_b64 exec, s[8:9]\nbuffer_load_dwordx4 v[140:143], v61, s[{srdn}:{srdn+3}], s65 offen sc1\ns_mov_b64 exec, -1')
def issue_p(srdn=32): loads3(128, srdn, 60)
def poll(issue, check, n, bound=None):
    slow = newlabel('pslow'); ok = newlabel('pok')
    check()
    A(f's_nop 0\ns_cbranch_vccz {ok}')
    A(f's_cmp_lg_u32 s46, 1\ns_cbranch_scc1 {slow}')
    freepoll(issue, check, n, ok, bound)
    mark = len(A.lines)
    A(f'{slow}:')
    def body():
        issue(16); A('s_waitcnt vmcnt(0)'); check()
    spin2(body, local_only=True)
    if opt['ool']:
        A(f's_branch {ok}')
        outline.append('\n'.join(A.lines[mark:])); del A.lines[mark:]
    A(f'{ok}:')
    return ok
def body():
    loads3(16, 16, 62)
    issue_p(16); issue_s(16)
    A('s_waitcnt vmcnt(0)')
    tagcheck([18, 22, 26])
if opt['frc']:
    for r in (18, 22, 130, 134): A(f'v_not_b32 v{r}, s30')
    A('s_mov_b64 exec, s[10:11]\nv_not_b32 v26, s30\nv_not_b32 v138, s30\ns_mov_b64 exec, s[8:9]\nv_not_b32 v142, s30\ns_mov_b64 exec, -1')
A('s_barrier')
if opt['frc']:
    def issue_all(srdn=32):
        loads3(16, srdn, 62, ' nt' if opt['hnt'] & 1 else ''); issue_s(srdn); loads3(128, srdn, 60, ' nt' if opt['hnt'] & 2 else '')
    poll(issue_all, lambda: tagcheck([18, 22, 26]), opt['frc'], opt['frcb'])
else: spin2(body, local_only=True)
A('v_pk_add_f32 v[40:41], v[16:17], v[20:21]\nv_pk_add_f32 v[40:41], v[40:41], v[24:25]')
for r in (40, 41): A(f'v_add_f32_dpp v{r}, v{r}, v{r} row_ror:8 {DPPM}')
swapreduce(S16, 'v_add_f32', [40, 41], [42, 43])
poll(issue_s, lambda: tagcheck([142]), opt['frs'])
A('s_cmp_lg_u32 s46, 1\ns_cbranch_scc1 L_nopre')
issue_p()
A('L_nopre:')
A(f"""
v_add_f32_dpp v36, v140, v140 quad_perm:[1,0,3,2] {DPPM}
v_add_f32_dpp v37, v141, v141 quad_perm:[1,0,3,2] {DPPM}
v_add_f32_dpp v36, v36, v36 quad_perm:[2,3,0,1] {DPPM}
v_add_f32_dpp v37, v37, v37 quad_perm:[2,3,0,1] {DPPM}
v_add_f32_dpp v36, v36, v36 row_half_mirror {DPPM}
v_add_f32_dpp v37, v37, v37 row_half_mirror {DPPM}
v_add_f32_dpp v46, v36, v36 row_mirror {DPPM}
v_add_f32_dpp v47, v37, v37 row_mirror {DPPM}
v_add_f32_dpp v36, v36, v36 row_mirror {DPPM}
v_add_f32_dpp v37, v37, v37 row_mirror {DPPM}
{S16} v36, v46
{S16} v37, v47
v_pk_add_f32 v[36:37], v[36:37], v[46:47]
s_cbranch_scc1 L_nopre2
""")
issue_p()
A(f"""
L_nopre2:
v_mul_f32 v44, {f32(1.0/640)}, v36
v_mul_f32 v45, {f32(1.0/640)}, v37
v_fma_f32 v45, -v44, v44, v45
v_max_f32 v45, 0, v45
v_cvt_pk_bf16_f32 v45, v57, v45
v_cvt_pk_bf16_f32 v44, v57, v44
v_add_f32 v45, {f32(1e-5)}, v45
v_cvt_pk_bf16_f32 v45, v57, v45
v_sqrt_f32 v45, v45
v_mul_f32 v40, v44, v40
v_cvt_pk_bf16_f32 v45, v57, v45
v_rcp_f32 v45, v45
v_mul_f32 v41, v44, v41
""")
poll(issue_p, lambda: tagcheck([130, 134, 138]), opt['frp'])
A('L_hidc:')
stamp(7)
A(f"""
v_pk_add_f32 v[8:9], v[128:129], v[132:133]
v_pk_add_f32 v[8:9], v[8:9], v[136:137]
v_add_f32_dpp v10, v8, v8 row_ror:8 {DPPM}
v_add_f32_dpp v11, v9, v9 row_ror:8 {DPPM}
v_add_f32_dpp v8, v8, v8 row_ror:8 {DPPM}
v_add_f32_dpp v9, v9, v9 row_ror:8 {DPPM}
{S16} v8, v10
{S16} v9, v11
v_add_f32 v8, v8, v10
v_sub_f32 v8, v8, v40
v_mul_f32 v8, v8, v45
v_cvt_pk_bf16_f32 v8, v57, v8
v_mul_f32 v12, {f32(-LOG2E)}, v8
v_exp_f32 v12, v12
v_add_f32 v9, v9, v11
v_add_f32 v12, 1.0, v12
v_rcp_f32 v12, v12
v_sub_f32 v9, v9, v41
v_mul_f32 v9, v9, v45
v_mul_f32 v8, v8, v12
v_cvt_pk_bf16_f32 v9, v57, v9
v_cvt_pk_bf16_f32 v8, v57, v8
v_mul_f32 v8, v8, v9
v_cvt_pk_bf16_f32 v8, v8, v8
ds_write_b16 v62, v8 offset:{HID}
ds_write_b32 v63, v59 offset:{HRDY}
""")
if opt['wb'] & 1: A('s_cmp_lg_u32 s5, 0\ns_cbranch_scc1 L_end\nbuffer_wbl2 sc1')
stamp_val(17, 94, 95)
A('s_endpgm')

pad(6)
A('L_f2:')
W2R = 64
srd(8, 52, 1536 * 640 * 2)
get_pref(1, dst=16, adr=17)
A(f"""
s_mul_i32 s72, s4, 12
s_add_u32 s72, s72, s5
v_mov_b32 v57, 0
s_sub_u32 s68, s3, 7
s_lshl_b32 s69, s68, 8
v_lshlrev_b32 v58, 2, v0
v_add_u32 v58, s69, v58
v_lshrrev_b32 v2, 4, v0
v_lshl_add_u32 v2, s68, 2, v2
v_mul_u32_u24 v3, 52, v2
v_lshrrev_b32 v3, 8, v3
v_mul_u32_u24 v4, 5, v3
v_sub_u32 v4, v2, v4
v_cmp_lt_u32 vcc, 2, v4
v_lshlrev_b32 v3, 1, v3
v_addc_co_u32 v3, vcc, 0, v3, vcc
v_lshrrev_b32 v3, v3, s47
v_and_b32 v3, 1, v3
v_lshlrev_b32 v116, 15, v2
v_lshl_add_u32 v116, v3, 13, v116
v_bfe_u32 v3, v0, 1, 3
v_lshl_add_u32 v116, v3, 4, v116
s_lshr_b32 s79, s72, 6
s_lshl_b32 s79, s79, 14
s_and_b32 s68, s72, 63
s_lshl_b32 s68, s68, 7
s_add_u32 s79, s79, s68
s_add_u32 s79, s79, {FP}
s_mov_b32 s60, 0x05040100
s_mov_b32 s61, 0x07060302
s_mul_i32 s62, s72, 20480
""")
def w2_loads():
    for k in range(16):
        A(f'buffer_load_dword v{W2R+k}, v58, s[8:11], s62 offen offset:{1280*(k%3)} nt')
        if k % 3 == 2: A('s_add_u32 s62, s62, 3840')
if opt['w2dma']:
    A(f'''
v_lshrrev_b32 v2, 4, v0
v_mul_u32_u24 v2, 1280, v2
v_and_b32 v3, 15, v0
v_lshl_add_u32 v2, v3, 4, v2
s_add_u32 s62, s62, s69
s_lshl_b32 s63, s69, 4
v_lshlrev_b32 v3, 2, v0
v_add_u32 v3, s63, v3
s_add_u32 s63, s63, {WL}
''')
    if opt['w2t'] == 0:
        A('v_and_b32 v1, 3, v0\nv_lshlrev_b32 v1, 2, v1')
        def body():
            A(f'ds_read_b32 v4, v1 offset:{OKF}')
            A('s_waitcnt lgkmcnt(0)')
            A('v_cmp_eq_u32 vcc, 0, v4')
        spin(body)
    else: A('s_barrier')
    if opt['w2t'] == 2: A('s_barrier')
    for k in range(4):
        A(f's_add_u32 m0, s63, {1024*k}\nbuffer_load_dwordx4 v2, s[8:11], s62 offen nt lds\ns_add_u32 s62, s62, 5120')
    if opt['w2t'] == 0: A('s_barrier')
    if opt['w2t'] < 2: A('s_barrier')
    A('s_waitcnt vmcnt(0)')
    for k in range(16): A(f'ds_read_b32 v{W2R+k}, v3 offset:{WL + 256*k}')
    A('s_waitcnt lgkmcnt(0)')
else:
    A('s_barrier')
    w2_loads()
    A('s_barrier')
    A('s_waitcnt vmcnt(0)')
stamp(6)
for kp in range(8):
    A(f'v_perm_b32 v{80+kp}, v{W2R+2*kp+1}, v{W2R+2*kp}, s60')
    A(f'v_perm_b32 v{88+kp}, v{W2R+2*kp+1}, v{W2R+2*kp}, s61')
A(f"""
v_mov_b32 v16, 0
v_mov_b32 v17, 0
v_mov_b32 v18, 0
v_mov_b32 v19, 0
s_mov_b32 s66, 0x55555555
s_mov_b32 s67, 0x55555555
v_mov_b32 v6, s30
v_mov_b32 v7, s31
v_and_b32 v9, 15, v0
v_lshlrev_b32 v9, 2, v9
v_mov_b32 v8, 0
s_mov_b32 s64, 0xff00ff00
s_mov_b32 s65, 0xff00ff00
s_mov_b32 s70, {SPIN * 8}
s_waitcnt lgkmcnt(0)
L_f2poll:
ds_read_b32 v8, v9 offset:{HID}
s_waitcnt lgkmcnt(4)
v_cmp_eq_u32 vcc, 0, v8
s_sub_u32 s70, s70, 1
s_cbranch_scc1 L_f2go
s_and_b64 vcc, vcc, s[64:65]
s_cbranch_scc1 L_f2poll
L_f2go:
""")
for kp in range(8):
    A(f'v_dot2c_f32_bf16_dpp v{16+2*(kp&1)}, v8, v{80+kp} row_newbcast:{kp} {DPPM}')
    A(f'v_dot2c_f32_bf16_dpp v{17+2*(kp&1)}, v8, v{88+kp} row_newbcast:{kp} {DPPM}')
A('v_pk_add_f32 v[16:17], v[16:17], v[18:19]')
A(f"""
v_cvt_pk_bf16_f32 v4, v16, v17
v_mov_b32_dpp v5, v4 quad_perm:[1,0,3,2] {DPPM}
""")
A('s_mov_b64 exec, s[66:67]')
if opt['dry'] & 4: A('s_cbranch_execz L_end')
A('buffer_store_dwordx4 v[4:7], v116, s[24:27], s79 offen sc1')
if opt['wb'] & 8:
    A('s_lshl4_add_u32 s68, s5, s3\ns_cmp_lg_u32 s68, 11\ns_cbranch_scc1 L_end')
    if opt['wbs']: A(f"s_sleep {opt['wbs']}")
    A('buffer_wbl2 sc1')
if STAMPS:
    setexec(ALL)
    stamp_now(20, True)
    stamp_val(15, 92, 93, True)
A('L_end:')
A('s_endpgm')
A('L_spare:')
if opt['sp']:
    lds_wait_ge(CNT + 28, 1, 2)
    A('v_lshlrev_b32 v1, 7, v0\ns_sub_u32 s76, s5, 30')
    if opt['sp'] & 2:
        A(f'''
s_lshl1_add_u32 s68, s4, s76
s_lshl3_add_u32 s68, s68, s73
s_mul_i32 s68, s68, 3072
s_add_u32 s68, s68, {OP}
s_mov_b64 exec, 0xffffff
buffer_load_dword v5, v1, s[32:35], s68 offen nt
s_waitcnt vmcnt(0)
buffer_load_dword v5, v1, s[32:35], s68 offen sc1
s_mov_b64 exec, -1
''')
    if opt['spd']: A(f"s_sleep {opt['spd']}")
    if opt['sp'] & 1:
        A(f'''
s_cmp_gt_u32 s73, 5
s_cbranch_scc1 L_nopa
s_mul_i32 s68, s4, 6
s_add_u32 s68, s68, s73
s_mul_i32 s68, s68, 6144
s_mul_i32 s69, s76, {CB - PA}
s_add_u32 s68, s68, s69
s_add_u32 s68, s68, {PA}
s_mov_b32 exec_lo, 0xff33ffff
s_mov_b32 exec_hi, 0x33ff
buffer_load_dword v4, v1, s[32:35], s68 offen nt
s_waitcnt vmcnt(0)
buffer_load_dword v4, v1, s[32:35], s68 offen sc1
s_mov_b64 exec, -1
L_nopa:
''')
    if opt['sp'] & 4:
        srd(8, 52, 1536 * 640 * 2)
        if opt['spd2']: A(f"s_sleep {opt['spd2']}")
        A(f'''
s_lshl1_add_u32 s68, s4, s76
s_lshl3_add_u32 s68, s68, s73
s_mul_i32 s68, s68, {120*128}
s_add_u32 s69, s68, {60*128}
s_mov_b32 exec_hi, 0xfffffff
buffer_load_dword v6, v1, s[8:11], s68 offen nt
buffer_load_dword v7, v1, s[8:11], s69 offen nt
''')
    A('s_endpgm')
else: A('s_branch L_stream_exit')
A('L_dry:')
if opt['dry']:
    srd(64, 54, 1280)
    A('''
v_mov_b32 v97, 0
v_mov_b32 v116, 0
v_mov_b32 v62, 0
v_mov_b32 v63, 0
s_mov_b32 s14, 16
s_mov_b32 s79, 0
s_mov_b64 s[8:9], 0
s_mov_b32 s46, 2
s_mov_b64 exec, 0
''')
    if opt['dry'] & 1: A('s_cmp_eq_u32 s3, 4\ns_cbranch_scc1 L_nopre')
    if opt['dry'] & 2: A('s_cmp_eq_u32 s3, 5\ns_cbranch_scc1 L_finc')
    if opt['dry'] & 4: A('s_mov_b64 s[66:67], 0\ns_cmp_eq_u32 s3, 6\ns_cbranch_scc1 L_f2go')
A('s_endpgm')
for blk in outline: A(blk)
A('L_codeend:')

A.raw('.section .rodata,"a"')
A.raw('.p2align 6')
A.raw(f'.amdhsa_kernel {NAME}_kernel')
A.raw('  .amdhsa_next_free_vgpr 168')
A.raw('  .amdhsa_next_free_sgpr 100')
A.raw('  .amdhsa_accum_offset 168')
A.raw('  .amdhsa_group_segment_fixed_size 0')
A.raw('  .amdhsa_kernarg_size 96')
A.raw('  .amdhsa_user_sgpr_count 2')
A.raw('  .amdhsa_user_sgpr_kernarg_segment_ptr 1')
A.raw('  .amdhsa_system_sgpr_workgroup_id_x 1')
A.raw('.end_amdhsa_kernel')
open(sys.argv[1], 'w').write(A.finalize())
```

```python
import sys, struct, os
from asmlib import Asm

NAME = "sequential_preLN__sliding_block_cached__glu_gated_swiglu__decode"
opt = dict(D1=3, D2=3, Vpre=3, stamps=0, spin=4000007, sleep=2, swave=11, stsleep=24, wtrig=2, DWF=6, opw=0,
           idtries=12, idsleep=16, forceslow=0, trap=0, fsleep=16, hsleep=0, shots=4, lead=31, samp=6,
           frp=1, frs=2, frc=8, frcb=14, w2dma=1, opp=0, osleep=0, sprio=0, outfl=0, outpre=0, lag2=0, idnt=1, xnt=0, cps=0, xs=1, qe=2, qb=10, pro=2, cpw=0, hnt=0, trl=1, al=0, ool=1, dry=0, q2=1, q2d=40, q2s=8, hack=0, endst=0, wb=0, wbs=0, stst=0, opm=0, op2=0, ant=1, abl=0, atrig=13, apub=1, qh=0, kb=0, dbgs=0, tlb=0, qpre=0, sp=3, spd=0, spd2=0, mst2=0, p2t=38, c2=41, e2=0, tries2=1, meas=0, kord=1, vord=0, p1=0, p2=0, p3=0, p4=0, p5=0, p6=0, Dinit=3, pkw=0, opi=1, hard=0, w2t=1, frb=12, fry=6, cal=1, mst=17, tau0=457, dA=7, dB=-13, dC=22, lag=480, cfrom=30, pick2=4, pftrig=26,
           caltries=2, calsleep=20, dbg=0, trace=0)
for a in sys.argv[2:]:
    k, v = a.split('=')
    assert k in opt, k
    opt[k] = int(v)
D1 = opt['D1']; D2 = opt['D2']; STAMPS = opt['stamps']; SPIN = opt['spin']

def f32(x): return '0x%08x' % struct.unpack('<I', struct.pack('<f', x))[0]
LOG2E = 1.4426950408889634

QP = 0x0
OP = 0x80000
ST = 0x1F8000
ID = 0x1FC000
YP = 0x1E0000
EP = 0xE0000
PF = 0xE8000
CAL = 0xEA000
FP = 0x100000
PB = 0x1A0000
SP = 0x200000
PA = 0x220000
PS = 0x2A0000
PH = 0x2A4000
CB = 0x300000
WSN = 0x400000
FAST = 0x400000
QL = 0
QF = 384
SL = 512
CNT = 640
OKF = QF + 64; PREF = CNT + 20; ORG = CNT + 40; SUMS = CNT + 56; SUMS2 = QF + 96; TRG2 = QF + 104
HID = 704
HRDY = HID + 32
CL = 768
OL = 1024
RL = 7168
QL2 = 8192
WL = 8704
OLA = WL + 49152
TRL = OLA + 6144
LDS = TRL + (2048 if opt['trace'] else 0)

A = Asm()
A.raw(open(os.path.join(os.path.dirname(os.path.abspath(__file__)), '..', NAME + '.s.ref')).read().split('; Override launch')[0].rstrip())
A.raw(f"; @launch grid=(256,1,1) block=(768,1,1) lds={LDS}")
A.raw('''; Generated by gen/gen20.py (hand-written generator).  One persistent launch, 256 workgroups x 12 waves, 1 per CU.
;  3 helper waves: LN(x) and an 80-row slice of the q projection; 4th helper: LDS init, XCD-locality check, stats.
;  the group is proven to sit on one XCD, a write-through copy as well, so any placement is correct.  Hand-offs
;  HBM bandwidth is shared out evenly: a streaming wave that is ahead of the chip-wide mean progress (sampled once in
;  s_sleep is used only as back-off inside / ahead of polling loops.''')
A.raw('.amdgcn_target "amdgcn-amd-amdhsa--gfx950"')
A.raw('.text')
A.raw(f'.globl {NAME}_kernel')
A.raw('.p2align 8')
A.raw(f'.type {NAME}_kernel,@function')
A.raw(f'{NAME}_kernel:')

def stamp(i):
    if STAMPS: A(f's_memrealtime s[{80+2*i}:{81+2*i}]')
def write_stamps(base_idx):
    if not STAMPS: return
    A('s_waitcnt lgkmcnt(0)')
    A('s_mov_b64 exec, 1')
    A('s_lshl3_add_u32 s68, s5, s4')
    A('s_lshl_b32 s68, s68, 8')
    A(f's_add_u32 s68, s68, {SP + base_idx*8}')
    A('v_mov_b32 v1, 0')
    for q in range(4):
        for e in range(4): A(f'v_mov_b32 v{4+e}, s{80+4*q+e}')
        A(f'buffer_store_dwordx4 v[4:7], v1, s[24:27], s68 offen offset:{16*q}')
        A('s_nop 2')
def stamp_val(idx, lo, hi, plus_wave=False):
    if not STAMPS: return
    A('s_lshl3_add_u32 s98, s5, s4')
    A('s_lshl_b32 s98, s98, 8')
    A(f's_add_u32 s98, s98, {SP + idx*8}')
    if plus_wave: A('s_lshl3_add_u32 s98, s3, s98')
    A('s_waitcnt lgkmcnt(0)')
    A(f'v_mov_b32 v164, s{lo}\nv_mov_b32 v165, s{hi}\nv_mov_b32 v163, 0')
    A('s_mov_b64 exec, 1')
    A('buffer_store_dwordx2 v[164:165], v163, s[24:27], s98 offen')
    A('s_mov_b64 exec, -1')
    A('s_nop 1')
def stamp_now(idx, plus_wave=False):
    if not STAMPS: return
    A('s_memrealtime s[96:97]')
    stamp_val(idx, 96, 97, plus_wave)

def srd(d, ptr, nbytes):
    A(f's_mov_b32 s{d}, s{ptr}')
    A(f's_mov_b32 s{d+1}, s{ptr+1}')
    A(f's_mov_b32 s{d+2}, {nbytes}')
    A(f's_mov_b32 s{d+3}, 0x20000')
def ws_srds():
    srd(24, 58, WSN)
    A(f's_add_u32 s32, s58, {FAST}')
    A('s_addc_u32 s33, s59, 0')
    A(f's_mov_b32 s34, {WSN}')
    A('s_mov_b32 s35, 0x20000')
    A('s_lshl3_add_u32 s71, s6, s7')
    A('''
s_mul_i32 s5, s79, 5
s_mul_i32 s47, s79, 3
s_add_u32 s47, s47, 15
s_cmp_lt_u32 s7, 5
s_cselect_b32 s5, s5, s47
s_add_u32 s5, s5, s7
''')

ALL = (1 << 64) - 1
def setexec(mask):
    if mask == ALL: A('s_mov_b64 exec, -1'); return
    A(f's_mov_b32 exec_lo, 0x{mask & 0xffffffff:x}')
    A(f's_mov_b32 exec_hi, 0x{mask >> 32:x}')

DPPM = 'row_mask:0xf bank_mask:0xf'
def allreduce8(op, regs):
    for pat in ('quad_perm:[1,0,3,2]', 'quad_perm:[2,3,0,1]', 'row_half_mirror'):
        for r in regs: A(f'{op}_dpp v{r}, v{r}, v{r} {pat} {DPPM}')
def allreduce16(op, regs):
    allreduce8(op, regs)
    for r in regs: A(f'{op}_dpp v{r}, v{r}, v{r} row_mirror {DPPM}')
def swapreduce(sw, op, regs, tmps):
    for r, t in zip(regs, tmps): A(f'v_mov_b32 v{t}, v{r}')
    for r, t in zip(regs, tmps): A(f'{sw} v{r}, v{t}')
    for r, t in zip(regs, tmps): A(f'{op} v{r}, v{r}, v{t}')
S16 = 'v_permlane16_swap_b32'; S32 = 'v_permlane32_swap_b32'
def allreduce_rows(op, regs, tmps):
    swapreduce(S16, op, regs, tmps); swapreduce(S32, op, regs, tmps)
def allreduce64(op, regs, tmps):
    allreduce16(op, regs); allreduce_rows(op, regs, tmps)
def bf16r(d, s):
    A(f'v_cvt_pk_bf16_f32 v{d}, v{s}, v{s}')
    A(f'v_lshlrev_b32 v{d}, 16, v{d}')
def mktag():
    A('''
s_waitcnt lgkmcnt(0)
s_mul_i32 s30, s28, 0x2c9277b5
s_add_u32 s30, s30, 0xac564b05
s_mul_i32 s31, s29, 0x0019660d
s_add_u32 s31, s31, 0x3c6ef35f
''')
lbl = [0]
def newlabel(p):
    lbl[0] += 1
    return f'L_{p}_{lbl[0]}'

def tagcheck(pairs):
    A(f'v_cmp_ne_u64 vcc, s[30:31], v[{pairs[0]}:{pairs[0]+1}]')
    tm = [(20, 21), (22, 23)]
    pend = []
    for i, p in enumerate(pairs[1:]):
        t = tm[i % 2]
        if len(pend) == 2:
            q = pend.pop(0); A(f's_or_b64 vcc, vcc, s[{q[0]}:{q[1]}]')
        A(f'v_cmp_ne_u64 s[{t[0]}:{t[1]}], s[30:31], v[{p}:{p+1}]')
        pend.append(t)
    for q in pend: A(f's_or_b64 vcc, vcc, s[{q[0]}:{q[1]}]')

def spin(body, sleep=0, retry=None, entry=None):
    top = newlabel('spin'); done = newlabel('sdone')
    A(f's_mov_b32 s70, {SPIN}')
    if entry: A(f's_branch {entry}')
    A(f'{top}:')
    body()
    A('s_nop 0')
    A(f's_cbranch_vccz {done}')
    if sleep: A(f's_sleep {sleep}')
    if retry: retry()
    A('s_sub_u32 s70, s70, 1')
    A(f's_cbranch_scc0 {top}')
    if opt['trap']:
        A(f's_lshl_b32 s99, s2, 8\ns_or_b32 s99, s99, s3\ns_lshl_b32 s99, s99, 8\ns_or_b32 s99, s99, {lbl[0] & 255}')
        A(f'v_mov_b32 v166, {4 * (lbl[0] % 64)}\nv_mov_b32 v167, s99')
        A('global_store_dword v166, v167, s[56:57]')
    A(f'{done}:')
def spin2(body, sleep=0, retry=None, local_only=False, entry=None):
    A(f's_mov_b32 s16, s32\ns_mov_b32 s17, s33\ns_mov_b32 s18, {WSN}\ns_mov_b32 s19, 0x20000')
    def rt():
        if retry: retry()
        A('s_and_b32 s99, s70, 7')
        if local_only:
            A('s_cmp_eq_u32 s46, 1')
            A('s_cselect_b32 s99, 1, s99')
            A('s_cmp_lg_u32 s99, 0')
        A('s_cselect_b32 s16, s32, s24')
        A('s_cselect_b32 s17, s33, s25')
    spin(body, sleep, rt, entry)

def freepoll(issue, check, nchk, done, bound=None):
    top = newlabel('fp')
    A(f's_mov_b32 s70, {SPIN}')
    A(f'{top}:')
    issue()
    for k in range(nchk):
        check()
        A('s_nop 0')
        A(f's_cbranch_vccz {done}')
    A(f"s_waitcnt vmcnt({bound or opt['frb']})")
    A('s_sub_u32 s70, s70, 1')
    A(f's_cbranch_scc0 {top}')
    if not opt['ool']: A(f's_branch {done}')

def lds_wait_ge(off, n, sleep, dst=4, adr=1):
    A(f'v_mov_b32 v{adr}, 0')
    def body():
        A(f'ds_read_b32 v{dst}, v{adr} offset:{off}')
        A('s_waitcnt lgkmcnt(0)')
        A(f'v_cmp_gt_u32 vcc, {n}, v{dst}')
    spin(body, sleep=sleep)
def get_mode(dst=4, adr=1):
    lds_wait_ge(CNT + 8, 1, 2, dst, adr)
    A(f'v_readfirstlane_b32 s46, v{dst}')
def pad(k):
    if not opt['al']: return
    A('.p2align 7')
    for i in range(opt[f'p{k}']): A('s_endpgm')
def get_pref(sleep, dst=4, adr=1):
    lds_wait_ge(PREF, 1, sleep, dst, adr)
    A(f'v_readfirstlane_b32 s47, v{dst}')

outline = []
def publish(stores):
    def emit(srdn, fl, AA):
        cur = ALL
        for m, line in stores:
            m = ALL if m is None else m
            if m != cur:
                if m == ALL: AA('s_mov_b64 exec, -1')
                else: AA(f's_mov_b32 exec_lo, 0x{m & 0xffffffff:x}\ns_mov_b32 exec_hi, 0x{m >> 32:x}')
                cur = m
            AA(line.replace('@', f's[{srdn}:{srdn+3}]') + fl)
        if cur != ALL: AA('s_mov_b64 exec, -1')
    if not opt['forceslow']: emit(32, '', A)
    slow = newlabel('slow'); back = newlabel('back')
    A('s_cmp_lg_u32 s46, 1')
    A(f's_cbranch_scc1 {slow}')
    A(f'{back}:')
    blk = [f'{slow}:']
    emit(24, ' sc1', lambda t: blk.append(t))
    blk.append('s_nop 1')
    blk.append(f's_branch {back}')
    outline.append('\n'.join(blk))

GST = 3072 * 64
GOFF = [60, 61, 62, 63, 64, 65, 66, 67]
KO = [4, 5, 6, 7, 0, 1, 2, 3] if opt['kord'] else list(range(8))
HA, HB = (16, 0) if opt['vord'] else (0, 16)
assert opt['pro'] == 2
if opt['pro'] == 2:
    A(f"""
{'s_memrealtime s[84:85]' if opt['stst'] else ''}
s_load_dwordx2 s[8:9], s[0:1], 8
v_readfirstlane_b32 s3, v0
s_lshr_b32 s79, s2, 6
s_cmp_gt_u32 s79, 3
s_cbranch_scc1 L_end
s_lshr_b32 s3, s3, 6
s_cmp_gt_u32 s3, 3
s_cbranch_scc1 L_str
{('s_cmp_ge_u32 s2, %d' % opt['cpw'] + chr(10) + 's_cbranch_scc1 L_helper0') if opt['cpw'] else ''}
s_getpc_b64 s[20:21]
L_pc0:
v_lshlrev_b32 v8, 7, v0
v_min_u32 v8, L_codeend-L_pc0-4, v8
global_load_dword v166, v8, s[20:21]
s_branch L_helper0
L_str:
s_and_b32 s4, s2, 7
s_lshr_b32 s6, s2, 7
s_bfe_u32 s7, s2, 0x40003
s_lshl1_add_u32 s6, s4, s6
s_lshl_b32 s6, s6, 10
s_lshl1_add_u32 s{GOFF[KO[0]]}, s7, s6
s_addk_i32 s{GOFF[KO[0]]}, {895 + 1024 * (HB if KO[0] else HA)}
s_mulk_i32 s{GOFF[KO[0]]}, 12288
v_lshlrev_b32 v3, 4, v0
v_lshrrev_b32 v2, 3, v0
v_lshl_add_u32 v1, v2, 8, v3
s_lshl_b32 s10, 3, 27
s_mov_b32 s11, 0x20000
s_waitcnt lgkmcnt(0)
""")
else:
    A("""
s_load_dwordx2 s[8:9], s[0:1], 8
s_lshr_b32 s79, s2, 6
s_cmp_gt_u32 s79, 3
s_cbranch_scc1 L_end
v_readfirstlane_b32 s3, v0
s_and_b32 s4, s2, 7
s_lshl2_add_u32 s6, s4, s79
s_bfe_u32 s7, s2, 0x30003
s_lshr_b32 s73, s3, 6
s_cmp_gt_u32 s73, 7
s_cbranch_scc1 L_helper0
s_lshl_b32 s60, s6, 9
s_add_u32 s60, s60, s7
s_addk_i32 s60, 448
s_mulk_i32 s60, 24576
v_lshlrev_b32 v3, 4, v0
v_lshrrev_b32 v2, 3, v0
v_lshl_add_u32 v1, v2, 8, v3
s_lshl_b32 s10, 3, 27
s_mov_b32 s11, 0x20000
s_waitcnt lgkmcnt(0)
""")
if opt['stst']: A('s_memrealtime s[86:87]')
if opt['kb']: A('s_barrier')
for j in range(3): A(f'buffer_load_dwordx4 v[{16+12*KO[0]+4*j}:{19+12*KO[0]+4*j}], v1, s[8:11], s{GOFF[KO[0]]} offen offset:{128*j} nt')
def prologue2():
    A("""
s_load_dwordx16 s[36:51], s[0:1], 0
s_load_dwordx8 s[52:59], s[0:1], 64
""")
    stamp(0)
    if opt['dbg']: A('s_memrealtime s[80:81]')
A("""
s_branch L_stream0
L_helper0:
""")
prologue2()
CPF = 's_getpc_b64 s[20:21]\nL_pc0:\nv_lshlrev_b32 v8, 7, v0\nv_add_u32 v9, 8192, v8\nv_min_u32 v9, L_codeend-L_pc0-4, v9\nglobal_load_dword v10, v8, s[20:21]\nglobal_load_dword v11, v9, s[20:21]\nv_add_u32 v9, 16384, v8\nv_min_u32 v9, L_codeend-L_pc0-4, v9\nglobal_load_dword v30, v9, s[20:21]\n'
if opt['cps']:
    n = opt['cps']; nw = -(-136 // n)
    CPF = f's_getpc_b64 s[20:21]\nL_pc0:\ns_lshr_b32 s22, s2, 3\n'
    if nw < 32: CPF += f's_mul_i32 s23, s22, {(65536 + nw - 1) // nw}\ns_lshr_b32 s23, s23, 16\ns_mul_i32 s23, s23, {nw}\ns_sub_u32 s22, s22, s23\n'
    CPF += f's_mul_i32 s22, s22, {128 * n}\ns_min_u32 s22, s22, L_codeend-L_pc0-{128 * (n - 1) + 4}\ns_add_u32 s20, s20, s22\ns_addc_u32 s21, s21, 0\n'
    for i in range(n): CPF += f's_load_dword s{80 + i}, s[20:21], {128 * i}\n'
if opt['pro'] == 2: CPF = ''
W3 = f"""
{'' if opt['cps'] else CPF}v_lshlrev_b32 v1, 3, v0
v_mov_b32 v4, 0
v_mov_b32 v5, 0
ds_write_b64 v1, v[4:5] offset:{QF}
s_waitcnt lgkmcnt(0)
s_memrealtime s[62:63]
s_barrier
s_load_dwordx2 s[28:29], s[58:59], {EP}
{CPF if opt['cps'] else ''}s_branch L_ids
"""
QE = f"""
v_lshrrev_b32 v2, 3, v0
v_mul_u32_u24 v2, 12160, v2
v_lshl_add_u32 v2, v0, 4, v2
s_mul_i32 s68, s7, {80*96}
s_lshr_b32 s69, s79, 1
s_mul_i32 s69, s69, {HB - HA - 2}
s_add_u32 s69, s69, s79
s_lshl1_add_u32 s69, s4, s69
s_add_u32 s69, s69, {HA}
s_mul_i32 s69, s69, 3
s_add_u32 s68, s68, s69
s_add_u32 s68, s68, s3
s_lshl_b32 s68, s68, 7
s_lshl_b32 s69, 3, 15
s_mov_b32 s10, {640*6144*2}
s_mov_b32 s11, 0x20000
s_waitcnt lgkmcnt(0)
s_mov_b64 s[8:9], s[42:43]
"""
for r in range(10):
    if r == opt['qb']: QE += 's_barrier\n'
    QE += f'buffer_load_dwordx4 v[{24+4*r}:{27+4*r}], v2, s[8:11], s68 offen nt\n'
    if r < 9: QE += 's_add_u32 s68, s68, s69\n'
QE += 's_branch L_helper\n'
if opt['pro'] == 2: A('s_and_b32 s4, s2, 7\ns_lshl2_add_u32 s6, s4, s79\ns_bfe_u32 s7, s2, 0x30003')
else: A('s_sub_u32 s3, s73, 8')
A('v_and_b32 v0, 63, v0\ns_cmp_lg_u32 s3, 3')
if opt['qe'] == 0: A('s_cbranch_scc1 L_helper' + W3)
elif opt['qe'] == 1: A('s_cbranch_scc1 L_qe' + W3 + 'L_qe:' + QE)
else: A('s_cbranch_scc0 L_w3' + QE + 'L_w3:' + W3)
A('L_stream0:')
prologue2()
if opt['trace']: A('s_memrealtime s[20:21]')
A(f"""
v_and_b32 v0, 63, v0
{'s_sub_u32 s73, s3, 4' if opt['pro'] == 2 else 's_add_u32 s3, s73, 4'}
v_and_b32 v3, 0x70, v3
s_lshl2_add_u32 s6, s4, s79
s_and_b32 s7, s7, 7
""")

QR = 4; KR = 16
def op_addr(late):
    A(f'''
v_min_u32 v12, 47, v0
v_lshrrev_b32 v13, 3, v12
v_lshlrev_b32 v13, 11, v13
v_and_b32 v14, 1, v12
v_lshl_add_u32 v13, v14, 10, v13
v_bfe_u32 v14, v12, 1, 2
v_lshl_add_u32 v13, v14, 8, v13
v_lshlrev_b32 v12, 4, v12
s_lshr_b32 s74, s2, 7
s_lshl2_add_u32 s74, s4, s74
s_mul_i32 s74, s74, 12288
s_bfe_u32 s69, s2, 0x40003
s_lshl4_add_u32 s74, s69, s74
s_add_u32 s74, s74, {OP + late * 12288}
s_mov_b32 s22, 0x55555555
s_mov_b32 s23, 0x55555555
v_mov_b32 v14, s30
v_mov_b32 v15, s31
''')
def pkadd(d, a, b):
    for e in (0, 2): A(f'v_pk_add_f32 v[{d+e}:{d+e+1}], v[{a+e}:{a+e+1}], v[{b+e}:{b+e+1}]')
def op_publish():
    for w in range(0, 8, 2):
        A(f's_waitcnt lgkmcnt({6-w})')
        pkadd(16 + 4*w, 16 + 4*w, 20 + 4*w)
        if w == 2 or w == 6: pkadd(8 + 4*w, 8 + 4*w, 16 + 4*w)
    pkadd(4, 16, 32)
    A('''
v_cvt_pk_bf16_f32 v8, v4, v5
v_cvt_pk_bf16_f32 v9, v6, v7
v_cndmask_b32 v4, v8, v14, s[22:23]
v_cndmask_b32 v5, v9, v15, s[22:23]
v_cndmask_b32 v6, v14, v8, s[22:23]
v_cndmask_b32 v7, v15, v9, s[22:23]
''')
    publish([((1 << 48) - 1, 'buffer_store_dwordx4 v[4:7], v13, @, s74 offen')])
def stream(G, D1, D2, Vpre):
    SC = 168 - G
    VR = KR + 12 * G
    nV1 = min((SC - VR) // 12, G)
    ACC = KR + 12 * (G - 2)
    T = ACC
    ACA = ACC - 24
    QR2 = VR + 36; assert Vpre <= 9
    half = (G + 1) // 2
    st = dict(n=0)
    def vreg(g): return VR + 12 * g if g < nV1 else KR + 12 * (g - nV1)
    CTL = bool(opt['cal'])
    def issue_load(kind, g, j, depth):
        n = st['n']
        if CTL and n >= opt['cfrom']:
            go = newlabel('go')
            A('s_waitcnt lgkmcnt(0)\ns_lshl_b32 s75, s76, 4\ns_sub_u32 s75, s75, s78\ns_and_b32 s75, s75, s72\ns_add_u32 s78, s78, s79')
            if opt['lag2']: A(f"s_waitcnt vmcnt({depth+1})\ns_cmp_gt_i32 s75, {opt['lag2']}\ns_cbranch_scc1 {go}")
            A(f"s_waitcnt vmcnt({depth})\ns_cmp_gt_i32 s75, {opt['lag']}\ns_cbranch_scc1 {go}")
            A(f's_waitcnt vmcnt({depth-1})\ns_cmp_ge_i32 s75, 0\ns_cbranch_scc1 {go}\ns_waitcnt vmcnt({depth-2})')
            if opt['hard']: A(f"s_cmp_ge_i32 s75, {-opt['hard']}\ns_cbranch_scc1 {go}\ns_waitcnt vmcnt({depth-3})")
            A(f'{go}:')
        elif n >= max(depth, opt['Dinit']): A(f's_waitcnt vmcnt({depth-1})')
        r = (KR + 12 * g + 4 * j) if kind == 'K' else vreg(g) + 4 * j
        s = 8 if kind == 'K' else 12
        if opt['meas'] and n in (11, 23, 35, 47): A(f's_memrealtime s[{84 + 2 * (n // 12)}:{85 + 2 * (n // 12)}]')
        if opt['stst'] and n in (3, 6): A(f's_memrealtime s[{88 if n == 3 else 90}:{89 if n == 3 else 91}]')
        if n >= 3: A(f'buffer_load_dwordx4 v[{r}:{r+3}], v1, s[{s}:{s+3}], s{GOFF[g]} offen offset:{128*j} nt')
        if opt['trace'] or (CTL and (opt['cfrom'] - 1 <= n < 47 or n == opt['mst'])): A('s_memrealtime s[76:77]')
        if opt['trace'] and n >= 3:
            A(f's_waitcnt lgkmcnt(0)\ns_sub_u32 s75, s76, s20\ns_lshl_b32 s77, s73, 8\nv_mov_b32 v6, s77\nv_mov_b32 v7, s75\nds_write_b32 v6, v7 offset:{TRL + 4*n}')
        if CTL and n == opt['mst']:
            A(f'''
s_waitcnt lgkmcnt(0)
v_mov_b32 v6, 0
v_mov_b32 v8, s76
v_mov_b32 v9, 1
s_mov_b64 exec, 1
ds_add_u32 v6, v8 offset:{SUMS}
ds_add_u32 v6, v9 offset:{SUMS+4}
s_mov_b64 exec, -1
''')
        if CTL and opt['mst2'] and n == opt['mst2']:
            A(f's_waitcnt lgkmcnt(0)\nv_mov_b32 v6, s76\ns_mov_b64 exec, 1\nds_add_u32 v2, v6 offset:{SUMS2}\nds_add_u32 v2, v11 offset:{SUMS2+4}\ns_mov_b64 exec, -1')
        if CTL and opt['mst2'] and n == opt['p2t']:
            A(f's_mov_b64 exec, 1\nds_add_u32 v2, v11 offset:{TRG2}\ns_mov_b64 exec, -1')
        if CTL and n in (opt['cfrom'] - 1, opt['cfrom'] - 1 + opt['pick2']) + ((opt['c2'] - 1, opt['c2'] + 1) if opt['mst2'] else ()):
            A(f'''
v_mov_b32 v6, 0
ds_read_b64 v[6:7], v6 offset:{ORG}
s_movk_i32 s79, {opt['tau0']}
s_waitcnt lgkmcnt(0)
v_readfirstlane_b32 s78, v6
v_readfirstlane_b32 s72, v7
s_add_u32 s78, s78, {(n - opt['mst']) * opt['tau0']}
''')
        if CTL and n == opt['pftrig']:
            A(f'v_mov_b32 v6, 0\nv_mov_b32 v7, 1\ns_mov_b64 exec, 1\nds_add_u32 v6, v7 offset:{CNT+52}\ns_mov_b64 exec, -1')
        st['n'] += 1
    goff = lambda g: (HB if g >= 4 else HA) * 12582912 + (g & 3) * 2 * GST
    for gi, g in enumerate(KO):
        for j in range(3):
            issue_load('K', g, j, D1)
            if j == 2 and gi + 1 < G:
                A(f's_add_u32 s{GOFF[KO[gi+1]]}, s{GOFF[g]}, {(goff(KO[gi+1]) - goff(g)) & 0xffffffff}')
            if st['n'] == opt['Dinit']: A('s_waitcnt lgkmcnt(0)' + ('' if opt['kb'] else '\ns_barrier'))
            if st['n'] == opt['Dinit'] + 1:
                A(f's_load_dwordx2 s[28:29], s[58:59], {EP}')
                ws_srds(); srd(12, 40, 402653184)
    stamp(1)
    nv = 0; NV = 3 * G
    for n in range(min(Vpre, 3 * nV1)):
        issue_load('V', nv // 3, nv % 3, D2); nv += 1
    stamp(2)
    mktag()
    A('v_and_b32 v2, 3, v0\nv_min_u32 v2, 2, v2\nv_lshlrev_b32 v2, 3, v2')
    def body():
        A(f'ds_read_b32 v{QR}, v2 offset:{QF}')
        A('s_waitcnt lgkmcnt(0)')
        A(f'v_cmp_eq_u32 vcc, 0, v{QR}')
    spin(body, sleep=1)
    stamp(3)
    A(f'''
ds_read_b128 v[{QR}:{QR+3}], v3 offset:{QL}
ds_read_b128 v[{QR+4}:{QR+7}], v3 offset:{QL+128}
ds_read_b128 v[{QR+8}:{QR+11}], v3 offset:{QL+256}
ds_read_b128 v[{QR2}:{QR2+3}], v3 offset:{QL2}
ds_read_b128 v[{QR2+4}:{QR2+7}], v3 offset:{QL2+128}
ds_read_b128 v[{QR2+8}:{QR2+11}], v3 offset:{QL2+256}
''')
    for g in range(G): A(f'v_mov_b32 v{SC+g}, 0')
    A(f's_waitcnt vmcnt({nv}) lgkmcnt(0)')
    for gs in (range(half), range(half, G)):
        for i in range(12):
            for g in gs:
                A(f'v_dot2c_f32_bf16 v{SC+g}, v{KR+12*g+i}, v{(QR if g < 4 else QR2)+i}')
    allreduce8('v_add_f32', [SC + g for g in range(G)])
    A(f's_mov_b32 s68, {f32(192 ** -0.5)}')
    A('v_mov_b32 v2, 0')
    for g in range(G): A(f'v_cvt_pk_bf16_f32 v{SC+g}, v2, v{SC+g}')
    for g in range(G): A(f'v_mul_f32 v{SC+g}, s68, v{SC+g}')
    for g in range(G): A(f'v_cvt_pk_bf16_f32 v{SC+g}, v2, v{SC+g}')
    for h in range(2):
        A(f'v_max_f32 v{4+2*h}, v{SC+4*h}, v{SC+4*h+1}')
    for h in range(2):
        A(f'v_max3_f32 v{4+2*h}, v{4+2*h}, v{SC+4*h+2}, v{SC+4*h+3}')
    for h in range(2): A(f'v_max_f32_dpp v{4+2*h}, v{4+2*h}, v{4+2*h} row_ror:8 {DPPM}')
    allreduce_rows('v_max_f32', [4, 6], [T, T + 1])
    A(f's_mov_b32 s68, {f32(LOG2E)}')
    for g in range(G): A(f'v_sub_f32 v{SC+g}, v{SC+g}, v{4 if g < 4 else 6}')
    for g in range(G): A(f'v_mul_f32 v{SC+g}, s68, v{SC+g}')
    for g in range(G): A(f'v_exp_f32 v{SC+g}, v{SC+g}')
    for h in range(2): A(f'v_add_f32 v{5+2*h}, v{SC+4*h}, v{SC+4*h+1}')
    for k in (2, 3):
        for h in range(2): A(f'v_add_f32 v{5+2*h}, v{5+2*h}, v{SC+4*h+k}')
    for h in range(2): A(f'v_add_f32_dpp v{5+2*h}, v{5+2*h}, v{5+2*h} row_ror:8 {DPPM}')
    allreduce_rows('v_add_f32', [5, 7], [T, T + 1])
    A(f'''
s_lshl_b32 s69, s73, 4
v_mov_b32 v{T}, s69
ds_write_b128 v{T}, v[4:7] offset:{SL}
''')
    stamp(4)
    for g in range(G): A(f'v_cvt_pk_bf16_f32 v{SC+g}, v{SC+g}, v2')
    for i in range(48): A(f'v_mov_b32 v{ACA+i}, 0')
    A('v_mov_b32 v5, v6')
    A('''
v_and_b32 v8, 7, v0
v_lshlrev_b32 v8, 5, v8
v_lshrrev_b32 v9, 4, v0
v_lshl_add_u32 v8, v9, 3, v8
s_mul_i32 s69, s73, 768
v_add_u32 v8, s69, v8
v_mov_b32 v11, 1
''')
    def scale_factor():
        def body():
            A(f'ds_read_b128 v[12:15], v3 offset:{SL}')
            A('s_waitcnt lgkmcnt(0)')
            A('v_cmp_eq_u32 vcc, 0, v15')
        spin(body, sleep=1)
        allreduce8('v_max_f32', [12, 14])
        A('v_sub_f32 v4, v4, v12\nv_sub_f32 v5, v5, v14\nv_mul_f32 v4, s68, v4\nv_mul_f32 v5, s68, v5\nv_exp_f32 v4, v4\nv_exp_f32 v5, v5')
        get_mode(dst=13, adr=2)
        op_addr(2)
    def reduce_j(j, ac, f, ol):
        a = ac + 8 * j
        for e in range(4): A(f'{S32} v{a+e}, v{a+e+4}')
        for e in range(4): A(f'v_add_f32 v{a+e}, v{a+e}, v{a+e+4}')
        for e in range(2): A(f'{S16} v{a+e}, v{a+e+2}')
        for e in range(2): A(f'v_add_f32 v{a+e}, v{a+e}, v{a+e+2}')
        for e in range(2): A(f'v_add_f32_dpp v{a+e}, v{a+e}, v{a+e} row_ror:8 {DPPM}')
        for e in range(2): A(f'v_mul_f32 v{a+e}, v{f}, v{a+e}')
        A(f'ds_write_b64 v8, v[{a}:{a+1}] offset:{ol+256*j}')
    def pv(idx):
        g, j = divmod(idx, 3)
        r = vreg(g) + 4 * j
        if j == 0: A(f'v_lshlrev_b32 v10, 16, v{SC+g}')
        ac = ACA if g < 4 else ACC
        if idx == 9: scale_factor()
        for e in range(4):
            A(f'v_dot2c_f32_bf16 v{ac+8*j+2*e}, v{r+e}, v{SC+g}')
            A(f'v_dot2c_f32_bf16 v{ac+8*j+2*e+1}, v{r+e}, v10')
        if g & 3 == 3: reduce_j(j, ac, 4 if g < 4 else 5, OLA if g < 4 else OL)
        if idx == 11: A(f's_mov_b64 exec, 1\nds_add_u32 v2, v11 offset:{CNT+12}\ns_mov_b64 exec, -1')
    done_idx = -1; pv_next = 0
    while nv < NV:
        issue_load('V', nv // 3, nv % 3, D2)
        done_idx = nv - D2 - ((2 if opt['lag2'] else 1) if CTL else 0)
        nv += 1
        if nv == NV - opt['wtrig']:
            A(f's_mov_b64 exec, 1\nds_add_u32 v2, v11 offset:{CNT+4}\ns_mov_b64 exec, -1')
        cnt = 0
        while pv_next <= done_idx and cnt < 2:
            pv(pv_next); pv_next += 1; cnt += 1
    while pv_next < NV:
        if pv_next > done_idx:
            A(f's_waitcnt vmcnt({NV - 1 - pv_next})')
            done_idx = pv_next
        pv(pv_next); pv_next += 1
    stamp(5)

stream(8, D1, D2, opt['Vpre'])
A(f'''
s_mov_b64 exec, 1
ds_add_rtn_u32 v10, v2, v11 offset:{CNT}
s_mov_b64 exec, -1
''')
for w in range(8): A(f'ds_read_b128 v[{16+4*w}:{19+4*w}], v12 offset:{OL+768*w}')
A('''
s_waitcnt lgkmcnt(8)
v_readfirstlane_b32 s68, v10
s_cmp_lg_u32 s68, 7
s_cbranch_scc1 L_nopub
''')
op_publish()
A(f'ds_write_b32 v2, v11 offset:{CNT+28}')
stamp_now(16)
A('L_nopub:')
if opt['dbgs']:
    a, b = [(0, 0), (86, 84), (88, 86), (90, 86)][opt['dbgs']]
    A(f's_waitcnt lgkmcnt(0)\ns_sub_u32 s68, s{a}, s{b}\nv_mov_b32 v16, s68\ns_mov_b64 exec, 1\nds_add_u32 v2, v16 offset:{CNT+36}\ns_mov_b64 exec, -1\ns_waitcnt lgkmcnt(0)')
elif opt['stst'] or opt['meas']:
    A(f'''
s_waitcnt lgkmcnt(0)
v_mov_b32 v16, s84
v_mov_b32 v17, s86
v_mov_b32 v18, s88
v_mov_b32 v19, s90
s_lshl3_add_u32 s68, s2, s73
s_lshl_b32 s68, s68, 4
s_add_u32 s68, s68, {0x380000}
s_mov_b64 exec, 1
buffer_store_dwordx4 v[16:19], v2, s[24:27], s68 offen
s_mov_b64 exec, -1
s_nop 2
''')
if opt['sprio']: A('s_setprio 0')
A('s_waitcnt lgkmcnt(0)')
if opt['trace']:
    A(f'''
s_lshl_b32 s68, s73, 8
v_lshl_add_u32 v16, v0, 2, s68
ds_read_b32 v17, v16 offset:{TRL}
s_lshl_b32 s68, s2, 11
s_add_u32 s68, s68, {0x380000}
s_waitcnt lgkmcnt(0)
buffer_store_dword v17, v16, s[24:27], s68 offen
s_nop 2
''')
stamp(6)
A('''
s_cmp_lt_u32 s5, 20
s_cbranch_scc1 L_notf1
s_cmp_lt_u32 s5, 30
s_cbranch_scc1 L_f1
s_branch L_spare
L_notf1:
s_cmp_gt_u32 s5, 11
s_cbranch_scc1 L_stream_exit
s_cmp_gt_u32 s3, 6
s_cbranch_scc1 L_f2
s_branch L_dry
L_stream_exit:
''')
if STAMPS:
    A(f"s_cmp_eq_u32 s3, {opt['swave']}")
    A('s_cbranch_scc0 L_end')
    stamp(7)
    write_stamps(8)
A('s_endpgm')

A('L_helper:')
A('s_setprio 3')
A('''
v_lshlrev_b32 v1, 2, v0
v_lshrrev_b32 v2, 3, v0
s_mul_i32 s68, s7, 80
v_add_u32 v3, s68, v2
v_lshlrev_b32 v3, 1, v3
v_mul_u32_u24 v2, 12288, v2
v_and_b32 v7, 7, v0
v_lshl_add_u32 v2, v7, 4, v2
s_mul_i32 s68, s68, 12288
s_mul_i32 s69, s6, 384
s_add_u32 s68, s68, s69
s_lshl_b32 s69, s3, 7
s_add_u32 s68, s68, s69
''')
XS = 64; XU = 70; XR = 8; WQ = 24; QA = 80
A('s_waitcnt lgkmcnt(0)')
if opt['xs'] == 1:
    for i in range(10): A(f's_load_dword s{12+i}, s[36:37], {128*i}')
if not (opt['qe'] and opt['qb'] < 10): A('s_barrier')
srd(8, 42, 640 * 6144 * 2)
if opt['xs']:
    for r in range(0 if opt['qe'] else 10):
        A(f'buffer_load_dwordx4 v[{WQ+4*r}:{WQ+4*r+3}], v2, s[8:11], s68 offen nt')
        if r < 9: A('s_add_u32 s68, s68, 98304')
    if opt['xs'] == 1: A('s_waitcnt lgkmcnt(0)')
    for i in range(5): A(f'global_load_dword v{XS+i}, v1, s[36:37] offset:{256*i}' + (' nt' if opt['xnt'] else ''))
    for r in range(10): A(f'global_load_ushort v{XR+r}, v3, s[36:37] offset:{16*r}' + (' nt' if opt['xnt'] else ''))
else:
    for i in range(5): A(f'global_load_dword v{XS+i}, v1, s[36:37] offset:{256*i}' + (' nt' if opt['xnt'] else ''))
    for r in range(10): A(f'global_load_ushort v{XR+r}, v3, s[36:37] offset:{16*r}' + (' nt' if opt['xnt'] else ''))
    for r in range(10):
        A(f'buffer_load_dwordx4 v[{WQ+4*r}:{WQ+4*r+3}], v2, s[8:11], s68 offen nt')
        if r < 9: A('s_add_u32 s68, s68, 98304')
A(f's_load_dwordx2 s[28:29], s[58:59], {EP}')
A('s_mov_b32 s69, 0xffff0000')
ws_srds()
if opt['qpre']:
    A(f'''
v_lshlrev_b32 v91, 7, v0
s_lshl_b32 s64, s71, 11
s_lshl_b32 s65, s3, 9
s_add_u32 s64, s64, s65
s_mov_b64 exec, 15
buffer_load_dword v92, v91, s[32:35], s64 offen offset:{QP} nt
s_mov_b64 exec, -1
''')
mktag()
A(f"s_waitcnt vmcnt({(10 if opt['xs'] else 20) + (1 if opt['qpre'] else 0)})")
for i in range(5):
    A(f'v_lshlrev_b32 v{XU+2*i}, 16, v{XS+i}')
    A(f'v_and_b32 v{XU+1+2*i}, s69, v{XS+i}')
A(f'''
v_add_f32 v4, v{XU}, v{XU+1}
v_add_f32 v5, v{XU+2}, v{XU+3}
v_add_f32 v6, v{XU+4}, v{XU+5}
v_add_f32 v7, v{XU+6}, v{XU+7}
v_add_f32 v4, v4, v5
v_add_f32 v6, v6, v7
v_add_f32 v5, v{XU+8}, v{XU+9}
v_add_f32 v4, v4, v6
v_add_f32 v4, v4, v5
''')
allreduce64('v_add_f32', [4], [5])
A(f'v_mul_f32 v4, {f32(1.0/640)}, v4')
for i in range(10): A(f'v_sub_f32 v{XU+i}, v{XU+i}, v4')
A(f'v_mul_f32 v5, v{XU}, v{XU}')
for i in range(1, 10): A(f'v_fmac_f32 v5, v{XU+i}, v{XU+i}')
allreduce64('v_add_f32', [5], [6])
A(f'v_mul_f32 v5, {f32(1.0/640)}, v5')
bf16r(4, 4); bf16r(5, 5)
A(f'v_add_f32 v5, {f32(1e-5)}, v5')
bf16r(5, 5)
A('v_sqrt_f32 v5, v5')
bf16r(5, 5)
A('v_rcp_f32 v5, v5')
A('v_mov_b32 v6, 0')
A(f"s_waitcnt vmcnt({0 if opt['xs'] else 10})")
if opt['qpre'] & 2: A(f's_mov_b64 exec, 15\nbuffer_load_dword v92, v91, s[32:35], s64 offen offset:{QP} sc1\ns_mov_b64 exec, -1')
for r in range(10): A(f'v_lshlrev_b32 v{XR+r}, 16, v{XR+r}')
for r in range(10): A(f'v_sub_f32 v{XR+r}, v{XR+r}, v4')
for r in range(10): A(f'v_cvt_pk_bf16_f32 v{XR+r}, v6, v{XR+r}')
for r in range(10): A(f'v_mul_f32 v{XR+r}, v{XR+r}, v5')
for r in range(10):
    A(f'v_cvt_pk_bf16_f32 v{XU+r}, v6, v{XR+r}')
    A(f'v_cvt_pk_bf16_f32 v{XR+r}, v{XR+r}, v6')
for e in range(8): A(f'v_mov_b32 v{QA+e}, 0')
A('''
v_and_b32 v90, 7, v0
v_lshrrev_b32 v6, 4, v0
v_lshl_add_u32 v90, v90, 2, v6
v_lshlrev_b32 v90, 4, v90
s_lshl_b32 s64, s71, 11
s_lshl_b32 s69, s3, 9
s_add_u32 s64, s64, s69
''')
for r in range(10):
    if not opt['xs']: A(f's_waitcnt vmcnt({9-r})')
    for e in range(4):
        A(f'v_dot2c_f32_bf16 v{QA+2*e}, v{WQ+4*r+e}, v{XR+r}')
        A(f'v_dot2c_f32_bf16 v{QA+2*e+1}, v{WQ+4*r+e}, v{XU+r}')
if STAMPS: A('s_lshr_b32 s82, s2, 3\ns_add_u32 s82, s80, s82\ns_addc_u32 s83, s81, 0')
for e in range(4): A(f'{S32} v{QA+e}, v{QA+e+4}')
for e in range(4): A(f'v_add_f32 v{QA+e}, v{QA+e}, v{QA+e+4}')
for e in range(2): A(f'{S16} v{QA+e}, v{QA+e+2}')
for e in range(2): A(f'v_add_f32 v{QA+e}, v{QA+e}, v{QA+e+2}')
for e in range(2): A(f'v_add_f32_dpp v{QA+e}, v{QA+e}, v{QA+e} row_ror:8 {DPPM}')
A(f'v_mov_b32 v{QA+2}, s30\nv_mov_b32 v{QA+3}, s31')
QM = [0x00ff00ff00ff00ff, 0x000f000f000f000f, 0x0003000300030003][opt['qh']]
if not opt['forceslow']:
    setexec(QM)
    A(f'buffer_store_dwordx4 v[{QA}:{QA+3}], v90, s[32:35], s64 offen offset:{QP}')
    setexec(ALL)
A(f'''
v_and_b32 v3, {[31, 15, 7][opt['qh']]}, v0
v_lshrrev_b32 v2, 5, v0
v_lshlrev_b32 v2, 11, v2
v_lshl_add_u32 v2, v3, 4, v2
s_lshl_b32 s68, s6, 14
s_add_u32 s60, s68, s69
s_add_u32 s61, s60, 4096
s_add_u32 s62, s60, 8192
s_add_u32 s63, s60, 12288
v_lshlrev_b32 v3, 2, v3
s_lshl_b32 s69, s3, 7
v_add_u32 v3, s69, v3
v_mov_b32 v1, 0
s_mov_b32 s65, 0
''')
def q_lazy():
    skip = newlabel('qlazy')
    A(f'''
ds_read_b32 v4, v1 offset:{CNT+8}
s_waitcnt lgkmcnt(0)
v_readfirstlane_b32 s46, v4
s_sub_u32 s68, s46, s65
s_cmp_lg_u32 s68, 2
s_cbranch_scc1 {skip}
''')
    setexec(QM)
    A(f'buffer_store_dwordx4 v[{QA}:{QA+3}], v90, s[24:27], s64 offen offset:{QP} sc1')
    setexec(ALL)
    A(f's_mov_b32 s65, 1\n{skip}:')
def body():
    for n in range(4):
        A(f'buffer_load_dwordx4 v[{8+4*n}:{11+4*n}], v2, s[16:19], s{60+n} offen offset:{QP} sc1' + ('' if opt['qpre'] & 4 else ' nt'))
    A('s_waitcnt vmcnt(0)')
    tagcheck([10, 14, 18, 22])
A('''
s_add_u32 s68, s3, 5
s_cmp_lg_u32 s68, s7
s_cbranch_scc1 L_qwait
''')
spin2(body, sleep=opt['sleep'], retry=q_lazy)
stamp(2)
A(f'''
v_add_f32 v8, v8, v12
v_add_f32 v9, v9, v13
v_add_f32 v16, v16, v20
v_add_f32 v17, v17, v21
v_add_f32 v8, v8, v16
v_add_f32 v9, v9, v17
''')
swapreduce(S32, 'v_add_f32', [8, 9], [10, 11])
A(f'''
v_cvt_pk_bf16_f32 v8, v8, v9
s_lshl_b32 s66, s6, 14
s_lshl_b32 s68, s3, 11
s_add_u32 s66, s66, s68
v_mov_b32_dpp v9, v8 quad_perm:[1,0,3,2] {DPPM}
v_mov_b32 v10, s30
v_mov_b32 v11, s31
v_lshlrev_b32 v2, 3, v0
''')
get_mode()
publish([(0x55555555, f'buffer_store_dwordx4 v[8:11], v2, @, s66 offen offset:{QP + 1536}')])
A(f'''
s_branch L_qget
L_qwait:
s_sleep {opt['q2d']}
L_qget:
s_lshr_b32 s66, s2, 7
s_lshl2_add_u32 s66, s4, s66
s_lshl_b32 s66, s66, 14
s_lshl_b32 s68, s3, 11
s_add_u32 s66, s66, s68
v_and_b32 v2, 15, v0
v_bfe_u32 v5, v0, 4, 1
v_lshlrev_b32 v3, 3, v2
v_add_u32 v3, s69, v3
v_lshl_add_u32 v3, v5, 13, v3
v_lshlrev_b32 v2, 4, v2
v_lshl_add_u32 v2, v5, 15, v2
''')
assert QL2 - QL == 1 << 13
def body2():
    A(f'buffer_load_dwordx4 v[12:15], v2, s[16:19], s66 offen offset:{QP + 1536} sc1 nt')
    A('s_waitcnt vmcnt(0)')
    tagcheck([14])
spin2(body2, sleep=opt['q2s'], retry=q_lazy)
A(f'ds_write_b64 v3, v[12:13] offset:{QL}')
A(f'''
s_lshl_b32 s69, s3, 3
v_mov_b32 v4, s69
v_mov_b32 v6, 1
s_waitcnt lgkmcnt(0)
ds_write_b32 v4, v6 offset:{QF}
''')
get_mode()
q_lazy()
A('s_branch L_stats')
pad(1)
A('L_ids:')
A(f'''
s_setprio 3
s_getreg_b32 s64, hwreg(HW_REG_XCC_ID)
''')
ws_srds()
mktag()
A(f'''
s_and_b32 s64, s64, 15
v_mov_b32 v4, s30
v_mov_b32 v5, s31
v_mov_b32 v6, s64
v_mov_b32 v7, s64
s_lshl_b32 s68, s4, 9
s_add_u32 s68, s68, {ID}
s_lshr_b32 s65, s2, 3
s_lshl_b32 s69, s65, 4
v_mov_b32 v1, s69
s_mov_b64 exec, 1
buffer_store_dwordx4 v[4:7], v1, s[32:35], s68 offen
s_mov_b64 exec, -1
s_cmp_lg_u32 s65, {opt['lead']}
s_cbranch_scc1 L_noinit
v_lshlrev_b32 v12, 8, v0
s_lshl_b32 s69, s4, 15
s_add_u32 s69, s69, {PB}
''')
m = sum(1 << (k * 9 & 31) for k in range(opt['shots']))
setexec(m | m << 32)
A('buffer_store_dword v4, v12, s[24:27], s69 offen sc1\ns_mov_b64 exec, -1')
TLB = ''
if opt['tlb']:
    TLB = f'''
s_lshr_b32 s69, s2, 7
s_lshl1_add_u32 s69, s4, s69
s_mul_i32 s69, s69, 12582912
s_add_u32 s69, s69, {11010048 - 128}
v_and_b32 v14, 1, v0
v_mul_u32_u24 v14, 12288, v14
v_lshlrev_b32 v14, 14, v14
v_add_u32 v14, s69, v14
s_mov_b64 exec, 3
'''
    if opt['tlb'] & 1: TLB += 'global_load_dword v31, v14, s[38:39] nt\nglobal_load_dword v32, v14, s[40:41] nt\n'
    if opt['tlb'] & 2:
        TLB += f'''s_mul_i32 s69, s4, {2*192*1280}
v_and_b32 v14, 1, v0
v_mul_u32_u24 v14, {16*192*5}, v14
v_lshlrev_b32 v14, 8, v14
v_add_u32 v14, s69, v14
global_load_dword v33, v14, s[44:45] nt
s_mov_b64 exec, 1
v_mov_b32 v14, 0
global_load_dword v34, v14, s[48:49] nt
global_load_dword v35, v14, s[50:51] nt
global_load_dword v36, v14, s[52:53] nt
'''
    TLB += 's_mov_b64 exec, -1'
A(f'''
L_noinit:
{TLB}
v_and_b32 v1, 31, v0
v_lshlrev_b32 v1, 4, v1
s_mov_b32 s70, {opt['idtries']}
s_mov_b32 s46, 2
L_idpoll:
s_sleep {opt['idsleep']}
buffer_load_dwordx4 v[8:11], v1, s[32:35], s68 offen sc1{' nt' if opt['idnt'] else ''}
s_waitcnt vmcnt(0)
v_cmp_ne_u64 vcc, s[30:31], v[8:9]
s_nop 0
s_cbranch_vccz L_iddone
s_sub_u32 s70, s70, 1
s_cbranch_scc0 L_idpoll
s_branch L_idset
L_iddone:
v_cmp_ne_u32 vcc, s64, v10
s_nop 0
s_cbranch_vccnz L_idset
s_mov_b32 s46, {2 if opt['forceslow'] else 1}
L_idset:
v_mov_b32 v1, 0
v_mov_b32 v4, s46
ds_write_b32 v1, v4 offset:{CNT+8}
''')
A(f'''
s_cmp_lg_u32 s65, {opt['lead']}
s_cbranch_scc1 L_pf
s_lshl_b32 s69, s4, 15
s_add_u32 s69, s69, {PB}
s_add_u32 s22, s58, s69
s_addc_u32 s23, s59, 0
s_waitcnt lgkmcnt(0)
s_mov_b32 s8, -1
s_mov_b32 s9, -1
s_memtime s[12:13]
''')
for k in range(2 * opt['shots']):
    c = (k ^ (k >> 1)) & 1
    i = (k >> 1) * 9 & 31
    a, b = (12, 14) if k % 2 == 0 else (14, 12)
    A('s_waitcnt lgkmcnt(0)')
    A(f's_load_dword s10, s[22:23], {c * 8192 + i * 256}')
    A('s_waitcnt lgkmcnt(0)')
    A(f's_memtime s[{b}:{b+1}]')
    A('s_waitcnt lgkmcnt(0)')
    A(f's_sub_u32 s11, s{b}, s{a}')
    A(f's_min_u32 s{8+c}, s{8+c}, s11')
A(f'''
s_cmp_gt_u32 s8, s9
s_cselect_b32 s21, 1, 0
v_mov_b32 v4, s21
v_mov_b32 v5, s62
v_mov_b32 v6, s30
v_mov_b32 v7, s31
s_lshl_b32 s69, s4, 4
s_add_u32 s69, s69, {PF}
s_mov_b64 exec, 1
buffer_store_dwordx4 v[4:7], v1, s[24:27], s69 offen sc1
s_mov_b64 exec, -1
L_pf:
''')
RE = ['s_mov_b32 s66, s68\ns_mov_b32 s65, -1',
      f"s_add_u32 s68, s68, {16 * opt['e2'] - (opt['mst2'] - opt['mst']) * opt['tau0']}\ns_sub_u32 s69, s68, s66\ns_and_b32 s69, s69, s65\ns_cmp_lt_i32 s69, 0\ns_cbranch_scc1 L_nostat"]
def calibrate(k, SUMS, TRG, CAL, tries, out):
    A(f"s_cmp_lg_u32 s7, {opt['samp']}\ns_cbranch_scc1 L_nosample{k}\nv_mov_b32 v1, 0")
    def body():
        A(f'ds_read_b64 v[4:5], v1 offset:{SUMS}')
        A('s_waitcnt lgkmcnt(0)')
        A('v_cmp_gt_u32 vcc, 8, v5')
    spin(body, sleep=2)
    A(f'''
v_mov_b32 v5, s31
v_lshlrev_b32 v6, 9, v0
s_lshl_b32 s68, s6, 3
s_add_u32 s68, s68, {CAL}
s_mov_b64 exec, {(2 << tries) - 1}
buffer_store_dwordx2 v[4:5], v6, s[24:27], s68 offen sc1
s_mov_b64 exec, -1
L_nosample{k}:
''')
    lds_wait_ge(TRG, 8, 4, dst=12)
    A(f'''
s_add_u32 s60, s58, {CAL}
s_addc_u32 s61, s59, 0
s_mov_b32 s70, {tries}
L_calpoll{k}:
s_lshl_b32 s96, s62, 8
s_sub_u32 s96, 0, s96
s_mov_b32 s97, 0
''')
    for h in range(2):
        A(f's_load_dwordx16 s[8:23], s[60:61], {128*h}\ns_load_dwordx16 s[80:95], s[60:61], {128*h+64}\ns_waitcnt lgkmcnt(0)')
        for b in (8, 80):
            for i in range(8):
                A(f's_add_u32 s96, s96, s{b+2*i}\ns_cmp_lg_u32 s{b+2*i+1}, s31\ns_addc_u32 s97, s97, 0')
    A(f'''
s_cmp_eq_u32 s97, 0
s_cbranch_scc1 L_calok{k}
s_add_u32 s60, s60, 512
s_addc_u32 s61, s61, 0
s_sub_u32 s70, s70, 1
s_cbranch_scc1 {out}
s_sleep {opt['calsleep']}
s_branch L_calpoll{k}
L_calok{k}:
s_ashr_i32 s96, s96, 4
s_mov_b32 s68, {16 * opt['dC']}
s_cmp_lt_u32 s5, 30
s_cselect_b32 s68, {16 * opt['dB']}, s68
s_cmp_lt_u32 s5, 20
s_cselect_b32 s68, {16 * opt['dA']}, s68
s_lshl4_add_u32 s68, s62, s68
s_add_u32 s68, s68, s96
{RE[k]}
v_mov_b32 v12, s68
v_mov_b32 v13, -1
ds_write_b64 v1, v[12:13] offset:{ORG}
''')

A('s_mov_b32 s65, 0')
if opt['cal']: calibrate(0, SUMS, CNT + 52, CAL, opt['caltries'], 'L_stats')

A('L_stats:')
A('v_and_b32 v1, 7, v0\nv_lshlrev_b32 v1, 4, v1')
def body():
    A(f'ds_read_b128 v[4:7], v1 offset:{SL}')
    A('s_waitcnt lgkmcnt(0)')
    A('v_cmp_eq_u32 vcc, 0, v7')
spin(body, sleep=4)
A('s_cmp_lg_u32 s3, 3')
A('s_cbranch_scc1 L_nostat')
def combine_stats(red):
    A(f's_mov_b32 s68, {f32(LOG2E)}')
    A('v_mov_b32 v2, v4')
    red('v_max_f32', [2])
    A('v_sub_f32 v4, v4, v2\nv_mul_f32 v4, s68, v4\nv_exp_f32 v4, v4\nv_mul_f32 v3, v4, v5')
    red('v_add_f32', [3])
A('''
v_and_b32 v12, 8, v0
v_cmp_ne_u32 vcc, 0, v12
v_lshlrev_b32 v12, 6, v12
v_cndmask_b32 v4, v4, v6, vcc
v_cndmask_b32 v5, v5, v7, vcc
''')
combine_stats(allreduce8)
A(f'''
s_lshr_b32 s68, s2, 7
s_lshl2_add_u32 s68, s4, s68
s_bfe_u32 s69, s2, 0x40003
s_lshl4_add_u32 s68, s68, s69
s_lshl_b32 s68, s68, 4
s_add_u32 s68, s68, {ST}
v_mov_b32 v4, s30
v_mov_b32 v5, s31
''')
publish([(0x101, 'buffer_store_dwordx4 v[2:5], v12, @, s68 offen')])
A(f's_mov_b32 s68, {PF}')
def body():
    A('buffer_load_dwordx4 v[8:11], v1, s[24:27], s68 offen sc1')
    A('s_waitcnt vmcnt(0)')
    tagcheck([10])
spin(body, sleep=8)
A('''
v_cmp_ne_u32 vcc, 0, v8
s_nop 0
s_and_b32 s67, vcc_lo, 0xff
s_bitset1_b32 s67, 8
v_mov_b32 v4, s67
v_mov_b32 v1, 0
''')
if opt['dbg'] and not opt['dbgs']:
    A('v_subrev_u32 v9, s62, v9')
    allreduce8('v_min_i32', [9])
    A(f'v_add_u32 v9, s62, v9\nds_write_b32 v1, v9 offset:{CNT+36}')
A(f'ds_write_b32 v1, v4 offset:{PREF}')
if opt['cal'] and opt['mst2']: calibrate(1, SUMS2, TRG2, CAL + 2048, opt['tries2'], 'L_nostat')
A('L_nostat:')
A(f"s_cmp_lg_u32 s3, {5 if opt['abl'] & 2 else 2}\ns_cbranch_scc1 L_noa")
op_addr(0)
lds_wait_ge(CNT + 12, 8, 4)
if opt['apub']: lds_wait_ge(CNT + 4, opt['apub'], 2)
for w in range(8): A(f'ds_read_b128 v[{16+4*w}:{19+4*w}], v12 offset:{OLA+768*w}')
op_publish()
A('L_noa:')
A('s_cmp_lt_u32 s5, 20\ns_cbranch_scc0 L_helper_exit')
BW = 64
CF = 56
def tr_addr(dst, tmp):
    A(f'''
v_lshrrev_b32 v{dst}, 4, v0
v_lshlrev_b32 v{dst}, 10, v{dst}
v_bfe_u32 v{tmp}, v0, 2, 2
v_lshl_add_u32 v{dst}, v{tmp}, 7, v{dst}
v_and_b32 v{tmp}, 3, v0
v_lshl_add_u32 v{dst}, v{tmp}, 3, v{dst}
''')
A(f'''
s_cmp_ge_u32 s5, 10
s_cselect_b32 s76, 1, 0
s_mul_i32 s77, s76, 10
s_sub_u32 s77, s5, s77
s_lshr_b32 s78, s3, 1
v_and_b32 v2, 48, v0
s_lshl_b32 s68, s78, 6
v_add_u32 v22, s68, v2
v_lshlrev_b32 v60, 4, v0
s_lshl1_add_u32 s73, s4, s78
s_lshl1_add_u32 s73, s73, s76
s_lshl1_add_u32 s73, s73, s3
s_lshl_b32 s68, s78, 1
s_sub_u32 s73, s73, s68
s_mul_i32 s73, s73, 6144
s_add_u32 s73, s73, {OP}
s_add_u32 s74, s73, 4096
v_lshlrev_b32 v62, 2, v0
s_lshl_b32 s68, s3, 8
v_add_u32 v61, s68, v62
v_lshrrev_b32 v2, 5, v0
v_lshlrev_b32 v2, 11, v2
v_bfe_u32 v3, v0, 2, 3
v_lshl_add_u32 v2, v3, 4, v2
v_and_b32 v3, 1, v0
v_lshl_add_u32 v63, v3, 13, v2
s_lshr_b32 s75, s77, 1
s_lshl_b32 s75, s75, 14
s_and_b32 s68, s77, 1
s_lshl_b32 s68, s68, 12
s_add_u32 s75, s75, s68
s_lshl1_add_u32 s68, s4, s76
s_lshl_b32 s68, s68, 7
s_add_u32 s75, s75, s68
s_add_u32 s75, s75, {YP}
s_mov_b32 s8, 0x33333333
s_mov_b32 s9, 0x33333333
v_mov_b32 v50, s30
v_mov_b32 v51, s31
''')
tr_addr(24, 25)
A('s_mul_i32 s69, s3, 12288\nv_add_u32 v24, s69, v24')
A(f'''
s_cmp_lg_u32 s3, 0
s_cbranch_scc1 L_noc
s_lshl2_add_u32 s72, s4, s76
s_lshl_b32 s72, s72, 8
s_add_u32 s72, s72, {ST}
v_and_b32 v1, 15, v0
v_lshlrev_b32 v1, 4, v1
v_and_b32 v2, 16, v0
v_lshl_add_u32 v1, v2, 5, v1
''')
def body():
    A(f"s_sleep {opt['stsleep']}")
    A('buffer_load_dwordx4 v[4:7], v1, s[16:19], s72 offen sc1' + (' nt' if opt['idnt'] else ''))
    A('s_waitcnt vmcnt(0)')
    tagcheck([6])
spin2(body, local_only=True)
stamp(4)
combine_stats(allreduce16)
A(f'''
v_rcp_f32 v3, v3
v_and_b32 v1, 0x7c, v62
v_mul_f32 v4, v4, v3
v_mov_b32 v2, 0
v_mov_b32 v3, 1
ds_write_b32 v1, v4 offset:{CL}
ds_write_b32 v2, v3 offset:{CNT+24}
L_noc:
''')
lds_wait_ge(CNT + 24, 1, 2)
A(f'ds_read_b128 v[{CF}:{CF+3}], v22 offset:{CL}')
def wo_tr(ts):
    for t in ts:
        for u in range(4):
            r = BW + 4 * (4 * t + u)
            A(f'ds_read_b64_tr_b16 v[{r}:{r+1}], v24 offset:{WL + 4096*t + 32*u}')
            A(f'ds_read_b64_tr_b16 v[{r+2}:{r+3}], v24 offset:{WL + 4096*t + 32*u + 512}')
AO = 144
def op_loads(srdn, fl=''):
    stamp(2)
    for n in range(6):
        A(f'buffer_load_dwordx4 v[{AO+4*n}:{AO+4*n+3}], v60, s[{srdn}:{srdn+3}], s{73 + n // 4} offen offset:{1024*(n%4)} sc1' + fl)
srd(12, 44, 6144 * 640 * 2)
A(f'''
v_lshrrev_b32 v21, 3, v0
v_mul_u32_u24 v21, 1280, v21
v_and_b32 v3, 7, v0
v_lshl_add_u32 v21, v3, 4, v21
s_lshl1_add_u32 s60, s4, s76
s_mul_i32 s68, s78, {HB - HA}
s_add_u32 s60, s60, s68
s_add_u32 s60, s60, {HA}
s_and_b32 s68, s3, 1
s_lshl1_add_u32 s60, s60, s68
s_mul_i32 s60, s60, {96*1280}
s_lshl_b32 s69, s77, 7
s_add_u32 s60, s60, s69
s_mul_i32 s61, s3, 12288
s_add_u32 s61, s61, {WL}
''')
A('v_mov_b32 v23, 1\ns_lshl_b32 s68, s3, 2\nv_mov_b32 v25, s68')
get_pref(4)
lds_wait_ge(CNT + 4, 8, 2)
stamp(3)
A('s_cmp_lg_u32 s78, 0\ns_cbranch_scc1 L_nofirst')
if opt['abl'] & 1:
    for t in range(3):
        for r in (0, 6): A(f'v_mov_b32 v{AO+8*t+r}, s30\nv_mov_b32 v{AO+8*t+r+1}, s31')
elif not opt['atrig']: op_loads(32, ' nt' if opt['ant'] else '')
A('L_nofirst:')
for n in range(12):
    if n >= opt['DWF']: A(f"s_waitcnt vmcnt({opt['DWF']-1})")
    A('s_mov_b32 m0, s61')
    A('buffer_load_dwordx4 v21, s[12:15], s60 offen nt lds')
    if n < 11: A(f's_add_u32 s60, s60, {8*1280}\ns_add_u32 s61, s61, 1024')
    if opt['atrig'] and n == opt['atrig'] - 1:
        A('s_cmp_lg_u32 s78, 0\ns_cbranch_scc1 L_nofirst2')
        op_loads(32, ' nt' if opt['ant'] else '')
        A('L_nofirst2:')
if opt['atrig'] == 15:
    A('s_cmp_lg_u32 s78, 0\ns_cbranch_scc1 L_s2')
    op_loads(32, ' nt' if opt['ant'] else '')
    A('s_waitcnt vmcnt(10)\ns_branch L_s3\nL_s2:\ns_waitcnt vmcnt(4)\nL_s3:')
else: A('s_waitcnt vmcnt(4)')
if opt['atrig'] == 14:
    A('s_cmp_lg_u32 s78, 0\ns_cbranch_scc1 L_s2')
    op_loads(32, ' nt' if opt['ant'] else '')
    A('L_s2:')
wo_tr([0, 1])
if opt['atrig'] >= 14: A('s_cmp_lg_u32 s78, 0\ns_cbranch_scc1 L_second\ns_waitcnt vmcnt(6) lgkmcnt(0)\ns_branch L_both\nL_second:')
elif opt['atrig'] != 13: A('s_cmp_lg_u32 s78, 0\ns_cbranch_scc1 L_second\ns_waitcnt vmcnt(0) lgkmcnt(0)\ns_branch L_both\nL_second:')
lds_wait_ge(CNT + 28, 1, 1)
A(f"s_waitcnt vmcnt({opt['opw']})")
op_loads(32)
A('s_waitcnt vmcnt(6)\nL_both:')
wo_tr([2])
stamp(6)
def body():
    op_loads(16)
    A('L_opw:')
    for t in range(3):
        A(f's_waitcnt vmcnt({4-2*t})' + (' lgkmcnt(0)' if t == 2 else ''))
        q = AO + 8 * t
        fill = [[f"v_cmp_ne_u64 {'vcc' if t == 0 else 's[20:21]'}, s[30:31], v[{q}:{q+1}]", f'v_cmp_ne_u64 s[22:23], s[30:31], v[{q+6}:{q+7}]'],
                ([] if t == 0 else ['s_or_b64 vcc, vcc, s[20:21]']) + ['s_or_b64 vcc, vcc, s[22:23]'], [], []]
        for u in range(4):
            r = BW + 4 * (4 * t + u)
            c = '0' if t == 0 else f'v[{32+4*u}:{35+4*u}]'
            A(f'v_mfma_f32_16x16x32_bf16 v[{32+4*u}:{35+4*u}], v[{q+2}:{q+5}], v[{r}:{r+3}], {c}')
            for l in fill[u]: A(l)
spin2(body, local_only=True, entry='L_opw')
stamp(7)
if opt['w2t'] == 0: A(f'ds_write_b32 v25, v23 offset:{OKF}')
for u in range(4):
    A(f'v_mul_f32 v{4+u}, v{32+4*u}, v{CF}')
    for r in range(1, 4): A(f'v_fmac_f32 v{4+u}, v{32+4*u+r}, v{CF+r}')
A(f'''
{S32} v4, v6
{S32} v5, v7
v_add_f32 v4, v4, v6
v_add_f32 v5, v5, v7
{S16} v4, v5
v_add_f32 v4, v4, v5
ds_write_b32 v61, v4 offset:{RL}
s_cmp_lg_u32 s3, 0
s_waitcnt lgkmcnt(0)
s_barrier
s_cbranch_scc1 L_post_wo
ds_read_b32 v5, v62 offset:{RL+256}
ds_read_b32 v6, v62 offset:{RL+512}
ds_read_b32 v7, v62 offset:{RL+768}
s_waitcnt lgkmcnt(0)
v_add_f32 v4, v4, v5
v_add_f32 v6, v6, v7
v_add_f32 v4, v4, v6
v_mov_b32_dpp v5, v4 quad_perm:[1,0,3,2] {DPPM}
v_cvt_pk_bf16_f32 v4, v4, v5
v_mov_b32_dpp v48, v4 quad_perm:[0,0,0,0] {DPPM}
v_mov_b32_dpp v49, v4 quad_perm:[2,2,2,2] {DPPM}
''')
A('s_mov_b64 exec, s[8:9]')
A('buffer_store_dwordx4 v[48:51], v63, s[24:27], s75 offen sc1')
stamp(5)
A('s_barrier')
if opt['wb'] & 2: A('s_cmp_lg_u32 s5, 19\ns_cbranch_scc1 L_end\nbuffer_wbl2 sc1')
write_stamps(0)
A('s_endpgm')
A('L_helper_exit:')
if STAMPS:
    A('s_cmp_lg_u32 s3, 0\ns_cbranch_scc1 L_end')
    write_stamps(0)
A('s_endpgm')

B1R = 64
DR = 16
pad(2)
A('L_f1:')
srd(12, 48, 640 * 1536 * 2); srd(16, 50, 640 * 1536 * 2)
A(f"""
s_sub_u32 s74, s5, 20
v_lshrrev_b32 v3, 4, v0
v_and_b32 v2, 7, v0
v_lshrrev_b32 v62, 3, v0
v_mul_u32_u24 v62, 3072, v62
v_lshl_add_u32 v62, v2, 4, v62
s_lshl3_add_u32 s61, s74, s73
s_mul_i32 s61, s61, {8*3072}
s_mul_i32 s68, s4, 384
s_add_u32 s61, s61, s68
s_add_u32 s62, s61, 128
s_add_u32 s63, s61, 256
s_lshl_b32 s79, s73, 10
s_add_u32 s79, s79, {WL}
v_mov_b32 v57, 0
v_mov_b32 v6, s30
v_mov_b32 v7, s31
""")
lds_wait_ge(CNT + 28, 1, 1)
for nbl in range(3):
    for m in range(2):
        A(f's_add_u32 m0, s79, {(m*3 + nbl)*8192}')
        A(f'buffer_load_dwordx4 v62, s[{12+4*m}:{15+4*m}], s{61+nbl} offen nt lds')
A('s_setprio 3\ns_cmp_gt_u32 s73, 1\ns_cbranch_scc1 L_f1m')
get_pref(1)
A(f"""
s_lshl1_add_u32 s74, s74, s73
v_lshl_add_u32 v61, v2, 2, v3
v_lshlrev_b32 v61, 1, v61
s_lshl_b32 s68, s74, 6
v_add_u32 v61, s68, v61
global_load_ushort v56, v61, s[36:37]
v_lshlrev_b32 v54, 5, v3
v_lshl_add_u32 v54, v2, 2, v54
v_lshlrev_b32 v55, 4, v0
s_lshl_b32 s72, s4, 9
s_lshl4_add_u32 s72, s74, s72
s_add_u32 s72, s72, {PS}
s_mul_i32 s75, s4, 20
s_add_u32 s75, s75, s74
s_lshl_b32 s75, s75, 7
s_add_u32 s75, s75, {PH}
""")
A(f"""
s_mov_b64 exec, 1
buffer_load_dword v104, v54, s[32:35], s75 offen sc1
buffer_load_dword v105, v55, s[32:35], s72 offen sc1
s_mov_b64 exec, -1
s_lshr_b32 s60, s74, 2
s_lshl_b32 s60, s60, 14
s_and_b32 s68, s74, 3
s_lshl_b32 s68, s68, 11
s_add_u32 s60, s60, s68
s_lshr_b32 s68, s47, s4
s_and_b32 s68, s68, 1
s_lshl_b32 s68, s68, 13
s_add_u32 s60, s60, s68
s_add_u32 s60, s60, {YP}
v_lshlrev_b32 v51, 4, v3
v_lshl_add_u32 v51, v2, 1, v51
v_and_b32 v4, 1, v0
v_mul_u32_u24 v4, 126, v4
v_add_u32 v51, v51, v4
s_lshl_b32 s68, s73, 6
v_add_u32 v51, s68, v51
s_mov_b32 s77, 0x3f80
s_mov_b32 s71, 0x3f800000
v_mov_b32 v14, s30
v_mov_b32 v15, s31
v_mov_b32 v8, 0
v_mov_b32 v9, 0
v_mov_b32 v10, 0
v_mov_b32 v11, 0
v_not_b32 v98, s30
v_not_b32 v102, s30
s_waitcnt vmcnt(2)
s_barrier
v_lshlrev_b32 v56, 16, v56
""")
stamp(6)
YL = ['buffer_load_dwordx4 v[96:99], v55, s[24:27], s60 offen sc1', 'buffer_load_dwordx4 v[100:103], v55, s[24:27], s60 offen offset:1024 sc1']
if opt['fry']:
    A(f"""
s_mov_b32 s70, {SPIN}
s_mov_b64 s[20:21], -1
s_mov_b64 s[22:23], -1
L_ypoll:
s_mov_b64 exec, s[20:21]
{YL[0]}
s_mov_b64 exec, s[22:23]
{YL[1]}
s_mov_b64 exec, -1
""")
    for k in range(opt['fry']):
        A('v_cmp_ne_u64 s[20:21], s[30:31], v[98:99]\nv_cmp_ne_u64 s[22:23], s[30:31], v[102:103]\ns_or_b64 vcc, s[20:21], s[22:23]\ns_cbranch_scc0 L_yok')
    A('s_waitcnt vmcnt(16)\ns_sub_u32 s70, s70, 1\ns_cbranch_scc0 L_ypoll\nL_yok:')
else:
    def body():
        A(YL[0]); A(YL[1])
        A('s_waitcnt vmcnt(0)')
        tagcheck([98, 102])
    spin(body)
stamp(1)
for r in (96, 100):
    A(f'v_dot2c_f32_bf16 v8, s77, v{r}\nv_dot2c_f32_bf16 v10, s77, v{r+1}\nv_dot2c_f32_bf16 v9, s71, v{r}\nv_dot2c_f32_bf16 v11, s71, v{r+1}')
A(f"""
{S32} v8, v10
{S32} v9, v11
v_add_f32 v8, v8, v10
v_add_f32 v9, v9, v11
{S16} v8, v9
v_add_f32 v8, v8, v9
v_add_f32_dpp v8, v8, v8 row_ror:8 {DPPM}
v_cvt_pk_bf16_f32 v8, v57, v8
v_add_f32 v12, v8, v56
v_mov_b32_dpp v13, v12 quad_perm:[1,0,3,2] {DPPM}
v_cvt_pk_bf16_f32 v12, v12, v13
ds_write_b32 v51, v12 offset:{RL}
v_lshlrev_b32 v4, 16, v12
v_mul_f32 v5, v4, v4
""")
allreduce8('v_add_f32', [4, 5])
A('s_waitcnt lgkmcnt(0)\ns_barrier')
A(f'v_mov_b32_dpp v13, v12 quad_perm:[2,3,2,3] {DPPM}')
allreduce_rows('v_add_f32', [4, 5], [8, 9])
publish([(1, 'buffer_store_dwordx4 v[4:7], v55, @, s72 offen'),
         (0x0011001100110011, 'buffer_store_dwordx4 v[12:15], v54, @, s75 offen')])
if opt['wb'] & 4: A('s_cmp_lg_u32 s74, 0\ns_cbranch_scc1 L_end\nbuffer_wbl2 sc1')
stamp_val(18, 82, 83, True)
stamp_val(23, 92, 93, True)
A('s_endpgm')
pad(3)
A(f"""
L_f1m:
s_sub_u32 s68, s73, 2
s_lshr_b32 s78, s68, 1
s_and_b32 s69, s73, 1
v_lshlrev_b32 v58, 7, v3
v_bfe_u32 v4, v0, 2, 2
v_lshl_add_u32 v58, v4, 9, v58
v_and_b32 v4, 3, v0
v_lshl_add_u32 v58, v4, 3, v58
s_lshl_b32 s75, s78, 13
s_lshl_b32 s68, s69, 6
s_add_u32 s75, s75, s68
v_add_u32 v58, s75, v58
v_lshlrev_b32 v52, 4, v3
v_and_b32 v59, 1, v3
v_cmp_eq_u32 s[62:63], 1, v59
v_mul_u32_u24 v59, 3072, v59
v_bfe_u32 v4, v0, 3, 1
v_lshl_add_u32 v59, v4, 9, v59
v_lshl_add_u32 v59, v2, 4, v59
s_mul_i32 s76, s4, 3
s_add_u32 s76, s76, s78
s_lshl1_add_u32 s76, s76, s69
s_mul_i32 s76, s76, 6144
s_lshr_b32 s68, s74, 2
s_lshl_b32 s68, s68, 10
s_add_u32 s76, s76, s68
s_and_b32 s68, s74, 3
s_lshl_b32 s68, s68, 7
s_add_u32 s76, s76, s68
s_add_u32 s77, s76, {CB}
s_add_u32 s76, s76, {PA}
v_mov_b32 v8, 0x3f803f80
v_mov_b32 v9, 0x3f803f80
v_mov_b32 v10, 0x3f803f80
v_mov_b32 v11, 0x3f803f80
v_mov_b32 v34, s30
v_mov_b32 v35, s31
s_waitcnt vmcnt(0)
s_barrier
""")
for kk in range(2):
    for m in range(2):
        for u in range(2):
            r = B1R + 4 * ((kk * 2 + m) * 2 + u)
            o = WL + m * 24576 + kk * 4096 + 32 * u
            A(f'ds_read_b64_tr_b16 v[{r}:{r+1}], v58 offset:{o}')
            A(f'ds_read_b64_tr_b16 v[{r+2}:{r+3}], v58 offset:{o + 2048}')
def f1_mfma(kk, a):
    for k in range(4):
        c = f'v[{DR+4*k}:{DR+3+4*k}]' if kk else '0'
        A(f'v_mfma_f32_16x16x32_bf16 v[{DR+4*k}:{DR+3+4*k}], v[{a}:{a+3}], v[{B1R+16*kk+4*k}:{B1R+16*kk+4*k+3}], {c}')
def f1_select(d):
    A(f'v_cndmask_b32 v{d}, v{DR}, v{DR+4}, s[62:63]\nv_cndmask_b32 v{d+1}, v{DR+8}, v{DR+12}, s[62:63]')
A('s_waitcnt lgkmcnt(0)')
f1_mfma(0, 8); f1_mfma(1, 8)
f1_select(32)
publish([(0xffffffff, 'buffer_store_dwordx4 v[32:35], v59, @, s77 offen')])
A(f"""
s_barrier
ds_read_b128 v[8:11], v52 offset:{RL}
ds_read_b128 v[12:15], v52 offset:{RL+64}
s_waitcnt lgkmcnt(1)
""")
f1_mfma(0, 8)
A('s_waitcnt lgkmcnt(0)')
f1_mfma(1, 12)
f1_select(4)
publish([(0xffffffff, 'buffer_store_dwordx4 v[4:7], v59, @, s76 offen')])
if STAMPS:
    A('s_cmp_eq_u32 s3, 11\ns_cbranch_scc1 L_end')
    stamp_now(11, True)
A('s_endpgm')

pad(4)
A('L_post_wo:')
A("""
s_cmp_gt_u32 s5, 11
s_cbranch_scc1 L_end
s_cmp_eq_u32 s3, 3
s_cbranch_scc1 L_end
v_mov_b32 v57, 0
s_cmp_eq_u32 s3, 1
s_cbranch_scc1 L_hid
s_barrier
""")
A(f"""
s_and_b32 s68, s4, 1
s_lshl_b32 s68, s68, 2
s_sub_u32 s68, 12, s68
s_cmp_ge_u32 s5, s68
s_cbranch_scc1 L_end
s_mul_i32 s72, s4, 5
s_add_u32 s72, s72, 1
s_lshr_b32 s72, s72, 1
s_lshr_b32 s68, s5, 2
s_add_u32 s72, s72, s68
s_and_b32 s73, s5, 3
v_lshrrev_b32 v2, 1, v0
v_lshlrev_b32 v2, 7, v2
v_and_b32 v3, 1, v0
v_lshl_add_u32 v96, v3, 4, v2
s_lshl_b32 s10, s72, 15
s_lshr_b32 s68, s47, s4
s_and_b32 s68, s68, 1
s_lshl_b32 s68, s68, 13
s_add_u32 s10, s10, s68
s_lshl_b32 s68, s73, 5
s_add_u32 s10, s10, s68
s_add_u32 s10, s10, {FP}
s_add_u32 s11, s10, 4096
s_add_u32 s12, s10, 16384
v_lshrrev_b32 v4, 4, v0
v_lshl_add_u32 v97, v3, 2, v4
v_lshlrev_b32 v97, 1, v97
v_lshlrev_b32 v99, 5, v4
s_and_b32 s68, s73, 1
s_lshl_b32 s68, s68, 5
v_lshl_add_u32 v98, v3, 4, s68
s_mul_i32 s13, s4, 20
s_add_u32 s13, s13, s72
s_lshl_b32 s13, s13, 7
s_lshr_b32 s68, s73, 1
s_lshl4_add_u32 s13, s68, s13
s_add_u32 s13, s13, {PH}
s_lshl2_add_u32 s14, s72, s73
s_lshl_b32 s14, s14, 4
s_mov_b32 s8, 0x30003
s_mov_b32 s9, 0x30003
s_mov_b32 s77, 0x3f80
s_mov_b32 s71, 0x3f800000
v_mov_b32 v8, 0
v_mov_b32 v9, 0
v_mov_b32 v10, 0
v_mov_b32 v11, 0
""")
FS = 16
srd(64, 54, 1280)
if opt['outpre']:
    A(f"s_mov_b64 exec, 1\nbuffer_load_dword v30, v57, s[64:67], s14 offen{['', '', ' sc1', ' nt'][opt['outpre']]}\ns_mov_b64 exec, -1")
A('s_setprio 0')
lds_wait_ge(HRDY, 1, opt['hsleep'])
if opt['fsleep']: A(f"s_sleep {opt['fsleep']}")
def body():
    A('buffer_load_dwordx4 v[4:7], v99, s[16:19], s13 offen sc1')
    for n in range(3):
        r = FS + 4 * n
        A(f'buffer_load_dwordx4 v[{r}:{r+3}], v96, s[24:27], s{10+n} offen sc1')
    A('s_waitcnt vmcnt(0)')
    tagcheck([6, FS + 2, FS + 6, FS + 10])
spin2(body, local_only=True)
A('L_finc:')
stamp(5)
for n in range(3):
    r = FS + 4 * n
    A(f'v_dot2c_f32_bf16 v8, s77, v{r}\nv_dot2c_f32_bf16 v10, s77, v{r+1}\nv_dot2c_f32_bf16 v9, s71, v{r}\nv_dot2c_f32_bf16 v11, s71, v{r+1}')
A(f"""
v_lshrrev_b64 v[58:59], v98, v[4:5]
{S32} v8, v10
{S32} v9, v11
v_add_f32 v8, v8, v10
v_add_f32 v9, v9, v11
v_lshlrev_b32 v58, 16, v58
{S16} v8, v9
v_add_f32 v8, v8, v9
v_add_f32_dpp v8, v8, v8 row_ror:8 {DPPM}
v_add_f32_dpp v8, v8, v8 row_ror:4 {DPPM}
v_add_f32_dpp v8, v8, v8 quad_perm:[2,3,0,1] {DPPM}
v_cvt_pk_bf16_f32 v8, v57, v8
v_add_f32 v8, v8, v58
v_cvt_pk_bf16_f32 v8, v8, v8
""")
A('s_mov_b64 exec, s[8:9]')
if opt['dry'] & 2: A('s_cbranch_execz L_end')
A(f"""
buffer_store_short v8, v97, s[64:67], s14 offen{['', ' sc1', ' sc0 sc1', ' nt'][opt['outfl']]}
s_cmp_lg_u32 s14, 0
s_cbranch_scc1 L_fin_exit
s_mov_b64 exec, 1
v_mov_b32 v4, s30
v_mov_b32 v5, s31
s_mov_b32 s68, {EP}
buffer_store_dwordx2 v[4:5], v57, s[24:27], s68 offen
L_fin_exit:
""")
if opt['endst']:
    A(f's_memrealtime s[82:83]\ns_mov_b64 exec, 1\ns_add_u32 s68, s14, {0x390000}\ns_waitcnt lgkmcnt(0)\nv_mov_b32 v4, s82\nv_mov_b32 v5, s83\nbuffer_store_dwordx2 v[4:5], v57, s[24:27], s68 offen')
if opt['dbg']:
    A(f'''
s_cmp_lg_u32 s14, 0
s_cbranch_scc1 L_end
s_mov_b64 exec, -1
ds_read_b32 v4, v57 offset:{CNT+36}
s_memrealtime s[82:83]
s_waitcnt lgkmcnt(0)
v_readfirstlane_b32 s85, v4
{'s_mov_b32 s84, s85' if opt['dbgs'] else 's_sub_u32 s84, s82, s85'}
v_mov_b32 v4, s84
global_store_dword v57, v4, s[56:57]
s_mul_i32 s84, s84, {opt['dbg']}
s_min_u32 s84, s84, 40000
L_dbgspin:
s_memrealtime s[86:87]
s_waitcnt lgkmcnt(0)
s_sub_u32 s86, s86, s82
s_cmp_lt_u32 s86, s84
s_cbranch_scc1 L_dbgspin
''')
if STAMPS:
    A('s_waitcnt vmcnt(0)')
    stamp(7)
    write_stamps(8)
A('s_endpgm')

pad(5)
A('L_hid:')
M2 = 0x0000ffff0000ffff
A(f"""
s_mul_i32 s72, s4, 12
s_add_u32 s72, s72, s5
v_lshrrev_b32 v4, 5, v0
v_and_b32 v2, 7, v0
v_lshl_add_u32 v62, v4, 3, v2
v_lshlrev_b32 v62, 1, v62
v_lshlrev_b32 v63, 2, v2
v_lshlrev_b32 v60, 4, v0
v_and_b32 v3, 31, v0
v_lshlrev_b32 v61, 4, v3
s_lshl_b32 s65, s4, 9
s_add_u32 s65, s65, {PS}
s_mul_i32 s60, s72, 3072
s_add_u32 s62, s60, {CB}
s_add_u32 s60, s60, {PA}
s_mov_b32 s8, 0xfffff
s_mov_b32 s9, 0xfffff
s_mov_b32 s10, 0xffff
s_mov_b32 s11, 0xffff
v_mov_b32 v59, 1
""")
for r in (24, 136, 140): A(f'v_mov_b32 v{r}, 0\nv_mov_b32 v{r+1}, 0\nv_mov_b32 v{r+2}, s30\nv_mov_b32 v{r+3}, s31')
def loads3(r, srdn, so, fl=''):
    A(f'buffer_load_dwordx4 v[{r}:{r+3}], v60, s[{srdn}:{srdn+3}], s{so} offen sc1' + fl)
    A(f'buffer_load_dwordx4 v[{r+4}:{r+7}], v60, s[{srdn}:{srdn+3}], s{so} offen offset:1024 sc1' + fl)
    A(f's_mov_b64 exec, s[10:11]\nbuffer_load_dwordx4 v[{r+8}:{r+11}], v60, s[{srdn}:{srdn+3}], s{so} offen offset:2048 sc1{fl}\ns_mov_b64 exec, -1')
def issue_s(srdn=32):
    A(f's_mov_b64 exec, s[8:9]\nbuffer_load_dwordx4 v[140:143], v61, s[{srdn}:{srdn+3}], s65 offen sc1\ns_mov_b64 exec, -1')
def issue_p(srdn=32): loads3(128, srdn, 60)
def poll(issue, check, n, bound=None):
    slow = newlabel('pslow'); ok = newlabel('pok')
    check()
    A(f's_nop 0\ns_cbranch_vccz {ok}')
    A(f's_cmp_lg_u32 s46, 1\ns_cbranch_scc1 {slow}')
    freepoll(issue, check, n, ok, bound)
    mark = len(A.lines)
    A(f'{slow}:')
    def body():
        issue(16); A('s_waitcnt vmcnt(0)'); check()
    spin2(body, local_only=True)
    if opt['ool']:
        A(f's_branch {ok}')
        outline.append('\n'.join(A.lines[mark:])); del A.lines[mark:]
    A(f'{ok}:')
    return ok
def body():
    loads3(16, 16, 62)
    issue_p(16); issue_s(16)
    A('s_waitcnt vmcnt(0)')
    tagcheck([18, 22, 26])
if opt['frc']:
    for r in (18, 22, 130, 134): A(f'v_not_b32 v{r}, s30')
    A('s_mov_b64 exec, s[10:11]\nv_not_b32 v26, s30\nv_not_b32 v138, s30\ns_mov_b64 exec, s[8:9]\nv_not_b32 v142, s30\ns_mov_b64 exec, -1')
A('s_barrier')
if opt['frc']:
    def issue_all(srdn=32):
        loads3(16, srdn, 62, ' nt' if opt['hnt'] & 1 else ''); issue_s(srdn); loads3(128, srdn, 60, ' nt' if opt['hnt'] & 2 else '')
    poll(issue_all, lambda: tagcheck([18, 22, 26]), opt['frc'], opt['frcb'])
else: spin2(body, local_only=True)
A('v_pk_add_f32 v[40:41], v[16:17], v[20:21]\nv_pk_add_f32 v[40:41], v[40:41], v[24:25]')
for r in (40, 41): A(f'v_add_f32_dpp v{r}, v{r}, v{r} row_ror:8 {DPPM}')
swapreduce(S16, 'v_add_f32', [40, 41], [42, 43])
poll(issue_s, lambda: tagcheck([142]), opt['frs'])
A('s_cmp_lg_u32 s46, 1\ns_cbranch_scc1 L_nopre')
issue_p()
A('L_nopre:')
A(f"""
v_add_f32_dpp v36, v140, v140 quad_perm:[1,0,3,2] {DPPM}
v_add_f32_dpp v37, v141, v141 quad_perm:[1,0,3,2] {DPPM}
v_add_f32_dpp v36, v36, v36 quad_perm:[2,3,0,1] {DPPM}
v_add_f32_dpp v37, v37, v37 quad_perm:[2,3,0,1] {DPPM}
v_add_f32_dpp v36, v36, v36 row_half_mirror {DPPM}
v_add_f32_dpp v37, v37, v37 row_half_mirror {DPPM}
v_add_f32_dpp v46, v36, v36 row_mirror {DPPM}
v_add_f32_dpp v47, v37, v37 row_mirror {DPPM}
v_add_f32_dpp v36, v36, v36 row_mirror {DPPM}
v_add_f32_dpp v37, v37, v37 row_mirror {DPPM}
{S16} v36, v46
{S16} v37, v47
v_pk_add_f32 v[36:37], v[36:37], v[46:47]
s_cbranch_scc1 L_nopre2
""")
issue_p()
A(f"""
L_nopre2:
v_mul_f32 v44, {f32(1.0/640)}, v36
v_mul_f32 v45, {f32(1.0/640)}, v37
v_fma_f32 v45, -v44, v44, v45
v_max_f32 v45, 0, v45
v_cvt_pk_bf16_f32 v45, v57, v45
v_cvt_pk_bf16_f32 v44, v57, v44
v_add_f32 v45, {f32(1e-5)}, v45
v_cvt_pk_bf16_f32 v45, v57, v45
v_sqrt_f32 v45, v45
v_mul_f32 v40, v44, v40
v_cvt_pk_bf16_f32 v45, v57, v45
v_rcp_f32 v45, v45
v_mul_f32 v41, v44, v41
""")
poll(issue_p, lambda: tagcheck([130, 134, 138]), opt['frp'])
A('L_hidc:')
stamp(7)
A(f"""
v_pk_add_f32 v[8:9], v[128:129], v[132:133]
v_pk_add_f32 v[8:9], v[8:9], v[136:137]
v_add_f32_dpp v10, v8, v8 row_ror:8 {DPPM}
v_add_f32_dpp v11, v9, v9 row_ror:8 {DPPM}
v_add_f32_dpp v8, v8, v8 row_ror:8 {DPPM}
v_add_f32_dpp v9, v9, v9 row_ror:8 {DPPM}
{S16} v8, v10
{S16} v9, v11
v_add_f32 v8, v8, v10
v_sub_f32 v8, v8, v40
v_mul_f32 v8, v8, v45
v_cvt_pk_bf16_f32 v8, v57, v8
v_mul_f32 v12, {f32(-LOG2E)}, v8
v_exp_f32 v12, v12
v_add_f32 v9, v9, v11
v_add_f32 v12, 1.0, v12
v_rcp_f32 v12, v12
v_sub_f32 v9, v9, v41
v_mul_f32 v9, v9, v45
v_mul_f32 v8, v8, v12
v_cvt_pk_bf16_f32 v9, v57, v9
v_cvt_pk_bf16_f32 v8, v57, v8
v_mul_f32 v8, v8, v9
v_cvt_pk_bf16_f32 v8, v8, v8
ds_write_b16 v62, v8 offset:{HID}
ds_write_b32 v63, v59 offset:{HRDY}
""")
if opt['wb'] & 1: A('s_cmp_lg_u32 s5, 0\ns_cbranch_scc1 L_end\nbuffer_wbl2 sc1')
stamp_val(17, 94, 95)
A('s_endpgm')

pad(6)
A('L_f2:')
W2R = 64
srd(8, 52, 1536 * 640 * 2)
get_pref(1, dst=16, adr=17)
A(f"""
s_mul_i32 s72, s4, 12
s_add_u32 s72, s72, s5
v_mov_b32 v57, 0
s_sub_u32 s68, s3, 7
s_lshl_b32 s69, s68, 8
v_lshlrev_b32 v58, 2, v0
v_add_u32 v58, s69, v58
v_lshrrev_b32 v2, 4, v0
v_lshl_add_u32 v2, s68, 2, v2
v_mul_u32_u24 v3, 52, v2
v_lshrrev_b32 v3, 8, v3
v_mul_u32_u24 v4, 5, v3
v_sub_u32 v4, v2, v4
v_cmp_lt_u32 vcc, 2, v4
v_lshlrev_b32 v3, 1, v3
v_addc_co_u32 v3, vcc, 0, v3, vcc
v_lshrrev_b32 v3, v3, s47
v_and_b32 v3, 1, v3
v_lshlrev_b32 v116, 15, v2
v_lshl_add_u32 v116, v3, 13, v116
v_bfe_u32 v3, v0, 1, 3
v_lshl_add_u32 v116, v3, 4, v116
s_lshr_b32 s79, s72, 6
s_lshl_b32 s79, s79, 14
s_and_b32 s68, s72, 63
s_lshl_b32 s68, s68, 7
s_add_u32 s79, s79, s68
s_add_u32 s79, s79, {FP}
s_mov_b32 s60, 0x05040100
s_mov_b32 s61, 0x07060302
s_mul_i32 s62, s72, 20480
""")
def w2_loads():
    for k in range(16):
        A(f'buffer_load_dword v{W2R+k}, v58, s[8:11], s62 offen offset:{1280*(k%3)} nt')
        if k % 3 == 2: A('s_add_u32 s62, s62, 3840')
if opt['w2dma']:
    A(f'''
v_lshrrev_b32 v2, 4, v0
v_mul_u32_u24 v2, 1280, v2
v_and_b32 v3, 15, v0
v_lshl_add_u32 v2, v3, 4, v2
s_add_u32 s62, s62, s69
s_lshl_b32 s63, s69, 4
v_lshlrev_b32 v3, 2, v0
v_add_u32 v3, s63, v3
s_add_u32 s63, s63, {WL}
''')
    if opt['w2t'] == 0:
        A('v_and_b32 v1, 3, v0\nv_lshlrev_b32 v1, 2, v1')
        def body():
            A(f'ds_read_b32 v4, v1 offset:{OKF}')
            A('s_waitcnt lgkmcnt(0)')
            A('v_cmp_eq_u32 vcc, 0, v4')
        spin(body)
    else: A('s_barrier')
    if opt['w2t'] == 2: A('s_barrier')
    for k in range(4):
        A(f's_add_u32 m0, s63, {1024*k}\nbuffer_load_dwordx4 v2, s[8:11], s62 offen nt lds\ns_add_u32 s62, s62, 5120')
    if opt['w2t'] == 0: A('s_barrier')
    if opt['w2t'] < 2: A('s_barrier')
    A('s_waitcnt vmcnt(0)')
    for k in range(16): A(f'ds_read_b32 v{W2R+k}, v3 offset:{WL + 256*k}')
    A('s_waitcnt lgkmcnt(0)')
else:
    A('s_barrier')
    w2_loads()
    A('s_barrier')
    A('s_waitcnt vmcnt(0)')
stamp(6)
for kp in range(8):
    A(f'v_perm_b32 v{80+kp}, v{W2R+2*kp+1}, v{W2R+2*kp}, s60')
    A(f'v_perm_b32 v{88+kp}, v{W2R+2*kp+1}, v{W2R+2*kp}, s61')
A(f"""
v_mov_b32 v16, 0
v_mov_b32 v17, 0
v_mov_b32 v18, 0
v_mov_b32 v19, 0
s_mov_b32 s66, 0x55555555
s_mov_b32 s67, 0x55555555
v_mov_b32 v6, s30
v_mov_b32 v7, s31
v_and_b32 v9, 15, v0
v_lshlrev_b32 v9, 2, v9
v_mov_b32 v8, 0
s_mov_b32 s64, 0xff00ff00
s_mov_b32 s65, 0xff00ff00
s_mov_b32 s70, {SPIN * 8}
s_waitcnt lgkmcnt(0)
L_f2poll:
ds_read_b32 v8, v9 offset:{HID}
s_waitcnt lgkmcnt(4)
v_cmp_eq_u32 vcc, 0, v8
s_sub_u32 s70, s70, 1
s_cbranch_scc1 L_f2go
s_and_b64 vcc, vcc, s[64:65]
s_cbranch_scc1 L_f2poll
L_f2go:
""")
for kp in range(8):
    A(f'v_dot2c_f32_bf16_dpp v{16+2*(kp&1)}, v8, v{80+kp} row_newbcast:{kp} {DPPM}')
    A(f'v_dot2c_f32_bf16_dpp v{17+2*(kp&1)}, v8, v{88+kp} row_newbcast:{kp} {DPPM}')
A('v_pk_add_f32 v[16:17], v[16:17], v[18:19]')
A(f"""
v_cvt_pk_bf16_f32 v4, v16, v17
v_mov_b32_dpp v5, v4 quad_perm:[1,0,3,2] {DPPM}
""")
A('s_mov_b64 exec, s[66:67]')
if opt['dry'] & 4: A('s_cbranch_execz L_end')
A('buffer_store_dwordx4 v[4:7], v116, s[24:27], s79 offen sc1')
if opt['wb'] & 8:
    A('s_lshl4_add_u32 s68, s5, s3\ns_cmp_lg_u32 s68, 11\ns_cbranch_scc1 L_end')
    if opt['wbs']: A(f"s_sleep {opt['wbs']}")
    A('buffer_wbl2 sc1')
if STAMPS:
    setexec(ALL)
    stamp_now(20, True)
    stamp_val(15, 92, 93, True)
A('L_end:')
A('s_endpgm')
A('L_spare:')
if opt['sp']:
    lds_wait_ge(CNT + 28, 1, 2)
    A('v_lshlrev_b32 v1, 7, v0\ns_sub_u32 s76, s5, 30')
    if opt['sp'] & 2:
        A(f'''
s_lshl1_add_u32 s68, s4, s76
s_lshl3_add_u32 s68, s68, s73
s_mul_i32 s68, s68, 3072
s_add_u32 s68, s68, {OP}
s_mov_b64 exec, 0xffffff
buffer_load_dword v5, v1, s[32:35], s68 offen nt
s_waitcnt vmcnt(0)
buffer_load_dword v5, v1, s[32:35], s68 offen sc1
s_mov_b64 exec, -1
''')
    if opt['spd']: A(f"s_sleep {opt['spd']}")
    if opt['sp'] & 1:
        A(f'''
s_cmp_gt_u32 s73, 5
s_cbranch_scc1 L_nopa
s_mul_i32 s68, s4, 6
s_add_u32 s68, s68, s73
s_mul_i32 s68, s68, 6144
s_mul_i32 s69, s76, {CB - PA}
s_add_u32 s68, s68, s69
s_add_u32 s68, s68, {PA}
s_mov_b32 exec_lo, 0xff33ffff
s_mov_b32 exec_hi, 0x33ff
buffer_load_dword v4, v1, s[32:35], s68 offen nt
s_waitcnt vmcnt(0)
buffer_load_dword v4, v1, s[32:35], s68 offen sc1
s_mov_b64 exec, -1
L_nopa:
''')
    if opt['sp'] & 4:
        srd(8, 52, 1536 * 640 * 2)
        if opt['spd2']: A(f"s_sleep {opt['spd2']}")
        A(f'''
s_lshl1_add_u32 s68, s4, s76
s_lshl3_add_u32 s68, s68, s73
s_mul_i32 s68, s68, {120*128}
s_add_u32 s69, s68, {60*128}
s_mov_b32 exec_hi, 0xfffffff
buffer_load_dword v6, v1, s[8:11], s68 offen nt
buffer_load_dword v7, v1, s[8:11], s69 offen nt
''')
    A('s_endpgm')
else: A('s_branch L_stream_exit')
A('L_dry:')
if opt['dry']:
    srd(64, 54, 1280)
    A('''
v_mov_b32 v97, 0
v_mov_b32 v116, 0
v_mov_b32 v62, 0
v_mov_b32 v63, 0
s_mov_b32 s14, 16
s_mov_b32 s79, 0
s_mov_b64 s[8:9], 0
s_mov_b32 s46, 2
s_mov_b64 exec, 0
''')
    if opt['dry'] & 1: A('s_cmp_eq_u32 s3, 4\ns_cbranch_scc1 L_nopre')
    if opt['dry'] & 2: A('s_cmp_eq_u32 s3, 5\ns_cbranch_scc1 L_finc')
    if opt['dry'] & 4: A('s_mov_b64 s[66:67], 0\ns_cmp_eq_u32 s3, 6\ns_cbranch_scc1 L_f2go')
A('s_endpgm')
for blk in outline: A(blk)
A('L_codeend:')

A.raw('.section .rodata,"a"')
A.raw('.p2align 6')
A.raw(f'.amdhsa_kernel {NAME}_kernel')
A.raw('  .amdhsa_next_free_vgpr 168')
A.raw('  .amdhsa_next_free_sgpr 100')
A.raw('  .amdhsa_accum_offset 168')
A.raw('  .amdhsa_group_segment_fixed_size 0')
A.raw('  .amdhsa_kernarg_size 96')
A.raw('  .amdhsa_user_sgpr_count 2')
A.raw('  .amdhsa_user_sgpr_kernarg_segment_ptr 1')
A.raw('  .amdhsa_system_sgpr_workgroup_id_x 1')
A.raw('.end_amdhsa_kernel')
open(sys.argv[1], 'w').write(A.finalize())
```

```python
import sys, struct, os
from asmlib import Asm

NAME = "sequential_preLN__sliding_block_cached__glu_gated_swiglu__decode"
opt = dict(D1=3, D2=3, Vpre=3, stamps=0, spin=4000007, sleep=2, swave=11, stsleep=24, wtrig=2, DWF=6, opw=0,
           idtries=12, idsleep=16, forceslow=0, trap=0, fsleep=16, hsleep=0, shots=4, lead=31, samp=6,
           frp=1, frs=2, frc=8, frcb=14, w2dma=1, opp=0, osleep=0, sprio=0, outfl=0, outpre=0, lag2=0, idnt=1, xnt=0, cps=0, xs=1, qe=2, qb=10, pro=2, cpw=0, hnt=0, trl=1, al=0, ool=1, dry=0, q2=1, q2d=40, q2s=8, hack=0, endst=0, wb=0, wbs=0, stst=0, opm=0, op2=0, ant=1, abl=0, atrig=13, apub=1, qh=0, kb=0, ypre=2, tl2=9, tk=0, dbgs=0, tlb=0, qpre=0, sp=3, spd=0, spd2=0, mst2=0, p2t=38, c2=41, e2=0, tries2=1, meas=0, kord=1, vord=0, p1=0, p2=0, p3=0, p4=0, p5=0, p6=0, Dinit=3, pkw=0, opi=1, hard=0, w2t=1, frb=12, fry=6, cal=1, mst=17, tau0=457, dA=7, dB=-5, dC=22, lag=480, cfrom=30, pick2=4, pftrig=26,
           caltries=2, calsleep=20, dbg=0, trace=0)
for a in sys.argv[2:]:
    k, v = a.split('=')
    assert k in opt, k
    opt[k] = int(v)
D1 = opt['D1']; D2 = opt['D2']; STAMPS = opt['stamps']; SPIN = opt['spin']

def f32(x): return '0x%08x' % struct.unpack('<I', struct.pack('<f', x))[0]
LOG2E = 1.4426950408889634

QP = 0x0
OP = 0x80000
ST = 0x1F8000
ID = 0x1FC000
YP = 0x1E0000
EP = 0xE0000
PF = 0xE8000
CAL = 0xEA000
FP = 0x100000
PB = 0x1A0000
SP = 0x200000
PA = 0x220000
PS = 0x2A0000
PH = 0x2A4000
CB = 0x300000
WSN = 0x400000
FAST = 0x400000
QL = 0
QF = 384
SL = 512
CNT = 640
OKF = QF + 64; PREF = CNT + 20; ORG = CNT + 40; SUMS = CNT + 56; SUMS2 = QF + 96; TRG2 = QF + 104
HID = 704
HRDY = HID + 32
CL = 768
OL = 1024
RL = 7168
QL2 = 8192
WL = 8704
OLA = WL + 49152
TRL = OLA + 6144
LDS = TRL + (2048 if opt['trace'] else 0)

A = Asm()
A.raw(open(os.path.join(os.path.dirname(os.path.abspath(__file__)), '..', NAME + '.s.ref')).read().split('; Override launch')[0].rstrip())
A.raw(f"; @launch grid=(256,1,1) block=(768,1,1) lds={LDS}")
A.raw('''; Generated by gen/gen20.py (hand-written generator).  One persistent launch, 256 workgroups x 12 waves, 1 per CU.
;  3 helper waves: LN(x) and an 80-row slice of the q projection; 4th helper: LDS init, XCD-locality check, stats.
;  the group is proven to sit on one XCD, a write-through copy as well, so any placement is correct.  Hand-offs
;  HBM bandwidth is shared out evenly: a streaming wave that is ahead of the chip-wide mean progress (sampled once in
;  s_sleep is used only as back-off inside / ahead of polling loops.''')
A.raw('.amdgcn_target "amdgcn-amd-amdhsa--gfx950"')
A.raw('.text')
A.raw(f'.globl {NAME}_kernel')
A.raw('.p2align 8')
A.raw(f'.type {NAME}_kernel,@function')
A.raw(f'{NAME}_kernel:')

def stamp(i):
    if STAMPS: A(f's_memrealtime s[{80+2*i}:{81+2*i}]')
def write_stamps(base_idx):
    if not STAMPS: return
    A('s_waitcnt lgkmcnt(0)')
    A('s_mov_b64 exec, 1')
    A('s_lshl3_add_u32 s68, s5, s4')
    A('s_lshl_b32 s68, s68, 8')
    A(f's_add_u32 s68, s68, {SP + base_idx*8}')
    A('v_mov_b32 v1, 0')
    for q in range(4):
        for e in range(4): A(f'v_mov_b32 v{4+e}, s{80+4*q+e}')
        A(f'buffer_store_dwordx4 v[4:7], v1, s[24:27], s68 offen offset:{16*q}')
        A('s_nop 2')
def stamp_val(idx, lo, hi, plus_wave=False):
    if not STAMPS: return
    A('s_lshl3_add_u32 s98, s5, s4')
    A('s_lshl_b32 s98, s98, 8')
    A(f's_add_u32 s98, s98, {SP + idx*8}')
    if plus_wave: A('s_lshl3_add_u32 s98, s3, s98')
    A('s_waitcnt lgkmcnt(0)')
    A(f'v_mov_b32 v164, s{lo}\nv_mov_b32 v165, s{hi}\nv_mov_b32 v163, 0')
    A('s_mov_b64 exec, 1')
    A('buffer_store_dwordx2 v[164:165], v163, s[24:27], s98 offen')
    A('s_mov_b64 exec, -1')
    A('s_nop 1')
def stamp_now(idx, plus_wave=False):
    if not STAMPS: return
    A('s_memrealtime s[96:97]')
    stamp_val(idx, 96, 97, plus_wave)

def srd(d, ptr, nbytes):
    A(f's_mov_b32 s{d}, s{ptr}')
    A(f's_mov_b32 s{d+1}, s{ptr+1}')
    A(f's_mov_b32 s{d+2}, {nbytes}')
    A(f's_mov_b32 s{d+3}, 0x20000')
def ws_srds():
    srd(24, 58, WSN)
    A(f's_add_u32 s32, s58, {FAST}')
    A('s_addc_u32 s33, s59, 0')
    A(f's_mov_b32 s34, {WSN}')
    A('s_mov_b32 s35, 0x20000')
    A('s_lshl3_add_u32 s71, s6, s7')
    A('''
s_mul_i32 s5, s79, 5
s_mul_i32 s47, s79, 3
s_add_u32 s47, s47, 15
s_cmp_lt_u32 s7, 5
s_cselect_b32 s5, s5, s47
s_add_u32 s5, s5, s7
''')

ALL = (1 << 64) - 1
def setexec(mask):
    if mask == ALL: A('s_mov_b64 exec, -1'); return
    A(f's_mov_b32 exec_lo, 0x{mask & 0xffffffff:x}')
    A(f's_mov_b32 exec_hi, 0x{mask >> 32:x}')

DPPM = 'row_mask:0xf bank_mask:0xf'
def allreduce8(op, regs):
    for pat in ('quad_perm:[1,0,3,2]', 'quad_perm:[2,3,0,1]', 'row_half_mirror'):
        for r in regs: A(f'{op}_dpp v{r}, v{r}, v{r} {pat} {DPPM}')
def allreduce16(op, regs):
    allreduce8(op, regs)
    for r in regs: A(f'{op}_dpp v{r}, v{r}, v{r} row_mirror {DPPM}')
def swapreduce(sw, op, regs, tmps):
    for r, t in zip(regs, tmps): A(f'v_mov_b32 v{t}, v{r}')
    for r, t in zip(regs, tmps): A(f'{sw} v{r}, v{t}')
    for r, t in zip(regs, tmps): A(f'{op} v{r}, v{r}, v{t}')
S16 = 'v_permlane16_swap_b32'; S32 = 'v_permlane32_swap_b32'
def allreduce_rows(op, regs, tmps):
    swapreduce(S16, op, regs, tmps); swapreduce(S32, op, regs, tmps)
def allreduce64(op, regs, tmps):
    allreduce16(op, regs); allreduce_rows(op, regs, tmps)
def bf16r(d, s):
    A(f'v_cvt_pk_bf16_f32 v{d}, v{s}, v{s}')
    A(f'v_lshlrev_b32 v{d}, 16, v{d}')
def mktag():
    A('''
s_waitcnt lgkmcnt(0)
s_mul_i32 s30, s28, 0x2c9277b5
s_add_u32 s30, s30, 0xac564b05
s_mul_i32 s31, s29, 0x0019660d
s_add_u32 s31, s31, 0x3c6ef35f
''')
lbl = [0]
def newlabel(p):
    lbl[0] += 1
    return f'L_{p}_{lbl[0]}'

def tagcheck(pairs):
    A(f'v_cmp_ne_u64 vcc, s[30:31], v[{pairs[0]}:{pairs[0]+1}]')
    tm = [(20, 21), (22, 23)]
    pend = []
    for i, p in enumerate(pairs[1:]):
        t = tm[i % 2]
        if len(pend) == 2:
            q = pend.pop(0); A(f's_or_b64 vcc, vcc, s[{q[0]}:{q[1]}]')
        A(f'v_cmp_ne_u64 s[{t[0]}:{t[1]}], s[30:31], v[{p}:{p+1}]')
        pend.append(t)
    for q in pend: A(f's_or_b64 vcc, vcc, s[{q[0]}:{q[1]}]')

def spin(body, sleep=0, retry=None, entry=None):
    top = newlabel('spin'); done = newlabel('sdone')
    A(f's_mov_b32 s70, {SPIN}')
    if entry: A(f's_branch {entry}')
    A(f'{top}:')
    body()
    A('s_nop 0')
    A(f's_cbranch_vccz {done}')
    if sleep: A(f's_sleep {sleep}')
    if retry: retry()
    A('s_sub_u32 s70, s70, 1')
    A(f's_cbranch_scc0 {top}')
    if opt['trap']:
        A(f's_lshl_b32 s99, s2, 8\ns_or_b32 s99, s99, s3\ns_lshl_b32 s99, s99, 8\ns_or_b32 s99, s99, {lbl[0] & 255}')
        A(f'v_mov_b32 v166, {4 * (lbl[0] % 64)}\nv_mov_b32 v167, s99')
        A('global_store_dword v166, v167, s[56:57]')
    A(f'{done}:')
def spin2(body, sleep=0, retry=None, local_only=False, entry=None):
    A(f's_mov_b32 s16, s32\ns_mov_b32 s17, s33\ns_mov_b32 s18, {WSN}\ns_mov_b32 s19, 0x20000')
    def rt():
        if retry: retry()
        A('s_and_b32 s99, s70, 7')
        if local_only:
            A('s_cmp_eq_u32 s46, 1')
            A('s_cselect_b32 s99, 1, s99')
            A('s_cmp_lg_u32 s99, 0')
        A('s_cselect_b32 s16, s32, s24')
        A('s_cselect_b32 s17, s33, s25')
    spin(body, sleep, rt, entry)

def freepoll(issue, check, nchk, done, bound=None):
    top = newlabel('fp')
    A(f's_mov_b32 s70, {SPIN}')
    A(f'{top}:')
    issue()
    for k in range(nchk):
        check()
        A('s_nop 0')
        A(f's_cbranch_vccz {done}')
    A(f"s_waitcnt vmcnt({bound or opt['frb']})")
    A('s_sub_u32 s70, s70, 1')
    A(f's_cbranch_scc0 {top}')
    if not opt['ool']: A(f's_branch {done}')

def lds_wait_ge(off, n, sleep, dst=4, adr=1):
    A(f'v_mov_b32 v{adr}, 0')
    def body():
        A(f'ds_read_b32 v{dst}, v{adr} offset:{off}')
        A('s_waitcnt lgkmcnt(0)')
        A(f'v_cmp_gt_u32 vcc, {n}, v{dst}')
    spin(body, sleep=sleep)
def get_mode(dst=4, adr=1):
    lds_wait_ge(CNT + 8, 1, 2, dst, adr)
    A(f'v_readfirstlane_b32 s46, v{dst}')
def pad(k):
    if not opt['al']: return
    A('.p2align 7')
    for i in range(opt[f'p{k}']): A('s_endpgm')
def get_pref(sleep, dst=4, adr=1):
    lds_wait_ge(PREF, 1, sleep, dst, adr)
    A(f'v_readfirstlane_b32 s47, v{dst}')

outline = []
def publish(stores):
    def emit(srdn, fl, AA):
        cur = ALL
        for m, line in stores:
            m = ALL if m is None else m
            if m != cur:
                if m == ALL: AA('s_mov_b64 exec, -1')
                else: AA(f's_mov_b32 exec_lo, 0x{m & 0xffffffff:x}\ns_mov_b32 exec_hi, 0x{m >> 32:x}')
                cur = m
            AA(line.replace('@', f's[{srdn}:{srdn+3}]') + fl)
        if cur != ALL: AA('s_mov_b64 exec, -1')
    if not opt['forceslow']: emit(32, '', A)
    slow = newlabel('slow'); back = newlabel('back')
    A('s_cmp_lg_u32 s46, 1')
    A(f's_cbranch_scc1 {slow}')
    A(f'{back}:')
    blk = [f'{slow}:']
    emit(24, ' sc1', lambda t: blk.append(t))
    blk.append('s_nop 1')
    blk.append(f's_branch {back}')
    outline.append('\n'.join(blk))

GST = 3072 * 64
GOFF = [60, 61, 62, 63, 64, 65, 66, 67]
KO = [4, 5, 6, 7, 0, 1, 2, 3] if opt['kord'] else list(range(8))
HA, HB = (16, 0) if opt['vord'] else (0, 16)
assert opt['pro'] == 2
if opt['pro'] == 2:
    A(f"""
{'s_memrealtime s[84:85]' if opt['stst'] else ''}
s_load_dwordx2 s[8:9], s[0:1], 8
v_readfirstlane_b32 s3, v0
s_lshr_b32 s79, s2, 6
s_cmp_gt_u32 s79, 3
s_cbranch_scc1 L_end
s_lshr_b32 s3, s3, 6
s_cmp_gt_u32 s3, 3
s_cbranch_scc1 L_str
{('s_cmp_ge_u32 s2, %d' % opt['cpw'] + chr(10) + 's_cbranch_scc1 L_helper0') if opt['cpw'] else ''}
s_getpc_b64 s[20:21]
L_pc0:
v_lshlrev_b32 v8, 7, v0
v_min_u32 v8, L_codeend-L_pc0-4, v8
global_load_dword v166, v8, s[20:21]
s_branch L_helper0
L_str:
s_and_b32 s4, s2, 7
s_lshr_b32 s6, s2, 7
s_bfe_u32 s7, s2, 0x40003
s_lshl1_add_u32 s6, s4, s6
s_lshl_b32 s6, s6, 10
s_lshl1_add_u32 s{GOFF[KO[0]]}, s7, s6
s_addk_i32 s{GOFF[KO[0]]}, {895 + 1024 * (HB if KO[0] else HA)}
s_mulk_i32 s{GOFF[KO[0]]}, 12288
v_lshlrev_b32 v3, 4, v0
v_lshrrev_b32 v2, 3, v0
v_lshl_add_u32 v1, v2, 8, v3
s_lshl_b32 s10, 3, 27
s_mov_b32 s11, 0x20000
s_waitcnt lgkmcnt(0)
""")
else:
    A("""
s_load_dwordx2 s[8:9], s[0:1], 8
s_lshr_b32 s79, s2, 6
s_cmp_gt_u32 s79, 3
s_cbranch_scc1 L_end
v_readfirstlane_b32 s3, v0
s_and_b32 s4, s2, 7
s_lshl2_add_u32 s6, s4, s79
s_bfe_u32 s7, s2, 0x30003
s_lshr_b32 s73, s3, 6
s_cmp_gt_u32 s73, 7
s_cbranch_scc1 L_helper0
s_lshl_b32 s60, s6, 9
s_add_u32 s60, s60, s7
s_addk_i32 s60, 448
s_mulk_i32 s60, 24576
v_lshlrev_b32 v3, 4, v0
v_lshrrev_b32 v2, 3, v0
v_lshl_add_u32 v1, v2, 8, v3
s_lshl_b32 s10, 3, 27
s_mov_b32 s11, 0x20000
s_waitcnt lgkmcnt(0)
""")
if opt['stst']: A('s_memrealtime s[86:87]')
if opt['kb']: A('s_barrier')
for j in range(3): A(f'buffer_load_dwordx4 v[{16+12*KO[0]+4*j}:{19+12*KO[0]+4*j}], v1, s[8:11], s{GOFF[KO[0]]} offen offset:{128*j} nt')
def prologue2():
    A("""
s_load_dwordx16 s[36:51], s[0:1], 0
s_load_dwordx8 s[52:59], s[0:1], 64
""")
    stamp(0)
    if opt['dbg']: A('s_memrealtime s[80:81]')
A("""
s_branch L_stream0
L_helper0:
""")
prologue2()
CPF = 's_getpc_b64 s[20:21]\nL_pc0:\nv_lshlrev_b32 v8, 7, v0\nv_add_u32 v9, 8192, v8\nv_min_u32 v9, L_codeend-L_pc0-4, v9\nglobal_load_dword v10, v8, s[20:21]\nglobal_load_dword v11, v9, s[20:21]\nv_add_u32 v9, 16384, v8\nv_min_u32 v9, L_codeend-L_pc0-4, v9\nglobal_load_dword v30, v9, s[20:21]\n'
if opt['cps']:
    n = opt['cps']; nw = -(-136 // n)
    CPF = f's_getpc_b64 s[20:21]\nL_pc0:\ns_lshr_b32 s22, s2, 3\n'
    if nw < 32: CPF += f's_mul_i32 s23, s22, {(65536 + nw - 1) // nw}\ns_lshr_b32 s23, s23, 16\ns_mul_i32 s23, s23, {nw}\ns_sub_u32 s22, s22, s23\n'
    CPF += f's_mul_i32 s22, s22, {128 * n}\ns_min_u32 s22, s22, L_codeend-L_pc0-{128 * (n - 1) + 4}\ns_add_u32 s20, s20, s22\ns_addc_u32 s21, s21, 0\n'
    for i in range(n): CPF += f's_load_dword s{80 + i}, s[20:21], {128 * i}\n'
if opt['pro'] == 2: CPF = ''
W3 = f"""
{'' if opt['cps'] else CPF}v_lshlrev_b32 v1, 3, v0
v_mov_b32 v4, 0
v_mov_b32 v5, 0
ds_write_b64 v1, v[4:5] offset:{QF}
s_waitcnt lgkmcnt(0)
s_memrealtime s[62:63]
s_barrier
s_load_dwordx2 s[28:29], s[58:59], {EP}
{CPF if opt['cps'] else ''}s_branch L_ids
"""
QE = f"""
v_lshrrev_b32 v2, 3, v0
v_mul_u32_u24 v2, 12160, v2
v_lshl_add_u32 v2, v0, 4, v2
s_mul_i32 s68, s7, {80*96}
s_lshr_b32 s69, s79, 1
s_mul_i32 s69, s69, {HB - HA - 2}
s_add_u32 s69, s69, s79
s_lshl1_add_u32 s69, s4, s69
s_add_u32 s69, s69, {HA}
s_mul_i32 s69, s69, 3
s_add_u32 s68, s68, s69
s_add_u32 s68, s68, s3
s_lshl_b32 s68, s68, 7
s_lshl_b32 s69, 3, 15
s_mov_b32 s10, {640*6144*2}
s_mov_b32 s11, 0x20000
s_waitcnt lgkmcnt(0)
s_mov_b64 s[8:9], s[42:43]
"""
for r in range(10):
    if r == opt['qb']: QE += 's_barrier\n'
    QE += f'buffer_load_dwordx4 v[{24+4*r}:{27+4*r}], v2, s[8:11], s68 offen nt\n'
    if r < 9: QE += 's_add_u32 s68, s68, s69\n'
QE += 's_branch L_helper\n'
if opt['pro'] == 2: A('s_and_b32 s4, s2, 7\ns_lshl2_add_u32 s6, s4, s79\ns_bfe_u32 s7, s2, 0x30003')
else: A('s_sub_u32 s3, s73, 8')
A('v_and_b32 v0, 63, v0\ns_cmp_lg_u32 s3, 3')
if opt['qe'] == 0: A('s_cbranch_scc1 L_helper' + W3)
elif opt['qe'] == 1: A('s_cbranch_scc1 L_qe' + W3 + 'L_qe:' + QE)
else: A('s_cbranch_scc0 L_w3' + QE + 'L_w3:' + W3)
A('L_stream0:')
prologue2()
if opt['trace']: A('s_memrealtime s[20:21]')
A(f"""
v_and_b32 v0, 63, v0
{'s_sub_u32 s73, s3, 4' if opt['pro'] == 2 else 's_add_u32 s3, s73, 4'}
v_and_b32 v3, 0x70, v3
s_lshl2_add_u32 s6, s4, s79
s_and_b32 s7, s7, 7
""")

QR = 4; KR = 16
def op_addr(late):
    A(f'''
v_min_u32 v12, 47, v0
v_lshrrev_b32 v13, 3, v12
v_lshlrev_b32 v13, 11, v13
v_and_b32 v14, 1, v12
v_lshl_add_u32 v13, v14, 10, v13
v_bfe_u32 v14, v12, 1, 2
v_lshl_add_u32 v13, v14, 8, v13
v_lshlrev_b32 v12, 4, v12
s_lshr_b32 s74, s2, 7
s_lshl2_add_u32 s74, s4, s74
s_mul_i32 s74, s74, 12288
s_bfe_u32 s69, s2, 0x40003
s_lshl4_add_u32 s74, s69, s74
s_add_u32 s74, s74, {OP + late * 12288}
s_mov_b32 s22, 0x55555555
s_mov_b32 s23, 0x55555555
v_mov_b32 v14, s30
v_mov_b32 v15, s31
''')
def pkadd(d, a, b):
    for e in (0, 2): A(f'v_pk_add_f32 v[{d+e}:{d+e+1}], v[{a+e}:{a+e+1}], v[{b+e}:{b+e+1}]')
def op_publish():
    for w in range(0, 8, 2):
        A(f's_waitcnt lgkmcnt({6-w})')
        pkadd(16 + 4*w, 16 + 4*w, 20 + 4*w)
        if w == 2 or w == 6: pkadd(8 + 4*w, 8 + 4*w, 16 + 4*w)
    pkadd(4, 16, 32)
    A('''
v_cvt_pk_bf16_f32 v8, v4, v5
v_cvt_pk_bf16_f32 v9, v6, v7
v_cndmask_b32 v4, v8, v14, s[22:23]
v_cndmask_b32 v5, v9, v15, s[22:23]
v_cndmask_b32 v6, v14, v8, s[22:23]
v_cndmask_b32 v7, v15, v9, s[22:23]
''')
    publish([((1 << 48) - 1, 'buffer_store_dwordx4 v[4:7], v13, @, s74 offen')])
def stream(G, D1, D2, Vpre):
    SC = 168 - G
    VR = KR + 12 * G
    nV1 = min((SC - VR) // 12, G)
    ACC = KR + 12 * (G - 2)
    T = ACC
    ACA = ACC - 24
    QR2 = VR + 36; assert Vpre <= 9
    half = (G + 1) // 2
    st = dict(n=0)
    def vreg(g): return VR + 12 * g if g < nV1 else KR + 12 * (g - nV1)
    CTL = bool(opt['cal'])
    def issue_load(kind, g, j, depth):
        n = st['n']
        if CTL and n >= opt['cfrom']:
            go = newlabel('go')
            A('s_waitcnt lgkmcnt(0)\ns_lshl_b32 s75, s76, 4\ns_sub_u32 s75, s75, s78\ns_and_b32 s75, s75, s72\ns_add_u32 s78, s78, s79')
            if opt['lag2']: A(f"s_waitcnt vmcnt({depth+1})\ns_cmp_gt_i32 s75, {opt['lag2']}\ns_cbranch_scc1 {go}")
            A(f"s_waitcnt vmcnt({depth})\ns_cmp_gt_i32 s75, {opt['lag']}\ns_cbranch_scc1 {go}")
            A(f's_waitcnt vmcnt({depth-1})\ns_cmp_ge_i32 s75, 0\ns_cbranch_scc1 {go}\ns_waitcnt vmcnt({depth-2})')
            if opt['hard']: A(f"s_cmp_ge_i32 s75, {-opt['hard']}\ns_cbranch_scc1 {go}\ns_waitcnt vmcnt({depth-3})")
            A(f'{go}:')
        elif n >= max(depth, opt['Dinit']): A(f's_waitcnt vmcnt({depth-1})')
        r = (KR + 12 * g + 4 * j) if kind == 'K' else vreg(g) + 4 * j
        s = 8 if kind == 'K' else 12
        if opt['meas'] and n in (11, 23, 35, 47): A(f's_memrealtime s[{84 + 2 * (n // 12)}:{85 + 2 * (n // 12)}]')
        if opt['stst'] and n in (3, 6): A(f's_memrealtime s[{88 if n == 3 else 90}:{89 if n == 3 else 91}]')
        if n >= 3: A(f'buffer_load_dwordx4 v[{r}:{r+3}], v1, s[{s}:{s+3}], s{GOFF[g]} offen offset:{128*j} nt')
        if opt['trace'] or (CTL and (opt['cfrom'] - 1 <= n < 47 or n == opt['mst'])): A('s_memrealtime s[76:77]')
        if opt['trace'] and n >= 3:
            A(f's_waitcnt lgkmcnt(0)\ns_sub_u32 s75, s76, s20\ns_lshl_b32 s77, s73, 8\nv_mov_b32 v6, s77\nv_mov_b32 v7, s75\nds_write_b32 v6, v7 offset:{TRL + 4*n}')
        if CTL and n == opt['mst']:
            A(f'''
s_waitcnt lgkmcnt(0)
v_mov_b32 v6, 0
v_mov_b32 v8, s76
v_mov_b32 v9, 1
s_mov_b64 exec, 1
ds_add_u32 v6, v8 offset:{SUMS}
ds_add_u32 v6, v9 offset:{SUMS+4}
s_mov_b64 exec, -1
''')
        if CTL and opt['mst2'] and n == opt['mst2']:
            A(f's_waitcnt lgkmcnt(0)\nv_mov_b32 v6, s76\ns_mov_b64 exec, 1\nds_add_u32 v2, v6 offset:{SUMS2}\nds_add_u32 v2, v11 offset:{SUMS2+4}\ns_mov_b64 exec, -1')
        if CTL and opt['mst2'] and n == opt['p2t']:
            A(f's_mov_b64 exec, 1\nds_add_u32 v2, v11 offset:{TRG2}\ns_mov_b64 exec, -1')
        if CTL and n in (opt['cfrom'] - 1, opt['cfrom'] - 1 + opt['pick2']) + ((opt['c2'] - 1, opt['c2'] + 1) if opt['mst2'] else ()):
            A(f'''
v_mov_b32 v6, 0
ds_read_b64 v[6:7], v6 offset:{ORG}
s_movk_i32 s79, {opt['tau0']}
s_waitcnt lgkmcnt(0)
v_readfirstlane_b32 s78, v6
v_readfirstlane_b32 s72, v7
s_add_u32 s78, s78, {(n - opt['mst']) * opt['tau0']}
''')
        if CTL and n == opt['pftrig']:
            A(f'v_mov_b32 v6, 0\nv_mov_b32 v7, 1\ns_mov_b64 exec, 1\nds_add_u32 v6, v7 offset:{CNT+52}\ns_mov_b64 exec, -1')
        st['n'] += 1
    goff = lambda g: (HB if g >= 4 else HA) * 12582912 + (g & 3) * 2 * GST
    for gi, g in enumerate(KO):
        for j in range(3):
            issue_load('K', g, j, D1)
            if j == 2 and gi + 1 < G:
                A(f's_add_u32 s{GOFF[KO[gi+1]]}, s{GOFF[g]}, {(goff(KO[gi+1]) - goff(g)) & 0xffffffff}')
            if st['n'] == opt['Dinit']: A('s_waitcnt lgkmcnt(0)' + ('' if opt['kb'] else '\ns_barrier'))
            if st['n'] == opt['Dinit'] + 1:
                A(f's_load_dwordx2 s[28:29], s[58:59], {EP}')
                ws_srds(); srd(12, 40, 402653184)
    stamp(1)
    nv = 0; NV = 3 * G
    for n in range(min(Vpre, 3 * nV1)):
        issue_load('V', nv // 3, nv % 3, D2); nv += 1
    stamp(2)
    mktag()
    A('v_and_b32 v2, 3, v0\nv_min_u32 v2, 2, v2\nv_lshlrev_b32 v2, 3, v2')
    def body():
        A(f'ds_read_b32 v{QR}, v2 offset:{QF}')
        A('s_waitcnt lgkmcnt(0)')
        A(f'v_cmp_eq_u32 vcc, 0, v{QR}')
    spin(body, sleep=1)
    stamp(3)
    A(f'''
ds_read_b128 v[{QR}:{QR+3}], v3 offset:{QL}
ds_read_b128 v[{QR+4}:{QR+7}], v3 offset:{QL+128}
ds_read_b128 v[{QR+8}:{QR+11}], v3 offset:{QL+256}
ds_read_b128 v[{QR2}:{QR2+3}], v3 offset:{QL2}
ds_read_b128 v[{QR2+4}:{QR2+7}], v3 offset:{QL2+128}
ds_read_b128 v[{QR2+8}:{QR2+11}], v3 offset:{QL2+256}
''')
    for g in range(G): A(f'v_mov_b32 v{SC+g}, 0')
    A(f's_waitcnt vmcnt({nv}) lgkmcnt(0)')
    for gs in (range(half), range(half, G)):
        for i in range(12):
            for g in gs:
                A(f'v_dot2c_f32_bf16 v{SC+g}, v{KR+12*g+i}, v{(QR if g < 4 else QR2)+i}')
    allreduce8('v_add_f32', [SC + g for g in range(G)])
    A(f's_mov_b32 s68, {f32(192 ** -0.5)}')
    A('v_mov_b32 v2, 0')
    for g in range(G): A(f'v_cvt_pk_bf16_f32 v{SC+g}, v2, v{SC+g}')
    for g in range(G): A(f'v_mul_f32 v{SC+g}, s68, v{SC+g}')
    for g in range(G): A(f'v_cvt_pk_bf16_f32 v{SC+g}, v2, v{SC+g}')
    for h in range(2):
        A(f'v_max_f32 v{4+2*h}, v{SC+4*h}, v{SC+4*h+1}')
    for h in range(2):
        A(f'v_max3_f32 v{4+2*h}, v{4+2*h}, v{SC+4*h+2}, v{SC+4*h+3}')
    for h in range(2): A(f'v_max_f32_dpp v{4+2*h}, v{4+2*h}, v{4+2*h} row_ror:8 {DPPM}')
    allreduce_rows('v_max_f32', [4, 6], [T, T + 1])
    A(f's_mov_b32 s68, {f32(LOG2E)}')
    for g in range(G): A(f'v_sub_f32 v{SC+g}, v{SC+g}, v{4 if g < 4 else 6}')
    for g in range(G): A(f'v_mul_f32 v{SC+g}, s68, v{SC+g}')
    for g in range(G): A(f'v_exp_f32 v{SC+g}, v{SC+g}')
    for h in range(2): A(f'v_add_f32 v{5+2*h}, v{SC+4*h}, v{SC+4*h+1}')
    for k in (2, 3):
        for h in range(2): A(f'v_add_f32 v{5+2*h}, v{5+2*h}, v{SC+4*h+k}')
    for h in range(2): A(f'v_add_f32_dpp v{5+2*h}, v{5+2*h}, v{5+2*h} row_ror:8 {DPPM}')
    allreduce_rows('v_add_f32', [5, 7], [T, T + 1])
    A(f'''
s_lshl_b32 s69, s73, 4
v_mov_b32 v{T}, s69
ds_write_b128 v{T}, v[4:7] offset:{SL}
''')
    stamp(4)
    for g in range(G): A(f'v_cvt_pk_bf16_f32 v{SC+g}, v{SC+g}, v2')
    for i in range(48): A(f'v_mov_b32 v{ACA+i}, 0')
    A('v_mov_b32 v5, v6')
    A('''
v_and_b32 v8, 7, v0
v_lshlrev_b32 v8, 5, v8
v_lshrrev_b32 v9, 4, v0
v_lshl_add_u32 v8, v9, 3, v8
s_mul_i32 s69, s73, 768
v_add_u32 v8, s69, v8
v_mov_b32 v11, 1
''')
    def scale_factor():
        def body():
            A(f'ds_read_b128 v[12:15], v3 offset:{SL}')
            A('s_waitcnt lgkmcnt(0)')
            A('v_cmp_eq_u32 vcc, 0, v15')
        spin(body, sleep=1)
        allreduce8('v_max_f32', [12, 14])
        A('v_sub_f32 v4, v4, v12\nv_sub_f32 v5, v5, v14\nv_mul_f32 v4, s68, v4\nv_mul_f32 v5, s68, v5\nv_exp_f32 v4, v4\nv_exp_f32 v5, v5')
        get_mode(dst=13, adr=2)
        op_addr(2)
    def reduce_j(j, ac, f, ol):
        a = ac + 8 * j
        for e in range(4): A(f'{S32} v{a+e}, v{a+e+4}')
        for e in range(4): A(f'v_add_f32 v{a+e}, v{a+e}, v{a+e+4}')
        for e in range(2): A(f'{S16} v{a+e}, v{a+e+2}')
        for e in range(2): A(f'v_add_f32 v{a+e}, v{a+e}, v{a+e+2}')
        for e in range(2): A(f'v_add_f32_dpp v{a+e}, v{a+e}, v{a+e} row_ror:8 {DPPM}')
        for e in range(2): A(f'v_mul_f32 v{a+e}, v{f}, v{a+e}')
        A(f'ds_write_b64 v8, v[{a}:{a+1}] offset:{ol+256*j}')
    def pv(idx):
        g, j = divmod(idx, 3)
        r = vreg(g) + 4 * j
        if j == 0: A(f'v_lshlrev_b32 v10, 16, v{SC+g}')
        ac = ACA if g < 4 else ACC
        if idx == 9: scale_factor()
        for e in range(4):
            A(f'v_dot2c_f32_bf16 v{ac+8*j+2*e}, v{r+e}, v{SC+g}')
            A(f'v_dot2c_f32_bf16 v{ac+8*j+2*e+1}, v{r+e}, v10')
        if g & 3 == 3: reduce_j(j, ac, 4 if g < 4 else 5, OLA if g < 4 else OL)
        if idx == 11: A(f's_mov_b64 exec, 1\nds_add_u32 v2, v11 offset:{CNT+12}\ns_mov_b64 exec, -1')
    done_idx = -1; pv_next = 0
    while nv < NV:
        issue_load('V', nv // 3, nv % 3, D2)
        done_idx = nv - D2 - ((2 if opt['lag2'] else 1) if CTL else 0)
        nv += 1
        if nv == NV - opt['wtrig']:
            A(f's_mov_b64 exec, 1\nds_add_u32 v2, v11 offset:{CNT+4}\ns_mov_b64 exec, -1')
        cnt = 0
        while pv_next <= done_idx and cnt < 2:
            pv(pv_next); pv_next += 1; cnt += 1
    while pv_next < NV:
        if pv_next > done_idx:
            A(f's_waitcnt vmcnt({NV - 1 - pv_next})')
            done_idx = pv_next
        pv(pv_next); pv_next += 1
    stamp(5)

stream(8, D1, D2, opt['Vpre'])
A(f'''
s_mov_b64 exec, 1
ds_add_rtn_u32 v10, v2, v11 offset:{CNT}
s_mov_b64 exec, -1
''')
for w in range(8): A(f'ds_read_b128 v[{16+4*w}:{19+4*w}], v12 offset:{OL+768*w}')
A('''
s_waitcnt lgkmcnt(8)
v_readfirstlane_b32 s68, v10
s_cmp_lg_u32 s68, 7
s_cbranch_scc1 L_nopub
''')
op_publish()
A(f'ds_write_b32 v2, v11 offset:{CNT+28}')
stamp_now(16)
A('L_nopub:')
if opt['dbgs']:
    a, b = [(0, 0), (86, 84), (88, 86), (90, 86)][opt['dbgs']]
    A(f's_waitcnt lgkmcnt(0)\ns_sub_u32 s68, s{a}, s{b}\nv_mov_b32 v16, s68\ns_mov_b64 exec, 1\nds_add_u32 v2, v16 offset:{CNT+36}\ns_mov_b64 exec, -1\ns_waitcnt lgkmcnt(0)')
elif opt['stst'] or opt['meas']:
    A(f'''
s_waitcnt lgkmcnt(0)
v_mov_b32 v16, s84
v_mov_b32 v17, s86
v_mov_b32 v18, s88
v_mov_b32 v19, s90
s_lshl3_add_u32 s68, s2, s73
s_lshl_b32 s68, s68, 4
s_add_u32 s68, s68, {0x380000}
s_mov_b64 exec, 1
buffer_store_dwordx4 v[16:19], v2, s[24:27], s68 offen
s_mov_b64 exec, -1
s_nop 2
''')
if opt['sprio']: A('s_setprio 0')
A('s_waitcnt lgkmcnt(0)')
if opt['trace']:
    A(f'''
s_lshl_b32 s68, s73, 8
v_lshl_add_u32 v16, v0, 2, s68
ds_read_b32 v17, v16 offset:{TRL}
s_lshl_b32 s68, s2, 11
s_add_u32 s68, s68, {0x380000}
s_waitcnt lgkmcnt(0)
buffer_store_dword v17, v16, s[24:27], s68 offen
s_nop 2
''')
stamp(6)
A('''
s_cmp_lt_u32 s5, 20
s_cbranch_scc1 L_notf1
s_cmp_lt_u32 s5, 30
s_cbranch_scc1 L_f1
s_branch L_spare
L_notf1:
s_cmp_gt_u32 s5, 11
s_cbranch_scc1 L_stream_exit
s_cmp_gt_u32 s3, 6
s_cbranch_scc1 L_f2
s_branch L_dry
L_stream_exit:
''')
if STAMPS:
    A(f"s_cmp_eq_u32 s3, {opt['swave']}")
    A('s_cbranch_scc0 L_end')
    stamp(7)
    write_stamps(8)
A('s_endpgm')

A('L_helper:')
A('s_setprio 3')
A('''
v_lshlrev_b32 v1, 2, v0
v_lshrrev_b32 v2, 3, v0
s_mul_i32 s68, s7, 80
v_add_u32 v3, s68, v2
v_lshlrev_b32 v3, 1, v3
v_mul_u32_u24 v2, 12288, v2
v_and_b32 v7, 7, v0
v_lshl_add_u32 v2, v7, 4, v2
s_mul_i32 s68, s68, 12288
s_mul_i32 s69, s6, 384
s_add_u32 s68, s68, s69
s_lshl_b32 s69, s3, 7
s_add_u32 s68, s68, s69
''')
XS = 64; XU = 70; XR = 8; WQ = 24; QA = 80
A('s_waitcnt lgkmcnt(0)')
if opt['xs'] == 1:
    for i in range(10): A(f's_load_dword s{12+i}, s[36:37], {128*i}')
if not (opt['qe'] and opt['qb'] < 10): A('s_barrier')
srd(8, 42, 640 * 6144 * 2)
if opt['xs']:
    for r in range(0 if opt['qe'] else 10):
        A(f'buffer_load_dwordx4 v[{WQ+4*r}:{WQ+4*r+3}], v2, s[8:11], s68 offen nt')
        if r < 9: A('s_add_u32 s68, s68, 98304')
    if opt['xs'] == 1: A('s_waitcnt lgkmcnt(0)')
    for i in range(5): A(f'global_load_dword v{XS+i}, v1, s[36:37] offset:{256*i}' + (' nt' if opt['xnt'] else ''))
    for r in range(10): A(f'global_load_ushort v{XR+r}, v3, s[36:37] offset:{16*r}' + (' nt' if opt['xnt'] else ''))
else:
    for i in range(5): A(f'global_load_dword v{XS+i}, v1, s[36:37] offset:{256*i}' + (' nt' if opt['xnt'] else ''))
    for r in range(10): A(f'global_load_ushort v{XR+r}, v3, s[36:37] offset:{16*r}' + (' nt' if opt['xnt'] else ''))
    for r in range(10):
        A(f'buffer_load_dwordx4 v[{WQ+4*r}:{WQ+4*r+3}], v2, s[8:11], s68 offen nt')
        if r < 9: A('s_add_u32 s68, s68, 98304')
A(f's_load_dwordx2 s[28:29], s[58:59], {EP}')
A('s_mov_b32 s69, 0xffff0000')
ws_srds()
if opt['qpre']:
    A(f'''
v_lshlrev_b32 v91, 7, v0
s_lshl_b32 s64, s71, 11
s_lshl_b32 s65, s3, 9
s_add_u32 s64, s64, s65
s_mov_b64 exec, 15
buffer_load_dword v92, v91, s[32:35], s64 offen offset:{QP} nt
s_mov_b64 exec, -1
''')
mktag()
A(f"s_waitcnt vmcnt({(10 if opt['xs'] else 20) + (1 if opt['qpre'] else 0)})")
for i in range(5):
    A(f'v_lshlrev_b32 v{XU+2*i}, 16, v{XS+i}')
    A(f'v_and_b32 v{XU+1+2*i}, s69, v{XS+i}')
A(f'''
v_add_f32 v4, v{XU}, v{XU+1}
v_add_f32 v5, v{XU+2}, v{XU+3}
v_add_f32 v6, v{XU+4}, v{XU+5}
v_add_f32 v7, v{XU+6}, v{XU+7}
v_add_f32 v4, v4, v5
v_add_f32 v6, v6, v7
v_add_f32 v5, v{XU+8}, v{XU+9}
v_add_f32 v4, v4, v6
v_add_f32 v4, v4, v5
''')
allreduce64('v_add_f32', [4], [5])
A(f'v_mul_f32 v4, {f32(1.0/640)}, v4')
for i in range(10): A(f'v_sub_f32 v{XU+i}, v{XU+i}, v4')
A(f'v_mul_f32 v5, v{XU}, v{XU}')
for i in range(1, 10): A(f'v_fmac_f32 v5, v{XU+i}, v{XU+i}')
allreduce64('v_add_f32', [5], [6])
A(f'v_mul_f32 v5, {f32(1.0/640)}, v5')
bf16r(4, 4); bf16r(5, 5)
A(f'v_add_f32 v5, {f32(1e-5)}, v5')
bf16r(5, 5)
A('v_sqrt_f32 v5, v5')
bf16r(5, 5)
A('v_rcp_f32 v5, v5')
A('v_mov_b32 v6, 0')
A(f"s_waitcnt vmcnt({0 if opt['xs'] else 10})")
if opt['qpre'] & 2: A(f's_mov_b64 exec, 15\nbuffer_load_dword v92, v91, s[32:35], s64 offen offset:{QP} sc1\ns_mov_b64 exec, -1')
for r in range(10): A(f'v_lshlrev_b32 v{XR+r}, 16, v{XR+r}')
for r in range(10): A(f'v_sub_f32 v{XR+r}, v{XR+r}, v4')
for r in range(10): A(f'v_cvt_pk_bf16_f32 v{XR+r}, v6, v{XR+r}')
for r in range(10): A(f'v_mul_f32 v{XR+r}, v{XR+r}, v5')
for r in range(10):
    A(f'v_cvt_pk_bf16_f32 v{XU+r}, v6, v{XR+r}')
    A(f'v_cvt_pk_bf16_f32 v{XR+r}, v{XR+r}, v6')
for e in range(8): A(f'v_mov_b32 v{QA+e}, 0')
A('''
v_and_b32 v90, 7, v0
v_lshrrev_b32 v6, 4, v0
v_lshl_add_u32 v90, v90, 2, v6
v_lshlrev_b32 v90, 4, v90
s_lshl_b32 s64, s71, 11
s_lshl_b32 s69, s3, 9
s_add_u32 s64, s64, s69
''')
for r in range(10):
    if not opt['xs']: A(f's_waitcnt vmcnt({9-r})')
    for e in range(4):
        A(f'v_dot2c_f32_bf16 v{QA+2*e}, v{WQ+4*r+e}, v{XR+r}')
        A(f'v_dot2c_f32_bf16 v{QA+2*e+1}, v{WQ+4*r+e}, v{XU+r}')
if STAMPS: A('s_lshr_b32 s82, s2, 3\ns_add_u32 s82, s80, s82\ns_addc_u32 s83, s81, 0')
for e in range(4): A(f'{S32} v{QA+e}, v{QA+e+4}')
for e in range(4): A(f'v_add_f32 v{QA+e}, v{QA+e}, v{QA+e+4}')
for e in range(2): A(f'{S16} v{QA+e}, v{QA+e+2}')
for e in range(2): A(f'v_add_f32 v{QA+e}, v{QA+e}, v{QA+e+2}')
for e in range(2): A(f'v_add_f32_dpp v{QA+e}, v{QA+e}, v{QA+e} row_ror:8 {DPPM}')
A(f'v_mov_b32 v{QA+2}, s30\nv_mov_b32 v{QA+3}, s31')
QM = [0x00ff00ff00ff00ff, 0x000f000f000f000f, 0x0003000300030003][opt['qh']]
if not opt['forceslow']:
    setexec(QM)
    A(f'buffer_store_dwordx4 v[{QA}:{QA+3}], v90, s[32:35], s64 offen offset:{QP}')
    setexec(ALL)
A(f'''
v_and_b32 v3, {[31, 15, 7][opt['qh']]}, v0
v_lshrrev_b32 v2, 5, v0
v_lshlrev_b32 v2, 11, v2
v_lshl_add_u32 v2, v3, 4, v2
s_lshl_b32 s68, s6, 14
s_add_u32 s60, s68, s69
s_add_u32 s61, s60, 4096
s_add_u32 s62, s60, 8192
s_add_u32 s63, s60, 12288
v_lshlrev_b32 v3, 2, v3
s_lshl_b32 s69, s3, 7
v_add_u32 v3, s69, v3
v_mov_b32 v1, 0
s_mov_b32 s65, 0
''')
def q_lazy():
    skip = newlabel('qlazy')
    A(f'''
ds_read_b32 v4, v1 offset:{CNT+8}
s_waitcnt lgkmcnt(0)
v_readfirstlane_b32 s46, v4
s_sub_u32 s68, s46, s65
s_cmp_lg_u32 s68, 2
s_cbranch_scc1 {skip}
''')
    setexec(QM)
    A(f'buffer_store_dwordx4 v[{QA}:{QA+3}], v90, s[24:27], s64 offen offset:{QP} sc1')
    setexec(ALL)
    A(f's_mov_b32 s65, 1\n{skip}:')
def body():
    for n in range(4):
        A(f'buffer_load_dwordx4 v[{8+4*n}:{11+4*n}], v2, s[16:19], s{60+n} offen offset:{QP} sc1' + ('' if opt['qpre'] & 4 else ' nt'))
    A('s_waitcnt vmcnt(0)')
    tagcheck([10, 14, 18, 22])
A('''
s_add_u32 s68, s3, 5
s_cmp_lg_u32 s68, s7
s_cbranch_scc1 L_qwait
''')
spin2(body, sleep=opt['sleep'], retry=q_lazy)
stamp(2)
A(f'''
v_add_f32 v8, v8, v12
v_add_f32 v9, v9, v13
v_add_f32 v16, v16, v20
v_add_f32 v17, v17, v21
v_add_f32 v8, v8, v16
v_add_f32 v9, v9, v17
''')
swapreduce(S32, 'v_add_f32', [8, 9], [10, 11])
A(f'''
v_cvt_pk_bf16_f32 v8, v8, v9
s_lshl_b32 s66, s6, 14
s_lshl_b32 s68, s3, 11
s_add_u32 s66, s66, s68
v_mov_b32_dpp v9, v8 quad_perm:[1,0,3,2] {DPPM}
v_mov_b32 v10, s30
v_mov_b32 v11, s31
v_lshlrev_b32 v2, 3, v0
''')
get_mode()
publish([(0x55555555, f'buffer_store_dwordx4 v[8:11], v2, @, s66 offen offset:{QP + 1536}')])
A(f'''
s_branch L_qget
L_qwait:
s_sleep {opt['q2d']}
L_qget:
s_lshr_b32 s66, s2, 7
s_lshl2_add_u32 s66, s4, s66
s_lshl_b32 s66, s66, 14
s_lshl_b32 s68, s3, 11
s_add_u32 s66, s66, s68
v_and_b32 v2, 15, v0
v_bfe_u32 v5, v0, 4, 1
v_lshlrev_b32 v3, 3, v2
v_add_u32 v3, s69, v3
v_lshl_add_u32 v3, v5, 13, v3
v_lshlrev_b32 v2, 4, v2
v_lshl_add_u32 v2, v5, 15, v2
''')
assert QL2 - QL == 1 << 13
def body2():
    A(f'buffer_load_dwordx4 v[12:15], v2, s[16:19], s66 offen offset:{QP + 1536} sc1 nt')
    A('s_waitcnt vmcnt(0)')
    tagcheck([14])
spin2(body2, sleep=opt['q2s'], retry=q_lazy)
A(f'ds_write_b64 v3, v[12:13] offset:{QL}')
A(f'''
s_lshl_b32 s69, s3, 3
v_mov_b32 v4, s69
v_mov_b32 v6, 1
s_waitcnt lgkmcnt(0)
ds_write_b32 v4, v6 offset:{QF}
''')
get_mode()
q_lazy()
A('s_branch L_stats')
pad(1)
A('L_ids:')
A(f'''
s_setprio 3
s_getreg_b32 s64, hwreg(HW_REG_XCC_ID)
''')
ws_srds()
mktag()
A(f'''
s_and_b32 s64, s64, 15
v_mov_b32 v4, s30
v_mov_b32 v5, s31
v_mov_b32 v6, s64
v_mov_b32 v7, s64
s_lshl_b32 s68, s4, 9
s_add_u32 s68, s68, {ID}
s_lshr_b32 s65, s2, 3
s_lshl_b32 s69, s65, 4
v_mov_b32 v1, s69
s_mov_b64 exec, 1
buffer_store_dwordx4 v[4:7], v1, s[32:35], s68 offen
s_mov_b64 exec, -1
s_cmp_lg_u32 s65, {opt['lead']}
s_cbranch_scc1 L_noinit
v_lshlrev_b32 v12, 8, v0
s_lshl_b32 s69, s4, 15
s_add_u32 s69, s69, {PB}
''')
m = sum(1 << (k * 9 & 31) for k in range(opt['shots']))
setexec(m | m << 32)
A('buffer_store_dword v4, v12, s[24:27], s69 offen sc1\ns_mov_b64 exec, -1')
TLB = ''
if opt['tlb']:
    TLB = f'''
s_lshr_b32 s69, s2, 7
s_lshl1_add_u32 s69, s4, s69
s_mul_i32 s69, s69, 12582912
s_add_u32 s69, s69, {11010048 - 128}
v_and_b32 v14, 1, v0
v_mul_u32_u24 v14, 12288, v14
v_lshlrev_b32 v14, 14, v14
v_add_u32 v14, s69, v14
s_mov_b64 exec, 3
'''
    if opt['tlb'] & 1: TLB += 'global_load_dword v31, v14, s[38:39] nt\nglobal_load_dword v32, v14, s[40:41] nt\n'
    if opt['tlb'] & 2:
        TLB += f'''s_mul_i32 s69, s4, {2*192*1280}
v_and_b32 v14, 1, v0
v_mul_u32_u24 v14, {16*192*5}, v14
v_lshlrev_b32 v14, 8, v14
v_add_u32 v14, s69, v14
global_load_dword v33, v14, s[44:45] nt
s_mov_b64 exec, 1
v_mov_b32 v14, 0
global_load_dword v34, v14, s[48:49] nt
global_load_dword v35, v14, s[50:51] nt
global_load_dword v36, v14, s[52:53] nt
'''
    TLB += 's_mov_b64 exec, -1'
A(f'''
L_noinit:
{TLB}
v_and_b32 v1, 31, v0
v_lshlrev_b32 v1, 4, v1
s_mov_b32 s70, {opt['idtries']}
s_mov_b32 s46, 2
L_idpoll:
s_sleep {opt['idsleep']}
buffer_load_dwordx4 v[8:11], v1, s[32:35], s68 offen sc1{' nt' if opt['idnt'] else ''}
s_waitcnt vmcnt(0)
v_cmp_ne_u64 vcc, s[30:31], v[8:9]
s_nop 0
s_cbranch_vccz L_iddone
s_sub_u32 s70, s70, 1
s_cbranch_scc0 L_idpoll
s_branch L_idset
L_iddone:
v_cmp_ne_u32 vcc, s64, v10
s_nop 0
s_cbranch_vccnz L_idset
s_mov_b32 s46, {2 if opt['forceslow'] else 1}
L_idset:
v_mov_b32 v1, 0
v_mov_b32 v4, s46
ds_write_b32 v1, v4 offset:{CNT+8}
''')
A(f'''
s_cmp_lg_u32 s65, {opt['lead']}
s_cbranch_scc1 L_pf
s_lshl_b32 s69, s4, 15
s_add_u32 s69, s69, {PB}
s_add_u32 s22, s58, s69
s_addc_u32 s23, s59, 0
s_waitcnt lgkmcnt(0)
s_mov_b32 s8, -1
s_mov_b32 s9, -1
s_memtime s[12:13]
''')
for k in range(2 * opt['shots']):
    c = (k ^ (k >> 1)) & 1
    i = (k >> 1) * 9 & 31
    a, b = (12, 14) if k % 2 == 0 else (14, 12)
    A('s_waitcnt lgkmcnt(0)')
    A(f's_load_dword s10, s[22:23], {c * 8192 + i * 256}')
    A('s_waitcnt lgkmcnt(0)')
    A(f's_memtime s[{b}:{b+1}]')
    A('s_waitcnt lgkmcnt(0)')
    A(f's_sub_u32 s11, s{b}, s{a}')
    A(f's_min_u32 s{8+c}, s{8+c}, s11')
A(f'''
s_cmp_gt_u32 s8, s9
s_cselect_b32 s21, 1, 0
v_mov_b32 v4, s21
v_mov_b32 v5, s62
v_mov_b32 v6, s30
v_mov_b32 v7, s31
s_lshl_b32 s69, s4, 4
s_add_u32 s69, s69, {PF}
s_mov_b64 exec, 1
buffer_store_dwordx4 v[4:7], v1, s[24:27], s69 offen sc1
s_mov_b64 exec, -1
L_pf:
''')
RE = ['s_mov_b32 s66, s68\ns_mov_b32 s65, -1',
      f"s_add_u32 s68, s68, {16 * opt['e2'] - (opt['mst2'] - opt['mst']) * opt['tau0']}\ns_sub_u32 s69, s68, s66\ns_and_b32 s69, s69, s65\ns_cmp_lt_i32 s69, 0\ns_cbranch_scc1 L_nostat"]
def calibrate(k, SUMS, TRG, CAL, tries, out):
    A(f"s_cmp_lg_u32 s7, {opt['samp']}\ns_cbranch_scc1 L_nosample{k}\nv_mov_b32 v1, 0")
    def body():
        A(f'ds_read_b64 v[4:5], v1 offset:{SUMS}')
        A('s_waitcnt lgkmcnt(0)')
        A('v_cmp_gt_u32 vcc, 8, v5')
    spin(body, sleep=2)
    A(f'''
v_mov_b32 v5, s31
v_lshlrev_b32 v6, 9, v0
s_lshl_b32 s68, s6, 3
s_add_u32 s68, s68, {CAL}
s_mov_b64 exec, {(2 << tries) - 1}
buffer_store_dwordx2 v[4:5], v6, s[24:27], s68 offen sc1
s_mov_b64 exec, -1
L_nosample{k}:
''')
    lds_wait_ge(TRG, 8, 4, dst=12)
    A(f'''
s_add_u32 s60, s58, {CAL}
s_addc_u32 s61, s59, 0
s_mov_b32 s70, {tries}
L_calpoll{k}:
s_lshl_b32 s96, s62, 8
s_sub_u32 s96, 0, s96
s_mov_b32 s97, 0
''')
    for h in range(2):
        A(f's_load_dwordx16 s[8:23], s[60:61], {128*h}\ns_load_dwordx16 s[80:95], s[60:61], {128*h+64}\ns_waitcnt lgkmcnt(0)')
        for b in (8, 80):
            for i in range(8):
                A(f's_add_u32 s96, s96, s{b+2*i}\ns_cmp_lg_u32 s{b+2*i+1}, s31\ns_addc_u32 s97, s97, 0')
    A(f'''
s_cmp_eq_u32 s97, 0
s_cbranch_scc1 L_calok{k}
s_add_u32 s60, s60, 512
s_addc_u32 s61, s61, 0
s_sub_u32 s70, s70, 1
s_cbranch_scc1 {out}
s_sleep {opt['calsleep']}
s_branch L_calpoll{k}
L_calok{k}:
s_ashr_i32 s96, s96, 4
s_mov_b32 s68, {16 * opt['dC']}
s_cmp_lt_u32 s5, 30
s_cselect_b32 s68, {16 * opt['dB']}, s68
s_cmp_lt_u32 s5, 20
s_cselect_b32 s68, {16 * opt['dA']}, s68
s_lshl4_add_u32 s68, s62, s68
s_add_u32 s68, s68, s96
{RE[k]}
v_mov_b32 v12, s68
v_mov_b32 v13, -1
ds_write_b64 v1, v[12:13] offset:{ORG}
''')

A('s_mov_b32 s65, 0')
if opt['cal']: calibrate(0, SUMS, CNT + 52, CAL, opt['caltries'], 'L_stats')

A('L_stats:')
A('v_and_b32 v1, 7, v0\nv_lshlrev_b32 v1, 4, v1')
def body():
    A(f'ds_read_b128 v[4:7], v1 offset:{SL}')
    A('s_waitcnt lgkmcnt(0)')
    A('v_cmp_eq_u32 vcc, 0, v7')
spin(body, sleep=4)
A('s_cmp_lg_u32 s3, 3')
A('s_cbranch_scc1 L_nostat')
def combine_stats(red):
    A(f's_mov_b32 s68, {f32(LOG2E)}')
    A('v_mov_b32 v2, v4')
    red('v_max_f32', [2])
    A('v_sub_f32 v4, v4, v2\nv_mul_f32 v4, s68, v4\nv_exp_f32 v4, v4\nv_mul_f32 v3, v4, v5')
    red('v_add_f32', [3])
A('''
v_and_b32 v12, 8, v0
v_cmp_ne_u32 vcc, 0, v12
v_lshlrev_b32 v12, 6, v12
v_cndmask_b32 v4, v4, v6, vcc
v_cndmask_b32 v5, v5, v7, vcc
''')
combine_stats(allreduce8)
A(f'''
s_lshr_b32 s68, s2, 7
s_lshl2_add_u32 s68, s4, s68
s_bfe_u32 s69, s2, 0x40003
s_lshl4_add_u32 s68, s68, s69
s_lshl_b32 s68, s68, 4
s_add_u32 s68, s68, {ST}
v_mov_b32 v4, s30
v_mov_b32 v5, s31
''')
publish([(0x101, 'buffer_store_dwordx4 v[2:5], v12, @, s68 offen')])
A(f's_mov_b32 s68, {PF}')
def body():
    A('buffer_load_dwordx4 v[8:11], v1, s[24:27], s68 offen sc1')
    A('s_waitcnt vmcnt(0)')
    tagcheck([10])
spin(body, sleep=8)
A('''
v_cmp_ne_u32 vcc, 0, v8
s_nop 0
s_and_b32 s67, vcc_lo, 0xff
s_bitset1_b32 s67, 8
v_mov_b32 v4, s67
v_mov_b32 v1, 0
''')
if opt['dbg'] and not opt['dbgs']:
    A('v_subrev_u32 v9, s62, v9')
    allreduce8('v_min_i32', [9])
    A(f'v_add_u32 v9, s62, v9\nds_write_b32 v1, v9 offset:{CNT+36}')
A(f'ds_write_b32 v1, v4 offset:{PREF}')
if opt['cal'] and opt['mst2']: calibrate(1, SUMS2, TRG2, CAL + 2048, opt['tries2'], 'L_nostat')
A('L_nostat:')
A(f"s_cmp_lg_u32 s3, {5 if opt['abl'] & 2 else 2}\ns_cbranch_scc1 L_noa")
op_addr(0)
lds_wait_ge(CNT + 12, 8, 4)
if opt['apub']: lds_wait_ge(CNT + 4, opt['apub'], 2)
for w in range(8): A(f'ds_read_b128 v[{16+4*w}:{19+4*w}], v12 offset:{OLA+768*w}')
op_publish()
A('L_noa:')
if opt['tl2']:
    A(f'''
s_cmp_lg_u32 s3, 1
s_cbranch_scc1 L_notl
s_lshl_b32 s68, s2, 12
v_mov_b32 v8, s68
s_mov_b64 exec, 1
s_cmp_lt_u32 s5, 20
s_cbranch_scc1 L_tlwo
{'global_load_dword v9, v8, s[48:49] nt' + chr(10) + 'global_load_dword v10, v8, s[50:51] nt' if opt['tl2'] & 2 else ''}
s_branch L_tlj
L_tlwo:
{'global_load_dword v9, v8, s[52:53] nt' if opt['tl2'] & 1 else ''}
''')
    if opt['tl2'] & 4:
        A(f'''
s_cmp_ge_u32 s5, 10
s_addc_u32 s68, s4, s4
s_mul_i32 s68, s68, {192*1280}
s_lshl_b32 s69, s5, 7
s_add_u32 s68, s68, s69
v_mov_b32 v11, s68
v_add_u32 v12, {16*192*1280}, v11
global_load_dword v10, v11, s[44:45] nt
global_load_dword v13, v12, s[44:45] nt
''')
    A('L_tlj:')
    if opt['tl2'] & 8: A(f's_lshl_b32 s68, s2, 7\ns_add_u32 s68, s68, {0x3F0000}\nv_mov_b32 v14, 0\nbuffer_load_dword v15, v14, s[32:35], s68 offen nt')
    A('s_mov_b64 exec, -1\ns_waitcnt vmcnt(0)\nL_notl:')
A('s_cmp_lt_u32 s5, 20\ns_cbranch_scc0 L_helper_exit')
BW = 64
CF = 56
def tr_addr(dst, tmp):
    A(f'''
v_lshrrev_b32 v{dst}, 4, v0
v_lshlrev_b32 v{dst}, 10, v{dst}
v_bfe_u32 v{tmp}, v0, 2, 2
v_lshl_add_u32 v{dst}, v{tmp}, 7, v{dst}
v_and_b32 v{tmp}, 3, v0
v_lshl_add_u32 v{dst}, v{tmp}, 3, v{dst}
''')
A(f'''
s_cmp_ge_u32 s5, 10
s_cselect_b32 s76, 1, 0
s_mul_i32 s77, s76, 10
s_sub_u32 s77, s5, s77
s_lshr_b32 s78, s3, 1
v_and_b32 v2, 48, v0
s_lshl_b32 s68, s78, 6
v_add_u32 v22, s68, v2
v_lshlrev_b32 v60, 4, v0
s_lshl1_add_u32 s73, s4, s78
s_lshl1_add_u32 s73, s73, s76
s_lshl1_add_u32 s73, s73, s3
s_lshl_b32 s68, s78, 1
s_sub_u32 s73, s73, s68
s_mul_i32 s73, s73, 6144
s_add_u32 s73, s73, {OP}
s_add_u32 s74, s73, 4096
v_lshlrev_b32 v62, 2, v0
s_lshl_b32 s68, s3, 8
v_add_u32 v61, s68, v62
v_lshrrev_b32 v2, 5, v0
v_lshlrev_b32 v2, 11, v2
v_bfe_u32 v3, v0, 2, 3
v_lshl_add_u32 v2, v3, 4, v2
v_and_b32 v3, 1, v0
v_lshl_add_u32 v63, v3, 13, v2
s_lshr_b32 s75, s77, 1
s_lshl_b32 s75, s75, 14
s_and_b32 s68, s77, 1
s_lshl_b32 s68, s68, 12
s_add_u32 s75, s75, s68
s_lshl1_add_u32 s68, s4, s76
s_lshl_b32 s68, s68, 7
s_add_u32 s75, s75, s68
s_add_u32 s75, s75, {YP}
s_mov_b32 s8, 0x33333333
s_mov_b32 s9, 0x33333333
v_mov_b32 v50, s30
v_mov_b32 v51, s31
''')
tr_addr(24, 25)
A('s_mul_i32 s69, s3, 12288\nv_add_u32 v24, s69, v24')
A(f'''
s_cmp_lg_u32 s3, 0
s_cbranch_scc1 L_noc
s_lshl2_add_u32 s72, s4, s76
s_lshl_b32 s72, s72, 8
s_add_u32 s72, s72, {ST}
v_and_b32 v1, 15, v0
v_lshlrev_b32 v1, 4, v1
v_and_b32 v2, 16, v0
v_lshl_add_u32 v1, v2, 5, v1
''')
def body():
    A(f"s_sleep {opt['stsleep']}")
    A('buffer_load_dwordx4 v[4:7], v1, s[16:19], s72 offen sc1' + (' nt' if opt['idnt'] else ''))
    A('s_waitcnt vmcnt(0)')
    tagcheck([6])
spin2(body, local_only=True)
stamp(4)
combine_stats(allreduce16)
A(f'''
v_rcp_f32 v3, v3
v_and_b32 v1, 0x7c, v62
v_mul_f32 v4, v4, v3
v_mov_b32 v2, 0
v_mov_b32 v3, 1
ds_write_b32 v1, v4 offset:{CL}
ds_write_b32 v2, v3 offset:{CNT+24}
L_noc:
''')
lds_wait_ge(CNT + 24, 1, 2)
A(f'ds_read_b128 v[{CF}:{CF+3}], v22 offset:{CL}')
def wo_tr(ts):
    for t in ts:
        for u in range(4):
            r = BW + 4 * (4 * t + u)
            A(f'ds_read_b64_tr_b16 v[{r}:{r+1}], v24 offset:{WL + 4096*t + 32*u}')
            A(f'ds_read_b64_tr_b16 v[{r+2}:{r+3}], v24 offset:{WL + 4096*t + 32*u + 512}')
AO = 144
def op_loads(srdn, fl=''):
    stamp(2)
    for n in range(6):
        A(f'buffer_load_dwordx4 v[{AO+4*n}:{AO+4*n+3}], v60, s[{srdn}:{srdn+3}], s{73 + n // 4} offen offset:{1024*(n%4)} sc1' + fl)
srd(12, 44, 6144 * 640 * 2)
A(f'''
v_lshrrev_b32 v21, 3, v0
v_mul_u32_u24 v21, 1280, v21
v_and_b32 v3, 7, v0
v_lshl_add_u32 v21, v3, 4, v21
s_lshl1_add_u32 s60, s4, s76
s_mul_i32 s68, s78, {HB - HA}
s_add_u32 s60, s60, s68
s_add_u32 s60, s60, {HA}
s_and_b32 s68, s3, 1
s_lshl1_add_u32 s60, s60, s68
s_mul_i32 s60, s60, {96*1280}
s_lshl_b32 s69, s77, 7
s_add_u32 s60, s60, s69
s_mul_i32 s61, s3, 12288
s_add_u32 s61, s61, {WL}
''')
A('v_mov_b32 v23, 1\ns_lshl_b32 s68, s3, 2\nv_mov_b32 v25, s68')
get_pref(4)
lds_wait_ge(CNT + 4, 8, 2)
stamp(3)
A('s_cmp_lg_u32 s78, 0\ns_cbranch_scc1 L_nofirst')
if opt['abl'] & 1:
    for t in range(3):
        for r in (0, 6): A(f'v_mov_b32 v{AO+8*t+r}, s30\nv_mov_b32 v{AO+8*t+r+1}, s31')
elif not opt['atrig']: op_loads(32, ' nt' if opt['ant'] else '')
A('L_nofirst:')
for n in range(12):
    if n >= opt['DWF']: A(f"s_waitcnt vmcnt({opt['DWF']-1})")
    A('s_mov_b32 m0, s61')
    A('buffer_load_dwordx4 v21, s[12:15], s60 offen nt lds')
    if n < 11: A(f's_add_u32 s60, s60, {8*1280}\ns_add_u32 s61, s61, 1024')
    if opt['atrig'] and n == opt['atrig'] - 1:
        A('s_cmp_lg_u32 s78, 0\ns_cbranch_scc1 L_nofirst2')
        op_loads(32, ' nt' if opt['ant'] else '')
        A('L_nofirst2:')
if opt['atrig'] == 15:
    A('s_cmp_lg_u32 s78, 0\ns_cbranch_scc1 L_s2')
    op_loads(32, ' nt' if opt['ant'] else '')
    A('s_waitcnt vmcnt(10)\ns_branch L_s3\nL_s2:\ns_waitcnt vmcnt(4)\nL_s3:')
else: A('s_waitcnt vmcnt(4)')
if opt['atrig'] == 14:
    A('s_cmp_lg_u32 s78, 0\ns_cbranch_scc1 L_s2')
    op_loads(32, ' nt' if opt['ant'] else '')
    A('L_s2:')
wo_tr([0, 1])
if opt['atrig'] >= 14: A('s_cmp_lg_u32 s78, 0\ns_cbranch_scc1 L_second\ns_waitcnt vmcnt(6) lgkmcnt(0)\ns_branch L_both\nL_second:')
elif opt['atrig'] != 13: A('s_cmp_lg_u32 s78, 0\ns_cbranch_scc1 L_second\ns_waitcnt vmcnt(0) lgkmcnt(0)\ns_branch L_both\nL_second:')
lds_wait_ge(CNT + 28, 1, 1)
A(f"s_waitcnt vmcnt({opt['opw']})")
op_loads(32)
A('s_waitcnt vmcnt(6)\nL_both:')
wo_tr([2])
stamp(6)
def body():
    op_loads(16)
    A('L_opw:')
    for t in range(3):
        A(f's_waitcnt vmcnt({4-2*t})' + (' lgkmcnt(0)' if t == 2 else ''))
        q = AO + 8 * t
        fill = [[f"v_cmp_ne_u64 {'vcc' if t == 0 else 's[20:21]'}, s[30:31], v[{q}:{q+1}]", f'v_cmp_ne_u64 s[22:23], s[30:31], v[{q+6}:{q+7}]'],
                ([] if t == 0 else ['s_or_b64 vcc, vcc, s[20:21]']) + ['s_or_b64 vcc, vcc, s[22:23]'], [], []]
        for u in range(4):
            r = BW + 4 * (4 * t + u)
            c = '0' if t == 0 else f'v[{32+4*u}:{35+4*u}]'
            A(f'v_mfma_f32_16x16x32_bf16 v[{32+4*u}:{35+4*u}], v[{q+2}:{q+5}], v[{r}:{r+3}], {c}')
            for l in fill[u]: A(l)
spin2(body, local_only=True, entry='L_opw')
stamp(7)
if opt['w2t'] == 0: A(f'ds_write_b32 v25, v23 offset:{OKF}')
for u in range(4):
    A(f'v_mul_f32 v{4+u}, v{32+4*u}, v{CF}')
    for r in range(1, 4): A(f'v_fmac_f32 v{4+u}, v{32+4*u+r}, v{CF+r}')
A(f'''
{S32} v4, v6
{S32} v5, v7
v_add_f32 v4, v4, v6
v_add_f32 v5, v5, v7
{S16} v4, v5
v_add_f32 v4, v4, v5
ds_write_b32 v61, v4 offset:{RL}
''')
if opt['tk']:
    A(f'''
s_mov_b64 exec, 1
ds_add_rtn_u32 v8, v1, v23 offset:{CNT+32}
s_mov_b64 exec, -1
ds_read_b32 v4, v62 offset:{RL}
ds_read_b32 v5, v62 offset:{RL+256}
ds_read_b32 v6, v62 offset:{RL+512}
ds_read_b32 v7, v62 offset:{RL+768}
s_waitcnt lgkmcnt(0)
v_readfirstlane_b32 s68, v8
v_add_f32 v4, v4, v5
v_add_f32 v6, v6, v7
s_cmp_lg_u32 s68, 3
v_add_f32 v4, v4, v6
s_cbranch_scc1 L_ydone
v_mov_b32_dpp v5, v4 quad_perm:[1,0,3,2] {DPPM}
v_cvt_pk_bf16_f32 v4, v4, v5
v_mov_b32_dpp v48, v4 quad_perm:[0,0,0,0] {DPPM}
v_mov_b32_dpp v49, v4 quad_perm:[2,2,2,2] {DPPM}
s_mov_b64 exec, s[8:9]
buffer_store_dwordx4 v[48:51], v63, s[24:27], s75 offen sc1
s_mov_b64 exec, -1
L_ydone:
s_barrier
''')
    stamp(5)
    A('s_sub_u32 s68, s3, 1\ns_cmp_lt_u32 s68, 2\ns_cbranch_scc1 L_post_wo\nL_wo_out:\ns_barrier')
    if STAMPS:
        A('s_cmp_lg_u32 s3, 0\ns_cbranch_scc1 L_end')
        write_stamps(0)
    A('s_endpgm')
else:
    A(f'''
s_cmp_lg_u32 s3, 0
s_waitcnt lgkmcnt(0)
s_barrier
s_cbranch_scc1 L_post_wo
ds_read_b32 v5, v62 offset:{RL+256}
ds_read_b32 v6, v62 offset:{RL+512}
ds_read_b32 v7, v62 offset:{RL+768}
s_waitcnt lgkmcnt(0)
v_add_f32 v4, v4, v5
v_add_f32 v6, v6, v7
v_add_f32 v4, v4, v6
v_mov_b32_dpp v5, v4 quad_perm:[1,0,3,2] {DPPM}
v_cvt_pk_bf16_f32 v4, v4, v5
v_mov_b32_dpp v48, v4 quad_perm:[0,0,0,0] {DPPM}
v_mov_b32_dpp v49, v4 quad_perm:[2,2,2,2] {DPPM}
''')
    A('s_mov_b64 exec, s[8:9]')
    A('buffer_store_dwordx4 v[48:51], v63, s[24:27], s75 offen sc1')
    stamp(5)
    A('s_barrier')
    if opt['wb'] & 2: A('s_cmp_lg_u32 s5, 19\ns_cbranch_scc1 L_end\nbuffer_wbl2 sc1')
    write_stamps(0)
    A('s_endpgm')
A('L_helper_exit:')
if STAMPS:
    A('s_cmp_lg_u32 s3, 0\ns_cbranch_scc1 L_end')
    write_stamps(0)
A('s_endpgm')

B1R = 64
DR = 16
pad(2)
A('L_f1:')
srd(12, 48, 640 * 1536 * 2); srd(16, 50, 640 * 1536 * 2)
A(f"""
s_sub_u32 s74, s5, 20
v_lshrrev_b32 v3, 4, v0
v_and_b32 v2, 7, v0
v_lshrrev_b32 v62, 3, v0
v_mul_u32_u24 v62, 3072, v62
v_lshl_add_u32 v62, v2, 4, v62
s_lshl3_add_u32 s61, s74, s73
s_mul_i32 s61, s61, {8*3072}
s_mul_i32 s68, s4, 384
s_add_u32 s61, s61, s68
s_add_u32 s62, s61, 128
s_add_u32 s63, s61, 256
s_lshl_b32 s79, s73, 10
s_add_u32 s79, s79, {WL}
v_mov_b32 v57, 0
v_mov_b32 v6, s30
v_mov_b32 v7, s31
""")
lds_wait_ge(CNT + 28, 1, 1)
for nbl in range(3):
    for m in range(2):
        A(f's_add_u32 m0, s79, {(m*3 + nbl)*8192}')
        A(f'buffer_load_dwordx4 v62, s[{12+4*m}:{15+4*m}], s{61+nbl} offen nt lds')
A('s_setprio 3\ns_cmp_gt_u32 s73, 1\ns_cbranch_scc1 L_f1m')
get_pref(1)
A(f"""
s_lshl1_add_u32 s74, s74, s73
v_lshl_add_u32 v61, v2, 2, v3
v_lshlrev_b32 v61, 1, v61
s_lshl_b32 s68, s74, 6
v_add_u32 v61, s68, v61
global_load_ushort v56, v61, s[36:37]
v_lshlrev_b32 v54, 5, v3
v_lshl_add_u32 v54, v2, 2, v54
v_lshlrev_b32 v55, 4, v0
s_lshl_b32 s72, s4, 9
s_lshl4_add_u32 s72, s74, s72
s_add_u32 s72, s72, {PS}
s_mul_i32 s75, s4, 20
s_add_u32 s75, s75, s74
s_lshl_b32 s75, s75, 7
s_add_u32 s75, s75, {PH}
""")
YPRE = 'v_lshlrev_b32 v107, 7, v0\ns_mov_b64 exec, 0xffff\nbuffer_load_dword v106, v107, s[24:27], s60 offen sc1\ns_mov_b64 exec, -1' if opt['ypre'] == 1 else ''
A(f"""
s_mov_b64 exec, 1
buffer_load_dword v104, v54, s[32:35], s75 offen sc1
buffer_load_dword v105, v55, s[32:35], s72 offen sc1
s_mov_b64 exec, -1
s_lshr_b32 s60, s74, 2
s_lshl_b32 s60, s60, 14
s_and_b32 s68, s74, 3
s_lshl_b32 s68, s68, 11
s_add_u32 s60, s60, s68
s_lshr_b32 s68, s47, s4
s_and_b32 s68, s68, 1
s_lshl_b32 s68, s68, 13
s_add_u32 s60, s60, s68
s_add_u32 s60, s60, {YP}
v_lshlrev_b32 v51, 4, v3
v_lshl_add_u32 v51, v2, 1, v51
v_and_b32 v4, 1, v0
v_mul_u32_u24 v4, 126, v4
v_add_u32 v51, v51, v4
s_lshl_b32 s68, s73, 6
v_add_u32 v51, s68, v51
s_mov_b32 s77, 0x3f80
s_mov_b32 s71, 0x3f800000
v_mov_b32 v14, s30
v_mov_b32 v15, s31
v_mov_b32 v8, 0
v_mov_b32 v9, 0
v_mov_b32 v10, 0
v_mov_b32 v11, 0
v_not_b32 v98, s30
v_not_b32 v102, s30
{YPRE}
s_waitcnt vmcnt({3 if opt['ypre'] == 1 else 2})
s_barrier
v_lshlrev_b32 v56, 16, v56
""")
stamp(6)
YL = ['buffer_load_dwordx4 v[96:99], v55, s[24:27], s60 offen sc1', 'buffer_load_dwordx4 v[100:103], v55, s[24:27], s60 offen offset:1024 sc1']
if opt['fry']:
    A(f"""
s_mov_b32 s70, {SPIN}
s_mov_b64 s[20:21], -1
s_mov_b64 s[22:23], -1
L_ypoll:
s_mov_b64 exec, s[20:21]
{YL[0]}
s_mov_b64 exec, s[22:23]
{YL[1]}
s_mov_b64 exec, -1
""")
    for k in range(opt['fry']):
        A('v_cmp_ne_u64 s[20:21], s[30:31], v[98:99]\nv_cmp_ne_u64 s[22:23], s[30:31], v[102:103]\ns_or_b64 vcc, s[20:21], s[22:23]\ns_cbranch_scc0 L_yok')
    A('s_waitcnt vmcnt(16)\ns_sub_u32 s70, s70, 1\ns_cbranch_scc0 L_ypoll\nL_yok:')
else:
    def body():
        A(YL[0]); A(YL[1])
        A('s_waitcnt vmcnt(0)')
        tagcheck([98, 102])
    spin(body)
stamp(1)
for r in (96, 100):
    A(f'v_dot2c_f32_bf16 v8, s77, v{r}\nv_dot2c_f32_bf16 v10, s77, v{r+1}\nv_dot2c_f32_bf16 v9, s71, v{r}\nv_dot2c_f32_bf16 v11, s71, v{r+1}')
A(f"""
{S32} v8, v10
{S32} v9, v11
v_add_f32 v8, v8, v10
v_add_f32 v9, v9, v11
{S16} v8, v9
v_add_f32 v8, v8, v9
v_add_f32_dpp v8, v8, v8 row_ror:8 {DPPM}
v_cvt_pk_bf16_f32 v8, v57, v8
v_add_f32 v12, v8, v56
v_mov_b32_dpp v13, v12 quad_perm:[1,0,3,2] {DPPM}
v_cvt_pk_bf16_f32 v12, v12, v13
ds_write_b32 v51, v12 offset:{RL}
v_lshlrev_b32 v4, 16, v12
v_mul_f32 v5, v4, v4
""")
allreduce8('v_add_f32', [4, 5])
A('s_waitcnt lgkmcnt(0)\ns_barrier')
A(f'v_mov_b32_dpp v13, v12 quad_perm:[2,3,2,3] {DPPM}')
allreduce_rows('v_add_f32', [4, 5], [8, 9])
publish([(1, 'buffer_store_dwordx4 v[4:7], v55, @, s72 offen'),
         (0x0011001100110011, 'buffer_store_dwordx4 v[12:15], v54, @, s75 offen')])
if opt['wb'] & 4: A('s_cmp_lg_u32 s74, 0\ns_cbranch_scc1 L_end\nbuffer_wbl2 sc1')
stamp_val(18, 82, 83, True)
stamp_val(23, 92, 93, True)
A('s_endpgm')
pad(3)
A(f"""
L_f1m:
s_sub_u32 s68, s73, 2
s_lshr_b32 s78, s68, 1
s_and_b32 s69, s73, 1
v_lshlrev_b32 v58, 7, v3
v_bfe_u32 v4, v0, 2, 2
v_lshl_add_u32 v58, v4, 9, v58
v_and_b32 v4, 3, v0
v_lshl_add_u32 v58, v4, 3, v58
s_lshl_b32 s75, s78, 13
s_lshl_b32 s68, s69, 6
s_add_u32 s75, s75, s68
v_add_u32 v58, s75, v58
v_lshlrev_b32 v52, 4, v3
v_and_b32 v59, 1, v3
v_cmp_eq_u32 s[62:63], 1, v59
v_mul_u32_u24 v59, 3072, v59
v_bfe_u32 v4, v0, 3, 1
v_lshl_add_u32 v59, v4, 9, v59
v_lshl_add_u32 v59, v2, 4, v59
s_mul_i32 s76, s4, 3
s_add_u32 s76, s76, s78
s_lshl1_add_u32 s76, s76, s69
s_mul_i32 s76, s76, 6144
s_lshr_b32 s68, s74, 2
s_lshl_b32 s68, s68, 10
s_add_u32 s76, s76, s68
s_and_b32 s68, s74, 3
s_lshl_b32 s68, s68, 7
s_add_u32 s76, s76, s68
s_add_u32 s77, s76, {CB}
s_add_u32 s76, s76, {PA}
v_mov_b32 v8, 0x3f803f80
v_mov_b32 v9, 0x3f803f80
v_mov_b32 v10, 0x3f803f80
v_mov_b32 v11, 0x3f803f80
v_mov_b32 v34, s30
v_mov_b32 v35, s31
s_waitcnt vmcnt(0)
s_barrier
""")
for kk in range(2):
    for m in range(2):
        for u in range(2):
            r = B1R + 4 * ((kk * 2 + m) * 2 + u)
            o = WL + m * 24576 + kk * 4096 + 32 * u
            A(f'ds_read_b64_tr_b16 v[{r}:{r+1}], v58 offset:{o}')
            A(f'ds_read_b64_tr_b16 v[{r+2}:{r+3}], v58 offset:{o + 2048}')
def f1_mfma(kk, a):
    for k in range(4):
        c = f'v[{DR+4*k}:{DR+3+4*k}]' if kk else '0'
        A(f'v_mfma_f32_16x16x32_bf16 v[{DR+4*k}:{DR+3+4*k}], v[{a}:{a+3}], v[{B1R+16*kk+4*k}:{B1R+16*kk+4*k+3}], {c}')
def f1_select(d):
    A(f'v_cndmask_b32 v{d}, v{DR}, v{DR+4}, s[62:63]\nv_cndmask_b32 v{d+1}, v{DR+8}, v{DR+12}, s[62:63]')
A('s_waitcnt lgkmcnt(0)')
f1_mfma(0, 8); f1_mfma(1, 8)
f1_select(32)
publish([(0xffffffff, 'buffer_store_dwordx4 v[32:35], v59, @, s77 offen')])
A(f"""
s_barrier
ds_read_b128 v[8:11], v52 offset:{RL}
ds_read_b128 v[12:15], v52 offset:{RL+64}
s_waitcnt lgkmcnt(1)
""")
f1_mfma(0, 8)
A('s_waitcnt lgkmcnt(0)')
f1_mfma(1, 12)
f1_select(4)
publish([(0xffffffff, 'buffer_store_dwordx4 v[4:7], v59, @, s76 offen')])
if STAMPS:
    A('s_cmp_eq_u32 s3, 11\ns_cbranch_scc1 L_end')
    stamp_now(11, True)
A('s_endpgm')

pad(4)
A('L_post_wo:')
A("""
s_cmp_gt_u32 s5, 11
s_cbranch_scc1 L_end
s_cmp_eq_u32 s3, 3
s_cbranch_scc1 L_end
v_mov_b32 v57, 0
s_cmp_eq_u32 s3, 1
s_cbranch_scc1 L_hid
s_barrier
""")
A(f"""
s_and_b32 s68, s4, 1
s_lshl_b32 s68, s68, 2
s_sub_u32 s68, 12, s68
s_cmp_ge_u32 s5, s68
s_cbranch_scc1 L_end
s_mul_i32 s72, s4, 5
s_add_u32 s72, s72, 1
s_lshr_b32 s72, s72, 1
s_lshr_b32 s68, s5, 2
s_add_u32 s72, s72, s68
s_and_b32 s73, s5, 3
v_lshrrev_b32 v2, 1, v0
v_lshlrev_b32 v2, 7, v2
v_and_b32 v3, 1, v0
v_lshl_add_u32 v96, v3, 4, v2
s_lshl_b32 s10, s72, 15
s_lshr_b32 s68, s47, s4
s_and_b32 s68, s68, 1
s_lshl_b32 s68, s68, 13
s_add_u32 s10, s10, s68
s_lshl_b32 s68, s73, 5
s_add_u32 s10, s10, s68
s_add_u32 s10, s10, {FP}
s_add_u32 s11, s10, 4096
s_add_u32 s12, s10, 16384
v_lshrrev_b32 v4, 4, v0
v_lshl_add_u32 v97, v3, 2, v4
v_lshlrev_b32 v97, 1, v97
v_lshlrev_b32 v99, 5, v4
s_and_b32 s68, s73, 1
s_lshl_b32 s68, s68, 5
v_lshl_add_u32 v98, v3, 4, s68
s_mul_i32 s13, s4, 20
s_add_u32 s13, s13, s72
s_lshl_b32 s13, s13, 7
s_lshr_b32 s68, s73, 1
s_lshl4_add_u32 s13, s68, s13
s_add_u32 s13, s13, {PH}
s_lshl2_add_u32 s14, s72, s73
s_lshl_b32 s14, s14, 4
s_mov_b32 s8, 0x30003
s_mov_b32 s9, 0x30003
s_mov_b32 s77, 0x3f80
s_mov_b32 s71, 0x3f800000
v_mov_b32 v8, 0
v_mov_b32 v9, 0
v_mov_b32 v10, 0
v_mov_b32 v11, 0
""")
FS = 16
srd(64, 54, 1280)
if opt['outpre']:
    A(f"s_mov_b64 exec, 1\nbuffer_load_dword v30, v57, s[64:67], s14 offen{['', '', ' sc1', ' nt'][opt['outpre']]}\ns_mov_b64 exec, -1")
A('s_setprio 0')
lds_wait_ge(HRDY, 1, opt['hsleep'])
if opt['fsleep']: A(f"s_sleep {opt['fsleep']}")
def body():
    A('buffer_load_dwordx4 v[4:7], v99, s[16:19], s13 offen sc1')
    for n in range(3):
        r = FS + 4 * n
        A(f'buffer_load_dwordx4 v[{r}:{r+3}], v96, s[24:27], s{10+n} offen sc1')
    A('s_waitcnt vmcnt(0)')
    tagcheck([6, FS + 2, FS + 6, FS + 10])
spin2(body, local_only=True)
A('L_finc:')
stamp(5)
for n in range(3):
    r = FS + 4 * n
    A(f'v_dot2c_f32_bf16 v8, s77, v{r}\nv_dot2c_f32_bf16 v10, s77, v{r+1}\nv_dot2c_f32_bf16 v9, s71, v{r}\nv_dot2c_f32_bf16 v11, s71, v{r+1}')
A(f"""
v_lshrrev_b64 v[58:59], v98, v[4:5]
{S32} v8, v10
{S32} v9, v11
v_add_f32 v8, v8, v10
v_add_f32 v9, v9, v11
v_lshlrev_b32 v58, 16, v58
{S16} v8, v9
v_add_f32 v8, v8, v9
v_add_f32_dpp v8, v8, v8 row_ror:8 {DPPM}
v_add_f32_dpp v8, v8, v8 row_ror:4 {DPPM}
v_add_f32_dpp v8, v8, v8 quad_perm:[2,3,0,1] {DPPM}
v_cvt_pk_bf16_f32 v8, v57, v8
v_add_f32 v8, v8, v58
v_cvt_pk_bf16_f32 v8, v8, v8
""")
A('s_mov_b64 exec, s[8:9]')
if opt['dry'] & 2: A('s_cbranch_execz L_end')
A(f"""
buffer_store_short v8, v97, s[64:67], s14 offen{['', ' sc1', ' sc0 sc1', ' nt'][opt['outfl']]}
s_cmp_lg_u32 s14, 0
s_cbranch_scc1 L_fin_exit
s_mov_b64 exec, 1
v_mov_b32 v4, s30
v_mov_b32 v5, s31
s_mov_b32 s68, {EP}
buffer_store_dwordx2 v[4:5], v57, s[24:27], s68 offen
L_fin_exit:
""")
if opt['endst']:
    A(f's_memrealtime s[82:83]\ns_mov_b64 exec, 1\ns_add_u32 s68, s14, {0x390000}\ns_waitcnt lgkmcnt(0)\nv_mov_b32 v4, s82\nv_mov_b32 v5, s83\nbuffer_store_dwordx2 v[4:5], v57, s[24:27], s68 offen')
if opt['dbg']:
    A(f'''
s_cmp_lg_u32 s14, 0
s_cbranch_scc1 L_end
s_mov_b64 exec, -1
ds_read_b32 v4, v57 offset:{CNT+36}
s_memrealtime s[82:83]
s_waitcnt lgkmcnt(0)
v_readfirstlane_b32 s85, v4
{'s_mov_b32 s84, s85' if opt['dbgs'] else 's_sub_u32 s84, s82, s85'}
v_mov_b32 v4, s84
global_store_dword v57, v4, s[56:57]
s_mul_i32 s84, s84, {opt['dbg']}
s_min_u32 s84, s84, 40000
L_dbgspin:
s_memrealtime s[86:87]
s_waitcnt lgkmcnt(0)
s_sub_u32 s86, s86, s82
s_cmp_lt_u32 s86, s84
s_cbranch_scc1 L_dbgspin
''')
if STAMPS:
    A('s_waitcnt vmcnt(0)')
    stamp(7)
    write_stamps(8)
A('s_endpgm')

pad(5)
A('L_hid:')
M2 = 0x0000ffff0000ffff
A(f"""
s_mul_i32 s72, s4, 12
s_add_u32 s72, s72, s5
v_lshrrev_b32 v4, 5, v0
v_and_b32 v2, 7, v0
v_lshl_add_u32 v62, v4, 3, v2
v_lshlrev_b32 v62, 1, v62
v_lshlrev_b32 v63, 2, v2
v_lshlrev_b32 v60, 4, v0
v_and_b32 v3, 31, v0
v_lshlrev_b32 v61, 4, v3
s_lshl_b32 s65, s4, 9
s_add_u32 s65, s65, {PS}
s_mul_i32 s60, s72, 3072
s_add_u32 s62, s60, {CB}
s_add_u32 s60, s60, {PA}
s_mov_b32 s8, 0xfffff
s_mov_b32 s9, 0xfffff
s_mov_b32 s10, 0xffff
s_mov_b32 s11, 0xffff
v_mov_b32 v59, 1
""")
for r in (24, 136, 140): A(f'v_mov_b32 v{r}, 0\nv_mov_b32 v{r+1}, 0\nv_mov_b32 v{r+2}, s30\nv_mov_b32 v{r+3}, s31')
def loads3(r, srdn, so, fl=''):
    A(f'buffer_load_dwordx4 v[{r}:{r+3}], v60, s[{srdn}:{srdn+3}], s{so} offen sc1' + fl)
    A(f'buffer_load_dwordx4 v[{r+4}:{r+7}], v60, s[{srdn}:{srdn+3}], s{so} offen offset:1024 sc1' + fl)
    A(f's_mov_b64 exec, s[10:11]\nbuffer_load_dwordx4 v[{r+8}:{r+11}], v60, s[{srdn}:{srdn+3}], s{so} offen offset:2048 sc1{fl}\ns_mov_b64 exec, -1')
def issue_s(srdn=32):
    A(f's_mov_b64 exec, s[8:9]\nbuffer_load_dwordx4 v[140:143], v61, s[{srdn}:{srdn+3}], s65 offen sc1\ns_mov_b64 exec, -1')
def issue_p(srdn=32): loads3(128, srdn, 60)
def poll(issue, check, n, bound=None):
    slow = newlabel('pslow'); ok = newlabel('pok')
    check()
    A(f's_nop 0\ns_cbranch_vccz {ok}')
    A(f's_cmp_lg_u32 s46, 1\ns_cbranch_scc1 {slow}')
    freepoll(issue, check, n, ok, bound)
    mark = len(A.lines)
    A(f'{slow}:')
    def body():
        issue(16); A('s_waitcnt vmcnt(0)'); check()
    spin2(body, local_only=True)
    if opt['ool']:
        A(f's_branch {ok}')
        outline.append('\n'.join(A.lines[mark:])); del A.lines[mark:]
    A(f'{ok}:')
    return ok
def body():
    loads3(16, 16, 62)
    issue_p(16); issue_s(16)
    A('s_waitcnt vmcnt(0)')
    tagcheck([18, 22, 26])
if opt['frc']:
    for r in (18, 22, 130, 134): A(f'v_not_b32 v{r}, s30')
    A('s_mov_b64 exec, s[10:11]\nv_not_b32 v26, s30\nv_not_b32 v138, s30\ns_mov_b64 exec, s[8:9]\nv_not_b32 v142, s30\ns_mov_b64 exec, -1')
A('s_barrier')
if opt['frc']:
    def issue_all(srdn=32):
        loads3(16, srdn, 62, ' nt' if opt['hnt'] & 1 else ''); issue_s(srdn); loads3(128, srdn, 60, ' nt' if opt['hnt'] & 2 else '')
    poll(issue_all, lambda: tagcheck([18, 22, 26]), opt['frc'], opt['frcb'])
else: spin2(body, local_only=True)
A('v_pk_add_f32 v[40:41], v[16:17], v[20:21]\nv_pk_add_f32 v[40:41], v[40:41], v[24:25]')
for r in (40, 41): A(f'v_add_f32_dpp v{r}, v{r}, v{r} row_ror:8 {DPPM}')
swapreduce(S16, 'v_add_f32', [40, 41], [42, 43])
poll(issue_s, lambda: tagcheck([142]), opt['frs'])
A('s_cmp_lg_u32 s46, 1\ns_cbranch_scc1 L_nopre')
issue_p()
A('L_nopre:')
A(f"""
v_add_f32_dpp v36, v140, v140 quad_perm:[1,0,3,2] {DPPM}
v_add_f32_dpp v37, v141, v141 quad_perm:[1,0,3,2] {DPPM}
v_add_f32_dpp v36, v36, v36 quad_perm:[2,3,0,1] {DPPM}
v_add_f32_dpp v37, v37, v37 quad_perm:[2,3,0,1] {DPPM}
v_add_f32_dpp v36, v36, v36 row_half_mirror {DPPM}
v_add_f32_dpp v37, v37, v37 row_half_mirror {DPPM}
v_add_f32_dpp v46, v36, v36 row_mirror {DPPM}
v_add_f32_dpp v47, v37, v37 row_mirror {DPPM}
v_add_f32_dpp v36, v36, v36 row_mirror {DPPM}
v_add_f32_dpp v37, v37, v37 row_mirror {DPPM}
{S16} v36, v46
{S16} v37, v47
v_pk_add_f32 v[36:37], v[36:37], v[46:47]
s_cbranch_scc1 L_nopre2
""")
issue_p()
A(f"""
L_nopre2:
v_mul_f32 v44, {f32(1.0/640)}, v36
v_mul_f32 v45, {f32(1.0/640)}, v37
v_fma_f32 v45, -v44, v44, v45
v_max_f32 v45, 0, v45
v_cvt_pk_bf16_f32 v45, v57, v45
v_cvt_pk_bf16_f32 v44, v57, v44
v_add_f32 v45, {f32(1e-5)}, v45
v_cvt_pk_bf16_f32 v45, v57, v45
v_sqrt_f32 v45, v45
v_mul_f32 v40, v44, v40
v_cvt_pk_bf16_f32 v45, v57, v45
v_rcp_f32 v45, v45
v_mul_f32 v41, v44, v41
""")
poll(issue_p, lambda: tagcheck([130, 134, 138]), opt['frp'])
A('L_hidc:')
stamp(7)
A(f"""
v_pk_add_f32 v[8:9], v[128:129], v[132:133]
v_pk_add_f32 v[8:9], v[8:9], v[136:137]
v_add_f32_dpp v10, v8, v8 row_ror:8 {DPPM}
v_add_f32_dpp v11, v9, v9 row_ror:8 {DPPM}
v_add_f32_dpp v8, v8, v8 row_ror:8 {DPPM}
v_add_f32_dpp v9, v9, v9 row_ror:8 {DPPM}
{S16} v8, v10
{S16} v9, v11
v_add_f32 v8, v8, v10
v_sub_f32 v8, v8, v40
v_mul_f32 v8, v8, v45
v_cvt_pk_bf16_f32 v8, v57, v8
v_mul_f32 v12, {f32(-LOG2E)}, v8
v_exp_f32 v12, v12
v_add_f32 v9, v9, v11
v_add_f32 v12, 1.0, v12
v_rcp_f32 v12, v12
v_sub_f32 v9, v9, v41
v_mul_f32 v9, v9, v45
v_mul_f32 v8, v8, v12
v_cvt_pk_bf16_f32 v9, v57, v9
v_cvt_pk_bf16_f32 v8, v57, v8
v_mul_f32 v8, v8, v9
v_cvt_pk_bf16_f32 v8, v8, v8
ds_write_b16 v62, v8 offset:{HID}
ds_write_b32 v63, v59 offset:{HRDY}
""")
if opt['wb'] & 1: A('s_cmp_lg_u32 s5, 0\ns_cbranch_scc1 L_end\nbuffer_wbl2 sc1')
stamp_val(17, 94, 95)
A('s_endpgm')

pad(6)
A('L_f2:')
W2R = 64
srd(8, 52, 1536 * 640 * 2)
get_pref(1, dst=16, adr=17)
A(f"""
s_mul_i32 s72, s4, 12
s_add_u32 s72, s72, s5
v_mov_b32 v57, 0
s_sub_u32 s68, s3, 7
s_lshl_b32 s69, s68, 8
v_lshlrev_b32 v58, 2, v0
v_add_u32 v58, s69, v58
v_lshrrev_b32 v2, 4, v0
v_lshl_add_u32 v2, s68, 2, v2
v_mul_u32_u24 v3, 52, v2
v_lshrrev_b32 v3, 8, v3
v_mul_u32_u24 v4, 5, v3
v_sub_u32 v4, v2, v4
v_cmp_lt_u32 vcc, 2, v4
v_lshlrev_b32 v3, 1, v3
v_addc_co_u32 v3, vcc, 0, v3, vcc
v_lshrrev_b32 v3, v3, s47
v_and_b32 v3, 1, v3
v_lshlrev_b32 v116, 15, v2
v_lshl_add_u32 v116, v3, 13, v116
v_bfe_u32 v3, v0, 1, 3
v_lshl_add_u32 v116, v3, 4, v116
s_lshr_b32 s79, s72, 6
s_lshl_b32 s79, s79, 14
s_and_b32 s68, s72, 63
s_lshl_b32 s68, s68, 7
s_add_u32 s79, s79, s68
s_add_u32 s79, s79, {FP}
s_mov_b32 s60, 0x05040100
s_mov_b32 s61, 0x07060302
s_mul_i32 s62, s72, 20480
""")
def w2_loads():
    for k in range(16):
        A(f'buffer_load_dword v{W2R+k}, v58, s[8:11], s62 offen offset:{1280*(k%3)} nt')
        if k % 3 == 2: A('s_add_u32 s62, s62, 3840')
if opt['w2dma']:
    A(f'''
v_lshrrev_b32 v2, 4, v0
v_mul_u32_u24 v2, 1280, v2
v_and_b32 v3, 15, v0
v_lshl_add_u32 v2, v3, 4, v2
s_add_u32 s62, s62, s69
s_lshl_b32 s63, s69, 4
v_lshlrev_b32 v3, 2, v0
v_add_u32 v3, s63, v3
s_add_u32 s63, s63, {WL}
''')
    if opt['w2t'] == 0:
        A('v_and_b32 v1, 3, v0\nv_lshlrev_b32 v1, 2, v1')
        def body():
            A(f'ds_read_b32 v4, v1 offset:{OKF}')
            A('s_waitcnt lgkmcnt(0)')
            A('v_cmp_eq_u32 vcc, 0, v4')
        spin(body)
    else: A('s_barrier')
    if opt['w2t'] == 2: A('s_barrier')
    for k in range(4):
        A(f's_add_u32 m0, s63, {1024*k}\nbuffer_load_dwordx4 v2, s[8:11], s62 offen nt lds\ns_add_u32 s62, s62, 5120')
    if opt['w2t'] == 0: A('s_barrier')
    if opt['w2t'] < 2: A('s_barrier')
    A('s_waitcnt vmcnt(0)')
    for k in range(16): A(f'ds_read_b32 v{W2R+k}, v3 offset:{WL + 256*k}')
    A('s_waitcnt lgkmcnt(0)')
else:
    A('s_barrier')
    w2_loads()
    A('s_barrier')
    A('s_waitcnt vmcnt(0)')
stamp(6)
for kp in range(8):
    A(f'v_perm_b32 v{80+kp}, v{W2R+2*kp+1}, v{W2R+2*kp}, s60')
    A(f'v_perm_b32 v{88+kp}, v{W2R+2*kp+1}, v{W2R+2*kp}, s61')
A(f"""
v_mov_b32 v16, 0
v_mov_b32 v17, 0
v_mov_b32 v18, 0
v_mov_b32 v19, 0
s_mov_b32 s66, 0x55555555
s_mov_b32 s67, 0x55555555
v_mov_b32 v6, s30
v_mov_b32 v7, s31
v_and_b32 v9, 15, v0
v_lshlrev_b32 v9, 2, v9
v_mov_b32 v8, 0
s_mov_b32 s64, 0xff00ff00
s_mov_b32 s65, 0xff00ff00
s_mov_b32 s70, {SPIN * 8}
s_waitcnt lgkmcnt(0)
L_f2poll:
ds_read_b32 v8, v9 offset:{HID}
s_waitcnt lgkmcnt(4)
v_cmp_eq_u32 vcc, 0, v8
s_sub_u32 s70, s70, 1
s_cbranch_scc1 L_f2go
s_and_b64 vcc, vcc, s[64:65]
s_cbranch_scc1 L_f2poll
L_f2go:
""")
for kp in range(8):
    A(f'v_dot2c_f32_bf16_dpp v{16+2*(kp&1)}, v8, v{80+kp} row_newbcast:{kp} {DPPM}')
    A(f'v_dot2c_f32_bf16_dpp v{17+2*(kp&1)}, v8, v{88+kp} row_newbcast:{kp} {DPPM}')
A('v_pk_add_f32 v[16:17], v[16:17], v[18:19]')
A(f"""
v_cvt_pk_bf16_f32 v4, v16, v17
v_mov_b32_dpp v5, v4 quad_perm:[1,0,3,2] {DPPM}
""")
A('s_mov_b64 exec, s[66:67]')
if opt['dry'] & 4: A('s_cbranch_execz L_end')
A('buffer_store_dwordx4 v[4:7], v116, s[24:27], s79 offen sc1')
if opt['wb'] & 8:
    A('s_lshl4_add_u32 s68, s5, s3\ns_cmp_lg_u32 s68, 11\ns_cbranch_scc1 L_end')
    if opt['wbs']: A(f"s_sleep {opt['wbs']}")
    A('buffer_wbl2 sc1')
if STAMPS:
    setexec(ALL)
    stamp_now(20, True)
    stamp_val(15, 92, 93, True)
A('L_end:')
A('s_endpgm')
A('L_spare:')
if opt['sp']:
    lds_wait_ge(CNT + 28, 1, 2)
    A('v_lshlrev_b32 v1, 7, v0\ns_sub_u32 s76, s5, 30')
    def ytouch():
        get_pref(1, dst=16, adr=17)
        A(f'''
s_lshl3_add_u32 s68, s76, s73
s_cmp_gt_u32 s68, 4
s_cbranch_scc1 L_noy
s_lshl_b32 s68, s68, 14
s_lshr_b32 s69, s47, s4
s_and_b32 s69, s69, 1
s_lshl_b32 s69, s69, 13
s_add_u32 s68, s68, s69
s_add_u32 s68, s68, {YP}
buffer_load_dword v8, v1, s[24:27], s68 offen sc1
L_noy:
''')
    if opt['ypre'] == 2: ytouch()
    if opt['sp'] & 2:
        A(f'''
s_lshl1_add_u32 s68, s4, s76
s_lshl3_add_u32 s68, s68, s73
s_mul_i32 s68, s68, 3072
s_add_u32 s68, s68, {OP}
s_mov_b64 exec, 0xffffff
buffer_load_dword v5, v1, s[32:35], s68 offen nt
s_waitcnt vmcnt(0)
buffer_load_dword v5, v1, s[32:35], s68 offen sc1
s_mov_b64 exec, -1
''')
    if opt['ypre'] == 3: ytouch()
    if opt['spd']: A(f"s_sleep {opt['spd']}")
    if opt['sp'] & 1:
        A(f'''
s_cmp_gt_u32 s73, 5
s_cbranch_scc1 L_nopa
s_mul_i32 s68, s4, 6
s_add_u32 s68, s68, s73
s_mul_i32 s68, s68, 6144
s_mul_i32 s69, s76, {CB - PA}
s_add_u32 s68, s68, s69
s_add_u32 s68, s68, {PA}
s_mov_b32 exec_lo, 0xff33ffff
s_mov_b32 exec_hi, 0x33ff
buffer_load_dword v4, v1, s[32:35], s68 offen nt
s_waitcnt vmcnt(0)
buffer_load_dword v4, v1, s[32:35], s68 offen sc1
s_mov_b64 exec, -1
L_nopa:
''')
    if opt['sp'] & 4:
        srd(8, 52, 1536 * 640 * 2)
        if opt['spd2']: A(f"s_sleep {opt['spd2']}")
        A(f'''
s_lshl1_add_u32 s68, s4, s76
s_lshl3_add_u32 s68, s68, s73
s_mul_i32 s68, s68, {120*128}
s_add_u32 s69, s68, {60*128}
s_mov_b32 exec_hi, 0xfffffff
buffer_load_dword v6, v1, s[8:11], s68 offen nt
buffer_load_dword v7, v1, s[8:11], s69 offen nt
''')
    A('s_endpgm')
else: A('s_branch L_stream_exit')
A('L_dry:')
if opt['dry']:
    srd(64, 54, 1280)
    A('''
v_mov_b32 v97, 0
v_mov_b32 v116, 0
v_mov_b32 v62, 0
v_mov_b32 v63, 0
s_mov_b32 s14, 16
s_mov_b32 s79, 0
s_mov_b64 s[8:9], 0
s_mov_b32 s46, 2
s_mov_b64 exec, 0
''')
    if opt['dry'] & 1: A('s_cmp_eq_u32 s3, 4\ns_cbranch_scc1 L_nopre')
    if opt['dry'] & 2: A('s_cmp_eq_u32 s3, 5\ns_cbranch_scc1 L_finc')
    if opt['dry'] & 4: A('s_mov_b64 s[66:67], 0\ns_cmp_eq_u32 s3, 6\ns_cbranch_scc1 L_f2go')
A('s_endpgm')
for blk in outline: A(blk)
A('L_codeend:')

A.raw('.section .rodata,"a"')
A.raw('.p2align 6')
A.raw(f'.amdhsa_kernel {NAME}_kernel')
A.raw('  .amdhsa_next_free_vgpr 168')
A.raw('  .amdhsa_next_free_sgpr 100')
A.raw('  .amdhsa_accum_offset 168')
A.raw('  .amdhsa_group_segment_fixed_size 0')
A.raw('  .amdhsa_kernarg_size 96')
A.raw('  .amdhsa_user_sgpr_count 2')
A.raw('  .amdhsa_user_sgpr_kernarg_segment_ptr 1')
A.raw('  .amdhsa_system_sgpr_workgroup_id_x 1')
A.raw('.end_amdhsa_kernel')
open(sys.argv[1], 'w').write(A.finalize())
```
